```python
import torch

def _softmax(x, axis=-1):
    return torch.softmax(x, dim=axis)
def _gelu(x):
    return torch.nn.functional.gelu(x, approximate="tanh")
def _silu(x):
    return torch.nn.functional.silu(x)
def _sigmoid(x):
    return torch.sigmoid(x)
def _layernorm(x, axis=-1, eps=1e-5):
    m = x.mean(dim=axis, keepdim=True)
    v = x.var(dim=axis, keepdim=True, unbiased=False)
    return (x - m) / torch.sqrt(v + eps)
def _scatter_add(tgt, idx, src, axis=0):
    return tgt.clone().index_add_(axis, idx, src)
def _segment_sum(src, seg, n):
    out = torch.zeros((n,) + src.shape[1:], dtype=src.dtype)
    return out.index_add_(0, seg, src)
def _pad(x, pw):
    flat = tuple(v for pair in reversed(pw) for v in pair)
    return torch.nn.functional.pad(x, flat)

kernel_name = 'gated_mix__linear_kernel_hedgehog__ssm_conv_s4d__prompt'

def setup_inputs():

    _w = (lambda a: (lambda t: t.to(torch.bfloat16) if t.is_floating_point() else t)(torch.as_tensor(a)))
    def _A_setup():
        B, S, D, H = 1, 2048, 512, 32
        Dh = D // H
        return {
            "x": _w((lambda *s: torch.randn(*s, dtype=torch.bfloat16) * 0.05)(B, S, D)),
            "wqkv": _w((lambda *s: torch.randn(*s, dtype=torch.bfloat16) * 0.8)(D, 3 * D)),
            "w_phi": _w((lambda *s: torch.randn(*s, dtype=torch.bfloat16) * 0.8)(H, Dh, Dh) * (Dh ** -0.5)),
            "wo": _w((lambda *s: torch.randn(*s, dtype=torch.bfloat16) * 0.05)(D, D)),
        }
    _A_in = _A_setup()

    def _B_setup():
        Bsz, L, D, N = 1, 2048, 512, 128
        return {
            "u": _w((lambda *s: torch.randn(*s, dtype=torch.bfloat16) * 0.05)(Bsz, L, D)),
            "log_A_real": _w((lambda *s: torch.randn(*s, dtype=torch.bfloat16) * 6.4)(D, N) * 0.5),
            "A_imag": _w((lambda *s: torch.randn(*s, dtype=torch.bfloat16) * 0.05)(D, N) * 3.14),
            "C_real": _w((lambda *s: torch.randn(*s, dtype=torch.bfloat16) * 0.2)(D, N) / N ** 0.5),
            "C_imag": _w((lambda *s: torch.randn(*s, dtype=torch.bfloat16) * 0.2)(D, N) / N ** 0.5),
            "log_dt": _w((lambda *s: torch.randn(*s, dtype=torch.bfloat16) * 0.05)(D) * 0.5 - 4.0),
            "D_skip": _w((lambda *s: torch.randn(*s, dtype=torch.bfloat16) * 0.05)(D)),
        }
    _B_in = _B_setup()

    return {
        "A_x": _A_in["x"],
        "A_wqkv": _A_in["wqkv"],
        "A_w_phi": _A_in["w_phi"],
        "A_wo": _A_in["wo"],
        "B_u": _B_in["u"],
        "B_log_A_real": _B_in["log_A_real"],
        "B_A_imag": _B_in["A_imag"],
        "B_C_real": _B_in["C_real"],
        "B_C_imag": _B_in["C_imag"],
        "B_log_dt": _B_in["log_dt"],
        "B_D_skip": _B_in["D_skip"],
        "gate_w": _w((lambda *s: torch.randn(*s, dtype=torch.bfloat16) * 0.05)(512) * 16.0),
    }

def reference(A_x, A_wqkv, A_w_phi, A_wo, B_u, B_log_A_real, B_A_imag, B_C_real, B_C_imag, B_log_dt, B_D_skip, gate_w):
    def _A_ref(x, wqkv, w_phi, wo):
        B, S, D = x.shape
        H = 32; Dh = D // H
        qkv = (lambda x, *d: x.permute(*d))((x @ wqkv).reshape(B, S, 3, H, Dh), 2, 0, 3, 1, 4)
        q, k, v = qkv[0], qkv[1], qkv[2]
        pq = torch.einsum("bhsd,hdf->bhsf", q, w_phi)
        pk = torch.einsum("bhsd,hdf->bhsf", k, w_phi)
        phi_q = torch.concatenate([_softmax(pq, axis=-1), _softmax(-pq, axis=-1)], axis=-1)
        phi_k = torch.concatenate([_softmax(pk, axis=-1), _softmax(-pk, axis=-1)], axis=-1)
        kv = torch.einsum("bhsf,bhsd->bhfd", phi_k, v)
        z  = torch.einsum("bhsf->bhf", phi_k)
        num = torch.einsum("bhqf,bhfd->bhqd", phi_q, kv)
        den = torch.einsum("bhqf,bhf->bhq", phi_q, z)[..., None] + 1e-6
        o = num / den
        return (lambda x, *d: x.permute(*d))(o, 0, 2, 1, 3).reshape(B, S, D) @ wo

    def _B_ref(u, log_A_real, A_imag, C_real, C_imag, log_dt, D_skip):
        L = u.shape[1]
        dt = torch.exp(log_dt)
        A = -torch.exp(log_A_real) + 1j * A_imag
        C = (C_real + 1j * C_imag) * dt[:, None]
        pos = (lambda x, dt: x.to(dt))(torch.arange(L), log_dt.dtype)
        P = torch.exp((A * dt[:, None])[:, :, None] * pos[None, None, :])
        K = 2.0 * torch.einsum("dn,dnl->dl", C, P).real
        L2 = 2 * L
        u_t = (lambda x, *d: x.permute(*d))(u, 0, 2, 1)
        Kf = (lambda x, *a, **k: torch.fft.rfft(x.float(), *a, **k))(K, L2)
        Uf = (lambda x, *a, **k: torch.fft.rfft(x.float(), *a, **k))(u_t, L2)
        y = (lambda x, *a, **k: torch.fft.irfft(x, *a, **k).to(torch.bfloat16))(Uf * Kf[None, :, :], L2)[:, :, :L]
        y = (lambda x, *d: x.permute(*d))(y, 0, 2, 1)
        return y + u * D_skip[None, None, :]

    x = A_x
    g = _sigmoid((x * gate_w).sum(-1, keepdims=True))
    a = _A_ref(x, A_wqkv, A_w_phi, A_wo)
    b = _B_ref(x, B_log_A_real, B_A_imag, B_C_real, B_C_imag, B_log_dt, B_D_skip)
    return g * a + (1 - g) * b
```

```python
import sys
sys.path.insert(0,"gen")
import importlib
from common import *
import io, contextlib
def build(parts, launches, path):
    hdr = open("gated_mix__linear_kernel_hedgehog__ssm_conv_s4d__prompt.s.ref").read().split("\n")
    hdr = [l for l in hdr if l.startswith(";") and "@launch" not in l and "Override launch" not in l and "grid=ceil" not in l]
    txt = "\n".join(hdr)+"\n"
    for (name,grid,block,lds) in launches:
        txt += f"; @launch kernel={name} grid=({grid},1,1) block=({block},1,1) lds={lds}\n"
    txt += '.amdgcn_target "amdgcn-amd-amdhsa--gfx950"\n.text\n'
    for p in parts: txt += p
    open(path,"w").write(txt)
```

```python
WS_PHI = 0
WS_B   = 4<<20
WS_WO  = 6<<20
WS_KV  = (6<<20) + (512<<10)
WS_G   = WS_KV + (128<<10)
WS_SIZE= 8<<20
KVH = 2176
KA = dict(x=0, wqkv=8, wphi=16, wo=24, u=32, lA=40, Ai=48, Cr=56, Ci=64, ldt=72, Ds=80, gw=88, out=96, dbg=104, ws=112)
def kd(name, vgpr, sgpr, accum):
    return f"""
.section .rodata,"a"
.p2align 6
.amdhsa_kernel {name}
  .amdhsa_next_free_vgpr {vgpr}
  .amdhsa_next_free_sgpr {sgpr}
  .amdhsa_accum_offset {accum}
  .amdhsa_group_segment_fixed_size 0
  .amdhsa_kernarg_size 120
  .amdhsa_user_sgpr_count 2
  .amdhsa_user_sgpr_kernarg_segment_ptr 1
  .amdhsa_system_sgpr_workgroup_id_x 1
.end_amdhsa_kernel
.text
"""
def head(name):
    return f""".globl {name}
.p2align 8
.type {name},@function
{name}:
"""
```

```python
import re

TRANS = ("v_exp_f32","v_log_f32","v_rcp_f32","v_rsq_f32","v_sqrt_f32","v_sin_f32","v_cos_f32","v_rcp_iflag_f32")
RMW_DST = ("v_fmac_f32","v_dot2c_f32_bf16","v_pk_fmac_f16","v_writelane_b32","v_mac_f32")
MFMA_PASSES = {"32x32x16":8,"16x16x32":4,"16x16x16":4,"32x32x8":8}
T_C_OVER = {2:4,4:6,8:10,16:18}
T_AB = {2:5,4:8,8:12,16:20}
T_VALU = {2:5,4:8,8:12,16:20}
T_WAR_C = {2:1,4:3,8:7,16:15}

def split_ops(s):
    out=[]; depth=0; cur=""
    for ch in s:
        if ch in "[(": depth+=1
        if ch in "])": depth-=1
        if ch=="," and depth==0:
            out.append(cur.strip()); cur=""
        else: cur+=ch
    if cur.strip(): out.append(cur.strip())
    return out

REG = re.compile(r"^-?\|?(abs\()?([vas])(\d+)\)?\|?$")
RNG = re.compile(r"^-?([vas])\[(\d+):(\d+)\]$")
def regs_of(tok):
    tok=tok.strip()
    m=REG.match(tok)
    if m: return [(m.group(2),int(m.group(3)))]
    m=RNG.match(tok)
    if m: return [(m.group(1),i) for i in range(int(m.group(2)),int(m.group(3))+1)]
    if tok=="vcc": return [("s","vcc")]
    if tok in("vcc_lo","vcc_hi"): return [("s","vcc")]
    if tok=="exec": return [("s","exec")]
    if tok in("exec_lo","exec_hi"): return [("s","exec")]
    if tok=="m0": return [("s","m0")]
    return []

class Ins:
    __slots__=("text","mn","ops","mods","reads","writes","cls","passes","srcC","srcAB","dpp","nstates","sgpr_const_reads","wide_store","lds_dma")
    def __init__(s,text):
        s.text=text
        t=text.split(";")[0].strip()
        parts=t.split(None,1)
        s.mn=parts[0]
        rest=parts[1] if len(parts)>1 else ""
        ops=split_ops(rest)
        mods=""
        if ops:
            last=ops[-1].split()
            if len(last)>1:
                ops[-1]=last[0]; mods=" ".join(last[1:])
        s.ops=ops; s.mods=mods
        s.reads=set(); s.writes=set(); s.passes=0; s.srcC=set(); s.srcAB=set(); s.dpp=False
        s.nstates=1; s.sgpr_const_reads=set(); s.wide_store=set(); s.lds_dma=False
        mn=s.mn
        base=re.sub(r"_(e32|e64|dpp|sdwa)$","",mn)
        R=lambda i: set(regs_of(ops[i])) if i<len(ops) else set()
        allr=lambda a: set().union(*[R(i) for i in range(a,len(ops))]) if len(ops)>a else set()
        if mn=="s_nop":
            s.cls="nop"; s.nstates=int(ops[0],0)+1; return
        if mn in("s_waitcnt","s_barrier","s_endpgm","s_branch","s_setprio","s_sleep") or mn.startswith("s_cbranch"):
            s.cls="ctl"
            if mn in("s_cbranch_vccz","s_cbranch_vccnz"): s.reads={("s","vcc")}
            if mn in("s_cbranch_execz","s_cbranch_execnz"): s.reads={("s","exec")}
            if mn in("s_cbranch_scc0","s_cbranch_scc1"): s.reads={("s","scc")}
            return
        if mn.startswith("s_load") or mn in("s_memtime","s_memrealtime"):
            s.cls="smem"; s.writes=R(0); s.reads=R(1) if mn.startswith("s_load") else set(); return
        if mn.startswith("s_"):
            s.cls="salu"
            if mn.startswith("s_cmp") or mn.startswith("s_bitcmp"):
                s.reads=allr(0); s.writes={("s","scc")}
            elif "saveexec" in mn:
                s.writes=R(0)|{("s","exec"),("s","scc")}; s.reads=R(1)|{("s","exec")}
            elif mn.startswith("s_getpc"):
                s.writes=R(0)
            elif mn.startswith("s_setpc"):
                s.reads=R(0)
            elif mn.startswith("s_getreg"):
                s.writes=R(0)
            else:
                s.writes=R(0); s.reads=allr(1)
                if mn.startswith(("s_addc","s_subb","s_cselect","s_cmov")): s.reads|={("s","scc")}
                if mn.startswith(("s_addk","s_mulk","s_cmov")): s.reads|=R(0)
                if not mn.startswith(("s_mov","s_cselect","s_mul","s_movk","s_cmov","s_bfm","s_brev")): s.writes|={("s","scc")}
            return
        if mn.startswith("v_mfma"):
            s.cls="mfma"
            for k,v in MFMA_PASSES.items():
                if k in mn: s.passes=v
            assert s.passes, mn
            s.writes=R(0); s.srcAB=R(1)|R(2); s.srcC=R(3); s.reads=s.srcAB|s.srcC
            return
        if mn.startswith("v_"):
            s.cls="trans" if base in TRANS else "valu"
            s.dpp = mn.endswith("_dpp") or any(k in mods for k in("row_","quad_perm","wave_"))
            if base.startswith("v_cmp"):
                s.writes=R(0); s.reads=allr(1)
            elif base in("v_readfirstlane_b32","v_readlane_b32"):
                s.writes=R(0); s.reads=allr(1)
            elif base in("v_permlane32_swap_b32","v_permlane16_swap_b32","v_swap_b32"):
                s.writes=R(0)|R(1); s.reads=R(0)|R(1)
            elif base in("v_add_co_u32","v_sub_co_u32","v_addc_co_u32","v_subb_co_u32"):
                s.writes=R(0)|R(1); s.reads=allr(2)
            else:
                s.writes=R(0); s.reads=allr(1)
                if base in RMW_DST or s.dpp: s.reads|=R(0)
            s.reads|={("s","exec")}
            s.sgpr_const_reads={r for r in s.reads if r[0]=="s" and r[1]!="exec"}
            return
        if mn.startswith("buffer_"):
            s.cls="vmem"
            s.lds_dma = "lds" in mods.split()
            if mn.startswith("buffer_load"):
                if s.lds_dma:
                    s.reads=allr(0)|{("s","m0")}
                else:
                    s.writes=R(0); s.reads=allr(1)
                    if "d16" in mn: s.reads|=R(0)
            elif mn.startswith("buffer_store"):
                s.reads=allr(0)
                if "x4" in mn or "x3" in mn: s.wide_store=R(0)
            elif mn.startswith("buffer_atomic"):
                s.reads=allr(0)
                if "sc0" in mods.split(): s.writes=R(0)
            elif mn.startswith(("buffer_wbl2","buffer_inv")):
                pass
            else: raise ValueError(text)
            s.reads|={("s","exec")}
            return
        if mn.startswith("global_"):
            s.cls="vmem"
            if mn.startswith("global_load_lds"):
                s.lds_dma=True; s.reads=allr(0)|{("s","m0")}
            elif mn.startswith("global_load"):
                s.writes=R(0); s.reads=allr(1)
                if "d16" in mn: s.reads|=R(0)
            elif mn.startswith("global_store"):
                s.reads=allr(0)
                if "x4" in mn or "x3" in mn: s.wide_store=R(1)
            elif mn.startswith("global_atomic"):
                if "sc0" in mods.split(): s.writes=R(0); s.reads=allr(1)
                else: s.reads=allr(0)
            else: raise ValueError(text)
            s.reads|={("s","exec")}
            return
        if mn.startswith("ds_"):
            s.cls="ds"
            if mn.startswith(("ds_read","ds_bpermute","ds_permute","ds_swizzle")):
                s.writes=R(0); s.reads=allr(1)
                if "d16" in mn: s.reads|=R(0)
            else:
                s.reads=allr(0)
            s.reads|={("s","exec")}
            return
        raise ValueError("unknown instr: "+text)

def need_states(p, c):
    n=0
    pv = p.cls in("valu","trans")
    cv = c.cls in("valu","trans")
    vw = {r for r in p.writes if r[0] in "va"}
    sw = {r for r in p.writes if r[0]=="s" and r[1] not in("scc",)}
    if pv:
        if c.cls=="mfma" and vw & c.reads: n=max(n,2)
        if cv and c.dpp and vw & c.reads: n=max(n,2)
        if cv and "permlane" in c.mn and vw & c.reads: n=max(n,2)
        if cv and c.mn.startswith(("v_readfirstlane","v_readlane")) and vw & c.reads: n=max(n,1)
        if cv and sw & c.sgpr_const_reads: n=max(n,2)
        if cv and c.mn.startswith(("v_readlane","v_writelane")) and sw & c.reads: n=max(n,4)
        if c.cls=="vmem" and sw & c.reads: n=max(n,5)
        if c.cls=="salu" and sw & c.reads: n=max(n,1)
        if p.cls=="trans" and c.cls in("valu",) and vw & c.reads: n=max(n,1)
        if p.cls=="trans" and c.cls in("vmem","ds") and vw & c.reads: n=max(n,1)
        if ("op_sel" in p.mods and "v_pk" not in p.mn) or p.mn.endswith("sdwa"):
            if cv and vw & (c.reads|c.writes): n=max(n,1)
    if p.mn.startswith("v_dot") and (vw & (c.reads|c.writes)):
        if not (c.mn==p.mn and (vw & c.writes)): n=max(n,3)
    if p.cls=="mfma":
        P=p.passes
        if c.cls=="mfma":
            if p.writes & c.srcC:
                if p.writes==c.srcC and p.passes==c.passes: n=max(n, 2 if P==2 else 0)
                else: n=max(n,T_C_OVER[P])
            if p.writes & c.srcAB: n=max(n,T_AB[P])
            if (p.writes & c.writes) and not (p.writes==c.writes and p.writes==c.srcC):
                if not (p.writes & c.srcC): n=max(n,T_C_OVER[P])
        elif cv:
            if p.writes & (c.reads|c.writes): n=max(n,T_VALU[P])
            if p.srcC & c.writes: n=max(n,T_WAR_C[P])
        elif c.cls in("vmem","ds"):
            if p.writes & (c.reads|c.writes): n=max(n,T_VALU[P])
            if p.srcC & c.writes: n=max(n,T_WAR_C[P])
    if p.wide_store:
        if cv and p.wide_store & c.writes: n=max(n,2)
        elif c.cls in("mfma","ds","vmem") and p.wide_store & c.writes: n=max(n,2)
    if p.cls=="salu" and ("s","m0") in p.writes and c.lds_dma: n=max(n,1)
    if p.cls=="salu" and ("s","exec") in p.writes and c.cls=="mfma": n=max(n,1)
    return n

class Kern:
    def __init__(s, auto=True):
        s.out=[]; s.hist=[]; s.vm=[]; s.lg=[]; s.auto=auto; s.nnop=0; s.nwait=0; s.log=[]; s.vm_total=0
    def raw(s,text): s.out.append(text)
    def label(s,name):
        s.out.append(name+":")
    def comment(s,t): s.out.append("  ; "+t)
    def snapshot(s): return (list(s.hist),[dict(x) for x in s.vm],[dict(x) for x in s.lg])
    def restore(s,st):
        s.hist=list(st[0]); s.vm=[dict(x) for x in st[1]]; s.lg=[dict(x) for x in st[2]]
    def clear_state(s): s.hist=[]; s.vm=[]; s.lg=[]
    def _push(s,ins):
        s.out.append("  "+ins.text); s.hist.append(ins)
        if len(s.hist)>40: s.hist=s.hist[-40:]
    def _hazard(s,ins):
        need=0; dist=0
        for p in reversed(s.hist):
            if dist>=20: break
            n=need_states(p,ins)
            if n>dist: need=max(need,n-dist)
            dist+=p.nstates
        return need
    def _nops(s,n):
        s.nnop+=n
        while n>0:
            k=min(n,16); s._push(Ins(f"s_nop {k-1}")); n-=k
    def _wait(s,vm=None,lg=None):
        parts=[]
        if vm is not None:
            vm=min(vm,63)
            if len(s.vm)>vm:
                parts.append(f"vmcnt({vm})"); s.vm=s.vm[len(s.vm)-vm:] if vm>0 else []
        if lg is not None:
            lg=min(lg,15)
            if len(s.lg)>lg:
                parts.append(f"lgkmcnt({lg})"); s.lg=s.lg[len(s.lg)-lg:] if lg>0 else []
        if parts:
            s.nwait+=1; s._push(Ins("s_waitcnt "+" ".join(parts)))
    def _autowait(s,ins):
        touched=ins.reads|ins.writes
        vmn=None; lgn=None
        for i,e in enumerate(s.vm):
            if e["dst"] & touched:
                if ins.cls=="vmem" and not (e["dst"] & ins.reads): continue
                n=len(s.vm)-1-i; vmn=n if vmn is None else min(vmn,n)
        anysm=any(e["smem"] for e in s.lg)
        for i,e in enumerate(s.lg):
            if e["dst"] & touched:
                if ins.cls=="ds" and not e["smem"] and not (e["dst"] & ins.reads): continue
                n=0 if anysm else len(s.lg)-1-i; lgn=n if lgn is None else min(lgn,n)
        s._wait(vmn,lgn)
    def __call__(s,text,tag=None):
        for line in text.strip().split("\n"):
            line=line.strip()
            if not line or line.startswith(";"):
                if line: s.out.append("  "+line)
                continue
            if line.endswith(":"): s.label(line[:-1]); continue
            s.emit(line,tag)
    def emit(s,text,tag=None):
        ins=Ins(text)
        if ins.mn=="s_waitcnt":
            m=re.search(r"vmcnt\((\d+)\)",text); l=re.search(r"lgkmcnt\((\d+)\)",text)
            if m:
                n=int(m.group(1)); s.vm=s.vm[max(0,len(s.vm)-n):] if n>0 else []
            if l:
                n=int(l.group(1)); s.lg=s.lg[max(0,len(s.lg)-n):] if n>0 else []
            s._push(ins); return ins
        if s.auto:
            s._autowait(ins)
            if ins.cls=="vmem" and len(s.vm)>=62: s._wait(vm=61)
            if ins.cls in("ds","smem") and len(s.lg)>=15:
                s._wait(lg=0 if any(e["smem"] for e in s.lg) else 14)
        n=s._hazard(ins)
        if n: s._nops(n)
        s._push(ins)
        if ins.cls=="vmem":
            s.vm_total+=1
            s.vm.append({"dst":set(ins.writes),"tag":tag})
            if len(s.vm)>63: s.vm=s.vm[-63:] if False else s.vm
        elif ins.cls=="ds": s.lg.append({"dst":set(ins.writes),"tag":tag,"smem":False})
        elif ins.cls=="smem": s.lg.append({"dst":set(ins.writes),"tag":tag,"smem":True})
        return ins
    def wait_tag(s,tag):
        idx=[i for i,e in enumerate(s.vm) if e["tag"]==tag]
        if idx: s._wait(vm=len(s.vm)-1-max(idx))
        idx=[i for i,e in enumerate(s.lg) if e["tag"]==tag]
        if idx:
            anysm=any(e["smem"] for e in s.lg)
            s._wait(lg=0 if anysm else len(s.lg)-1-max(idx))
    def wait_vm(s,n=0): s._wait(vm=n)
    def wait_lg(s,n=0): s._wait(lg=n)
    def barrier(s):
        s._wait(lg=0); s.emit("s_barrier")
    def text(s): return "\n".join(s.out)+"\n"

class Alloc:
    def __init__(s,kind,start,limit): s.kind=kind; s.n=start; s.limit=limit; s.hi=start
    def __call__(s,count=1,align=None):
        if align is None: align = 1 if count==1 else 2
        s.n=(s.n+align-1)//align*align
        r=s.n; s.n+=count; s.hi=max(s.hi,s.n)
        assert s.n<=s.limit, f"out of {s.kind} regs"
        return r
    def mark(s): return s.n
    def reset(s,m): s.n=m
def vr(b,n=1): return f"v{b}" if n==1 else f"v[{b}:{b+n-1}]"
def ar(b,n=1): return f"a{b}" if n==1 else f"a[{b}:{b+n-1}]"
def sr(b,n=1): return f"s{b}" if n==1 else f"s[{b}:{b+n-1}]"

STAMP_BASE=86
class Stamper:
    def __init__(s,on,kid): s.on=on; s.kid=kid
    def start(s,k):
        if s.on: k(f"s_memrealtime s[{STAMP_BASE}:{STAMP_BASE+1}]")
    def mark(s,k,i):
        if s.on: k(f"s_memtime s[{STAMP_BASE+2*i}:{STAMP_BASE+2*i+1}]")
    def finish(s,k,wsptr,swave,vtmp):
        if not s.on: return
        k(f"s_waitcnt vmcnt(0)")
        k(f"s_memrealtime s[{STAMP_BASE+14}:{STAMP_BASE+15}]")
        k("s_waitcnt lgkmcnt(0)")
        k(f"s_lshl_b32 s3, s2, 2")
        k(f"s_add_u32 s3, s3, s{swave}")
        k(f"s_lshl_b32 s3, s3, 6")
        k(f"s_add_u32 s3, s3, {(16<<20)+(s.kid<<20)}")
        for i in range(8):
            k(f"v_mov_b32 v{vtmp+i}, s{STAMP_BASE+2*i}")
        k(f"v_mov_b32 v{vtmp+8}, s3")
        k(f"s_mov_b64 exec, 1")
        k(f"global_store_dwordx4 v{vtmp+8}, v[{vtmp}:{vtmp+3}], s[{wsptr}:{wsptr+1}]")
        k(f"global_store_dwordx4 v{vtmp+8}, v[{vtmp+4}:{vtmp+7}], s[{wsptr}:{wsptr+1}] offset:16")
        k(f"s_getreg_b32 s3, hwreg(HW_REG_HW_ID)")
        k(f"v_mov_b32 v{vtmp}, s3")
        k(f"s_getreg_b32 s3, hwreg(HW_REG_XCC_ID)")
        k(f"v_mov_b32 v{vtmp+1}, s3")
        k(f"global_store_dwordx2 v{vtmp+8}, v[{vtmp}:{vtmp+1}], s[{wsptr}:{wsptr+1}] offset:32")
```

```python
from dsl import *
from common import *
from k1a import *
try:
    from k1b import gen_b
except ImportError:
    gen_b=None
def gen_k1(name="mix_kernel", with_b=True, stamp=False, with_a=True):
    k=Kern()
    S=Stamper(stamp,0)
    k(f"s_cmp_ge_u32 s2, 512")
    k(f"s_cbranch_scc1 L_{name}_end")
    S.start(k); S.mark(k,6)
    k(f"s_load_dwordx16 s[4:19], s[0:1], 0")
    k(f"s_load_dwordx8 s[20:27], s[0:1], 64")
    k(f"s_load_dwordx4 s[28:31], s[0:1], 96")
    k(f"s_load_dwordx2 s[32:33], s[0:1], 112")
    k(f"v_lshrrev_b32 v1, 6, v0")
    k(f"s_and_b32 s{sXCD}, s2, 7")
    k(f"v_readfirstlane_b32 s{sW}, v1")
    k(f"s_lshr_b32 s37, s2, 3")
    k(f"s_lshr_b32 s{sIDX}, s37, 1")
    k(f"s_lshr_b32 s38, s37, 5")
    k(f"s_xor_b32 s38, s38, s37")
    k(f"s_bitcmp1_b32 s38, 0")
    k(f"s_cbranch_scc1 L_{name}_B")
    st=k.snapshot()
    if with_a: hiA=gen_a(k,name,S)
    else:
        k("s_endpgm"); hiA=0
    k.restore(st)
    k.label(f"L_{name}_B")
    hiB=0
    if with_b and gen_b:
        hiB=gen_b(k,name,S)
    k.label(f"L_{name}_end")
    k("s_endpgm")
    hi=max(hiA,hiB)
    nv=(hi+7)//8*8
    return head(name)+k.text()+kd(name, nv, 102 if stamp else 96, nv)
if __name__=="__main__":
    print(gen_k1(with_b=False))
```

```python
from dsl import *
from common import *

sX=4; sWQ=6; sWPHI=8; sWO=10; sLA=14; sAI=16; sCR=18; sCI=20; sLDT=22; sDS=24; sGW=26; sOUT=28; sDBG=30; sWS=32
sW=34
sXCD=35; sIDX=36
srdX=40; srdWq=44; srdWS=48; srdKV=52; srdDBG=56; srdT=60
SLOT=14336; NSLOT=5
L_WPHI=0
L_WO=L_WPHI+1024
L_SLOT=L_WO+4096
L_RED=L_SLOT+14336
K1_LDS=81920
LOG2E=0x3fb8aa3b; NLOG2E=0xbfb8aa3b

def softmax2(k, blocks, tmp, sL2E):
    nb=len(blocks)
    def each(f):
        for b in range(nb): f(b,*blocks[b])
    T=[tmp+4*b for b in range(nb)]
    each(lambda b,p,o: k(f"v_max3_f32 v{T[b]}, v{p}, v{p+1}, v{p+2}"))
    for u in range(6):
        each(lambda b,p,o: k(f"v_max3_f32 v{T[b]}, v{T[b]}, v{p+3+2*u}, v{p+4+2*u}"))
    each(lambda b,p,o: k(f"v_max_f32 v{T[b]}, v{T[b]}, v{p+15}"))
    each(lambda b,p,o: k(f"v_mul_f32 v{T[b]}, {NLOG2E:#x}, v{T[b]}"))
    for u in range(8):
        each(lambda b,p,o: k(f"v_pk_fma_f32 v[{p+2*u}:{p+2*u+1}], v[{p+2*u}:{p+2*u+1}], s[{sL2E}:{sL2E+1}], v[{T[b]}:{T[b]+1}] op_sel_hi:[1,1,0]"))
    for u in range(16):
        each(lambda b,p,o: k(f"v_exp_f32 v{p+u}, v{p+u}"))
    S=[t+2 for t in T]
    each(lambda b,p,o: k(f"v_pk_add_f32 v[{S[b]}:{S[b]+1}], v[{p}:{p+1}], v[{p+2}:{p+3}]"))
    for u in range(2,8):
        each(lambda b,p,o: k(f"v_pk_add_f32 v[{S[b]}:{S[b]+1}], v[{S[b]}:{S[b]+1}], v[{p+2*u}:{p+2*u+1}]"))
    each(lambda b,p,o: k(f"v_add_f32 v{T[b]}, v{S[b]}, v{S[b]+1}"))
    each(lambda b,p,o: k(f"v_rcp_f32 v{T[b]}, v{T[b]}"))
    for u in range(8):
        each(lambda b,p,o: k(f"v_pk_mul_f32 v[{p+2*u}:{p+2*u+1}], v[{p+2*u}:{p+2*u+1}], v[{T[b]}:{T[b]+1}] op_sel_hi:[1,0]"))
    for u in range(8):
        each(lambda b,p,o: k(f"v_cvt_pk_bf16_f32 v{o+u}, v{p+2*u}, v{p+2*u+1}"))

def gen_a(k, name, st):
    V=Alloc("v",1,256)
    sTT=37; sHP=38; sT=39; sA=64; sB=65; sIt=66; sI0=67; sOffR=68; sOffD=69; sXo=70; sWo_=71; sMx=72; sMw=73
    sL2E=74; sMaskLo=76; sEx=78; sTick=80; sPhiO=81; sGo=82; sE=83; sFirst=84
    k.label(f"L_{name}_A")
    k(f"s_and_b32 s{sA}, s{sXCD}, 3")
    k(f"s_lshl_b32 s{sA}, s{sA}, 2")
    k(f"s_and_b32 s{sB}, s{sIDX}, 3")
    k(f"s_add_u32 s{sTT}, s{sA}, s{sB}")
    k(f"s_lshr_b32 s{sA}, s{sXCD}, 2")
    k(f"s_lshl_b32 s{sA}, s{sA}, 3")
    k(f"s_lshr_b32 s{sB}, s{sIDX}, 2")
    k(f"s_add_u32 s{sHP}, s{sA}, s{sB}")
    vL=V(); vXg=V(); vWg=V(); vt=V(); vt2=V(); vt3=V()
    k(f"v_and_b32 v{vL}, 63, v0")
    k(f"v_lshrrev_b32 v{vt}, 4, v{vL}")
    k(f"v_xor_b32 v{vt}, v{vt}, v{vL}")
    k(f"v_and_b32 v{vt}, 3, v{vt}")
    k(f"v_lshlrev_b32 v{vt}, 4, v{vt}")
    k(f"v_lshrrev_b32 v{vt2}, 2, v{vL}")
    k(f"v_lshl_add_u32 v{vXg}, v{vt2}, 10, v{vt}")
    k(f"v_mul_u32_u24 v{vt}, 43, v{vL}")
    k(f"v_lshrrev_b32 v{vt}, 9, v{vt}")
    k(f"v_mul_u32_u24 v{vt2}, 12, v{vt}")
    k(f"v_sub_u32 v{vt2}, v{vL}, v{vt2}")
    k(f"v_mul_u32_u24 v{vWg}, 3072, v{vt}")
    k(f"v_lshrrev_b32 v{vt3}, 2, v{vt2}")
    k(f"v_lshl_add_u32 v{vWg}, v{vt3}, 10, v{vWg}")
    k(f"v_and_b32 v{vt2}, 3, v{vt2}")
    k(f"v_lshl_add_u32 v{vWg}, v{vt2}, 4, v{vWg}")
    k("s_waitcnt lgkmcnt(0)")
    for (srd,ptr,size) in ((srdX,sX,2048*512*2),(srdWq,sWQ,512*1536*2)):
        k(f"s_mov_b32 s{srd}, s{ptr}")
        k(f"s_and_b32 s{srd+1}, s{ptr+1}, 0xffff")
        k(f"s_mov_b32 s{srd+2}, {size}")
        k(f"s_mov_b32 s{srd+3}, 0x20000")
    k(f"s_lshl_b32 s{sXo}, s{sTT}, 17")
    k(f"s_lshl_b32 s{sA}, s{sW}, 15")
    k(f"s_add_u32 s{sXo}, s{sXo}, s{sA}")
    k(f"s_mul_i32 s{sWo_}, s{sW}, {8*3072}")
    k(f"s_lshl_b32 s{sA}, s{sHP}, 6")
    k(f"s_add_u32 s{sWo_}, s{sWo_}, s{sA}")
    k(f"s_lshl_b32 s{sMx}, s{sW}, 11")
    k(f"s_add_u32 s{sMx}, s{sMx}, {L_SLOT}")
    k(f"s_mul_i32 s{sMw}, s{sW}, 1536")
    k(f"s_add_u32 s{sMw}, s{sMw}, {8192+L_SLOT}")
    k(f"s_mov_b32 s{sEx}, -1")
    k(f"s_mov_b32 s{sEx+1}, 0xffff")
    def dma_stage(slot_off_reg, slot_off_const):
        for i in range(2):
            if slot_off_reg is None: k(f"s_add_u32 m0, s{sMx}, {slot_off_const+i*1024}")
            else:
                k(f"s_add_u32 s{sA}, s{sMx}, s{slot_off_reg}")
                k(f"s_add_u32 m0, s{sA}, {i*1024}")
            k(f"s_add_u32 s{sT}, s{sXo}, {i*16384}")
            k(f"buffer_load_dwordx4 v{vXg}, s[{srdX}:{srdX+3}], s{sT} offen lds", tag="dma")
        k(f"s_mov_b64 exec, s[{sEx}:{sEx+1}]")
        for i in range(2):
            if slot_off_reg is None: k(f"s_add_u32 m0, s{sMw}, {slot_off_const+i*768}")
            else:
                k(f"s_add_u32 s{sA}, s{sMw}, s{slot_off_reg}")
                k(f"s_add_u32 m0, s{sA}, {i*768}")
            k(f"s_add_u32 s{sT}, s{sWo_}, {i*4*3072}")
            k(f"buffer_load_dwordx4 v{vWg}, s[{srdWq}:{srdWq+3}], s{sT} offen lds", tag="dma")
        k(f"s_mov_b64 exec, -1")
        k(f"s_add_u32 s{sXo}, s{sXo}, 64")
        k(f"s_add_u32 s{sWo_}, s{sWo_}, {32*3072}")
    vPf=V(2)
    def prefetch():
        k(f"s_lshr_b32 s{sA}, s{sIDX}, 2")
        k(f"s_lshl_b32 s{sA}, s{sA}, 4")
        k(f"s_lshl_b32 s{sB}, s{sW}, 2")
        k(f"s_add_u32 s{sA}, s{sA}, s{sB}")
        k(f"s_lshl_b32 s{sB}, s{sTT}, 7")
        k(f"s_add_u32 s{sA}, s{sA}, s{sB}")
        k(f"s_lshl_b32 s{sT}, s{sA}, 10")
        k(f"v_lshrrev_b32 v{vt}, 3, v{vL}")
        k(f"v_lshlrev_b32 v{vt}, 10, v{vt}")
        k(f"v_and_b32 v{vt2}, 7, v{vL}")
        k(f"v_lshl_add_u32 v{vt}, v{vt2}, 7, v{vt}")
        k(f"s_mov_b32 s{sA}, -1")
        k(f"s_mov_b32 s{sB}, 0")
        k(f"s_mov_b64 exec, s[{sA}:{sA+1}]")
        k(f"buffer_load_dword v{vPf}, v{vt}, s[{srdX}:{srdX+3}], s{sT} offen")
        k(f"s_mov_b64 exec, s[{sEx}:{sEx+1}]")
        k(f"v_mul_u32_u24 v{vt}, 171, v{vL}")
        k(f"v_lshrrev_b32 v{vt}, 9, v{vt}")
        k(f"v_mul_u32_u24 v{vt2}, 3, v{vt}")
        k(f"v_sub_u32 v{vt2}, v{vL}, v{vt2}")
        k(f"v_mul_u32_u24 v{vt}, 3072, v{vt}")
        k(f"v_lshl_add_u32 v{vt}, v{vt2}, 10, v{vt}")
        k(f"s_and_b32 s{sA}, s{sHP}, 1")
        k(f"s_lshl_b32 s{sA}, s{sA}, 2")
        k(f"s_and_b32 s{sB}, s{sIDX}, 3")
        k(f"s_add_u32 s{sA}, s{sA}, s{sB}")
        k(f"s_lshl_b32 s{sA}, s{sA}, 6")
        k(f"s_lshl_b32 s{sB}, s{sW}, 4")
        k(f"s_add_u32 s{sA}, s{sA}, s{sB}")
        k(f"s_mul_i32 s{sA}, s{sA}, 3072")
        k(f"s_lshr_b32 s{sB}, s{sHP}, 1")
        k(f"s_lshl_b32 s{sB}, s{sB}, 7")
        k(f"s_add_u32 s{sT}, s{sA}, s{sB}")
        k(f"buffer_load_dword v{vPf+1}, v{vt}, s[{srdWq}:{srdWq+3}], s{sT} offen")
        k(f"s_mov_b64 exec, -1")
    dma_stage(None, 0)
    prefetch()
    for s in range(1,4): dma_stage(None, s*SLOT)
    for (srd,ptr,size) in ((srdWS,sWS,WS_SIZE),(srdDBG,sDBG,256),(srdT,sWPHI,32*512)):
        k(f"s_mov_b32 s{srd}, s{ptr}")
        k(f"s_and_b32 s{srd+1}, s{ptr+1}, 0xffff")
        k(f"s_mov_b32 s{srd+2}, {size}")
        k(f"s_mov_b32 s{srd+3}, 0x20000")
    vL16=V()
    k(f"v_lshlrev_b32 v{vL16}, 4, v{vL}")
    k(f"s_lshl_b32 s{sT}, s{sHP}, 10")
    k(f"s_mov_b32 m0, {L_WPHI}")
    k(f"s_nop 0")
    k(f"buffer_load_dwordx4 v{vL16}, s[{srdT}:{srdT+3}], s{sT} offen lds", tag="wphi")
    sFr=85
    k(f"s_lshl_b32 s{sFr}, s{sTT}, 4")
    k(f"s_add_u32 s{sFr}, s{sFr}, s{sHP}")
    k(f"s_lshl_b32 s{sFr}, s{sFr}, 1")
    k(f"s_and_b32 s{sA}, s{sW}, 1")
    k(f"s_add_u32 s{sFr}, s{sFr}, s{sA}")
    k(f"s_mov_b32 s{srdT}, s{sWO}")
    k(f"s_and_b32 s{srdT+1}, s{sWO+1}, 0xffff")
    k(f"s_mov_b32 s{srdT+2}, {512*512*2}")
    k(f"v_lshrrev_b32 v{vt}, 2, v{vL}")
    k(f"v_and_b32 v{vt2}, 3, v{vL}")
    k(f"v_lshlrev_b32 v{vt2}, 4, v{vt2}")
    k(f"v_lshl_add_u32 v{vt}, v{vt}, 10, v{vt2}")
    k(f"s_and_b32 s{sA}, s{sFr}, 31")
    k(f"s_lshl_b32 s{sA}, s{sA}, 14")
    k(f"s_lshr_b32 s{sB}, s{sFr}, 5")
    k(f"s_lshl_b32 s{sB}, s{sB}, 6")
    k(f"s_add_u32 s{sT}, s{sA}, s{sB}")
    k(f"s_lshl_b32 s{sA}, s{sW}, 10")
    k(f"s_add_u32 m0, s{sA}, {L_WO}")
    k(f"s_nop 0")
    k(f"buffer_load_dwordx4 v{vt}, s[{srdT}:{srdT+3}], s{sT} offen lds", tag="wo")
    gx=V(8,4); gw=V(8,4); vGa=V()
    k(f"v_and_b32 v{vt}, 31, v{vL}")
    k(f"v_lshlrev_b32 v{vt}, 5, v{vt}")
    k(f"v_lshrrev_b32 v{vt2}, 5, v{vL}")
    k(f"v_lshl_add_u32 v{vGa}, v{vt2}, 10, v{vt}")
    k(f"s_lshl_b32 s{sA}, s{sTT}, 7")
    k(f"s_lshl_b32 s{sB}, s{sHP}, 3")
    k(f"s_add_u32 s{sA}, s{sA}, s{sB}")
    k(f"s_lshl_b32 s{sB}, s{sW}, 1")
    k(f"s_add_u32 s{sGo}, s{sA}, s{sB}")
    k(f"s_lshl_b32 s{sT}, s{sGo}, 10")
    k(f"buffer_load_dwordx4 v[{gx}:{gx+3}], v{vGa}, s[{srdX}:{srdX+3}], s{sT} offen")
    k(f"buffer_load_dwordx4 v[{gx+4}:{gx+7}], v{vGa}, s[{srdX}:{srdX+3}], s{sT} offen offset:16")
    k(f"global_load_dwordx4 v[{gw}:{gw+3}], v{vt}, s[{sGW}:{sGW+1}]")
    k(f"global_load_dwordx4 v[{gw+4}:{gw+7}], v{vt}, s[{sGW}:{sGW+1}] offset:16")
    vTk=V(); vZ=V()
    k(f"s_lshl_b32 s{sA}, s{sHP}, 2")
    k(f"s_cmp_eq_u32 s{sW}, 0")
    k(f"s_cselect_b32 s{sI0}, 0, 100")
    k(f"v_mov_b32 v{vTk}, 1")
    k(f"v_mov_b32 v{vZ}, 0")
    k(f"s_cbranch_scc0 L_{name}_A_notick")
    k(f"s_mov_b64 exec, 1")
    k(f"buffer_atomic_add v{vTk}, v{vZ}, s[{srdDBG}:{srdDBG+3}], s{sA} offen sc0 sc1")
    k(f"s_mov_b64 exec, -1")
    k.label(f"L_{name}_A_notick")
    k.vm=k.vm[:-1]
    E=6
    k(f"s_mov_b32 s{sL2E}, {LOG2E:#x}")
    k(f"s_mov_b32 s{sL2E+1}, {LOG2E:#x}")
    k(f"s_mov_b32 s{sMaskLo}, 0x0000ffff")
    k(f"s_mov_b32 s{sMaskLo+1}, 0x0000ffff")
    vM=V(); vH=V()
    k(f"v_and_b32 v{vM}, 31, v{vL}")
    k(f"v_lshrrev_b32 v{vH}, 5, v{vL}")
    I=V(8,4)
    for s in range(2):
        k(f"v_lshlrev_b32 v{vt}, 4, v{vH}")
        k(f"v_sub_u32 v{vt}, v{vM}, v{vt}")
        if s: k(f"v_subrev_u32 v{vt}, 8, v{vt}")
        k(f"v_and_b32 v{vt2}, 1, v{vt}")
        k(f"v_lshlrev_b32 v{vt2}, 4, v{vt2}")
        k(f"v_mov_b32 v{vt3}, 0x3f80")
        k(f"v_lshlrev_b32 v{vt2}, v{vt2}, v{vt3}")
        k(f"v_lshrrev_b32 v{vt}, 1, v{vt}")
        for u in range(4):
            k(f"v_cmp_eq_u32 vcc, {u}, v{vt}")
            k(f"v_cndmask_b32 v{I+4*s+u}, 0, v{vt2}, vcc")
    z4=V(4,4)
    for u in range(4): k(f"v_mov_b32 v{z4+u}, 0")
    vX0=V(); vX1=V(); vWr=V(); vXa=V(); vXb=V(); vWa=V()
    k(f"v_lshrrev_b32 v{vt}, 2, v{vM}")
    k(f"v_and_b32 v{vt}, 3, v{vt}")
    k(f"v_xor_b32 v{vt}, v{vt}, v{vH}")
    k(f"v_lshlrev_b32 v{vt}, 4, v{vt}")
    k(f"v_lshl_add_u32 v{vX0}, v{vM}, 6, v{vt}")
    k(f"v_add_u32 v{vX0}, s{sMx}, v{vX0}")
    k(f"v_xor_b32 v{vX1}, 32, v{vX0}")
    k(f"v_bfe_u32 v{vt}, v{vL}, 2, 2")
    k(f"v_lshl_add_u32 v{vt}, v{vH}, 3, v{vt}")
    k(f"v_mul_u32_u24 v{vWr}, 192, v{vt}")
    k(f"v_bfe_u32 v{vt}, v{vL}, 4, 1")
    k(f"v_lshl_add_u32 v{vWr}, v{vt}, 5, v{vWr}")
    k(f"v_and_b32 v{vt}, 3, v{vL}")
    k(f"v_lshl_add_u32 v{vWr}, v{vt}, 3, v{vWr}")
    k(f"v_add_u32 v{vWr}, {8192+L_SLOT}, v{vWr}")
    accQ=V(16,4); accK=V(16,4); accV=V(16,4)
    fa=V(16,4); fb=V(16,4)
    for r in range(16):
        k(f"v_mov_b32 v{accQ+r}, 0"); k(f"v_mov_b32 v{accK+r}, 0"); k(f"v_mov_b32 v{accV+r}, 0"); k(f"v_mov_b32 v{fb+r}, 0")
    k(f"s_mov_b32 s{sIt}, 0")
    k(f"s_mov_b32 s{sOffR}, 0")
    k(f"s_mov_b32 s{sOffD}, {4*SLOT}")
    k(f"s_mov_b32 s{sFirst}, 0")
    st.mark(k,1)
    k.wait_lg(0)
    def reads(f, vx, ks):
        k(f"ds_read_b128 v[{f}:{f+3}], v{vx}")
        for seg in range(3):
            for half in range(2):
                k(f"ds_read_b64_tr_b16 v[{f+4+4*seg+2*half}:{f+5+4*seg+2*half}], v{vWa} offset:{ks*3072+half*768+seg*64}")
    def mfmas(f):
        k(f"v_mfma_f32_32x32x16_bf16 v[{accQ}:{accQ+15}], v[{f+4}:{f+7}], v[{f}:{f+3}], v[{accQ}:{accQ+15}]")
        k(f"v_mfma_f32_32x32x16_bf16 v[{accK}:{accK+15}], v[{f+8}:{f+11}], v[{f}:{f+3}], v[{accK}:{accK+15}]")
        k(f"v_mfma_f32_32x32x16_bf16 v[{accV}:{accV+15}], v[{f}:{f+3}], v[{f+12}:{f+15}], v[{accV}:{accV+15}]")
    saved_vm=k.vm; k.vm=[]; k.auto=False
    LP=f"L_{name}_A_loop"
    k.raw(".p2align 4")
    k.label(LP)
    k(f"s_cmp_lt_u32 s{sIt}, 4")
    k(f"s_cbranch_scc1 {LP}_w0")
    k(f"s_cmp_lt_u32 s{sIt}, 13")
    k(f"s_cbranch_scc1 {LP}_w1")
    k("s_waitcnt vmcnt(0)")
    k.label(f"{LP}_w1")
    k("s_waitcnt vmcnt(12)")
    k.label(f"{LP}_w0")
    k(f"s_waitcnt vmcnt({12+E}) lgkmcnt(0)")
    k("s_barrier")
    k(f"v_add_u32 v{vXa}, s{sOffR}, v{vX0}")
    k(f"v_add_u32 v{vWa}, s{sOffR}, v{vWr}")
    k(f"v_add_u32 v{vXb}, s{sOffR}, v{vX1}")
    reads(fa, vXa, 0)
    k(f"s_cmp_ge_u32 s{sIt}, 12")
    k(f"s_cbranch_scc1 {LP}_nodma")
    dma_stage(sOffD, 0)
    k(f"s_add_u32 s{sOffD}, s{sOffD}, {SLOT}")
    k(f"s_cmp_eq_u32 s{sOffD}, {NSLOT*SLOT}")
    k(f"s_cselect_b32 s{sOffD}, 0, s{sOffD}")
    k.label(f"{LP}_nodma")
    mfmas(fb)
    reads(fb, vXb, 1)
    k(f"s_cmp_eq_u32 s{sI0}, 4")
    k(f"s_cbranch_scc1 {LP}_ev4")
    k(f"s_cmp_eq_u32 s{sI0}, 8")
    k(f"s_cbranch_scc1 {LP}_ev8")
    k.label(f"{LP}_evret")
    k("s_waitcnt lgkmcnt(7)")
    mfmas(fa)
    k(f"s_add_u32 s{sOffR}, s{sOffR}, {SLOT}")
    k(f"s_cmp_eq_u32 s{sOffR}, {NSLOT*SLOT}")
    k(f"s_cselect_b32 s{sOffR}, 0, s{sOffR}")
    k(f"s_add_u32 s{sI0}, s{sI0}, 1")
    k(f"s_add_u32 s{sIt}, s{sIt}, 1")
    k(f"s_cmp_lt_u32 s{sIt}, 16")
    k(f"s_cbranch_scc1 {LP}")
    k(f"s_branch {LP}_done")
    k.label(f"{LP}_ev4")
    k(f"v_readfirstlane_b32 s{sTick}, v{vTk}")
    k(f"s_nop 0")
    k(f"s_cmp_lg_u32 s{sTick}, 0")
    k(f"s_cbranch_scc1 {LP}_evret")
    k(f"s_mov_b32 s{sFirst}, 1")
    k(f"s_mul_i32 s{sA}, s{sHP}, {2*KVH}")
    k(f"s_add_u32 s{sA}, s{sA}, {WS_KV}")
    for u in range(5):
        if u<4:
            k(f"buffer_store_dwordx4 v[{z4}:{z4+3}], v{vL16}, s[{srdWS}:{srdWS+3}], s{sA} offen offset:{u*1024} sc1")
        else:
            k(f"s_add_u32 s{sA}, s{sA}, 4096")
            k(f"s_mov_b64 exec, 0xffff")
            k(f"buffer_store_dwordx4 v[{z4}:{z4+3}], v{vL16}, s[{srdWS}:{srdWS+3}], s{sA} offen sc1")
            k(f"s_mov_b64 exec, -1")
    k(f"s_branch {LP}_evret")
    k.label(f"{LP}_ev8")
    k(f"s_cmp_eq_u32 s{sFirst}, 0")
    k(f"s_cbranch_scc1 {LP}_evret")
    k(f"s_lshl_b32 s{sA}, s{sHP}, 2")
    k(f"s_add_u32 s{sA}, s{sA}, 64")
    k(f"v_mov_b32 v{vt}, 1")
    k(f"s_mov_b64 exec, 1")
    k(f"buffer_store_dword v{vt}, v{vZ}, s[{srdDBG}:{srdDBG+3}], s{sA} offen sc1")
    k(f"s_mov_b64 exec, -1")
    k(f"s_branch {LP}_evret")
    k.label(f"{LP}_done")
    k.vm=[]; k.lg=[{"dst":{("v",r) for r in range(fb,fb+16)},"tag":None,"smem":False}]; k.auto=True
    k.hist=[]
    k("s_nop 1")
    mfmas(fb)
    st.mark(k,2)
    vFl=V()
    k(f"v_mov_b32 v{vFl}, 1")
    k(f"s_cmp_lg_u32 s{sW}, 0")
    k(f"s_cbranch_scc1 L_{name}_A_nopoll0")
    k(f"s_lshl_b32 s{sE}, s{sHP}, 2")
    k(f"s_add_u32 s{sE}, s{sE}, 64")
    k(f"buffer_load_dword v{vFl}, v{vZ}, s[{srdDBG}:{srdDBG+3}], s{sE} offen sc1")
    k.vm=[]
    k.label(f"L_{name}_A_nopoll0")
    wof=V(4,4); vWoA=V()
    k(f"v_bfe_u32 v{vt}, v{vL}, 2, 2")
    k(f"v_lshl_add_u32 v{vt}, v{vH}, 2, v{vt}")
    k(f"v_lshlrev_b32 v{vWoA}, 6, v{vt}")
    k(f"v_bfe_u32 v{vt2}, v{vL}, 4, 1")
    k(f"v_lshl_add_u32 v{vWoA}, v{vt2}, 5, v{vWoA}")
    k(f"v_and_b32 v{vt2}, 3, v{vL}")
    k(f"v_lshl_add_u32 v{vWoA}, v{vt2}, 3, v{vWoA}")
    k(f"s_lshl_b32 s{sA}, s{sW}, 10")
    k(f"v_add_u32 v{vWoA}, s{sA}, v{vWoA}")
    k(f"ds_read_b64_tr_b16 v[{wof}:{wof+1}], v{vWoA} offset:{L_WO}")
    k(f"ds_read_b64_tr_b16 v[{wof+2}:{wof+3}], v{vWoA} offset:{L_WO+512}")
    wf=V(8,4); vPhA=V()
    k(f"v_lshlrev_b32 v{vPhA}, 5, v{vt}")
    k(f"v_bfe_u32 v{vt2}, v{vL}, 4, 1")
    k(f"v_lshl_add_u32 v{vPhA}, v{vt2}, 4, v{vPhA}")
    k(f"v_bfe_u32 v{vt2}, v{vL}, 1, 1")
    k(f"v_lshl_add_u32 v{vPhA}, v{vt2}, 3, v{vPhA}")
    for hd in range(2):
        k(f"ds_read_b64_tr_b16 v[{wf+4*hd}:{wf+4*hd+1}], v{vPhA} offset:{L_WPHI+512*hd}")
        k(f"ds_read_b64_tr_b16 v[{wf+4*hd+2}:{wf+4*hd+3}], v{vPhA} offset:{L_WPHI+512*hd+256}")
    vSg=V()
    k(f"v_bfe_u32 v{vSg}, v{vL}, 2, 1")
    k(f"v_mul_u32_u24 v{vSg}, 0x8000, v{vSg}")
    k(f"v_lshl_or_b32 v{vSg}, v{vSg}, 16, v{vSg}")
    kb=fa; qb=fa+8; vb=fb
    for u in range(8): k(f"v_cvt_pk_bf16_f32 v{kb+u}, v{accK+2*u}, v{accK+2*u+1}")
    for u in range(8): k(f"v_xor_b32 v{wf+u}, v{wf+u}, v{vSg}")
    pkA=V(16,4); pkB=V(16,4)
    k(f"v_mfma_f32_32x32x16_bf16 v[{pkA}:{pkA+15}], v[{wf}:{wf+3}], v[{kb}:{kb+3}], 0")
    k(f"v_mfma_f32_32x32x16_bf16 v[{pkB}:{pkB+15}], v[{wf+4}:{wf+7}], v[{kb+4}:{kb+7}], 0")
    for u in range(8): k(f"v_cvt_pk_bf16_f32 v{qb+u}, v{accQ+2*u}, v{accQ+2*u+1}")
    pqA=accK; pqB=accQ
    k(f"v_mfma_f32_32x32x16_bf16 v[{pqA}:{pqA+15}], v[{wf}:{wf+3}], v[{qb}:{qb+3}], 0")
    k(f"v_mfma_f32_32x32x16_bf16 v[{pqB}:{pqB+15}], v[{wf+4}:{wf+7}], v[{qb+4}:{qb+7}], 0")
    for u in range(8): k(f"v_cvt_pk_bf16_f32 v{vb+u}, v{accV+2*u}, v{accV+2*u+1}")
    k(f"s_lshl_b32 s{sA}, s{sFr}, 10")
    k(f"s_add_u32 s{sA}, s{sA}, {WS_WO}")
    k(f"buffer_store_dwordx4 v[{wof}:{wof+3}], v{vL16}, s[{srdWS}:{srdWS+3}], s{sA} offen")
    vA_=accV; vB_=accV+8
    ones=V()
    k(f"v_mov_b32 v{ones}, 0x3f803f80")
    for u in range(8): k(f"v_cndmask_b32 v{vA_+u}, v{ones}, v{vb+u}, s[{sMaskLo}:{sMaskLo+1}]")
    for u in range(8): k(f"v_cndmask_b32 v{vB_+u}, v{vb+u}, v{ones}, s[{sMaskLo}:{sMaskLo+1}]")
    phA=V(8,4); phB=V(8,4); tmp=V(8,2)
    softmax2(k,[(pkA,phA),(pkB,phB)],tmp,sL2E)
    TA=pkA; TB=pkB
    k(f"v_mfma_f32_32x32x16_bf16 v[{TA}:{TA+15}], v[{phA}:{phA+3}], v[{I}:{I+3}], 0")
    k(f"v_mfma_f32_32x32x16_bf16 v[{TB}:{TB+15}], v[{phB}:{phB+3}], v[{I}:{I+3}], 0")
    k(f"v_mfma_f32_32x32x16_bf16 v[{TA}:{TA+15}], v[{phA+4}:{phA+7}], v[{I+4}:{I+7}], v[{TA}:{TA+15}]")
    k(f"v_mfma_f32_32x32x16_bf16 v[{TB}:{TB+15}], v[{phB+4}:{phB+7}], v[{I+4}:{I+7}], v[{TB}:{TB+15}]")
    gs=V();
    k(f"v_mov_b32 v{gs}, 0")
    for u in range(8): k(f"v_dot2c_f32_bf16 v{gs}, v{gx+u}, v{gw+u}")
    for n in (8,4,2,1): k(f"v_add_f32_dpp v{gs}, v{gs}, v{gs} row_ror:{n} row_mask:0xf bank_mask:0xf")
    k(f"v_add_f32_dpp v{gs}, v{gs}, v{gs} row_bcast:15 row_mask:0xa bank_mask:0xf")
    k(f"v_cvt_pk_bf16_f32 v{gs}, v{gs}, v{gs}")
    k(f"v_lshlrev_b32 v{gs}, 16, v{gs}")
    k(f"v_mul_f32 v{gs}, {NLOG2E:#x}, v{gs}")
    k(f"v_exp_f32 v{gs}, v{gs}")
    k(f"v_add_f32 v{gs}, 1.0, v{gs}")
    k(f"v_rcp_f32 v{gs}, v{gs}")
    k(f"v_cvt_pk_bf16_f32 v{gs}, v{gs}, v{gs}")
    k(f"v_lshlrev_b32 v{gs}, 16, v{gs}")
    k(f"v_lshlrev_b32 v{vt}, 2, v{vH}")
    k(f"v_bfe_u32 v{vt2}, v{vL}, 4, 1")
    k(f"v_subrev_u32 v{vt2}, 1, v{vt2}")
    k(f"v_and_b32 v{vt2}, 0x80000000, v{vt2}")
    k(f"v_or_b32 v{vt}, v{vt}, v{vt2}")
    k(f"s_lshl_b32 s{sA}, s{sGo}, 2")
    k(f"s_add_u32 s{sA}, s{sA}, {WS_G}")
    k(f"buffer_store_dword v{gs}, v{vt}, s[{srdWS}:{srdWS+3}], s{sA} offen")
    ptA=phA; ptB=phB
    for u in range(8): k(f"v_cvt_pk_bf16_f32 v{ptA+u}, v{TA+2*u}, v{TA+2*u+1}")
    for u in range(8): k(f"v_cvt_pk_bf16_f32 v{ptB+u}, v{TB+2*u}, v{TB+2*u+1}")
    kvA=TA; kvB=TB
    k(f"v_mfma_f32_32x32x16_bf16 v[{kvA}:{kvA+15}], v[{ptA}:{ptA+3}], v[{vA_}:{vA_+3}], 0")
    k(f"v_mfma_f32_32x32x16_bf16 v[{kvB}:{kvB+15}], v[{ptB}:{ptB+3}], v[{vB_}:{vB_+3}], 0")
    k(f"v_mfma_f32_32x32x16_bf16 v[{kvA}:{kvA+15}], v[{ptA+4}:{ptA+7}], v[{vA_+4}:{vA_+7}], v[{kvA}:{kvA+15}]")
    k(f"v_mfma_f32_32x32x16_bf16 v[{kvB}:{kvB+15}], v[{ptB+4}:{ptB+7}], v[{vB_+4}:{vB_+7}], v[{kvB}:{kvB+15}]")
    assert gw==gx+8
    pq_o=gx
    softmax2(k,[(pqA,pq_o),(pqB,pq_o+8)],tmp,sL2E)
    vRb=V(2); vSt=V(2); vRa=V(4)
    k(f"v_and_b32 v{vt}, 15, v{vM}")
    k(f"v_lshlrev_b32 v{vt}, 4, v{vt}")
    k(f"v_lshl_add_u32 v{vt}, v{vH}, 9, v{vt}")
    k(f"v_lshlrev_b32 v{vt2}, 5, v{vH}")
    k(f"v_add_u32 v{vt2}, 2048, v{vt2}")
    k(f"s_mul_i32 s{sA}, s{sW}, {2*KVH}")
    k(f"s_add_u32 s{sA}, s{sA}, {L_RED}")
    k(f"v_cndmask_b32 v{vRb}, v{vt2}, v{vt}, s[{sMaskLo}:{sMaskLo+1}]")
    k(f"v_cndmask_b32 v{vRb+1}, v{vt}, v{vt2}, s[{sMaskLo}:{sMaskLo+1}]")
    k(f"v_add_u32 v{vRb}, s{sA}, v{vRb}")
    k(f"v_add_u32 v{vRb+1}, s{sA}, v{vRb+1}")
    k(f"v_mov_b32 v{vt}, 256")
    k(f"v_mov_b32 v{vt2}, 16")
    k(f"v_cndmask_b32 v{vSt}, v{vt2}, v{vt}, s[{sMaskLo}:{sMaskLo+1}]")
    k(f"v_cndmask_b32 v{vSt+1}, v{vt}, v{vt2}, s[{sMaskLo}:{sMaskLo+1}]")
    for hd,kvr in ((0,kvA),(1,kvB)):
        for i in range(4):
            c=4*(i&1)+(i>>1)
            k(f"v_mad_u32_u24 v{vRa+i}, v{vSt+hd}, {c}, v{vRb+hd}")
        for i in range(4):
            k(f"ds_write_b128 v{vRa+i}, v[{kvr+4*i}:{kvr+4*i+3}] offset:{hd*KVH}")
    st.mark(k,3)
    k(f"s_cmp_lg_u32 s{sW}, 0")
    k(f"s_cbranch_scc1 L_{name}_A_flagok")
    k(f"s_waitcnt vmcnt({len(k.vm)})") if True else None
    k.label(f"L_{name}_A_poll")
    k(f"v_readfirstlane_b32 s{sA}, v{vFl}")
    k("s_nop 0")
    k(f"s_cmp_lg_u32 s{sA}, 0")
    k(f"s_cbranch_scc1 L_{name}_A_flagok")
    k("s_sleep 1")
    k(f"buffer_load_dword v{vFl}, v{vZ}, s[{srdDBG}:{srdDBG+3}], s{sE} offen sc1")
    k("s_waitcnt vmcnt(0)")
    k(f"s_branch L_{name}_A_poll")
    k.label(f"L_{name}_A_flagok")
    k(f"s_lshl_b32 s{sPhiO}, s{sTT}, 2")
    k(f"s_add_u32 s{sPhiO}, s{sPhiO}, s{sW}")
    k(f"s_lshl_b32 s{sPhiO}, s{sPhiO}, 16")
    k(f"s_lshl_b32 s{sA}, s{sHP}, 12")
    k(f"s_add_u32 s{sPhiO}, s{sPhiO}, s{sA}")
    for q in range(4):
        k(f"buffer_store_dwordx4 v[{pq_o+4*q}:{pq_o+4*q+3}], v{vL16}, s[{srdWS}:{srdWS+3}], s{sPhiO} offen offset:{q*1024}")
    k.barrier()
    st.mark(k,4)
    k(f"s_mul_i32 s{sA}, s{sHP}, {2*KVH}")
    k(f"s_add_u32 s{sA}, s{sA}, {WS_KV}")
    k(f"s_add_u32 s{srdKV}, s{sWS}, s{sA}")
    k(f"s_addc_u32 s{srdKV+1}, s{sWS+1}, 0")
    k(f"s_and_b32 s{srdKV+1}, s{srdKV+1}, 0xffff")
    k(f"s_mov_b32 s{srdKV+2}, {2*KVH}")
    k(f"s_mov_b32 s{srdKV+3}, 0x20000")
    vE=V(); rd=accV
    k(f"v_lshlrev_b32 v{vE}, 2, v0")
    for u in range(5):
        for w in range(4):
            off=L_RED+w*2*KVH+1024*u
            k(f"ds_read_b32 v{rd+4*u+w if u<4 else accK+w}, v{vE} offset:{off}")
    for u in range(5):
        b=rd+4*u if u<4 else accK
        k(f"v_add_f32 v{b}, v{b}, v{b+1}")
        k(f"v_add_f32 v{b+2}, v{b+2}, v{b+3}")
        k(f"v_add_f32 v{b}, v{b}, v{b+2}")
        if u<4: k(f"buffer_atomic_add_f32 v{b}, v{vE}, s[{srdKV}:{srdKV+3}], 0 offen offset:{1024*u} sc1")
        else:
            k(f"v_add_u32 v{vt}, 4096, v{vE}")
            k(f"buffer_atomic_add_f32 v{b}, v{vt}, s[{srdKV}:{srdKV+3}], 0 offen sc1")
    st.mark(k,5)
    st.finish(k,sWS,sW,accQ)
    k("s_endpgm")
    return V.hi
```

```python
from dsl import *
from common import *
from k1a import sX,sLA,sAI,sCR,sCI,sLDT,sDS,sWS,sW,sXCD,sIDX,srdX,srdWS,LOG2E,NLOG2E

UC=4160
CH=32256
TAB=16640
P1=4640
INV2PI=0x3e22f983

def cmul(k,dst,w,z,t):
    k(f"v_pk_mul_f32 v[{t}:{t+1}], v[{w}:{w+1}], v[{z}:{z+1}] op_sel:[0,0] op_sel_hi:[0,1]")
    k(f"v_pk_fma_f32 v[{dst}:{dst+1}], v[{w}:{w+1}], v[{z}:{z+1}], v[{t}:{t+1}] op_sel:[1,1,0] op_sel_hi:[1,0,1] neg_lo:[0,1,0]")

def gen_b(k,name,st):
    k.comment("===== type B: S4D kernel generation + causal conv for 2 channels =====")
    V=Alloc("v",1,256)
    sA=64; sB=65; sT=39; sD0=66; sCh=67; sRole=68; sLdt=69; sDsk=70; sCB=71; sSel0=72; sSel1=73; sEx=74; sTab=76
    vL=V(); vt=V(); vt2=V(); vt3=V(); t0=V(2,2); t1=V(2,2)
    vI=V(); vQ=V(); vA=V(); vB=V()
    mark0=V.mark()
    k(f"s_lshl_b32 s{sD0}, s{sXCD}, 6")
    k(f"s_lshl_b32 s{sA}, s{sIDX}, 1")
    k(f"s_add_u32 s{sD0}, s{sD0}, s{sA}")
    k(f"s_lshr_b32 s{sCh}, s{sW}, 1")
    k(f"s_and_b32 s{sRole}, s{sW}, 1")
    k(f"v_and_b32 v{vL}, 63, v0")
    k(f"s_add_u32 s{sA}, s{sD0}, s{sCh}")
    k(f"s_lshl_b32 s{sA}, s{sA}, 8")
    vP=V()
    k(f"v_lshlrev_b32 v{vP}, 1, v{vL}")
    k(f"v_add_u32 v{vP}, s{sA}, v{vP}")
    k(f"s_lshl_b32 s{sB}, s{sD0}, 1")
    k("s_waitcnt lgkmcnt(0)")
    k(f"s_load_dword s{sLdt}, s[{sLDT}:{sLDT+1}], s{sB}")
    k(f"s_load_dword s{sDsk}, s[{sDS}:{sDS+1}], s{sB}")
    pl=V(2); pa=V(2); pcr=V(2); pci=V(2)
    for c in range(2):
        k(f"global_load_ushort v{pl+c}, v{vP}, s[{sLA}:{sLA+1}] offset:{128*c}")
        k(f"global_load_ushort v{pa+c}, v{vP}, s[{sAI}:{sAI+1}] offset:{128*c}")
        k(f"global_load_ushort v{pcr+c}, v{vP}, s[{sCR}:{sCR+1}] offset:{128*c}")
        k(f"global_load_ushort v{pci+c}, v{vP}, s[{sCI}:{sCI+1}] offset:{128*c}")
    k(f"s_mov_b32 s{srdX}, s{sX}")
    k(f"s_and_b32 s{srdX+1}, s{sX+1}, 0xffff")
    k(f"s_mov_b32 s{srdX+2}, {2048*512*2}")
    k(f"s_mov_b32 s{srdX+3}, 0x20000")
    g=V(11); vG=V()
    k(f"v_lshlrev_b32 v{vG}, 13, v0")
    k(f"v_add_u32 v{vG}, s{sB}, v{vG}")
    k(f"s_mov_b32 s{sT}, 4096")
    for r in range(8):
        so = "0" if r<4 else f"s{sT}"
        k(f"buffer_load_dword v{g+3+r}, v{vG}, s[{srdX}:{srdX+3}], {so} offen offset:{(r%4)*1024}")
    k(f"v_subrev_u32 v{vt}, 3072, v{vG}")
    k(f"s_mov_b64 exec, 1")
    for r in range(3):
        k(f"buffer_load_dword v{g+r}, v{vt}, s[{srdX}:{srdX+3}], 0 offen offset:{r*1024}")
    k(f"s_mov_b64 exec, -1")
    k(f"s_mov_b32 s{srdWS}, s{sWS}")
    k(f"s_and_b32 s{srdWS+1}, s{sWS+1}, 0xffff")
    k(f"s_mov_b32 s{srdWS+2}, {WS_SIZE}")
    k(f"s_mov_b32 s{srdWS+3}, 0x20000")
    k(f"s_mul_i32 s{sCB}, s{sCh}, {CH}")
    k(f"s_add_u32 s{sTab}, s{sCB}, {TAB}")
    aX=V(16)
    k(f"v_and_b32 v{vt}, 3, v{vL}")
    k(f"v_lshlrev_b32 v{vt}, 2, v{vt}")
    k(f"v_lshrrev_b32 v{vt2}, 2, v{vL}")
    k(f"v_lshl_add_u32 v{vt}, v{vt2}, 4, v{vt}")
    k(f"v_add_u32 v{aX}, s{sTab}, v{vt}")
    for x in range(1,16): k(f"v_xor_b32 v{aX+x}, {x<<4}, v{aX}")
    k(f"v_and_b32 v{vI}, 15, v{vL}")
    k(f"v_lshrrev_b32 v{vQ}, 4, v{vL}")
    def rdaddr(dst,rowreg):
        k(f"v_and_b32 v{vt}, 15, v{rowreg}")
        k(f"v_xor_b32 v{vt}, v{vt}, v{vQ}")
        k(f"v_lshlrev_b32 v{vt}, 4, v{vt}")
        k(f"v_lshl_add_u32 v{vt}, v{rowreg}, 8, v{vt}")
        k(f"v_add_u32 v{dst}, s{sTab}, v{vt}")
        for ks in range(1,4): k(f"v_xor_b32 v{dst+ks}, {ks<<6}, v{dst}")
    rF=V(4); rG1=V(4); rG2=V(4)
    rdaddr(rF,vI)
    def rne(dst,kk):
        k(f"v_bfe_u32 v{dst}, v{vI}, {kk}, 1")
        k(f"v_add3_u32 v{dst}, v{dst}, v{vI}, {(1<<(kk-1))-1}")
        k(f"v_lshrrev_b32 v{dst}, {kk}, v{dst}")
    z4=V(4,4)
    for u in range(4): k(f"v_mov_b32 v{z4+u}, 0")
    k(f"v_bfe_u32 v{vt}, v{vL}, 4, 1")
    k(f"v_mul_u32_u24 v{vt}, {CH}, v{vt}")
    k(f"v_bfe_u32 v{vt2}, v{vL}, 2, 2")
    k(f"v_mul_u32_u24 v{vt2}, {UC}, v{vt2}")
    k(f"v_add_u32 v{vt}, v{vt}, v{vt2}")
    k(f"v_and_b32 v{vt2}, 3, v{vL}")
    k(f"v_lshl_add_u32 v{vt}, v{vt2}, 4, v{vt}")
    k(f"s_mov_b32 s{sEx}, -1")
    k(f"s_mov_b32 s{sEx+1}, 0")
    k(f"s_mov_b64 exec, s[{sEx}:{sEx+1}]")
    k(f"ds_write_b128 v{vt}, v[{z4}:{z4+3}] offset:4096")
    k(f"s_mov_b64 exec, -1")
    vDt=V(); vDs=V()
    k("s_waitcnt lgkmcnt(0)")
    k(f"s_lshl_b32 s{sA}, s{sLdt}, 16")
    k(f"s_and_b32 s{sB}, s{sLdt}, 0xffff0000")
    k(f"s_cmp_eq_u32 s{sCh}, 0")
    k(f"s_cselect_b32 s{sLdt}, s{sA}, s{sB}")
    k(f"s_lshl_b32 s{sA}, s{sDsk}, 16")
    k(f"s_and_b32 s{sB}, s{sDsk}, 0xffff0000")
    k(f"s_cmp_eq_u32 s{sCh}, 0")
    k(f"s_cselect_b32 s{sDsk}, s{sA}, s{sB}")
    k(f"v_mov_b32 v{vDt}, {LOG2E:#x}")
    k(f"v_mul_f32 v{vDt}, s{sLdt}, v{vDt}")
    k(f"v_exp_f32 v{vDt}, v{vDt}")
    k(f"v_cvt_pk_bf16_f32 v{vDt}, v{vDt}, v{vDt}")
    k(f"v_lshlrev_b32 v{vDt}, 16, v{vDt}")
    k(f"v_cmp_eq_u32 vcc, 0, v{vL}")
    k(f"v_mov_b32 v{vt}, s{sDsk}")
    k(f"v_cndmask_b32 v{vDs}, 0, v{vt}, vcc")
    re2=V(); fr=V(); cc=V(2,2)
    def mode_params(c, need_c):
        k(f"v_lshlrev_b32 v{re2}, 16, v{pl+c}")
        k(f"v_mul_f32 v{re2}, {LOG2E:#x}, v{re2}")
        k(f"v_exp_f32 v{re2}, v{re2}")
        k(f"v_lshlrev_b32 v{fr}, 16, v{pa+c}")
        k(f"v_cvt_pk_bf16_f32 v{re2}, v{re2}, v{re2}")
        k(f"v_mul_f32 v{fr}, v{fr}, v{vDt}")
        k(f"v_lshlrev_b32 v{re2}, 16, v{re2}")
        k(f"v_mul_f32 v{fr}, {INV2PI:#x}, v{fr}")
        k(f"v_mul_f32 v{re2}, v{re2}, v{vDt}")
        k(f"v_mul_f32 v{re2}, {NLOG2E:#x}, v{re2}")
        if need_c:
            k(f"v_lshlrev_b32 v{cc}, 16, v{pcr+c}")
            k(f"v_lshlrev_b32 v{cc+1}, 16, v{pci+c}")
            k(f"v_add_f32 v{vt}, v{vDt}, v{vDt}")
            k(f"v_pk_mul_f32 v[{cc}:{cc+1}], v[{cc}:{cc+1}], v[{vt}:{vt+1}] op_sel_hi:[1,0]" if vt%2==0 else f"v_mul_f32 v{cc}, v{cc}, v{vt}")
            if vt%2: k(f"v_mul_f32 v{cc+1}, v{cc+1}, v{vt}")
    def Edirect(dst,p):
        pf=float(p)
        import struct
        lit=struct.unpack("<I",struct.pack("<f",pf))[0]
        if p==1:
            k(f"v_exp_f32 v{t1}, v{re2}")
            k(f"v_fract_f32 v{t1+1}, v{fr}")
        else:
            k(f"v_mul_f32 v{t1}, {lit:#x}, v{re2}")
            k(f"v_mul_f32 v{t1+1}, {lit:#x}, v{fr}")
            k(f"v_exp_f32 v{t1}, v{t1}")
            k(f"v_fract_f32 v{t1+1}, v{t1+1}")
        k(f"v_cos_f32 v{dst}, v{t1+1}")
        k(f"v_sin_f32 v{dst+1}, v{t1+1}")
        k(f"v_pk_mul_f32 v[{dst}:{dst+1}], v[{dst}:{dst+1}], v[{t1}:{t1+1}] op_sel_hi:[1,0]")
    pk=V(2)
    pkc=[0]
    def wrow(row,w,neg):
        r=pk+(pkc[0]&1); pkc[0]+=1
        k(f"v_cvt_pk_bf16_f32 v{r}, v{w}, {'-' if neg else ''}v{w+1}")
        k(f"ds_write_b32 v{aX+(row&15)}, v{r} offset:{row*256}")
    wA=V(2,2); wB=V(2,2); zz=V(2,2); e4=V(2,2); e8=V(2,2); e12=V(2,2); e16=V(2,2); eb=V(2,2)
    def table_role0(c):
        mode_params(c,True)
        Edirect(zz,16)
        Edirect(wB,256)
        cmul(k,wB,wB,cc,t0)
        k(f"v_mov_b32 v{wA}, v{cc}"); k(f"v_mov_b32 v{wA+1}, v{cc+1}")
        for a in range(16):
            wrow(a,wA,True); wrow(16+a,wB,True)
            if a<15:
                cmul(k,wA,wA,zz,t0); cmul(k,wB,wB,zz,t1)
    def table_role1(c):
        mode_params(c,False)
        Edirect(zz,1)
        if c==0:
            k(f"v_mov_b32 v{pk}, 0x3f80")
            k(f"ds_write_b32 v{aX+0}, v{pk} offset:{32*256}")
        keep={4:e4,8:e8,12:e12,16:e16}
        Edirect(eb,512)
        k(f"v_mov_b32 v{wA}, v{zz}"); k(f"v_mov_b32 v{wA+1}, v{zz+1}")
        wrow(33,wA,False)
        wrow(50,eb,False)
        cur=wA
        for b in range(2,17):
            dst=keep.get(b,wA)
            cmul(k,dst,cur,zz,t0)
            cur=dst
            wrow(32+b if b<16 else 49,cur,False)
            if b in keep:
                cmul(k,wB,eb,cur,t1)
                wrow(50+b//4,wB,False)
        for (p,row) in ((1024,55),(1536,58)):
            Edirect(eb,p)
            wrow(row,eb,False)
            cmul(k,wB,eb,e8,t0); wrow(row+1,wB,False)
            cmul(k,wB,eb,e16,t1); wrow(row+2,wB,False)
    def u_stage():
        for r in range(3):
            k(f"v_mov_b32_dpp v{g+r}, v{g+8+r} wave_shr:1 row_mask:0xf bank_mask:0xf")
        k(f"s_mov_b32 s{sSel0}, 0x05040100")
        k(f"s_mov_b32 s{sSel1}, 0x07060302")
        vU=vt3
        k(f"v_sub_u32 v{vU}, 255, v0")
        k(f"v_lshlrev_b32 v{vU}, 4, v{vU}")
        o4=[V(4,4),V(4,4)]
        n=0
        for ch in range(2):
            sel=sSel0 if ch==0 else sSel1
            for c in range(4):
                o=o4[n&1]; n+=1
                for u in range(4):
                    top=4+c-2*u
                    k(f"v_perm_b32 v{o+u}, v{g+3+top-1}, v{g+3+top}, s{sel}")
                k(f"ds_write_b128 v{vU}, v[{o}:{o+3}] offset:{ch*CH+c*UC}")
    acc=V(16,4)
    fF=V(16,4)
    fG=V(24,4)
    def kmfma(role,c):
        first=(c==0)
        for ks in range(4):
            k(f"ds_read_b128 v[{fF}:{fF+3}], v{rF+ks}")
            k(f"ds_read_b128 v[{fF+4}:{fF+7}], v{rF+ks} offset:4096")
            if role==0:
                k(f"ds_read_b128 v[{fG}:{fG+3}], v{rF+ks} offset:8192")
                k(f"ds_read_b128 v[{fG+4}:{fG+7}], v{rG1+ks}")
                k(f"ds_read_b128 v[{fG+8}:{fG+11}], v{rG2+ks}")
                pairs=[(0,fG,fF),(1,fG+4,fF+4),(2,fG+8,fF),(3,fG+8,fF+4)]
            else:
                k(f"ds_read_b128 v[{fG}:{fG+3}], v{rG1+ks}")
                k(f"ds_read_b128 v[{fG+4}:{fG+7}], v{rG2+ks}")
                pairs=[(0,fG,fF),(1,fG,fF+4),(2,fG+4,fF),(3,fG+4,fF+4)]
            for (T,a,b) in pairs:
                cin="0" if (first and ks==0) else f"v[{acc+4*T}:{acc+4*T+3}]"
                k(f"v_mfma_f32_16x16x32_bf16 v[{acc+4*T}:{acc+4*T+3}], v[{a}:{a+3}], v[{b}:{b+3}], {cin}")
    row=V()
    k(f"s_cmp_eq_u32 s{sRole}, 0")
    k(f"s_cbranch_scc0 L_{name}_B1")
    snap=k.snapshot(); mark=V.mark()
    for role in range(2):
        if role==1:
            k.restore(snap); V.reset(mark); k.label(f"L_{name}_B1")
        if role==0:
            rne(row,1)
            k(f"v_lshrrev_b32 v{vt2}, 3, v{row}")
            k(f"v_lshl_add_u32 v{row}, v{row}, 1, v{vt2}")
            k(f"v_add_u32 v{row}, 32, v{row}")
            rdaddr(rG1,row)
            rne(row,2); k(f"v_add_u32 v{row}, 50, v{row}"); rdaddr(rG2,row)
        else:
            rne(row,3); k(f"v_add_u32 v{row}, 55, v{row}"); rdaddr(rG1,row)
            k(f"v_add_u32 v{row}, 3, v{row}"); rdaddr(rG2,row)
        tab=table_role0 if role==0 else table_role1
        st.mark(k,1)
        tab(0)
        st.mark(k,2)
        k.barrier()
        kmfma(role,0)
        m2=V.mark(); u_stage(); V.reset(m2)
        k.barrier()
        tab(1)
        k.barrier()
        kmfma(role,1)
        st.mark(k,3)
        k.barrier()
        vK=vt3
        k(f"v_lshlrev_b32 v{vK}, 5, v{vI}")
        k(f"v_lshl_add_u32 v{vK}, v{vQ}, 3, v{vK}")
        k(f"v_add_u32 v{vK}, s{sTab}, v{vK}")
        if role==0:
            k(f"v_add_f32 v{acc}, v{acc}, v{vDs}")
            k(f"v_lshlrev_b32 v{vt}, 3, v{vL}")
            k(f"v_add_u32 v{vt}, s{sTab}, v{vt}")
            k(f"ds_write_b64 v{vt}, v[{z4}:{z4+1}]")
            k(f"ds_write_b64 v{vt}, v[{z4}:{z4+1}] offset:{P1}")
        kp=V(8,2)
        for T in range(4):
            k(f"v_cvt_pk_bf16_f32 v{kp+2*T}, v{acc+4*T}, v{acc+4*T+1}")
            k(f"v_cvt_pk_bf16_f32 v{kp+2*T+1}, v{acc+4*T+2}, v{acc+4*T+3}")
        for T in range(4):
            TT=4*role+T
            k(f"ds_write_b64 v{vK}, v[{kp+2*T}:{kp+2*T+1}] offset:{512*TT+464}")
            k(f"ds_write_b64 v{vK}, v[{kp+2*T}:{kp+2*T+1}] offset:{P1+512*TT+456}")
        k(f"v_and_b32 v{vt}, 3, v{vI}")
        k(f"v_mul_u32_u24 v{vA}, {UC}, v{vt}")
        k(f"v_lshrrev_b32 v{vt}, 2, v{vI}")
        k(f"v_sub_u32 v{vt}, v{vQ}, v{vt}")
        k(f"v_add_u32 v{vt}, 3, v{vt}")
        k(f"v_lshl_add_u32 v{vA}, v{vt}, 4, v{vA}")
        k(f"v_add_u32 v{vA}, s{sCB}, v{vA}")
        k(f"v_lshrrev_b32 v{vt}, 1, v{vI}")
        k(f"v_lshlrev_b32 v{vB}, 6, v{vt}")
        k(f"v_lshl_add_u32 v{vB}, v{vQ}, 4, v{vB}")
        k(f"v_and_b32 v{vt}, 1, v{vI}")
        k(f"v_mul_u32_u24 v{vt}, {P1-16}, v{vt}")
        k(f"v_sub_u32 v{vt}, {P1}, v{vt}")
        k(f"v_add3_u32 v{vB}, v{vB}, v{vt}, s{sTab}")
        k.barrier()
        V.reset(mark0)
        y=V(32,4)
        S=[V(64,4),V(64,4)]
        def loads(r,s):
            L=[]
            for c in range(8):
                L.append(f"ds_read_b128 v[{s+4*c}:{s+4*c+3}], v{vA} offset:{64*(56+r-8*c)}")
                L.append(f"ds_read_b128 v[{s+32+4*c}:{s+32+4*c+3}], v{vB} offset:{64*(r+8*c)}")
            return L
        classes=[4*role+i for i in range(4)]
        for l in loads(classes[0],S[0]): k(l)
        started=set()
        for ci,r in enumerate(classes):
            s=S[ci&1]
            nxt=loads(classes[ci+1],S[(ci+1)&1]) if ci+1<4 else []
            order=[]
            for d in range(8):
                for a in range(8):
                    for c in range(8):
                        if max(a,c)==d and a+c<=7: order.append((a,c))
            n=0
            for (a,c) in order:
                i=a+c
                cin="0" if i not in started else f"v[{y+4*i}:{y+4*i+3}]"
                started.add(i)
                k(f"v_mfma_f32_16x16x32_bf16 v[{y+4*i}:{y+4*i+3}], v[{s+4*c}:{s+4*c+3}], v[{s+32+4*a}:{s+32+4*a+3}], {cin}")
                n+=1
                if nxt and n>=4 and n%2==0: k(nxt.pop(0))
            for l in nxt: k(l)
        st.mark(k,4)
        k.barrier()
        vXw=vt3
        k(f"v_lshlrev_b32 v{vt}, 4, v{vL}")
        k(f"s_lshl_b32 s{sA}, s{sW}, 13")
        k(f"v_add_u32 v{vXw}, s{sA}, v{vt}")
        for i in range(8):
            k(f"ds_write_b128 v{vXw}, v[{y+4*i}:{y+4*i+3}] offset:{1024*i}")
        k(f"s_lshl_b32 s{sA}, s{sW}, 11")
        k(f"v_add_u32 v{vXw}, s{sA}, v{vt}")
        k.barrier()
        rr=S[0]
        for ii in range(2):
            for sw in range(4):
                k(f"ds_read_b128 v[{rr+16*ii+4*sw}:{rr+16*ii+4*sw+3}], v{vXw} offset:{sw*8192+ii*1024}")
        vS=vA
        k(f"v_lshrrev_b32 v{vt}, 1, v{vI}")
        k(f"v_lshlrev_b32 v{vS}, 7, v{vt}")
        k(f"v_lshl_add_u32 v{vS}, v{vQ}, 5, v{vS}")
        k(f"v_and_b32 v{vt}, 1, v{vI}")
        k(f"v_lshl_add_u32 v{vS}, v{vt}, 4, v{vS}")
        k(f"s_lshl_b32 s{sA}, s{sD0}, 12")
        k(f"s_lshl_b32 s{sB}, s{sW}, 11")
        k(f"s_add_u32 s{sA}, s{sA}, s{sB}")
        k(f"s_add_u32 s{sA}, s{sA}, {WS_B}")
        for ii in range(2):
            b=rr+16*ii
            for j in range(4):
                k(f"v_add_f32 v{b+j}, v{b+j}, v{b+4+j}")
                k(f"v_add_f32 v{b+8+j}, v{b+8+j}, v{b+12+j}")
            for j in range(4):
                k(f"v_cvt_pk_bf16_f32 v{b+4+j}, v{b+j}, v{b+8+j}")
            k(f"buffer_store_dwordx4 v[{b+4}:{b+7}], v{vS}, s[{srdWS}:{srdWS+3}], s{sA} offen offset:{1024*ii}")
        st.mark(k,5)
        st.finish(k,sWS,sW,y)
        k("s_endpgm")
    return V.hi
```

```python
from dsl import *
from common import *

def gen_k2(name="fin_kernel", stamp=False):
    k = Kern()
    S = Stamper(stamp,1)
    V = Alloc("v", 1, 256)
    sOUT=4; sWS=6; srdW=8; srdO=12; sW=16; sTB=17; sDB=18; sT=19; sA=20; sB=21
    k(f"s_cmp_ge_u32 s2, 256")
    k(f"s_cbranch_scc1 L_{name}_end")
    S.start(k); S.mark(k,6)
    k(f"s_load_dwordx2 s[{sOUT}:{sOUT+1}], s[0:1], {KA['out']}")
    k(f"s_load_dwordx2 s[{sWS}:{sWS+1}], s[0:1], {KA['ws']}")
    vLane=V(); vT=V(); vH=V(); vPhi=V(); vKv=V(4); vB=V(); vG=V(); vO=V(); vtmp=V(); vtmp2=V()
    k(f"v_lshrrev_b32 v{vtmp}, 6, v0")
    k(f"v_and_b32 v{vLane}, 63, v0")
    k(f"v_readfirstlane_b32 s{sW}, v{vtmp}")
    k(f"v_and_b32 v{vT}, 31, v{vLane}")
    k(f"v_lshrrev_b32 v{vH}, 5, v{vLane}")
    k(f"v_lshlrev_b32 v{vPhi}, 4, v{vLane}")
    k(f"s_and_b32 s{sA}, s2, 7")
    k(f"s_lshr_b32 s{sB}, s2, 5")
    k(f"s_lshl_b32 s{sB}, s{sB}, 3")
    k(f"s_or_b32 s{sTB}, s{sA}, s{sB}")
    k(f"s_lshr_b32 s{sDB}, s2, 3")
    k(f"s_and_b32 s{sDB}, s{sDB}, 3")
    k(f"v_lshlrev_b32 v{vtmp}, 4, v{vT}")
    k(f"v_lshl_add_u32 v{vtmp}, v{vH}, 8, v{vtmp}")
    k(f"v_lshlrev_b32 v{vtmp2}, 4, v{vH}")
    k(f"v_add_u32 v{vtmp2}, 2048, v{vtmp2}")
    k(f"v_cmp_gt_u32 vcc, 16, v{vT}")
    k(f"v_cndmask_b32 v{vKv}, v{vtmp2}, v{vtmp}, vcc")
    k(f"v_mov_b32 v{vtmp}, 512")
    k(f"v_mov_b32 v{vtmp2}, 32")
    k(f"v_cndmask_b32 v{vtmp}, v{vtmp2}, v{vtmp}, vcc")
    for u in range(1,4): k(f"v_add_u32 v{vKv+u}, v{vKv+u-1}, v{vtmp}")
    k(f"v_lshlrev_b32 v{vB}, 14, v{vH}")
    k(f"v_lshl_add_u32 v{vB}, v{vT}, 2, v{vB}")
    k(f"v_lshlrev_b32 v{vG}, 2, v{vT}")
    k(f"v_lshlrev_b32 v{vO}, 10, v{vT}")
    k(f"v_lshl_add_u32 v{vO}, v{vH}, 4, v{vO}")
    k("s_waitcnt lgkmcnt(0)")
    k(f"s_mov_b32 s{srdW}, s{sWS}")
    k(f"s_and_b32 s{srdW+1}, s{sWS+1}, 0xffff")
    k(f"s_mov_b32 s{srdW+2}, {WS_SIZE}")
    k(f"s_mov_b32 s{srdW+3}, 0x20000")
    sPhi=22; sKv=23; sWo=24; sBb=25; sG=26; sOo=27
    k(f"s_lshl_b32 s{sA}, s{sTB}, 16")
    k(f"s_lshl_b32 s{sB}, s{sW}, 14")
    k(f"s_add_u32 s{sPhi}, s{sA}, s{sB}")
    k(f"s_mul_i32 s{sKv}, s{sW}, {8*KVH}")
    k(f"s_add_u32 s{sKv}, s{sKv}, {WS_KV}")
    k(f"s_lshl_b32 s{sA}, s{sDB}, 2")
    k(f"s_add_u32 s{sA}, s{sA}, s{sW}")
    k(f"s_lshl_b32 s{sWo}, s{sA}, 15")
    k(f"s_add_u32 s{sWo}, s{sWo}, {WS_WO}")
    k(f"s_lshl_b32 s{sBb}, s{sA}, 17")
    k(f"s_lshl_b32 s{sB}, s{sTB}, 7")
    k(f"s_add_u32 s{sBb}, s{sBb}, s{sB}")
    k(f"s_add_u32 s{sBb}, s{sBb}, {WS_B}")
    k(f"s_add_u32 s{sG}, s{sB}, {WS_G}")
    k(f"s_lshl_b32 s{sOo}, s{sTB}, 15")
    k(f"s_lshl_b32 s{sB}, s{sA}, 6")
    k(f"s_add_u32 s{sOo}, s{sOo}, s{sB}")
    phi = [V(8,4) for _ in range(8)]
    kvf = [V(16,4) for _ in range(8)]
    for hh in range(8):
        if hh%2==0:
            k(f"s_add_u32 s{sT}, s{sPhi}, {hh*2048}")
        for s in range(2):
            k(f"buffer_load_dwordx4 v[{phi[hh]+4*s}:{phi[hh]+4*s+3}], v{vPhi}, s[{srdW}:{srdW+3}], s{sT} offen offset:{(hh%2)*2048+s*1024}")
        if hh%2==0:
            k(f"s_add_u32 s{sA}, s{sKv}, {hh*KVH}")
        for q in range(4):
            k(f"buffer_load_dwordx4 v[{kvf[hh]+4*q}:{kvf[hh]+4*q+3}], v{vKv+q}, s[{srdW}:{srdW+3}], s{sA} offen offset:{(hh%2)*KVH}")
    for c in range(32):
        if c%4==0: k(f"s_add_u32 s{sT}, s{sWo}, {c*1024}")
        k(f"buffer_load_dwordx4 a[{4*c}:{4*c+3}], v{vPhi}, s[{srdW}:{srdW+3}], s{sT} offen offset:{(c%4)*1024}")
    bdw = V(8,2); vg=V()
    for i in range(4):
        for u in range(2):
            k(f"s_add_u32 s{sT}, s{sBb}, {(4*i+u)*8192}")
            k(f"buffer_load_dword v{bdw+2*i+u}, v{vB}, s[{srdW}:{srdW+3}], s{sT} offen")
    k(f"buffer_load_dword v{vg}, v{vG}, s[{srdW}:{srdW+3}], s{sG} offen")
    k(f"s_mov_b32 s{srdO}, s{sOUT}")
    k(f"s_and_b32 s{srdO+1}, s{sOUT+1}, 0xffff")
    k(f"s_mov_b32 s{srdO+2}, {2048*512*2}")
    k(f"s_mov_b32 s{srdO+3}, 0x20000")
    vOw=V()
    k(f"s_lshl_b32 s{sA}, s{sW}, 13")
    k(f"v_add_u32 v{vOw}, s{sA}, v{vPhi}")
    D=[V(16,4),V(16,4)]
    def p1_mfma(hh):
        f=kvf[hh]; d=D[hh%2]
        for q in range(8):
            k(f"v_cvt_pk_bf16_f32 v{f+q}, v{kvf[hh]+2*q}, v{kvf[hh]+2*q+1}")
        k(f"v_mfma_f32_32x32x16_bf16 v[{d}:{d+15}], v[{f}:{f+3}], v[{phi[hh]}:{phi[hh]+3}], 0")
        k(f"v_mfma_f32_32x32x16_bf16 v[{d}:{d+15}], v[{f+4}:{f+7}], v[{phi[hh]+4}:{phi[hh]+7}], v[{d}:{d+15}]")
    of=V(4,4)
    def p1_fin(hh):
        d=D[hh%2]
        k(f"v_add_f32 v{vtmp}, 0x358637bd, v{d+8}")
        k(f"v_rcp_f32 v{vtmp}, v{vtmp}")
        for j in range(8):
            k(f"v_mul_f32 v{d+j}, v{d+j}, v{vtmp}")
        for j in range(4):
            k(f"v_cvt_pk_bf16_f32 v{of+j}, v{d+2*j}, v{d+2*j+1}")
        k(f"ds_write_b128 v{vOw}, v[{of}:{of+3}] offset:{hh*1024}")
    S.mark(k,1)
    p1_mfma(0)
    for hh in range(8):
        if hh+1<8: p1_mfma(hh+1)
        p1_fin(hh)
    S.mark(k,2)
    k.barrier()
    S.mark(k,3)
    acc=D[0]
    ob=[phi[0]+4*i for i in range(8)]
    def rd(c): k(f"ds_read_b128 v[{ob[c%8]}:{ob[c%8]+3}], v{vPhi} offset:{c*1024}")
    for c in range(8): rd(c)
    for c in range(32):
        cin = "0" if c==0 else f"v[{acc}:{acc+15}]"
        k(f"v_mfma_f32_32x32x16_bf16 v[{acc}:{acc+15}], a[{4*c}:{4*c+3}], v[{ob[c%8]}:{ob[c%8]+3}], {cin}")
        if c+8<32: rd(c+8)
    S.mark(k,4)
    vomg=vtmp2; bl=kvf[0]; od=kvf[1]
    k(f"v_sub_f32 v{vomg}, 1.0, v{vg}")
    k(f"v_cvt_pk_bf16_f32 v{vomg}, v{vomg}, v{vomg}")
    k(f"v_lshlrev_b32 v{vomg}, 16, v{vomg}")
    for q in range(8):
        k(f"v_lshlrev_b32 v{bl+2*q}, 16, v{bdw+q}")
        k(f"v_and_b32 v{bl+2*q+1}, 0xffff0000, v{bdw+q}")
    for r in range(16):
        k(f"v_mul_f32 v{bl+r}, v{vomg}, v{bl+r}")
    for r in range(16):
        k(f"v_fmac_f32 v{bl+r}, v{vg}, v{acc+r}")
    for q in range(8):
        k(f"v_cvt_pk_bf16_f32 v{od+q}, v{bl+2*q}, v{bl+2*q+1}")
    for p in range(2):
        b=od+4*p
        k(f"v_permlane32_swap_b32 v{b}, v{b+2}")
        k(f"v_permlane32_swap_b32 v{b+1}, v{b+3}")
        k(f"buffer_store_dwordx4 v[{b}:{b+3}], v{vO}, s[{srdO}:{srdO+3}], s{sOo} offen offset:{32*p}")
    S.mark(k,5)
    S.finish(k,sWS,sW,phi[0])
    k.label(f"L_{name}_end")
    k("s_endpgm")
    assert V.hi<=256
    txt = head(name)+k.text()+kd(name, 256+128, 102 if stamp else 32, 256)
    return txt
if __name__=="__main__":
    print(gen_k2())
```

```python
import sys
sys.path.insert(0,"gen")
from k1 import gen_k1
from k2 import gen_k2
from build import build
L=[("mix_kernel",256,512,163840),("fin_kernel",256,256,32768+4*17408+8192)]
build([gen_k1(stamp=True),gen_k2(stamp=True)],L,"full_st.s")
build([gen_k1(),gen_k2()],L,"full.s")
build([gen_k1(stamp=True,with_b=False),gen_k2(stamp=True)],L,"aonly_st.s")
build([gen_k1(stamp=True,with_a=False),gen_k2(stamp=True)],L,"bonly_st.s")
```

```python
from dsl import *
from common import *
import os
DBG=os.environ.get('DBG','')
TP=eval(os.environ.get('TP','(0,3,3)'))
NTB=int(os.environ.get('TB','1'))
MK=eval(os.environ.get('MK','{0:2,1:3,2:4,4:5}'))

sX=4; sWQ=6; sWPHI=8; sWO=10; sLA=14; sAI=16; sCR=18; sCI=20; sLDT=22; sDS=24; sGW=26; sOUT=28; sDBG=30; sWS=32
sW=34
sXCD=35; sIDX=36
srdX=40; srdWq=44; srdWS=48; srdKV=52; srdDBG=56; srdT=60
L_WPHI=0
L_WR=1024; WSL=12288; NWS=3
L_XR=L_WR+NWS*WSL; XSL=8192; NXS=5
K1_LDS=81920
LOG2E=0x3fb8aa3b; NLOG2E=0xbfb8aa3b
RED_BASE=[L_WR, L_WR+4352, L_WR+2*WSL, L_WR+2*WSL+4352]

def mk_srd(k,srd,ptr,size):
    k(f"s_mov_b32 s{srd}, s{ptr}")
    k(f"s_and_b32 s{srd+1}, s{ptr+1}, 0xffff")
    k(f"s_mov_b32 s{srd+2}, {size}")
    k(f"s_mov_b32 s{srd+3}, 0x20000")

def softmax2(k, blocks, tmp, sL2E, fill=None):
    nb=len(blocks)
    def each(f):
        for b in range(nb): f(b,*blocks[b])
    T=[tmp+4*b for b in range(nb)]
    each(lambda b,p,o: k(f"v_max3_f32 v{T[b]}, v{p}, v{p+1}, v{p+2}"))
    for u in range(6):
        each(lambda b,p,o: k(f"v_max3_f32 v{T[b]}, v{T[b]}, v{p+3+2*u}, v{p+4+2*u}"))
    each(lambda b,p,o: k(f"v_max_f32 v{T[b]}, v{T[b]}, v{p+15}"))
    each(lambda b,p,o: k(f"v_mul_f32 v{T[b]}, {NLOG2E:#x}, v{T[b]}"))
    for u in range(8):
        each(lambda b,p,o: k(f"v_pk_fma_f32 v[{p+2*u}:{p+2*u+1}], v[{p+2*u}:{p+2*u+1}], s[{sL2E}:{sL2E+1}], v[{T[b]}:{T[b]+1}] op_sel_hi:[1,1,0]"))
    for u in range(16):
        each(lambda b,p,o: k(f"v_exp_f32 v{p+u}, v{p+u}"))
    S=[t+2 for t in T]
    each(lambda b,p,o: k(f"v_pk_add_f32 v[{S[b]}:{S[b]+1}], v[{p}:{p+1}], v[{p+2}:{p+3}]"))
    for u in range(2,8):
        each(lambda b,p,o: k(f"v_pk_add_f32 v[{S[b]}:{S[b]+1}], v[{S[b]}:{S[b]+1}], v[{p+2*u}:{p+2*u+1}]"))
    each(lambda b,p,o: k(f"v_add_f32 v{T[b]}, v{S[b]}, v{S[b]+1}"))
    each(lambda b,p,o: k(f"v_rcp_f32 v{T[b]}, v{T[b]}"))
    for u in range(8):
        each(lambda b,p,o: k(f"v_pk_mul_f32 v[{p+2*u}:{p+2*u+1}], v[{p+2*u}:{p+2*u+1}], v[{T[b]}:{T[b]+1}] op_sel_hi:[1,0]"))
    for u in range(8):
        each(lambda b,p,o: k(f"v_cvt_pk_bf16_f32 v{o+u}, v{p+2*u}, v{p+2*u+1}"))

def gen_a(k, name, st):
    V=Alloc("v",1,256)
    sTT=37; sHP=38; sT=39; sA=64; sB=65; sX0=66; sWo_=68; sMx=69; sMw=70
    sL2E=74; sMaskLo=76; sEx=78; sTick=80; sPhiO=81; sGo=82; sE=83; sFirst=84
    k.label(f"L_{name}_A")
    k(f"s_and_b32 s{sA}, s{sXCD}, 3")
    k(f"s_lshl_b32 s{sA}, s{sA}, 2")
    k(f"s_and_b32 s{sB}, s{sIDX}, 3")
    k(f"s_add_u32 s{sTT}, s{sA}, s{sB}")
    k(f"s_lshr_b32 s{sA}, s{sXCD}, 2")
    k(f"s_lshl_b32 s{sA}, s{sA}, 3")
    k(f"s_lshr_b32 s{sB}, s{sIDX}, 2")
    k(f"s_add_u32 s{sHP}, s{sA}, s{sB}")
    vL=V(); vXg=V(); vWg=V(3); vt=V(); vt2=V(); vt3=V()
    k(f"v_and_b32 v{vL}, 63, v0")
    k(f"v_lshrrev_b32 v{vt}, 4, v{vL}")
    k(f"v_xor_b32 v{vt}, v{vt}, v{vL}")
    k(f"v_and_b32 v{vt}, 3, v{vt}")
    k(f"v_lshlrev_b32 v{vt}, 4, v{vt}")
    k(f"v_lshrrev_b32 v{vt2}, 2, v{vL}")
    k(f"v_lshl_add_u32 v{vXg}, v{vt2}, 10, v{vt}")
    for i in range(3):
        k(f"v_add_u32 v{vt3}, {64*i}, v{vL}")
        k(f"v_mul_u32_u24 v{vt}, 171, v{vt3}")
        k(f"v_lshrrev_b32 v{vt}, 11, v{vt}")
        k(f"v_mul_u32_u24 v{vt2}, 12, v{vt}")
        k(f"v_sub_u32 v{vt2}, v{vt3}, v{vt2}")
        k(f"v_mul_u32_u24 v{vWg+i}, 3072, v{vt}")
        k(f"v_lshrrev_b32 v{vt3}, 2, v{vt2}")
        k(f"v_lshl_add_u32 v{vWg+i}, v{vt3}, 10, v{vWg+i}")
        k(f"v_and_b32 v{vt2}, 3, v{vt2}")
        k(f"v_lshl_add_u32 v{vWg+i}, v{vt2}, 4, v{vWg+i}")
    k(f"s_lshl_b32 s{sX0}, s{sTT}, 17")
    k(f"s_lshl_b32 s{sA}, s{sW}, 15")
    k(f"s_add_u32 s{sX0}, s{sX0}, s{sA}")
    k(f"s_mul_i32 s{sWo_}, s{sW}, {16*3072}")
    k(f"s_lshl_b32 s{sA}, s{sHP}, 6")
    k(f"s_add_u32 s{sWo_}, s{sWo_}, s{sA}")
    k(f"s_lshl_b32 s{sMx}, s{sW}, 11")
    k(f"s_add_u32 s{sMx}, s{sMx}, {L_XR}")
    k(f"s_mul_i32 s{sMw}, s{sW}, 3072")
    k(f"s_add_u32 s{sMw}, s{sMw}, {L_WR}")
    sXk=71; sWk=72; sXc=73; sWc=85
    k(f"s_lshr_b32 s{sA}, s{sIDX}, 2")
    k(f"s_and_b32 s{sB}, s{sIDX}, 3")
    k(f"s_lshl_b32 s{sB}, s{sB}, 1")
    k(f"s_add_u32 s{sA}, s{sA}, s{sB}")
    k(f"s_and_b32 s{sA}, s{sA}, 7")
    if 'N' in DBG: k(f"s_mov_b32 s{sA}, 0")
    k(f"s_lshl_b32 s{sXk}, s{sA}, 7")
    k(f"s_mul_i32 s{sWk}, s{sA}, {64*3072}")
    k("s_waitcnt lgkmcnt(0)")
    mk_srd(k,srdX,sX,2048*512*2)
    mk_srd(k,srdWq,sWQ,512*1536*2)
    def dma_x_l(S):
        L=[]
        for i in range(2):
            for hf in range(2):
                slot=(2*S+hf)%NXS; g=[]
                if i==0 and hf==0:
                    if S>0:
                        g.append((f"s_add_u32 s{sXk}, s{sXk}, 128",None))
                        g.append((f"s_and_b32 s{sXk}, s{sXk}, 0x3ff",None))
                    g.append((f"s_add_u32 s{sXc}, s{sX0}, s{sXk}",None))
                g+=[(f"s_add_u32 m0, s{sMx}, {slot*XSL+i*1024}",None),
                    (f"s_add_u32 s{sT}, s{sXc}, {hf*64+i*16384}",None),
                    (f"buffer_load_dwordx4 v{vXg}, s[{srdX}:{srdX+3}], s{sT} offen lds",f"x{S}")]
                L.append(g)
        return L
    def dma_w_l(S):
        slot=S%NWS; L=[]
        for i in range(3):
            g=[]
            if i==0:
                if S>0:
                    g.append((f"s_add_u32 s{sWk}, s{sWk}, {64*3072}",None))
                    g.append((f"s_cmp_eq_u32 s{sWk}, {512*3072}",None))
                    g.append((f"s_cselect_b32 s{sWk}, 0, s{sWk}",None))
                g.append((f"s_add_u32 s{sWc}, s{sWo_}, s{sWk}",None))
            g.append((f"s_add_u32 m0, s{sMw}, {slot*WSL+i*1024}",None))
            g.append(("s_nop 0",None))
            g.append((f"buffer_load_dwordx4 v{vWg+i}, s[{srdWq}:{srdWq+3}], s{sWc} offen lds",f"w{S}"))
            L.append(g)
        return L
    def emit_g(g):
        for (t,tag) in g: k(t,tag=tag)
    def dma_x(S):
        for g in dma_x_l(S): emit_g(g)
    def dma_w(S):
        for g in dma_w_l(S): emit_g(g)
    dma_x(0); dma_w(0)
    if 1 not in MK.values(): st.mark(k,1)
    gx=V(8,4); gw=V(8,4); vGa=V(); vGw=V()
    k(f"v_and_b32 v{vt}, 31, v{vL}")
    k(f"v_lshlrev_b32 v{vGw}, 5, v{vt}")
    k(f"v_lshrrev_b32 v{vt}, 5, v{vL}")
    k(f"v_lshl_add_u32 v{vGa}, v{vt}, 10, v{vGw}")
    k(f"s_lshl_b32 s{sA}, s{sTT}, 7")
    k(f"s_lshl_b32 s{sB}, s{sHP}, 3")
    k(f"s_add_u32 s{sA}, s{sA}, s{sB}")
    k(f"s_lshl_b32 s{sB}, s{sW}, 1")
    k(f"s_add_u32 s{sGo}, s{sA}, s{sB}")
    k(f"global_load_dwordx4 v[{gw}:{gw+3}], v{vGw}, s[{sGW}:{sGW+1}]")
    k(f"global_load_dwordx4 v[{gw+4}:{gw+7}], v{vGw}, s[{sGW}:{sGW+1}] offset:16")
    mk_srd(k,srdDBG,sDBG,256)
    mk_srd(k,srdT,sWPHI,32*512)
    mk_srd(k,srdWS,sWS,WS_SIZE)
    vZ=V(); vL16=V()
    k(f"v_mov_b32 v{vZ}, 0")
    k(f"v_lshlrev_b32 v{vL16}, 4, v{vL}")
    k(f"s_lshl_b32 s{sT}, s{sHP}, 10")
    k(f"s_mov_b32 m0, {L_WPHI}")
    k(f"s_lshl_b32 s{sA}, s{sHP}, 2")
    k(f"buffer_load_dwordx4 v{vL16}, s[{srdT}:{srdT+3}], s{sT} offen lds", tag="wphi")
    k(f"s_mov_b32 s{sL2E}, {LOG2E:#x}")
    k(f"s_mov_b32 s{sL2E+1}, {LOG2E:#x}")
    k(f"s_mov_b32 s{sMaskLo}, 0x0000ffff")
    k(f"s_mov_b32 s{sMaskLo+1}, 0x0000ffff")
    k(f"s_or_b32 s{sA}, s{sTT}, s{sW}")
    k(f"s_cmp_eq_u32 s{sA}, 0")
    k(f"s_cselect_b32 s{sFirst}, 1, 0")
    vM=V(); vH=V()
    k(f"v_and_b32 v{vM}, 31, v{vL}")
    k(f"v_lshrrev_b32 v{vH}, 5, v{vL}")
    vXr=V(2); vWr=V()
    k(f"v_lshrrev_b32 v{vt}, 2, v{vM}")
    k(f"v_and_b32 v{vt}, 3, v{vt}")
    k(f"v_xor_b32 v{vt}, v{vt}, v{vH}")
    k(f"v_lshlrev_b32 v{vt}, 4, v{vt}")
    k(f"v_lshl_add_u32 v{vXr}, v{vM}, 6, v{vt}")
    k(f"v_add_u32 v{vXr}, s{sMx}, v{vXr}")
    k(f"v_xor_b32 v{vXr+1}, 32, v{vXr}")
    k(f"v_bfe_u32 v{vt}, v{vL}, 2, 2")
    k(f"v_lshl_add_u32 v{vt}, v{vH}, 3, v{vt}")
    k(f"v_mul_u32_u24 v{vWr}, 192, v{vt}")
    k(f"v_bfe_u32 v{vt}, v{vL}, 4, 1")
    k(f"v_lshl_add_u32 v{vWr}, v{vt}, 5, v{vWr}")
    k(f"v_and_b32 v{vt}, 3, v{vL}")
    k(f"v_lshl_add_u32 v{vWr}, v{vt}, 3, v{vWr}")
    k(f"v_add_u32 v{vWr}, {L_WR}, v{vWr}")
    I=V(8,4)
    for s in range(2):
        k(f"v_lshlrev_b32 v{vt}, 4, v{vH}")
        k(f"v_sub_u32 v{vt}, v{vM}, v{vt}")
        if s: k(f"v_subrev_u32 v{vt}, 8, v{vt}")
        k(f"v_and_b32 v{vt2}, 1, v{vt}")
        k(f"v_lshlrev_b32 v{vt2}, 4, v{vt2}")
        k(f"v_mov_b32 v{vt3}, 0x3f80")
        k(f"v_lshlrev_b32 v{vt2}, v{vt2}, v{vt3}")
        k(f"v_lshrrev_b32 v{vt}, 1, v{vt}")
        for u in range(4):
            k(f"v_cmp_eq_u32 vcc, {u}, v{vt}")
            k(f"v_cndmask_b32 v{I+4*s+u}, 0, v{vt2}, vcc")
    z4=V(4,4)
    for u in range(4): k(f"v_mov_b32 v{z4+u}, 0")
    accQ=V(16,4); accK=V(16,4); accV=V(16,4)
    F=[V(16,4),V(16,4)]
    def reads(j):
        f=F[j&1]; S=j>>2; ks=j&3
        k(f"ds_read_b128 v[{f}:{f+3}], v{vXr+(ks&1)} offset:{((2*S+(ks>>1))%NXS)*XSL}")
        for seg in range(3):
            for half in range(2):
                k(f"ds_read_b64_tr_b16 v[{f+4+4*seg+2*half}:{f+5+4*seg+2*half}], v{vWr} offset:{(S%NWS)*WSL+ks*3072+half*768+seg*64}")
    def mfmas(j, fill=()):
        f=F[j&1]; fill=list(fill)
        c=lambda a: "0" if j==0 else f"v[{a}:{a+15}]"
        M=[f"v_mfma_f32_32x32x16_bf16 v[{accQ}:{accQ+15}], v[{f+4}:{f+7}], v[{f}:{f+3}], {c(accQ)}",
           f"v_mfma_f32_32x32x16_bf16 v[{accK}:{accK+15}], v[{f+8}:{f+11}], v[{f}:{f+3}], {c(accK)}",
           f"v_mfma_f32_32x32x16_bf16 v[{accV}:{accV+15}], v[{f}:{f+3}], v[{f+12}:{f+15}], {c(accV)}"]
        for m in M:
            k(m)
            if fill: emit_g(fill.pop(0))
        for g in fill: emit_g(g)
    pend=[]
    for j in range(32):
        S=j>>2
        if j%4==0:
            k.wait_tag(f"w{S}")
            k.wait_tag(f"x{S}")
            k("s_barrier")
            if S in MK: st.mark(k,MK[S])
        reads(j)
        if j==0:
            dma_w(1); dma_x(1)
            pend+=dma_w_l(2)
        if j%4==0 and 1<=S and S+2<8: pend+=dma_w_l(S+2)
        if j%4==2 and S+2<8: pend+=dma_x_l(S+2)
        if j>0:
            if j%4==2:
                pass
            take=pend[:2]; pend=pend[2:]
            mfmas(j-1, take)
        if j==1:
            k(f"s_cmp_eq_u32 s{sFirst}, 1")
            k(f"s_cbranch_scc1 L_{name}_A_ev4")
            k.label(f"L_{name}_A_ev4ret")
            vm_ev4=k.vm_total
        if j==21:
            k(f"s_lshl_b32 s{sT}, s{sGo}, 10")
            k(f"buffer_load_dwordx4 v[{gx}:{gx+3}], v{vGa}, s[{srdX}:{srdX+3}], s{sT} offen")
            k(f"buffer_load_dwordx4 v[{gx+4}:{gx+7}], v{vGa}, s[{srdX}:{srdX+3}], s{sT} offen offset:16")
        if j==13:
            vm_ev8=k.vm_total
            k(f"s_cmp_eq_u32 s{sFirst}, 1")
            k(f"s_cbranch_scc1 L_{name}_A_ev8")
            k.label(f"L_{name}_A_ev8ret")
    assert not pend
    mfmas(31)
    vFl=V()
    k(f"s_lshl_b32 s{sE}, s{sHP}, 2")
    k(f"s_add_u32 s{sE}, s{sE}, 64")
    vm_poll0=k.vm_total
    k(f"s_cmp_eq_u32 s{sW}, 0")
    k(f"s_cbranch_scc1 L_{name}_A_poll0")
    k.label(f"L_{name}_A_poll0ret")
    fa,fb=F
    wf=V(8,4); vPhA=V()
    k(f"v_bfe_u32 v{vt}, v{vL}, 2, 2")
    k(f"v_lshl_add_u32 v{vt}, v{vH}, 2, v{vt}")
    k(f"v_lshlrev_b32 v{vPhA}, 5, v{vt}")
    k(f"v_bfe_u32 v{vt2}, v{vL}, 4, 1")
    k(f"v_lshl_add_u32 v{vPhA}, v{vt2}, 4, v{vPhA}")
    k(f"v_bfe_u32 v{vt2}, v{vL}, 1, 1")
    k(f"v_lshl_add_u32 v{vPhA}, v{vt2}, 3, v{vPhA}")
    for hd in range(2):
        k(f"ds_read_b64_tr_b16 v[{wf+4*hd}:{wf+4*hd+1}], v{vPhA} offset:{L_WPHI+512*hd}")
        k(f"ds_read_b64_tr_b16 v[{wf+4*hd+2}:{wf+4*hd+3}], v{vPhA} offset:{L_WPHI+512*hd+256}")
    vSg=V()
    k(f"v_bfe_u32 v{vSg}, v{vL}, 2, 1")
    k(f"v_mul_u32_u24 v{vSg}, 0x8000, v{vSg}")
    k(f"v_lshl_or_b32 v{vSg}, v{vSg}, 16, v{vSg}")
    kb=fa; qb=fa+8; vb=fb
    for u in range(8): k(f"v_cvt_pk_bf16_f32 v{kb+u}, v{accK+2*u}, v{accK+2*u+1}")
    for u in range(8): k(f"v_xor_b32 v{wf+u}, v{wf+u}, v{vSg}")
    pkA=V(16,4); pkB=V(16,4)
    k(f"v_mfma_f32_32x32x16_bf16 v[{pkA}:{pkA+15}], v[{wf}:{wf+3}], v[{kb}:{kb+3}], 0")
    k(f"v_mfma_f32_32x32x16_bf16 v[{pkB}:{pkB+15}], v[{wf+4}:{wf+7}], v[{kb+4}:{kb+7}], 0")
    for u in range(8): k(f"v_cvt_pk_bf16_f32 v{qb+u}, v{accQ+2*u}, v{accQ+2*u+1}")
    pqA=accK; pqB=accQ
    k(f"v_mfma_f32_32x32x16_bf16 v[{pqA}:{pqA+15}], v[{wf}:{wf+3}], v[{qb}:{qb+3}], 0")
    k(f"v_mfma_f32_32x32x16_bf16 v[{pqB}:{pqB+15}], v[{wf+4}:{wf+7}], v[{qb+4}:{qb+7}], 0")
    for u in range(8): k(f"v_cvt_pk_bf16_f32 v{vb+u}, v{accV+2*u}, v{accV+2*u+1}")
    vA_=accV; vB_=accV+8
    ones=V()
    k(f"v_mov_b32 v{ones}, 0x3f803f80")
    for u in range(8): k(f"v_cndmask_b32 v{vA_+u}, v{ones}, v{vb+u}, s[{sMaskLo}:{sMaskLo+1}]")
    for u in range(8): k(f"v_cndmask_b32 v{vB_+u}, v{vb+u}, v{ones}, s[{sMaskLo}:{sMaskLo+1}]")
    phA=V(8,4); phB=V(8,4); tmp=V(8,2)
    softmax2(k,[(pkA,phA),(pkB,phB)],tmp,sL2E)
    TA=pkA; TB=pkB
    k(f"v_mfma_f32_32x32x16_bf16 v[{TA}:{TA+15}], v[{phA}:{phA+3}], v[{I}:{I+3}], 0")
    k(f"v_mfma_f32_32x32x16_bf16 v[{TB}:{TB+15}], v[{phB}:{phB+3}], v[{I}:{I+3}], 0")
    k(f"v_mfma_f32_32x32x16_bf16 v[{TA}:{TA+15}], v[{phA+4}:{phA+7}], v[{I+4}:{I+7}], v[{TA}:{TA+15}]")
    k(f"v_mfma_f32_32x32x16_bf16 v[{TB}:{TB+15}], v[{phB+4}:{phB+7}], v[{I+4}:{I+7}], v[{TB}:{TB+15}]")
    gs=V()
    k(f"v_mov_b32 v{gs}, 0")
    for u in range(8): k(f"v_dot2c_f32_bf16 v{gs}, v{gx+u}, v{gw+u}")
    for n in (8,4,2,1): k(f"v_add_f32_dpp v{gs}, v{gs}, v{gs} row_ror:{n} row_mask:0xf bank_mask:0xf")
    k(f"v_add_f32_dpp v{gs}, v{gs}, v{gs} row_bcast:15 row_mask:0xa bank_mask:0xf")
    k(f"v_cvt_pk_bf16_f32 v{gs}, v{gs}, v{gs}")
    k(f"v_lshlrev_b32 v{gs}, 16, v{gs}")
    k(f"v_mul_f32 v{gs}, {NLOG2E:#x}, v{gs}")
    k(f"v_exp_f32 v{gs}, v{gs}")
    k(f"v_add_f32 v{gs}, 1.0, v{gs}")
    k(f"v_rcp_f32 v{gs}, v{gs}")
    k(f"v_cvt_pk_bf16_f32 v{gs}, v{gs}, v{gs}")
    k(f"v_lshlrev_b32 v{gs}, 16, v{gs}")
    k(f"v_lshlrev_b32 v{vt}, 2, v{vH}")
    k(f"v_bfe_u32 v{vt2}, v{vL}, 4, 1")
    k(f"v_subrev_u32 v{vt2}, 1, v{vt2}")
    k(f"v_and_b32 v{vt2}, 0x80000000, v{vt2}")
    k(f"v_or_b32 v{vt}, v{vt}, v{vt2}")
    k(f"s_lshl_b32 s{sA}, s{sGo}, 2")
    k(f"s_add_u32 s{sA}, s{sA}, {WS_G}")
    k(f"buffer_store_dword v{gs}, v{vt}, s[{srdWS}:{srdWS+3}], s{sA} offen")
    ptA=phA; ptB=phB
    for u in range(8): k(f"v_cvt_pk_bf16_f32 v{ptA+u}, v{TA+2*u}, v{TA+2*u+1}")
    for u in range(8): k(f"v_cvt_pk_bf16_f32 v{ptB+u}, v{TB+2*u}, v{TB+2*u+1}")
    kvA=TA; kvB=TB
    k(f"v_mfma_f32_32x32x16_bf16 v[{kvA}:{kvA+15}], v[{ptA}:{ptA+3}], v[{vA_}:{vA_+3}], 0")
    k(f"v_mfma_f32_32x32x16_bf16 v[{kvB}:{kvB+15}], v[{ptB}:{ptB+3}], v[{vB_}:{vB_+3}], 0")
    k(f"v_mfma_f32_32x32x16_bf16 v[{kvA}:{kvA+15}], v[{ptA+4}:{ptA+7}], v[{vA_+4}:{vA_+7}], v[{kvA}:{kvA+15}]")
    k(f"v_mfma_f32_32x32x16_bf16 v[{kvB}:{kvB+15}], v[{ptB+4}:{ptB+7}], v[{vB_+4}:{vB_+7}], v[{kvB}:{kvB+15}]")
    vRb=V(2); vSt=V(2); vRa=V(8)
    k(f"v_and_b32 v{vt}, 15, v{vM}")
    k(f"v_lshlrev_b32 v{vt}, 4, v{vt}")
    k(f"v_lshl_add_u32 v{vt}, v{vH}, 9, v{vt}")
    k(f"v_lshlrev_b32 v{vt2}, 5, v{vH}")
    k(f"v_add_u32 v{vt2}, 2048, v{vt2}")
    k(f"s_and_b32 s{sA}, s{sW}, 1")
    k(f"s_mul_i32 s{sA}, s{sA}, 4352")
    k(f"s_lshr_b32 s{sB}, s{sW}, 1")
    k(f"s_mul_i32 s{sB}, s{sB}, {2*WSL}")
    k(f"s_add_u32 s{sA}, s{sA}, s{sB}")
    k(f"s_add_u32 s{sA}, s{sA}, {L_WR}")
    k(f"v_cndmask_b32 v{vRb}, v{vt2}, v{vt}, s[{sMaskLo}:{sMaskLo+1}]")
    k(f"v_cndmask_b32 v{vRb+1}, v{vt}, v{vt2}, s[{sMaskLo}:{sMaskLo+1}]")
    k(f"v_add_u32 v{vRb}, s{sA}, v{vRb}")
    k(f"v_add_u32 v{vRb+1}, s{sA}, v{vRb+1}")
    k(f"v_mov_b32 v{vt}, 256")
    k(f"v_mov_b32 v{vt2}, 16")
    k(f"v_cndmask_b32 v{vSt}, v{vt2}, v{vt}, s[{sMaskLo}:{sMaskLo+1}]")
    k(f"v_cndmask_b32 v{vSt+1}, v{vt}, v{vt2}, s[{sMaskLo}:{sMaskLo+1}]")
    for hd in range(2):
        for i in range(4):
            c=4*(i&1)+(i>>1)
            k(f"v_mad_u32_u24 v{vRa+4*hd+i}, v{vSt+hd}, {c}, v{vRb+hd}")
    for hd,kvr in ((0,kvA),(1,kvB)):
        for i in range(4):
            k(f"ds_write_b128 v{vRa+4*hd+i}, v[{kvr+4*i}:{kvr+4*i+3}] offset:{hd*KVH}")
    vm_poll=k.vm_total
    k(f"s_cmp_eq_u32 s{sW}, 0")
    k(f"s_cbranch_scc1 L_{name}_A_poll")
    k.label(f"L_{name}_A_flagok")
    k(f"s_mul_i32 s{sA}, s{sHP}, {2*KVH}")
    k(f"s_add_u32 s{sA}, s{sA}, {WS_KV}")
    k(f"s_add_u32 s{srdKV}, s{sWS}, s{sA}")
    k(f"s_addc_u32 s{srdKV+1}, s{sWS+1}, 0")
    k(f"s_and_b32 s{srdKV+1}, s{srdKV+1}, 0xffff")
    k(f"s_mov_b32 s{srdKV+2}, {2*KVH}")
    k(f"s_mov_b32 s{srdKV+3}, 0x20000")
    vE=vRb
    k(f"v_lshlrev_b32 v{vE}, 2, v0")
    k.barrier()
    rd=accV; rd2=fb
    for u in range(5):
        for w in range(4):
            k(f"ds_read_b32 v{rd+4*u+w if u<4 else rd2+w}, v{vE} offset:{RED_BASE[w]+1024*u}")
    for u in range(5):
        b=rd+4*u if u<4 else rd2
        k(f"v_add_f32 v{b}, v{b}, v{b+1}")
        k(f"v_add_f32 v{b+2}, v{b+2}, v{b+3}")
        k(f"v_add_f32 v{b}, v{b}, v{b+2}")
        if u<4: k(f"buffer_atomic_add_f32 v{b}, v{vE}, s[{srdKV}:{srdKV+3}], 0 offen offset:{1024*u} sc1")
        else:
            k(f"v_add_u32 v{vt}, 4096, v{vE}")
            k(f"buffer_atomic_add_f32 v{b}, v{vt}, s[{srdKV}:{srdKV+3}], 0 offen sc1")
    pq_o=gx
    assert gw==gx+8
    softmax2(k,[(pqA,pq_o),(pqB,pq_o+8)],tmp,sL2E)
    k(f"s_lshl_b32 s{sPhiO}, s{sTT}, 2")
    k(f"s_add_u32 s{sPhiO}, s{sPhiO}, s{sW}")
    k(f"s_lshl_b32 s{sPhiO}, s{sPhiO}, 16")
    k(f"s_lshl_b32 s{sA}, s{sHP}, 12")
    k(f"s_add_u32 s{sPhiO}, s{sPhiO}, s{sA}")
    for q in range(4):
        k(f"buffer_store_dwordx4 v[{pq_o+4*q}:{pq_o+4*q+3}], v{vL16}, s[{srdWS}:{srdWS+3}], s{sPhiO} offen offset:{q*1024}")
    st.finish(k,sWS,sW,accQ)
    k("s_endpgm")
    k.auto=False
    k.label(f"L_{name}_A_ev4")
    k(f"s_mul_i32 s{sA}, s{sHP}, {2*KVH}")
    k(f"s_add_u32 s{sA}, s{sA}, {WS_KV}")
    for u in range(5):
        if u<4:
            k(f"buffer_store_dwordx4 v[{z4}:{z4+3}], v{vL16}, s[{srdWS}:{srdWS+3}], s{sA} offen offset:{u*1024} sc1")
        else:
            k(f"s_add_u32 s{sA}, s{sA}, 4096")
            k(f"s_mov_b64 exec, 0xffff")
            k(f"buffer_store_dwordx4 v[{z4}:{z4+3}], v{vL16}, s[{srdWS}:{srdWS+3}], s{sA} offen sc1")
            k(f"s_mov_b64 exec, -1")
    k(f"s_branch L_{name}_A_ev4ret")
    k.label(f"L_{name}_A_ev8")
    k(f"s_waitcnt vmcnt({vm_ev8-vm_ev4})")
    k(f"v_mov_b32 v{vt}, 1")
    k(f"s_lshl_b32 s{sA}, s{sHP}, 2")
    k(f"s_add_u32 s{sA}, s{sA}, 64")
    k(f"s_mov_b64 exec, 1")
    k(f"buffer_store_dword v{vt}, v{vZ}, s[{srdDBG}:{srdDBG+3}], s{sA} offen sc1")
    k(f"s_mov_b64 exec, -1")
    k(f"s_branch L_{name}_A_ev8ret")
    k.label(f"L_{name}_A_poll0")
    k(f"buffer_load_dword v{vFl}, v{vZ}, s[{srdDBG}:{srdDBG+3}], s{sE} offen sc1")
    k(f"s_branch L_{name}_A_poll0ret")
    k.label(f"L_{name}_A_poll")
    k(f"s_mov_b32 s{sTick}, 0")
    k(f"s_waitcnt vmcnt({vm_poll-vm_poll0})")
    k.label(f"L_{name}_A_poll1")
    k(f"v_readfirstlane_b32 s{sA}, v{vFl}")
    k("s_nop 0")
    k(f"s_cmp_lg_u32 s{sA}, 0")
    k(f"s_cbranch_scc1 L_{name}_A_flagok")
    k(f"s_add_u32 s{sTick}, s{sTick}, 1")
    k(f"s_cmp_ge_u32 s{sTick}, 0x40000")
    k(f"s_cbranch_scc1 L_{name}_A_flagok")
    k("s_sleep 1")
    k(f"buffer_load_dword v{vFl}, v{vZ}, s[{srdDBG}:{srdDBG+3}], s{sE} offen sc1")
    k("s_waitcnt vmcnt(0)")
    k(f"s_branch L_{name}_A_poll1")
    k.auto=True
    return V.hi
```

```python
from dsl import *
from common import *
from k1a import mk_srd,sWO,srdT,sX,sLA,sAI,sCR,sCI,sLDT,sDS,sWS,sW,sXCD,sIDX,srdX,srdWS,LOG2E,NLOG2E

UC=4160
CH=31232
TAB1=15616
KOFF=16640
P1=4640
L_WOB=2*CH
INV2PI=0x3e22f983

def cmul(k,dst,w,z,t):
    k(f"v_pk_mul_f32 v[{t}:{t+1}], v[{w}:{w+1}], v[{z}:{z+1}] op_sel:[0,0] op_sel_hi:[0,1]")
    k(f"v_pk_fma_f32 v[{dst}:{dst+1}], v[{w}:{w+1}], v[{z}:{z+1}], v[{t}:{t+1}] op_sel:[1,1,0] op_sel_hi:[1,0,1] neg_lo:[0,1,0]")

def gen_b(k,name,st):
    k.comment("===== type B: S4D kernel generation + causal conv for 2 channels =====")
    V=Alloc("v",1,256)
    sA=64; sB=65; sT=39; sD0=66; sCh=67; sRole=68; sLdt=69; sDsk=70; sCB=71; sSel0=72; sSel1=73; sEx=74; sTab=76
    vL=V(); vt=V(); vt2=V(); vt3=V(); t0=V(2,2); t1=V(2,2)
    vI=V(); vQ=V(); vA=V(); vB=V()
    mark0=V.mark()
    k(f"s_lshl_b32 s{sD0}, s{sXCD}, 6")
    k(f"s_lshl_b32 s{sA}, s{sIDX}, 1")
    k(f"s_add_u32 s{sD0}, s{sD0}, s{sA}")
    k(f"s_lshr_b32 s{sCh}, s{sW}, 1")
    k(f"s_and_b32 s{sRole}, s{sW}, 1")
    k(f"v_and_b32 v{vL}, 63, v0")
    k(f"s_add_u32 s{sA}, s{sD0}, s{sCh}")
    k(f"s_lshl_b32 s{sA}, s{sA}, 8")
    vP=V()
    k(f"v_lshlrev_b32 v{vP}, 1, v{vL}")
    k(f"v_add_u32 v{vP}, s{sA}, v{vP}")
    k(f"s_lshl_b32 s{sB}, s{sD0}, 1")
    k("s_waitcnt lgkmcnt(0)")
    k(f"s_load_dword s{sLdt}, s[{sLDT}:{sLDT+1}], s{sB}")
    k(f"s_load_dword s{sDsk}, s[{sDS}:{sDS+1}], s{sB}")
    pl=V(2); pa=V(2); pcr=V(2); pci=V(2)
    for c in range(2):
        k(f"global_load_ushort v{pl+c}, v{vP}, s[{sLA}:{sLA+1}] offset:{128*c}")
        k(f"global_load_ushort v{pa+c}, v{vP}, s[{sAI}:{sAI+1}] offset:{128*c}")
    for c in range(2):
        k(f"global_load_ushort v{pcr+c}, v{vP}, s[{sCR}:{sCR+1}] offset:{128*c}")
        k(f"global_load_ushort v{pci+c}, v{vP}, s[{sCI}:{sCI+1}] offset:{128*c}")
    mk_srd(k,srdX,sX,2048*512*2)
    g=V(11); vG=V(); vH3=V(); vPf=V()
    k(f"v_and_b32 v{vt}, 15, v{vL}")
    k(f"v_lshlrev_b32 v{vt}, 10, v{vt}")
    k(f"s_lshl_b32 s{sA}, s{sIDX}, 6")
    k(f"s_lshl_b32 s{sT}, s{sW}, 4")
    k(f"s_add_u32 s{sA}, s{sA}, s{sT}")
    k(f"s_lshl_b32 s{sA}, s{sA}, 10")
    k(f"s_lshl_b32 s{sT}, s{sXCD}, 7")
    k(f"s_add_u32 s{sA}, s{sA}, s{sT}")
    k(f"s_mov_b64 exec, 0xffff")
    k(f"buffer_load_dword v{vPf}, v{vt}, s[{srdX}:{srdX+3}], s{sA} offen")
    k(f"s_mov_b64 exec, -1")
    sFr=78
    k(f"s_lshl_b32 s{sFr}, s{sXCD}, 5")
    k(f"s_add_u32 s{sFr}, s{sFr}, s{sIDX}")
    k(f"s_lshl_b32 s{sFr}, s{sFr}, 1")
    k(f"s_add_u32 s{sFr}, s{sFr}, s{sRole}")
    mk_srd(k,srdT,sWO,512*512*2)
    k(f"v_lshrrev_b32 v{vt}, 2, v{vL}")
    k(f"v_and_b32 v{vt2}, 3, v{vL}")
    k(f"v_lshlrev_b32 v{vt2}, 4, v{vt2}")
    k(f"v_lshl_add_u32 v{vt}, v{vt}, 10, v{vt2}")
    k(f"s_and_b32 s{sA}, s{sFr}, 31")
    k(f"s_lshl_b32 s{sA}, s{sA}, 14")
    k(f"s_lshr_b32 s{sT}, s{sFr}, 5")
    k(f"s_lshl_b32 s{sT}, s{sT}, 6")
    k(f"s_add_u32 s{sT}, s{sA}, s{sT}")
    k(f"s_lshl_b32 s{sA}, s{sW}, 10")
    k(f"s_add_u32 m0, s{sA}, {L_WOB}")
    k(f"s_nop 0")
    k(f"buffer_load_dwordx4 v{vt}, s[{srdT}:{srdT+3}], s{sT} offen lds", tag="wo")
    k(f"v_lshlrev_b32 v{vG}, 13, v0")
    k(f"v_add_u32 v{vG}, s{sB}, v{vG}")
    k(f"v_subrev_u32 v{vH3}, 3072, v{vG}")
    sK4=79
    k(f"s_mov_b32 s{sK4}, 4096")
    side=[]
    for r in range(8):
        so = "0" if r<4 else f"s{sK4}"
        side.append([f"buffer_load_dword v{g+3+r}, v{vG}, s[{srdX}:{srdX+3}], {so} offen offset:{(r%4)*1024}"])
    side.append(["s_mov_b64 exec, 1"]+[f"buffer_load_dword v{g+r}, v{vH3}, s[{srdX}:{srdX+3}], 0 offen offset:{r*1024}" for r in range(3)]+["s_mov_b64 exec, -1"])
    mk_srd(k,srdWS,sWS,WS_SIZE)
    k(f"s_mul_i32 s{sCB}, s{sCh}, {CH}")
    k(f"s_mov_b32 s{sTab}, s{sCB}")
    aX=V(16)
    k(f"v_and_b32 v{vt}, 3, v{vL}")
    k(f"v_lshlrev_b32 v{vt}, 2, v{vt}")
    k(f"v_lshrrev_b32 v{vt2}, 2, v{vL}")
    k(f"v_lshl_add_u32 v{vt}, v{vt2}, 4, v{vt}")
    k(f"v_add_u32 v{aX}, s{sTab}, v{vt}")
    for x in range(1,16): k(f"v_xor_b32 v{aX+x}, {x<<4}, v{aX}")
    k(f"v_and_b32 v{vI}, 15, v{vL}")
    k(f"v_lshrrev_b32 v{vQ}, 4, v{vL}")
    def rdaddr(dst,rowreg):
        k(f"v_and_b32 v{vt}, 15, v{rowreg}")
        k(f"v_xor_b32 v{vt}, v{vt}, v{vQ}")
        k(f"v_lshlrev_b32 v{vt}, 4, v{vt}")
        k(f"v_lshl_add_u32 v{vt}, v{rowreg}, 8, v{vt}")
        k(f"v_add_u32 v{dst}, s{sTab}, v{vt}")
        for ks in range(1,4): k(f"v_xor_b32 v{dst+ks}, {ks<<6}, v{dst}")
    rF=V(4); rG1=V(4); rG2=V(4)
    rdaddr(rF,vI)
    def rne(dst,kk):
        k(f"v_bfe_u32 v{dst}, v{vI}, {kk}, 1")
        k(f"v_add3_u32 v{dst}, v{dst}, v{vI}, {(1<<(kk-1))-1}")
        k(f"v_lshrrev_b32 v{dst}, {kk}, v{dst}")
    z4=V(4,4)
    for u in range(4): k(f"v_mov_b32 v{z4+u}, 0")
    vDt=V(); vDs=V()
    k("s_waitcnt lgkmcnt(0)")
    k(f"s_lshl_b32 s{sA}, s{sLdt}, 16")
    k(f"s_and_b32 s{sB}, s{sLdt}, 0xffff0000")
    k(f"s_cmp_eq_u32 s{sCh}, 0")
    k(f"s_cselect_b32 s{sLdt}, s{sA}, s{sB}")
    k(f"s_lshl_b32 s{sA}, s{sDsk}, 16")
    k(f"s_and_b32 s{sB}, s{sDsk}, 0xffff0000")
    k(f"s_cmp_eq_u32 s{sCh}, 0")
    k(f"s_cselect_b32 s{sDsk}, s{sA}, s{sB}")
    k(f"v_mov_b32 v{vDt}, {LOG2E:#x}")
    k(f"v_mul_f32 v{vDt}, s{sLdt}, v{vDt}")
    k(f"v_exp_f32 v{vDt}, v{vDt}")
    k(f"v_cvt_pk_bf16_f32 v{vDt}, v{vDt}, v{vDt}")
    k(f"v_lshlrev_b32 v{vDt}, 16, v{vDt}")
    k(f"v_cmp_eq_u32 vcc, 0, v{vL}")
    k(f"v_mov_b32 v{vt}, s{sDsk}")
    k(f"v_cndmask_b32 v{vDs}, 0, v{vt}, vcc")
    re2=V(); fr=V(); cc=V(2,2)
    def mode_params(c, need_c):
        k(f"v_lshlrev_b32 v{re2}, 16, v{pl+c}")
        k(f"v_mul_f32 v{re2}, {LOG2E:#x}, v{re2}")
        k(f"v_exp_f32 v{re2}, v{re2}")
        k(f"v_lshlrev_b32 v{fr}, 16, v{pa+c}")
        k(f"v_cvt_pk_bf16_f32 v{re2}, v{re2}, v{re2}")
        k(f"v_mul_f32 v{fr}, v{fr}, v{vDt}")
        k(f"v_lshlrev_b32 v{re2}, 16, v{re2}")
        k(f"v_mul_f32 v{fr}, {INV2PI:#x}, v{fr}")
        k(f"v_mul_f32 v{re2}, v{re2}, v{vDt}")
        k(f"v_mul_f32 v{re2}, {NLOG2E:#x}, v{re2}")
        if need_c:
            k(f"v_lshlrev_b32 v{cc}, 16, v{pcr+c}")
            k(f"v_lshlrev_b32 v{cc+1}, 16, v{pci+c}")
            k(f"v_add_f32 v{vt}, v{vDt}, v{vDt}")
            k(f"v_pk_mul_f32 v[{cc}:{cc+1}], v[{cc}:{cc+1}], v[{vt}:{vt+1}] op_sel_hi:[1,0]" if vt%2==0 else f"v_mul_f32 v{cc}, v{cc}, v{vt}")
            if vt%2: k(f"v_mul_f32 v{cc+1}, v{cc+1}, v{vt}")
    def Edirect(dst,p):
        pf=float(p)
        import struct
        lit=struct.unpack("<I",struct.pack("<f",pf))[0]
        if p==1:
            k(f"v_exp_f32 v{t1}, v{re2}")
            k(f"v_fract_f32 v{t1+1}, v{fr}")
        else:
            k(f"v_mul_f32 v{t1}, {lit:#x}, v{re2}")
            k(f"v_mul_f32 v{t1+1}, {lit:#x}, v{fr}")
            k(f"v_exp_f32 v{t1}, v{t1}")
            k(f"v_fract_f32 v{t1+1}, v{t1+1}")
        k(f"v_cos_f32 v{dst}, v{t1+1}")
        k(f"v_sin_f32 v{dst+1}, v{t1+1}")
        k(f"v_pk_mul_f32 v[{dst}:{dst+1}], v[{dst}:{dst+1}], v[{t1}:{t1+1}] op_sel_hi:[1,0]")
    pk=V(2)
    pkc=[0]
    chunk=[0]; sidel=[]
    def wrow(row,w,neg):
        r=pk+(pkc[0]&1); pkc[0]+=1
        k(f"v_cvt_pk_bf16_f32 v{r}, v{w}, {'-' if neg else ''}v{w+1}")
        k(f"ds_write_b32 v{aX+(row&15)}, v{r} offset:{row*256+chunk[0]*TAB1}")
        if sidel and pkc[0]%4==0:
            for l in sidel.pop(0): k(l)
    wA=V(2,2); wB=V(2,2); zz=V(2,2); e4=V(2,2); e8=V(2,2); e12=V(2,2); e16=V(2,2); eb=V(2,2)
    def table_role0(c):
        chunk[0]=c
        mode_params(c,True)
        Edirect(zz,16)
        Edirect(wB,256)
        cmul(k,wB,wB,cc,t0)
        k(f"v_mov_b32 v{wA}, v{cc}"); k(f"v_mov_b32 v{wA+1}, v{cc+1}")
        for a in range(16):
            wrow(a,wA,True); wrow(16+a,wB,True)
            if a<15:
                cmul(k,wA,wA,zz,t0); cmul(k,wB,wB,zz,t1)
    def table_role1(c):
        chunk[0]=c
        mode_params(c,False)
        Edirect(zz,1)
        k(f"v_mov_b32 v{pk}, 0x3f80")
        k(f"ds_write_b32 v{aX+0}, v{pk} offset:{32*256+c*TAB1}")
        keep={4:e4,8:e8,12:e12,16:e16}
        Edirect(eb,512)
        k(f"v_mov_b32 v{wA}, v{zz}"); k(f"v_mov_b32 v{wA+1}, v{zz+1}")
        wrow(33,wA,False)
        wrow(50,eb,False)
        cur=wA
        for b in range(2,17):
            dst=keep.get(b,wA)
            cmul(k,dst,cur,zz,t0)
            cur=dst
            wrow(32+b if b<16 else 49,cur,False)
            if b in keep:
                cmul(k,wB,eb,cur,t1)
                wrow(50+b//4,wB,False)
        for (p,row) in ((1024,55),(1536,58)):
            Edirect(eb,p)
            wrow(row,eb,False)
            cmul(k,wB,eb,e8,t0); wrow(row+1,wB,False)
            cmul(k,wB,eb,e16,t1); wrow(row+2,wB,False)
    def u_stage():
        for r in range(3):
            k(f"v_mov_b32_dpp v{g+r}, v{g+8+r} wave_shr:1 row_mask:0xf bank_mask:0xf")
        k(f"s_mov_b32 s{sSel0}, 0x05040100")
        k(f"s_mov_b32 s{sSel1}, 0x07060302")
        k(f"v_bfe_u32 v{vt}, v{vL}, 4, 1")
        k(f"v_mul_u32_u24 v{vt}, {CH}, v{vt}")
        k(f"v_bfe_u32 v{vt2}, v{vL}, 2, 2")
        k(f"v_mul_u32_u24 v{vt2}, {UC}, v{vt2}")
        k(f"v_add_u32 v{vt}, v{vt}, v{vt2}")
        k(f"v_and_b32 v{vt2}, 3, v{vL}")
        k(f"v_lshl_add_u32 v{vt}, v{vt2}, 4, v{vt}")
        k(f"s_mov_b32 s{sEx}, -1")
        k(f"s_mov_b32 s{sEx+1}, 0")
        k(f"s_mov_b64 exec, s[{sEx}:{sEx+1}]")
        k(f"ds_write_b128 v{vt}, v[{z4}:{z4+3}] offset:4096")
        k(f"s_mov_b64 exec, -1")
        vU=vt3
        k(f"v_sub_u32 v{vU}, 255, v0")
        k(f"v_lshlrev_b32 v{vU}, 4, v{vU}")
        o4=[V(4,4),V(4,4)]
        n=0
        for ch in range(2):
            sel=sSel0 if ch==0 else sSel1
            for c in range(4):
                o=o4[n&1]; n+=1
                for u in range(4):
                    top=4+c-2*u
                    k(f"v_perm_b32 v{o+u}, v{g+3+top-1}, v{g+3+top}, s{sel}")
                k(f"ds_write_b128 v{vU}, v[{o}:{o+3}] offset:{ch*CH+c*UC}")
    acc=V(16,4)
    fr_=[V(20,4),V(20,4)]
    def kreads(role,u):
        c,ks=u>>2,u&3; f=fr_[u&1]; o=c*TAB1
        k(f"ds_read_b128 v[{f}:{f+3}], v{rF+ks} offset:{o}")
        if role==0:
            k(f"ds_read_b128 v[{f+8}:{f+11}], v{rF+ks} offset:{o+8192}")
            k(f"ds_read_b128 v[{f+4}:{f+7}], v{rF+ks} offset:{o+4096}")
            k(f"ds_read_b128 v[{f+12}:{f+15}], v{rG1+ks} offset:{o}")
            k(f"ds_read_b128 v[{f+16}:{f+19}], v{rG2+ks} offset:{o}")
        else:
            k(f"ds_read_b128 v[{f+8}:{f+11}], v{rG1+ks} offset:{o}")
            k(f"ds_read_b128 v[{f+4}:{f+7}], v{rF+ks} offset:{o+4096}")
            k(f"ds_read_b128 v[{f+12}:{f+15}], v{rG2+ks} offset:{o}")
    def kmf(role,u):
        f=fr_[u&1]
        if role==0: pairs=[(0,f+8,f),(1,f+12,f+4),(2,f+16,f),(3,f+16,f+4)]
        else: pairs=[(0,f+8,f),(1,f+8,f+4),(2,f+12,f),(3,f+12,f+4)]
        for (T,a,b) in pairs:
            cin="0" if u==0 else f"v[{acc+4*T}:{acc+4*T+3}]"
            k(f"v_mfma_f32_16x16x32_bf16 v[{acc+4*T}:{acc+4*T+3}], v[{a}:{a+3}], v[{b}:{b+3}], {cin}")
    def kmfma(role):
        kreads(role,0)
        for u in range(8):
            if u+1<8: kreads(role,u+1)
            kmf(role,u)
    def wo_frag():
        wof=V(4,4); vWoA=V()
        k(f"v_bfe_u32 v{vt}, v{vL}, 2, 2")
        k(f"v_lshrrev_b32 v{vt2}, 5, v{vL}")
        k(f"v_lshl_add_u32 v{vt}, v{vt2}, 2, v{vt}")
        k(f"v_lshlrev_b32 v{vWoA}, 6, v{vt}")
        k(f"v_bfe_u32 v{vt2}, v{vL}, 4, 1")
        k(f"v_lshl_add_u32 v{vWoA}, v{vt2}, 5, v{vWoA}")
        k(f"v_and_b32 v{vt2}, 3, v{vL}")
        k(f"v_lshl_add_u32 v{vWoA}, v{vt2}, 3, v{vWoA}")
        k(f"s_lshl_b32 s{sA}, s{sW}, 10")
        k(f"v_add_u32 v{vWoA}, s{sA}, v{vWoA}")
        k.wait_tag("wo")
        k(f"ds_read_b64_tr_b16 v[{wof}:{wof+1}], v{vWoA} offset:{L_WOB}")
        k(f"ds_read_b64_tr_b16 v[{wof+2}:{wof+3}], v{vWoA} offset:{L_WOB+512}")
        k(f"v_lshlrev_b32 v{vt}, 4, v{vL}")
        k(f"s_lshl_b32 s{sA}, s{sFr}, 10")
        k(f"s_add_u32 s{sA}, s{sA}, {WS_WO}")
        k(f"buffer_store_dwordx4 v[{wof}:{wof+3}], v{vt}, s[{srdWS}:{srdWS+3}], s{sA} offen")
    row=V()
    k(f"s_cmp_eq_u32 s{sRole}, 0")
    k(f"s_cbranch_scc0 L_{name}_B1")
    snap=k.snapshot(); mark=V.mark()
    for role in range(2):
        if role==1:
            k.restore(snap); V.reset(mark); k.label(f"L_{name}_B1")
        if role==0:
            rne(row,1)
            k(f"v_lshrrev_b32 v{vt2}, 3, v{row}")
            k(f"v_lshl_add_u32 v{row}, v{row}, 1, v{vt2}")
            k(f"v_add_u32 v{row}, 32, v{row}")
            rdaddr(rG1,row)
            rne(row,2); k(f"v_add_u32 v{row}, 50, v{row}"); rdaddr(rG2,row)
        else:
            rne(row,3); k(f"v_add_u32 v{row}, 55, v{row}"); rdaddr(rG1,row)
            k(f"v_add_u32 v{row}, 3, v{row}"); rdaddr(rG2,row)
        tab=table_role0 if role==0 else table_role1
        st.mark(k,1)
        sidel.clear(); sidel.extend([list(x) for x in side])
        tab(0)
        tab(1)
        for blk in sidel:
            for l in blk: k(l)
        sidel.clear()
        m2=V.mark(); wo_frag(); V.reset(m2)
        st.mark(k,2)
        k.barrier()
        kmfma(role)
        st.mark(k,3)
        k.barrier()
        m2=V.mark(); u_stage(); V.reset(m2)
        vK=vt3
        k(f"v_lshlrev_b32 v{vK}, 5, v{vI}")
        k(f"v_lshl_add_u32 v{vK}, v{vQ}, 3, v{vK}")
        k(f"s_add_u32 s{sTab}, s{sCB}, {KOFF}")
        k(f"v_add_u32 v{vK}, s{sTab}, v{vK}")
        if role==0:
            k(f"v_add_f32 v{acc}, v{acc}, v{vDs}")
            k(f"v_lshlrev_b32 v{vt}, 3, v{vL}")
            k(f"v_add_u32 v{vt}, s{sTab}, v{vt}")
            k(f"ds_write_b64 v{vt}, v[{z4}:{z4+1}]")
            k(f"ds_write_b64 v{vt}, v[{z4}:{z4+1}] offset:{P1}")
        kp=V(8,2)
        for T in range(4):
            k(f"v_cvt_pk_bf16_f32 v{kp+2*T}, v{acc+4*T}, v{acc+4*T+1}")
            k(f"v_cvt_pk_bf16_f32 v{kp+2*T+1}, v{acc+4*T+2}, v{acc+4*T+3}")
        for T in range(4):
            TT=4*role+T
            k(f"ds_write_b64 v{vK}, v[{kp+2*T}:{kp+2*T+1}] offset:{512*TT+464}")
            k(f"ds_write_b64 v{vK}, v[{kp+2*T}:{kp+2*T+1}] offset:{P1+512*TT+456}")
        k(f"v_and_b32 v{vt}, 3, v{vI}")
        k(f"v_mul_u32_u24 v{vA}, {UC}, v{vt}")
        k(f"v_lshrrev_b32 v{vt}, 2, v{vI}")
        k(f"v_sub_u32 v{vt}, v{vQ}, v{vt}")
        k(f"v_add_u32 v{vt}, 3, v{vt}")
        k(f"v_lshl_add_u32 v{vA}, v{vt}, 4, v{vA}")
        k(f"v_add_u32 v{vA}, s{sCB}, v{vA}")
        k(f"v_lshrrev_b32 v{vt}, 1, v{vI}")
        k(f"v_lshlrev_b32 v{vB}, 6, v{vt}")
        k(f"v_lshl_add_u32 v{vB}, v{vQ}, 4, v{vB}")
        k(f"v_and_b32 v{vt}, 1, v{vI}")
        k(f"v_mul_u32_u24 v{vt}, {P1-16}, v{vt}")
        k(f"v_sub_u32 v{vt}, {P1}, v{vt}")
        k(f"v_add3_u32 v{vB}, v{vB}, v{vt}, s{sTab}")
        k.barrier()
        V.reset(mark0)
        y=V(32,4)
        S=[V(64,4),V(64,4)]
        def loads(r,s):
            L=[]
            for c in range(8):
                L.append(f"ds_read_b128 v[{s+4*c}:{s+4*c+3}], v{vA} offset:{64*(56+r-8*c)}")
                L.append(f"ds_read_b128 v[{s+32+4*c}:{s+32+4*c+3}], v{vB} offset:{64*(r+8*c)}")
            return L
        classes=[4*role+i for i in range(4)]
        for l in loads(classes[0],S[0]): k(l)
        started=set()
        for ci,r in enumerate(classes):
            s=S[ci&1]
            nxt=loads(classes[ci+1],S[(ci+1)&1]) if ci+1<4 else []
            order=[]
            for d in range(8):
                for a in range(8):
                    for c in range(8):
                        if max(a,c)==d and a+c<=7: order.append((a,c))
            n=0
            for (a,c) in order:
                i=a+c
                cin="0" if i not in started else f"v[{y+4*i}:{y+4*i+3}]"
                started.add(i)
                k(f"v_mfma_f32_16x16x32_bf16 v[{y+4*i}:{y+4*i+3}], v[{s+4*c}:{s+4*c+3}], v[{s+32+4*a}:{s+32+4*a+3}], {cin}")
                n+=1
                if nxt and n>=4 and n%2==0: k(nxt.pop(0))
            for l in nxt: k(l)
        st.mark(k,4)
        k.barrier()
        vXw=vt3
        k(f"v_lshlrev_b32 v{vt}, 4, v{vL}")
        k(f"s_lshl_b32 s{sA}, s{sW}, 13")
        k(f"v_add_u32 v{vXw}, s{sA}, v{vt}")
        for i in range(8):
            k(f"ds_write_b128 v{vXw}, v[{y+4*i}:{y+4*i+3}] offset:{1024*i}")
        k(f"s_lshl_b32 s{sA}, s{sW}, 11")
        k(f"v_add_u32 v{vXw}, s{sA}, v{vt}")
        k.barrier()
        rr=S[0]
        for ii in range(2):
            for sw in range(4):
                k(f"ds_read_b128 v[{rr+16*ii+4*sw}:{rr+16*ii+4*sw+3}], v{vXw} offset:{sw*8192+ii*1024}")
        vS=vA
        k(f"v_lshrrev_b32 v{vt}, 1, v{vI}")
        k(f"v_lshlrev_b32 v{vS}, 7, v{vt}")
        k(f"v_lshl_add_u32 v{vS}, v{vQ}, 5, v{vS}")
        k(f"v_and_b32 v{vt}, 1, v{vI}")
        k(f"v_lshl_add_u32 v{vS}, v{vt}, 4, v{vS}")
        k(f"s_lshl_b32 s{sA}, s{sD0}, 12")
        k(f"s_lshl_b32 s{sB}, s{sW}, 11")
        k(f"s_add_u32 s{sA}, s{sA}, s{sB}")
        k(f"s_add_u32 s{sA}, s{sA}, {WS_B}")
        for ii in range(2):
            b=rr+16*ii
            for j in range(4):
                k(f"v_add_f32 v{b+j}, v{b+j}, v{b+4+j}")
                k(f"v_add_f32 v{b+8+j}, v{b+8+j}, v{b+12+j}")
            for j in range(4):
                k(f"v_cvt_pk_bf16_f32 v{b+4+j}, v{b+j}, v{b+8+j}")
            k(f"buffer_store_dwordx4 v[{b+4}:{b+7}], v{vS}, s[{srdWS}:{srdWS+3}], s{sA} offen offset:{1024*ii}")
        st.mark(k,5)
        st.finish(k,sWS,sW,y)
        k("s_endpgm")
    return V.hi
```

```python
from dsl import *
from common import *
import os
DBG2=os.environ.get('DBG2','')

def gen_k2(name="fin_kernel", stamp=False):
    k = Kern()
    S = Stamper(stamp,1)
    V = Alloc("v", 1, 256)
    sOUT=4; sWS=6; srdW=8; srdO=12; sW=16; sTB=17; sDB=18; sT=19; sA=20; sB=21
    sPhi=22; sKv=23; sWo=24; sBb=25; sG=26; sOo=27; sRh=28; sRc=29; sH=30; sC=31
    k(f"s_cmp_ge_u32 s2, 256")
    k(f"s_cbranch_scc1 L_{name}_end")
    S.start(k); S.mark(k,6)
    k(f"s_load_dwordx2 s[{sOUT}:{sOUT+1}], s[0:1], {KA['out']}")
    k(f"s_load_dwordx2 s[{sWS}:{sWS+1}], s[0:1], {KA['ws']}")
    vLane=V(); vT=V(); vH=V(); vPhi=V(); vKv=V(4); vB=V(); vG=V(); vO=V(); vtmp=V(); vtmp2=V()
    k(f"v_lshrrev_b32 v{vtmp}, 6, v0")
    k(f"v_and_b32 v{vLane}, 63, v0")
    k(f"v_readfirstlane_b32 s{sW}, v{vtmp}")
    k(f"v_and_b32 v{vT}, 31, v{vLane}")
    k(f"v_lshrrev_b32 v{vH}, 5, v{vLane}")
    k(f"v_lshlrev_b32 v{vPhi}, 4, v{vLane}")
    k(f"s_and_b32 s{sA}, s2, 7")
    k(f"s_lshr_b32 s{sB}, s2, 5")
    k(f"s_lshr_b32 s{sDB}, s2, 3")
    k(f"s_and_b32 s{sDB}, s{sDB}, 3")
    k(f"s_lshl_b32 s{sB}, s{sB}, 3")
    k(f"s_or_b32 s{sTB}, s{sA}, s{sB}")
    k(f"v_lshlrev_b32 v{vtmp}, 4, v{vT}")
    k(f"v_lshl_add_u32 v{vtmp}, v{vH}, 8, v{vtmp}")
    k(f"v_lshlrev_b32 v{vtmp2}, 4, v{vH}")
    k(f"v_add_u32 v{vtmp2}, 2048, v{vtmp2}")
    k(f"v_cmp_gt_u32 vcc, 16, v{vT}")
    k(f"v_cndmask_b32 v{vKv}, v{vtmp2}, v{vtmp}, vcc")
    k(f"v_mov_b32 v{vtmp}, 512")
    k(f"v_mov_b32 v{vtmp2}, 32")
    k(f"v_cndmask_b32 v{vtmp}, v{vtmp2}, v{vtmp}, vcc")
    for u in range(1,4): k(f"v_add_u32 v{vKv+u}, v{vKv+u-1}, v{vtmp}")
    k(f"s_lshl_b32 s{sA}, s{sTB}, 16")
    k(f"s_lshl_b32 s{sB}, s{sW}, 14")
    k(f"s_add_u32 s{sPhi}, s{sA}, s{sB}")
    k(f"s_mul_i32 s{sKv}, s{sW}, {8*KVH}")
    k(f"s_add_u32 s{sKv}, s{sKv}, {WS_KV}")
    k(f"s_lshl_b32 s{sA}, s{sDB}, 2")
    k(f"s_add_u32 s{sA}, s{sA}, s{sW}")
    k(f"s_lshl_b32 s{sWo}, s{sA}, 15")
    k(f"s_add_u32 s{sWo}, s{sWo}, {WS_WO}")
    k(f"s_lshl_b32 s{sBb}, s{sA}, 17")
    k(f"s_lshl_b32 s{sB}, s{sTB}, 7")
    k(f"s_add_u32 s{sBb}, s{sBb}, s{sB}")
    k(f"s_add_u32 s{sBb}, s{sBb}, {WS_B}")
    k(f"s_add_u32 s{sG}, s{sB}, {WS_G}")
    k(f"s_lshl_b32 s{sOo}, s{sTB}, 15")
    k(f"s_lshl_b32 s{sB}, s{sA}, 6")
    k(f"s_add_u32 s{sOo}, s{sOo}, s{sB}")
    k("s_waitcnt lgkmcnt(0)")
    k(f"s_mov_b32 s{srdW}, s{sWS}")
    k(f"s_and_b32 s{srdW+1}, s{sWS+1}, 0xffff")
    k(f"s_mov_b32 s{srdW+2}, {WS_SIZE}")
    k(f"s_mov_b32 s{srdW+3}, 0x20000")
    phi = [V(8,4) for _ in range(8)]
    kvf = [V(16,4) for _ in range(3)]
    L_KV=32768
    k(f"s_mul_i32 s{sRh}, s{sW}, {8*KVH}")
    k(f"s_add_u32 s{sRh}, s{sRh}, {L_KV}")
    for u in range(4): k(f"v_add_u32 v{vKv+u}, s{sRh}, v{vKv+u}")
    nkv=[0]
    def ld_kv(upto):
        while nkv[0]<upto:
            c=nkv[0]
            k(f"s_add_u32 m0, s{sRh}, {c*1024}")
            k(f"s_add_u32 s{sA}, s{sKv}, {c*1024}")
            k(f"buffer_load_dwordx4 v{vPhi}, s[{srdW}:{srdW+3}], s{sA} offen lds", tag=f"kv{c}")
            nkv[0]+=1
    def ld_head(hh):
        ld_kv(min(17,(KVH*(hh+1)+1023)//1024))
        if hh%2==0: k(f"s_add_u32 s{sB}, s{sPhi}, {hh*2048}")
        for s in range(2):
            k(f"buffer_load_dwordx4 v[{phi[hh]+4*s}:{phi[hh]+4*s+3}], v{vPhi}, s[{srdW}:{srdW+3}], s{sB} offen offset:{(hh%2)*2048+s*1024}")
    def ld_wo4(g):
        k(f"s_add_u32 s{sT}, s{sWo}, {g*4096}")
        for u in range(4):
            c=4*g+u
            k(f"buffer_load_dwordx4 a[{4*c}:{4*c+3}], v{vPhi}, s[{srdW}:{srdW+3}], s{sT} offen offset:{u*1024}")
    def rd_kv(hh):
        f=kvf[hh%3]
        k.wait_tag(f"kv{(KVH*(hh+1)-1)//1024}")
        for q in range(4):
            k(f"ds_read_b128 v[{f+4*q}:{f+4*q+3}], v{vKv+q} offset:{hh*KVH}")
    PRE=os.environ.get('K2PRE','hhwh')
    PER=eval(os.environ.get('K2PER',"['hw','hw','hw','hw','hw','w','w','']"))
    cnt={'h':0,'w':0}
    def issue(spec):
        for ch in spec:
            if ch=='h': ld_head(cnt['h']); cnt['h']+=1
            else: ld_wo4(cnt['w']); cnt['w']+=1
    issue(PRE)
    bdw = V(8,2); vg=V()
    k(f"v_lshlrev_b32 v{vB}, 14, v{vH}")
    k(f"v_lshl_add_u32 v{vB}, v{vT}, 2, v{vB}")
    k(f"v_lshlrev_b32 v{vG}, 2, v{vT}")
    k(f"v_lshlrev_b32 v{vO}, 10, v{vT}")
    k(f"v_lshl_add_u32 v{vO}, v{vH}, 4, v{vO}")
    def ld_bg():
        for i in range(4):
            for u in range(2):
                k(f"s_add_u32 s{sT}, s{sBb}, {(4*i+u)*8192}")
                k(f"buffer_load_dword v{bdw+2*i+u}, v{vB}, s[{srdW}:{srdW+3}], s{sT} offen")
        k(f"buffer_load_dword v{vg}, v{vG}, s[{srdW}:{srdW+3}], s{sG} offen")
    k(f"s_mov_b32 s{srdO}, s{sOUT}")
    k(f"s_and_b32 s{srdO+1}, s{sOUT+1}, 0xffff")
    k(f"s_mov_b32 s{srdO+2}, {2048*512*2}")
    k(f"s_mov_b32 s{srdO+3}, 0x20000")
    vOw=V()
    k(f"s_lshl_b32 s{sA}, s{sW}, 13")
    k(f"v_add_u32 v{vOw}, s{sA}, v{vPhi}")
    D=[V(16,4),V(16,4)]
    def p1_mfma(hh):
        f=kvf[hh%3]; d=D[hh%2]
        for q in range(8):
            k(f"v_cvt_pk_bf16_f32 v{f+q}, v{f+2*q}, v{f+2*q+1}")
        k(f"v_mfma_f32_32x32x16_bf16 v[{d}:{d+15}], v[{f}:{f+3}], v[{phi[hh]}:{phi[hh]+3}], 0")
        k(f"v_mfma_f32_32x32x16_bf16 v[{d}:{d+15}], v[{f+4}:{f+7}], v[{phi[hh]+4}:{phi[hh]+7}], v[{d}:{d+15}]")
    def p1_fin(hh):
        d=D[hh%2]; of=kvf[hh%3]+8
        k(f"v_add_f32 v{vtmp}, 0x358637bd, v{d+8}")
        k(f"v_rcp_f32 v{vtmp}, v{vtmp}")
        for j in range(4):
            k(f"v_pk_mul_f32 v[{d+2*j}:{d+2*j+1}], v[{d+2*j}:{d+2*j+1}], v[{vtmp}:{vtmp+1}] op_sel_hi:[1,0]") if vtmp%2==0 else None
        if vtmp%2:
            for j in range(8): k(f"v_mul_f32 v{d+j}, v{d+j}, v{vtmp}")
        for j in range(4):
            k(f"v_cvt_pk_bf16_f32 v{of+j}, v{d+2*j}, v{d+2*j+1}")
        k(f"ds_write_b128 v{vOw}, v[{of}:{of+3}] offset:{hh*1024}")
    S.mark(k,1)
    rd_kv(0); rd_kv(1)
    p1_mfma(0)
    issue(PER[0])
    for hh in range(8):
        if hh+1<8:
            p1_mfma(hh+1)
            issue(PER[hh+1])
        if hh==6: ld_bg()
        p1_fin(hh)
        if hh+2<8: rd_kv(hh+2)
    assert cnt['h']==8 and cnt['w']==8, cnt
    S.mark(k,2)
    k.barrier()
    S.mark(k,3)
    acc=D[0]
    ob=[phi[0]+4*i for i in range(8)]
    def rd(c): k(f"ds_read_b128 v[{ob[c%8]}:{ob[c%8]+3}], v{vPhi} offset:{c*1024}")
    for c in range(8): rd(c)
    for c in range(32):
        cin = "0" if c==0 else f"v[{acc}:{acc+15}]"
        k(f"v_mfma_f32_32x32x16_bf16 v[{acc}:{acc+15}], a[{4*c}:{4*c+3}], v[{ob[c%8]}:{ob[c%8]+3}], {cin}")
        if c+8<32: rd(c+8)
        if c==8:
            vomg=vtmp2; bl=kvf[0]; od=kvf[1]
            k(f"v_sub_f32 v{vomg}, 1.0, v{vg}")
            k(f"v_cvt_pk_bf16_f32 v{vomg}, v{vomg}, v{vomg}")
            k(f"v_lshlrev_b32 v{vomg}, 16, v{vomg}")
        if 9<=c<17:
            q=c-9
            k(f"v_lshlrev_b32 v{bl+2*q}, 16, v{bdw+q}")
            k(f"v_and_b32 v{bl+2*q+1}, 0xffff0000, v{bdw+q}")
        if 17<=c<25:
            q=c-17
            k(f"v_mul_f32 v{bl+2*q}, v{vomg}, v{bl+2*q}")
            k(f"v_mul_f32 v{bl+2*q+1}, v{vomg}, v{bl+2*q+1}")
    S.mark(k,4)
    for r in range(16):
        k(f"v_fmac_f32 v{bl+r}, v{vg}, v{acc+r}")
    for q in range(8):
        k(f"v_cvt_pk_bf16_f32 v{od+q}, v{bl+2*q}, v{bl+2*q+1}")
    for p in range(2):
        b=od+4*p
        k(f"v_permlane32_swap_b32 v{b}, v{b+2}")
        k(f"v_permlane32_swap_b32 v{b+1}, v{b+3}")
        k(f"buffer_store_dwordx4 v[{b}:{b+3}], v{vO}, s[{srdO}:{srdO+3}], s{sOo} offen offset:{32*p}")
    S.mark(k,5)
    S.finish(k,sWS,sW,phi[0])
    k.label(f"L_{name}_end")
    k("s_endpgm")
    assert V.hi<=256
    txt = head(name)+k.text()+kd(name, 256+128, 102 if stamp else 40, 256)
    return txt
if __name__=="__main__":
    print(gen_k2())
```

```python
import re

TRANS = ("v_exp_f32","v_log_f32","v_rcp_f32","v_rsq_f32","v_sqrt_f32","v_sin_f32","v_cos_f32","v_rcp_iflag_f32")
RMW_DST = ("v_fmac_f32","v_dot2c_f32_bf16","v_pk_fmac_f16","v_writelane_b32","v_mac_f32")
MFMA_PASSES = {"32x32x16":8,"16x16x32":4,"16x16x16":4,"32x32x8":8}
T_C_OVER = {2:4,4:6,8:10,16:18}
T_AB = {2:5,4:8,8:12,16:20}
T_VALU = {2:5,4:8,8:12,16:20}
T_WAR_C = {2:1,4:3,8:7,16:15}

def split_ops(s):
    out=[]; depth=0; cur=""
    for ch in s:
        if ch in "[(": depth+=1
        if ch in "])": depth-=1
        if ch=="," and depth==0:
            out.append(cur.strip()); cur=""
        else: cur+=ch
    if cur.strip(): out.append(cur.strip())
    return out

REG = re.compile(r"^-?\|?(abs\()?([vas])(\d+)\)?\|?$")
RNG = re.compile(r"^-?([vas])\[(\d+):(\d+)\]$")
def regs_of(tok):
    tok=tok.strip()
    m=REG.match(tok)
    if m: return [(m.group(2),int(m.group(3)))]
    m=RNG.match(tok)
    if m: return [(m.group(1),i) for i in range(int(m.group(2)),int(m.group(3))+1)]
    if tok=="vcc": return [("s","vcc")]
    if tok in("vcc_lo","vcc_hi"): return [("s","vcc")]
    if tok=="exec": return [("s","exec")]
    if tok in("exec_lo","exec_hi"): return [("s","exec")]
    if tok=="m0": return [("s","m0")]
    return []

class Ins:
    __slots__=("text","mn","ops","mods","reads","writes","cls","passes","srcC","srcAB","dpp","nstates","sgpr_const_reads","wide_store","lds_dma")
    def __init__(s,text):
        s.text=text
        t=text.split(";")[0].strip()
        parts=t.split(None,1)
        s.mn=parts[0]
        rest=parts[1] if len(parts)>1 else ""
        ops=split_ops(rest)
        mods=""
        if ops:
            last=ops[-1].split()
            if len(last)>1:
                ops[-1]=last[0]; mods=" ".join(last[1:])
        s.ops=ops; s.mods=mods
        s.reads=set(); s.writes=set(); s.passes=0; s.srcC=set(); s.srcAB=set(); s.dpp=False
        s.nstates=1; s.sgpr_const_reads=set(); s.wide_store=set(); s.lds_dma=False
        mn=s.mn
        base=re.sub(r"_(e32|e64|dpp|sdwa)$","",mn)
        R=lambda i: set(regs_of(ops[i])) if i<len(ops) else set()
        allr=lambda a: set().union(*[R(i) for i in range(a,len(ops))]) if len(ops)>a else set()
        if mn=="s_nop":
            s.cls="nop"; s.nstates=int(ops[0],0)+1; return
        if mn in("s_waitcnt","s_barrier","s_endpgm","s_branch","s_setprio","s_sleep") or mn.startswith("s_cbranch"):
            s.cls="ctl"
            if mn in("s_cbranch_vccz","s_cbranch_vccnz"): s.reads={("s","vcc")}
            if mn in("s_cbranch_execz","s_cbranch_execnz"): s.reads={("s","exec")}
            if mn in("s_cbranch_scc0","s_cbranch_scc1"): s.reads={("s","scc")}
            return
        if mn.startswith("s_load") or mn in("s_memtime","s_memrealtime"):
            s.cls="smem"; s.writes=R(0); s.reads=R(1) if mn.startswith("s_load") else set(); return
        if mn.startswith("s_"):
            s.cls="salu"
            if mn.startswith("s_cmp") or mn.startswith("s_bitcmp"):
                s.reads=allr(0); s.writes={("s","scc")}
            elif "saveexec" in mn:
                s.writes=R(0)|{("s","exec"),("s","scc")}; s.reads=R(1)|{("s","exec")}
            elif mn.startswith("s_getpc"):
                s.writes=R(0)
            elif mn.startswith("s_setpc"):
                s.reads=R(0)
            elif mn.startswith("s_getreg"):
                s.writes=R(0)
            else:
                s.writes=R(0); s.reads=allr(1)
                if mn.startswith(("s_addc","s_subb","s_cselect","s_cmov")): s.reads|={("s","scc")}
                if mn.startswith(("s_addk","s_mulk","s_cmov")): s.reads|=R(0)
                if not mn.startswith(("s_mov","s_cselect","s_mul","s_movk","s_cmov","s_bfm","s_brev")): s.writes|={("s","scc")}
            return
        if mn.startswith("v_mfma"):
            s.cls="mfma"
            for k,v in MFMA_PASSES.items():
                if k in mn: s.passes=v
            assert s.passes, mn
            s.writes=R(0); s.srcAB=R(1)|R(2); s.srcC=R(3); s.reads=s.srcAB|s.srcC
            return
        if mn.startswith("v_"):
            s.cls="trans" if base in TRANS else "valu"
            s.dpp = mn.endswith("_dpp") or any(k in mods for k in("row_","quad_perm","wave_"))
            if base.startswith("v_cmp"):
                s.writes=R(0); s.reads=allr(1)
            elif base in("v_readfirstlane_b32","v_readlane_b32"):
                s.writes=R(0); s.reads=allr(1)
            elif base in("v_permlane32_swap_b32","v_permlane16_swap_b32","v_swap_b32"):
                s.writes=R(0)|R(1); s.reads=R(0)|R(1)
            elif base in("v_add_co_u32","v_sub_co_u32","v_addc_co_u32","v_subb_co_u32"):
                s.writes=R(0)|R(1); s.reads=allr(2)
            else:
                s.writes=R(0); s.reads=allr(1)
                if base in RMW_DST or s.dpp: s.reads|=R(0)
            s.reads|={("s","exec")}
            s.sgpr_const_reads={r for r in s.reads if r[0]=="s" and r[1]!="exec"}
            return
        if mn.startswith("buffer_"):
            s.cls="vmem"
            s.lds_dma = "lds" in mods.split()
            if mn.startswith("buffer_load"):
                if s.lds_dma:
                    s.reads=allr(0)|{("s","m0")}
                else:
                    s.writes=R(0); s.reads=allr(1)
                    if "d16" in mn: s.reads|=R(0)
            elif mn.startswith("buffer_store"):
                s.reads=allr(0)
                if "x4" in mn or "x3" in mn: s.wide_store=R(0)
            elif mn.startswith("buffer_atomic"):
                s.reads=allr(0)
                if "sc0" in mods.split(): s.writes=R(0)
            elif mn.startswith(("buffer_wbl2","buffer_inv")):
                pass
            else: raise ValueError(text)
            s.reads|={("s","exec")}
            return
        if mn.startswith("global_"):
            s.cls="vmem"
            if mn.startswith("global_load_lds"):
                s.lds_dma=True; s.reads=allr(0)|{("s","m0")}
            elif mn.startswith("global_load"):
                s.writes=R(0); s.reads=allr(1)
                if "d16" in mn: s.reads|=R(0)
            elif mn.startswith("global_store"):
                s.reads=allr(0)
                if "x4" in mn or "x3" in mn: s.wide_store=R(1)
            elif mn.startswith("global_atomic"):
                if "sc0" in mods.split(): s.writes=R(0); s.reads=allr(1)
                else: s.reads=allr(0)
            else: raise ValueError(text)
            s.reads|={("s","exec")}
            return
        if mn.startswith("ds_"):
            s.cls="ds"
            if mn.startswith(("ds_read","ds_bpermute","ds_permute","ds_swizzle")):
                s.writes=R(0); s.reads=allr(1)
                if "d16" in mn: s.reads|=R(0)
            else:
                s.reads=allr(0)
            s.reads|={("s","exec")}
            return
        raise ValueError("unknown instr: "+text)

def need_states(p, c):
    n=0
    pv = p.cls in("valu","trans")
    cv = c.cls in("valu","trans")
    vw = {r for r in p.writes if r[0] in "va"}
    sw = {r for r in p.writes if r[0]=="s" and r[1] not in("scc",)}
    if pv:
        if c.cls=="mfma" and vw & c.reads: n=max(n,2)
        if cv and c.dpp and vw & c.reads: n=max(n,2)
        if cv and "permlane" in c.mn and vw & c.reads: n=max(n,2)
        if cv and c.mn.startswith(("v_readfirstlane","v_readlane")) and vw & c.reads: n=max(n,1)
        if cv and sw & c.sgpr_const_reads: n=max(n,2)
        if cv and c.mn.startswith(("v_readlane","v_writelane")) and sw & c.reads: n=max(n,4)
        if c.cls=="vmem" and sw & c.reads: n=max(n,5)
        if c.cls=="salu" and sw & c.reads: n=max(n,1)
        if p.cls=="trans" and c.cls in("valu",) and vw & c.reads: n=max(n,1)
        if p.cls=="trans" and c.cls in("vmem","ds") and vw & c.reads: n=max(n,1)
        if ("op_sel" in p.mods and "v_pk" not in p.mn) or p.mn.endswith("sdwa"):
            if cv and vw & (c.reads|c.writes): n=max(n,1)
    if p.mn.startswith("v_dot") and (vw & (c.reads|c.writes)):
        if not (c.mn==p.mn and (vw & c.writes)): n=max(n,3)
    if p.cls=="mfma":
        P=p.passes
        if c.cls=="mfma":
            if p.writes & c.srcC:
                if p.writes==c.srcC and p.passes==c.passes: n=max(n, 2 if P==2 else 0)
                else: n=max(n,T_C_OVER[P])
            if p.writes & c.srcAB: n=max(n,T_AB[P])
            if (p.writes & c.writes) and not (p.writes==c.writes and p.writes==c.srcC):
                if not (p.writes & c.srcC): n=max(n,T_C_OVER[P])
        elif cv:
            if p.writes & (c.reads|c.writes): n=max(n,T_VALU[P])
            if p.srcC & c.writes: n=max(n,T_WAR_C[P])
        elif c.cls in("vmem","ds"):
            if p.writes & (c.reads|c.writes): n=max(n,T_VALU[P])
            if p.srcC & c.writes: n=max(n,T_WAR_C[P])
    if p.wide_store:
        if cv and p.wide_store & c.writes: n=max(n,2)
        elif c.cls in("mfma","ds","vmem") and p.wide_store & c.writes: n=max(n,2)
    if p.cls=="salu" and ("s","m0") in p.writes and c.lds_dma: n=max(n,1)
    if p.cls=="salu" and ("s","exec") in p.writes and c.cls=="mfma": n=max(n,1)
    return n

class Kern:
    def __init__(s, auto=True):
        s.out=[]; s.hist=[]; s.vm=[]; s.lg=[]; s.auto=auto; s.nnop=0; s.nwait=0; s.log=[]; s.vm_total=0; s.bg=[]; s.bg_every=0; s.bg_cnt=0; s.in_bg=False
    def raw(s,text): s.out.append(text)
    def label(s,name):
        s.out.append(name+":")
    def comment(s,t): s.out.append("  ; "+t)
    def snapshot(s): return (list(s.hist),[dict(x) for x in s.vm],[dict(x) for x in s.lg])
    def restore(s,st):
        s.hist=list(st[0]); s.vm=[dict(x) for x in st[1]]; s.lg=[dict(x) for x in st[2]]
    def clear_state(s): s.hist=[]; s.vm=[]; s.lg=[]
    def _push(s,ins):
        s.out.append("  "+ins.text); s.hist.append(ins)
        if len(s.hist)>40: s.hist=s.hist[-40:]
    def _hazard(s,ins):
        need=0; dist=0
        for p in reversed(s.hist):
            if dist>=20: break
            n=need_states(p,ins)
            if n>dist: need=max(need,n-dist)
            dist+=p.nstates
        return need
    def _nops(s,n):
        s.nnop+=n
        while n>0:
            k=min(n,16); s._push(Ins(f"s_nop {k-1}")); n-=k
    def _wait(s,vm=None,lg=None):
        parts=[]
        if vm is not None:
            vm=min(vm,63)
            if len(s.vm)>vm:
                parts.append(f"vmcnt({vm})"); s.vm=s.vm[len(s.vm)-vm:] if vm>0 else []
        if lg is not None:
            lg=min(lg,15)
            if len(s.lg)>lg:
                parts.append(f"lgkmcnt({lg})"); s.lg=s.lg[len(s.lg)-lg:] if lg>0 else []
        if parts:
            s.nwait+=1; s._push(Ins("s_waitcnt "+" ".join(parts)))
    def _autowait(s,ins):
        touched=ins.reads|ins.writes
        if s.bg and not s.in_bg:
            last=-1
            for gi,g in enumerate(s.bg):
                for (t,_) in g:
                    if Ins(t).writes & {r for r in touched if r[0] in "va"}: last=gi
            for _ in range(last+1): s.bg_pop()
        vmn=None; lgn=None
        for i,e in enumerate(s.vm):
            if e["dst"] & touched:
                if ins.cls=="vmem" and not (e["dst"] & ins.reads): continue
                n=len(s.vm)-1-i; vmn=n if vmn is None else min(vmn,n)
        anysm=any(e["smem"] for e in s.lg)
        for i,e in enumerate(s.lg):
            if e["dst"] & touched:
                if ins.cls=="ds" and not e["smem"] and not (e["dst"] & ins.reads): continue
                n=0 if anysm else len(s.lg)-1-i; lgn=n if lgn is None else min(lgn,n)
        s._wait(vmn,lgn)
    def __call__(s,text,tag=None):
        for line in text.strip().split("\n"):
            line=line.strip()
            if not line or line.startswith(";"):
                if line: s.out.append("  "+line)
                continue
            if line.endswith(":"): s.label(line[:-1]); continue
            s.emit(line,tag)
    def emit(s,text,tag=None):
        ins=Ins(text)
        if ins.mn=="s_waitcnt":
            m=re.search(r"vmcnt\((\d+)\)",text); l=re.search(r"lgkmcnt\((\d+)\)",text)
            if m:
                n=int(m.group(1)); s.vm=s.vm[max(0,len(s.vm)-n):] if n>0 else []
            if l:
                n=int(l.group(1)); s.lg=s.lg[max(0,len(s.lg)-n):] if n>0 else []
            s._push(ins); return ins
        if s.auto:
            s._autowait(ins)
            if ins.cls=="vmem" and len(s.vm)>=62: s._wait(vm=61)
            if ins.cls in("ds","smem") and len(s.lg)>=15:
                s._wait(lg=0 if any(e["smem"] for e in s.lg) else 14)
        n=s._hazard(ins)
        if n: s._nops(n)
        s._push(ins)
        if ins.cls=="vmem":
            s.vm_total+=1
            s.vm.append({"dst":set(ins.writes),"tag":tag})
            if len(s.vm)>63: s.vm=s.vm[-63:] if False else s.vm
        elif ins.cls=="ds": s.lg.append({"dst":set(ins.writes),"tag":tag,"smem":False})
        elif ins.cls=="smem": s.lg.append({"dst":set(ins.writes),"tag":tag,"smem":True})
        if s.bg and not s.in_bg and ins.cls in("valu","trans","mfma","ds"):
            s.bg_cnt+= (4 if ins.cls=="mfma" and ins.passes>=8 else 2 if ins.cls in("mfma","trans") else 1)
            if s.bg_cnt>=s.bg_every:
                s.bg_cnt=0; s.bg_pop()
        return ins
    def bg_pop(s):
        g=s.bg.pop(0); s.in_bg=True
        for (t,tg) in g: s.emit(t,tg)
        s.in_bg=False
    def bg_flush(s, upto_tag=None):
        while s.bg:
            if upto_tag is not None and not any(tg==upto_tag for g in s.bg for (_,tg) in g): break
            s.bg_pop()
    def wait_tag(s,tag):
        s.bg_flush(tag)
        idx=[i for i,e in enumerate(s.vm) if e["tag"]==tag]
        if idx: s._wait(vm=len(s.vm)-1-max(idx))
        idx=[i for i,e in enumerate(s.lg) if e["tag"]==tag]
        if idx:
            anysm=any(e["smem"] for e in s.lg)
            s._wait(lg=0 if anysm else len(s.lg)-1-max(idx))
    def wait_vm(s,n=0): s._wait(vm=n)
    def wait_lg(s,n=0): s._wait(lg=n)
    def barrier(s):
        s._wait(lg=0); s.emit("s_barrier")
    def text(s): return "\n".join(s.out)+"\n"

class Alloc:
    def __init__(s,kind,start,limit): s.kind=kind; s.n=start; s.limit=limit; s.hi=start
    def __call__(s,count=1,align=None):
        if align is None: align = 1 if count==1 else 2
        s.n=(s.n+align-1)//align*align
        r=s.n; s.n+=count; s.hi=max(s.hi,s.n)
        assert s.n<=s.limit, f"out of {s.kind} regs"
        return r
    def mark(s): return s.n
    def reset(s,m): s.n=m
def vr(b,n=1): return f"v{b}" if n==1 else f"v[{b}:{b+n-1}]"
def ar(b,n=1): return f"a{b}" if n==1 else f"a[{b}:{b+n-1}]"
def sr(b,n=1): return f"s{b}" if n==1 else f"s[{b}:{b+n-1}]"

STAMP_BASE=86
class Stamper:
    def __init__(s,on,kid): s.on=on; s.kid=kid
    def start(s,k):
        if s.on: k(f"s_memrealtime s[{STAMP_BASE}:{STAMP_BASE+1}]")
    def mark(s,k,i):
        if s.on: k(f"s_memtime s[{STAMP_BASE+2*i}:{STAMP_BASE+2*i+1}]")
    def finish(s,k,wsptr,swave,vtmp):
        if not s.on: return
        k(f"s_waitcnt vmcnt(0)")
        k(f"s_memrealtime s[{STAMP_BASE+14}:{STAMP_BASE+15}]")
        k("s_waitcnt lgkmcnt(0)")
        k(f"s_lshl_b32 s3, s2, 3")
        k(f"s_add_u32 s3, s3, s{swave}")
        k(f"s_lshl_b32 s3, s3, 6")
        k(f"s_add_u32 s3, s3, {(16<<20)+(s.kid<<20)}")
        for i in range(8):
            k(f"v_mov_b32 v{vtmp+i}, s{STAMP_BASE+2*i}")
        k(f"v_mov_b32 v{vtmp+8}, s3")
        k(f"s_mov_b64 exec, 1")
        k(f"global_store_dwordx4 v{vtmp+8}, v[{vtmp}:{vtmp+3}], s[{wsptr}:{wsptr+1}]")
        k(f"global_store_dwordx4 v{vtmp+8}, v[{vtmp+4}:{vtmp+7}], s[{wsptr}:{wsptr+1}] offset:16")
        k(f"s_getreg_b32 s3, hwreg(HW_REG_HW_ID)")
        k(f"v_mov_b32 v{vtmp}, s3")
        k(f"s_getreg_b32 s3, hwreg(HW_REG_XCC_ID)")
        k(f"v_mov_b32 v{vtmp+1}, s3")
        k(f"global_store_dwordx2 v{vtmp+8}, v[{vtmp}:{vtmp+1}], s[{wsptr}:{wsptr+1}] offset:32")
```

```python
from dsl import *
from common import *
from k1a import *
import os
PAIR=int(os.environ.get('PAIR','1'))
try:
    from k1b import gen_b
except ImportError:
    gen_b=None
def gen_k1(name="mix_kernel", with_b=True, stamp=False, with_a=True):
    k=Kern()
    S=Stamper(stamp,0)
    k(f"s_cmp_ge_u32 s2, 256")
    k(f"s_cbranch_scc1 L_{name}_end")
    S.start(k); S.mark(k,6)
    k(f"s_load_dwordx16 s[4:19], s[0:1], 0")
    k(f"s_load_dwordx8 s[20:27], s[0:1], 64")
    k(f"s_load_dwordx4 s[28:31], s[0:1], 96")
    k(f"s_load_dwordx2 s[32:33], s[0:1], 112")
    k(f"v_lshrrev_b32 v1, 6, v0")
    k(f"s_and_b32 s{sXCD}, s2, 7")
    k(f"v_readfirstlane_b32 s{sW}, v1")
    k(f"s_lshr_b32 s37, s2, 3")
    k(f"s_lshr_b32 s{sIDX}, s37, 1")
    k(f"s_bitcmp1_b32 s37, 0")
    k(f"s_cbranch_scc1 L_{name}_B")
    st=k.snapshot()
    if with_a: hiA=gen_a(k,name,S)
    else:
        k("s_endpgm"); hiA=0
    k.restore(st)
    k.label(f"L_{name}_B")
    hiB=0
    if with_b and gen_b:
        hiB=gen_b(k,name,S)
    k.label(f"L_{name}_end")
    k("s_endpgm")
    hi=max(hiA,hiB)
    nv=(hi+7)//8*8
    return head(name)+k.text()+kd(name, nv, 102 if stamp else 96, nv)
if __name__=="__main__":
    print(gen_k1(with_b=False))
```

```python
from dsl import *
from common import *
import os
DBG=os.environ.get('DBG','')
STF=os.environ.get('STF','')
TP=eval(os.environ.get('TP','(0,3,3)'))
NTB=int(os.environ.get('TB','1'))
MK=eval(os.environ.get('MK','{0:2,1:3,2:4,4:5}'))

sX=4; sWQ=6; sWPHI=8; sWO=10; sLA=14; sAI=16; sCR=18; sCI=20; sLDT=22; sDS=24; sGW=26; sOUT=28; sDBG=30; sWS=32
sW=34
sXCD=35; sIDX=36
srdX=40; srdWq=44; srdWS=48; srdKV=52; srdDBG=56; srdT=60
L_WPHI=0
L_WR=2048; WSL=24576; NWS=3
L_XR=L_WR+NWS*WSL; XSL=16384; NXS=3
K1_LDS=159744
LOG2E=0x3fb8aa3b; NLOG2E=0xbfb8aa3b
RED0=L_WR
def red_base(g,w): return (L_WR if g==0 else L_WR+2*WSL)+w*4352

def mk_srd(k,srd,ptr,size):
    k(f"s_mov_b32 s{srd}, s{ptr}")
    k(f"s_and_b32 s{srd+1}, s{ptr+1}, 0xffff")
    k(f"s_mov_b32 s{srd+2}, {size}")
    k(f"s_mov_b32 s{srd+3}, 0x20000")

def softmax2(k, blocks, tmp, sL2E, fill=None):
    nb=len(blocks)
    def each(f):
        for b in range(nb): f(b,*blocks[b])
    T=[tmp+4*b for b in range(nb)]
    each(lambda b,p,o: k(f"v_max3_f32 v{T[b]}, v{p}, v{p+1}, v{p+2}"))
    for u in range(6):
        each(lambda b,p,o: k(f"v_max3_f32 v{T[b]}, v{T[b]}, v{p+3+2*u}, v{p+4+2*u}"))
    each(lambda b,p,o: k(f"v_max_f32 v{T[b]}, v{T[b]}, v{p+15}"))
    each(lambda b,p,o: k(f"v_mul_f32 v{T[b]}, {NLOG2E:#x}, v{T[b]}"))
    for u in range(8):
        each(lambda b,p,o: k(f"v_pk_fma_f32 v[{p+2*u}:{p+2*u+1}], v[{p+2*u}:{p+2*u+1}], s[{sL2E}:{sL2E+1}], v[{T[b]}:{T[b]+1}] op_sel_hi:[1,1,0]"))
    for u in range(16):
        each(lambda b,p,o: k(f"v_exp_f32 v{p+u}, v{p+u}"))
    S=[t+2 for t in T]
    each(lambda b,p,o: k(f"v_pk_add_f32 v[{S[b]}:{S[b]+1}], v[{p}:{p+1}], v[{p+2}:{p+3}]"))
    for u in range(2,8):
        each(lambda b,p,o: k(f"v_pk_add_f32 v[{S[b]}:{S[b]+1}], v[{S[b]}:{S[b]+1}], v[{p+2*u}:{p+2*u+1}]"))
    each(lambda b,p,o: k(f"v_add_f32 v{T[b]}, v{S[b]}, v{S[b]+1}"))
    each(lambda b,p,o: k(f"v_rcp_f32 v{T[b]}, v{T[b]}"))
    for u in range(8):
        each(lambda b,p,o: k(f"v_pk_mul_f32 v[{p+2*u}:{p+2*u+1}], v[{p+2*u}:{p+2*u+1}], v[{T[b]}:{T[b]+1}] op_sel_hi:[1,0]"))
    for u in range(8):
        each(lambda b,p,o: k(f"v_cvt_pk_bf16_f32 v{o+u}, v{p+2*u}, v{p+2*u+1}"))

def gen_a(k, name, st):
    V=Alloc("v",1,256)
    sTT=37; sHP=38; sT=39; sA=64; sB=65; sX0=66; sWo_=68; sMx=69; sMw=70
    sL2E=74; sMaskLo=76; sTick=80; sPhiO=81; sGo=82; sE=83; sFirst=84
    k.label(f"L_{name}_A")
    sHQ=67; sTBW=78; sHG=79
    k(f"s_and_b32 s{sA}, s{sXCD}, 3")
    k(f"s_lshl_b32 s{sA}, s{sA}, 2")
    k(f"s_and_b32 s{sB}, s{sIDX}, 3")
    k(f"s_add_u32 s{sTT}, s{sA}, s{sB}")
    k(f"s_lshr_b32 s{sA}, s{sXCD}, 2")
    k(f"s_lshl_b32 s{sA}, s{sA}, 2")
    k(f"s_lshr_b32 s{sB}, s{sIDX}, 2")
    k(f"s_add_u32 s{sHQ}, s{sA}, s{sB}")
    k(f"s_and_b32 s{sTBW}, s{sW}, 3")
    k(f"s_lshr_b32 s{sHG}, s{sW}, 2")
    k(f"s_lshl_b32 s{sA}, s{sHQ}, 1")
    k(f"s_add_u32 s{sHP}, s{sA}, s{sHG}")
    vL=V(); vXg=V(2); vWg=V(3); vt=V(); vt2=V(); vt3=V()
    k(f"v_and_b32 v{vL}, 63, v0")
    k(f"v_lshrrev_b32 v{vt}, 4, v{vL}")
    k(f"v_xor_b32 v{vt}, v{vt}, v{vL}")
    k(f"v_and_b32 v{vt}, 7, v{vt}")
    k(f"v_lshlrev_b32 v{vt}, 4, v{vt}")
    k(f"v_lshrrev_b32 v{vt2}, 3, v{vL}")
    k(f"v_lshl_add_u32 v{vXg}, v{vt2}, 10, v{vt}")
    k(f"v_xor_b32 v{vXg+1}, 64, v{vXg}")
    k(f"v_add_u32 v{vXg+1}, 8192, v{vXg+1}")
    for i in range(3):
        k(f"v_add_u32 v{vt3}, {64*i}, v{vL}")
        k(f"v_mul_u32_u24 v{vt}, 171, v{vt3}")
        k(f"v_lshrrev_b32 v{vt}, 12, v{vt}")
        k(f"v_mul_u32_u24 v{vt2}, 24, v{vt}")
        k(f"v_sub_u32 v{vt2}, v{vt3}, v{vt2}")
        k(f"v_bfe_u32 v{vt3}, v{vt}, 1, 1")
        k(f"v_lshlrev_b32 v{vt3}, 2, v{vt3}")
        k(f"v_xor_b32 v{vt2}, v{vt2}, v{vt3}")
        k(f"v_mul_u32_u24 v{vWg+i}, 3072, v{vt}")
        k(f"v_lshrrev_b32 v{vt3}, 3, v{vt2}")
        k(f"v_lshl_add_u32 v{vWg+i}, v{vt3}, 10, v{vWg+i}")
        k(f"v_and_b32 v{vt2}, 7, v{vt2}")
        k(f"v_lshl_add_u32 v{vWg+i}, v{vt2}, 4, v{vWg+i}")
    k(f"s_lshl_b32 s{sX0}, s{sTT}, 17")
    k(f"s_lshl_b32 s{sA}, s{sW}, 14")
    k(f"s_add_u32 s{sX0}, s{sX0}, s{sA}")
    k(f"s_mul_i32 s{sWo_}, s{sW}, {8*3072}")
    k(f"s_lshl_b32 s{sA}, s{sHQ}, 7")
    k(f"s_add_u32 s{sWo_}, s{sWo_}, s{sA}")
    k(f"s_lshl_b32 s{sMx}, s{sW}, 11")
    k(f"s_add_u32 s{sMx}, s{sMx}, {L_XR}")
    k(f"s_mul_i32 s{sMw}, s{sW}, 3072")
    k(f"s_add_u32 s{sMw}, s{sMw}, {L_WR}")
    sXk=71; sWk=72; sXc=73; sWc=85
    k(f"s_lshr_b32 s{sA}, s{sIDX}, 2")
    k(f"s_and_b32 s{sB}, s{sIDX}, 3")
    k(f"s_add_u32 s{sA}, s{sA}, s{sB}")
    k(f"s_and_b32 s{sA}, s{sA}, 3")
    k(f"s_lshl_b32 s{sA}, s{sA}, 1")
    if 'N' in DBG: k(f"s_mov_b32 s{sA}, 0")
    k(f"s_lshl_b32 s{sXk}, s{sA}, 7")
    k(f"s_mul_i32 s{sWk}, s{sA}, {64*3072}")
    k("s_waitcnt lgkmcnt(0)")
    mk_srd(k,srdX,sX,2048*512*2)
    mk_srd(k,srdWq,sWQ,512*1536*2)
    def dma_x_l(S):
        L=[]; slot=S%NXS
        for i in range(2):
            g=[]
            if i==0:
                if S>0:
                    g.append((f"s_add_u32 s{sXk}, s{sXk}, 128",None))
                    g.append((f"s_and_b32 s{sXk}, s{sXk}, 0x3ff",None))
                g.append((f"s_add_u32 s{sXc}, s{sX0}, s{sXk}",None))
            g+=[(f"s_add_u32 m0, s{sMx}, {slot*XSL+i*1024}",None),("s_nop 0",None),
                (f"buffer_load_dwordx4 v{vXg+i}, s[{srdX}:{srdX+3}], s{sXc} offen lds",f"x{S}")]
            L.append(g)
        return L
    def dma_w_l(S):
        slot=S%NWS; L=[]
        for i in range(3):
            g=[]
            if i==0:
                if S>0:
                    g.append((f"s_add_u32 s{sWk}, s{sWk}, {64*3072}",None))
                    g.append((f"s_cmp_eq_u32 s{sWk}, {512*3072}",None))
                    g.append((f"s_cselect_b32 s{sWk}, 0, s{sWk}",None))
                g.append((f"s_add_u32 s{sWc}, s{sWo_}, s{sWk}",None))
            g.append((f"s_add_u32 m0, s{sMw}, {slot*WSL+i*1024}",None))
            g.append(("s_nop 0",None))
            g.append((f"buffer_load_dwordx4 v{vWg+i}, s[{srdWq}:{srdWq+3}], s{sWc} offen lds",f"w{S}"))
            L.append(g)
        return L
    def emit_g(g):
        for (t,tag) in g: k(t,tag=tag)
    def dma_x(S):
        for g in dma_x_l(S): emit_g(g)
    def dma_w(S):
        for g in dma_w_l(S): emit_g(g)
    dma_x(0); dma_w(0)
    if 1 not in MK.values(): st.mark(k,1)
    gx=V(8,4); gw=V(8,4); vGa=V(); vGw=V()
    k(f"v_and_b32 v{vt}, 31, v{vL}")
    k(f"v_lshlrev_b32 v{vGw}, 5, v{vt}")
    k(f"v_lshrrev_b32 v{vt}, 5, v{vL}")
    k(f"v_lshl_add_u32 v{vGa}, v{vt}, 10, v{vGw}")
    k(f"s_lshl_b32 s{sA}, s{sTT}, 7")
    k(f"s_and_b32 s{sB}, s{sHQ}, 7")
    k(f"s_lshl_b32 s{sB}, s{sB}, 4")
    k(f"s_add_u32 s{sA}, s{sA}, s{sB}")
    k(f"s_lshl_b32 s{sB}, s{sW}, 1")
    k(f"s_add_u32 s{sGo}, s{sA}, s{sB}")
    k(f"global_load_dwordx4 v[{gw}:{gw+3}], v{vGw}, s[{sGW}:{sGW+1}]")
    k(f"global_load_dwordx4 v[{gw+4}:{gw+7}], v{vGw}, s[{sGW}:{sGW+1}] offset:16")
    mk_srd(k,srdDBG,sDBG,256)
    mk_srd(k,srdT,sWPHI,32*512)
    mk_srd(k,srdWS,sWS,WS_SIZE)
    vZ=V(); vL16=V(); vOne=V(); sR=3
    k(f"v_mov_b32 v{vZ}, 0")
    k(f"v_lshlrev_b32 v{vL16}, 4, v{vL}")
    k(f"s_lshl_b32 s{sT}, s{sHP}, 10")
    k(f"s_lshl_b32 s{sA}, s{sHG}, 10")
    k(f"s_add_u32 m0, s{sA}, {L_WPHI}")
    k(f"s_lshl_b32 s{sA}, s{sHP}, 2")
    k(f"buffer_load_dwordx4 v{vL16}, s[{srdT}:{srdT+3}], s{sT} offen lds", tag="wphi")
    k(f"s_mov_b32 s{sL2E}, {LOG2E:#x}")
    k(f"s_mov_b32 s{sL2E+1}, {LOG2E:#x}")
    k(f"s_mov_b32 s{sMaskLo}, 0x0000ffff")
    k(f"s_mov_b32 s{sMaskLo+1}, 0x0000ffff")
    k(f"s_or_b32 s{sA}, s{sTT}, s{sTBW}")
    k(f"s_cmp_eq_u32 s{sA}, 0")
    k(f"s_cselect_b32 s{sFirst}, 1, 0")
    vM=V(); vH=V()
    k(f"v_and_b32 v{vM}, 31, v{vL}")
    k(f"v_lshrrev_b32 v{vH}, 5, v{vL}")
    vXr=V(4); vWr=V()
    k(f"v_lshrrev_b32 v{vt}, 1, v{vM}")
    k(f"v_and_b32 v{vt}, 7, v{vt}")
    k(f"v_xor_b32 v{vt}, v{vt}, v{vH}")
    k(f"v_lshlrev_b32 v{vt}, 4, v{vt}")
    k(f"v_lshl_add_u32 v{vXr}, v{vM}, 7, v{vt}")
    k(f"s_lshl_b32 s{sA}, s{sTBW}, 12")
    k(f"s_add_u32 s{sA}, s{sA}, {L_XR}")
    k(f"v_add_u32 v{vXr}, s{sA}, v{vXr}")
    for ks in range(1,4): k(f"v_xor_b32 v{vXr+ks}, {ks<<5}, v{vXr}")
    k(f"v_bfe_u32 v{vt}, v{vL}, 2, 2")
    k(f"v_lshl_add_u32 v{vt2}, v{vH}, 3, v{vt}")
    k(f"v_mul_u32_u24 v{vWr}, 384, v{vt2}")
    k(f"v_bfe_u32 v{vt2}, v{vL}, 4, 1")
    k(f"v_lshlrev_b32 v{vt2}, 5, v{vt2}")
    k(f"v_and_b32 v{vt3}, 3, v{vL}")
    k(f"v_lshl_add_u32 v{vt2}, v{vt3}, 3, v{vt2}")
    k(f"s_lshl_b32 s{sA}, s{sHG}, 6")
    k(f"v_add_u32 v{vt2}, s{sA}, v{vt2}")
    k(f"v_lshrrev_b32 v{vt}, 1, v{vt}")
    k(f"v_lshlrev_b32 v{vt}, 6, v{vt}")
    k(f"v_xor_b32 v{vt2}, v{vt2}, v{vt}")
    k(f"v_add_u32 v{vWr}, v{vWr}, v{vt2}")
    k(f"v_add_u32 v{vWr}, {L_WR}, v{vWr}")
    vWr2=V()
    k(f"v_add_u32 v{vWr2}, {2*WSL}, v{vWr}")
    I=V(8,4)
    for s in range(2):
        k(f"v_lshlrev_b32 v{vt}, 4, v{vH}")
        k(f"v_sub_u32 v{vt}, v{vM}, v{vt}")
        if s: k(f"v_subrev_u32 v{vt}, 8, v{vt}")
        k(f"v_and_b32 v{vt2}, 1, v{vt}")
        k(f"v_lshlrev_b32 v{vt2}, 4, v{vt2}")
        k(f"v_mov_b32 v{vt3}, 0x3f80")
        k(f"v_lshlrev_b32 v{vt2}, v{vt2}, v{vt3}")
        k(f"v_lshrrev_b32 v{vt}, 1, v{vt}")
        for u in range(4):
            k(f"v_cmp_eq_u32 vcc, {u}, v{vt}")
            k(f"v_cndmask_b32 v{I+4*s+u}, 0, v{vt2}, vcc")
    z4=V(4,4)
    for u in range(4): k(f"v_mov_b32 v{z4+u}, 0")
    accQ=V(16,4); accK=V(16,4); accV=V(16,4)
    F=[V(16,4),V(16,4),V(16,4)]
    def reads_l(j):
        f=F[j%3]; S=j>>2; ks=j&3
        if 'R' in DBG: return []
        L=[f"ds_read_b128 v[{f}:{f+3}], v{vXr+ks} offset:{(S%NXS)*XSL}"]
        for seg in range(3):
            for half in range(2):
                L.append(f"ds_read_b64_tr_b16 v[{f+4+4*seg+2*half}:{f+5+4*seg+2*half}], v{vWr2 if S%NWS==2 else vWr} offset:{(S%NWS%2)*WSL+ks*16*384+half*4*384+seg*128}")
        return L
    def reads(j):
        for l in reads_l(j): k(l)
    RSPLIT=eval(os.environ.get('RSPLIT','(2,2,3)'))
    def mfmas(j, fill=(), rd=()):
        f=F[j%3]; fill=list(fill); rd=list(rd)
        c=lambda a: "0" if j==0 else f"v[{a}:{a+15}]"
        M=[f"v_mfma_f32_32x32x16_bf16 v[{accQ}:{accQ+15}], v[{f+4}:{f+7}], v[{f}:{f+3}], {c(accQ)}",
           f"v_mfma_f32_32x32x16_bf16 v[{accK}:{accK+15}], v[{f+8}:{f+11}], v[{f}:{f+3}], {c(accK)}",
           f"v_mfma_f32_32x32x16_bf16 v[{accV}:{accV+15}], v[{f}:{f+3}], v[{f+12}:{f+15}], {c(accV)}"]
        for n,m in enumerate(M):
            if 'M' not in DBG: k(m)
            for _ in range(RSPLIT[n]):
                if rd: k(rd.pop(0))
            if fill: emit_g(fill.pop(0))
        for l in rd: k(l)
        for g in fill: emit_g(g)
    wf=V(8,4); vPhA=V(); vSg=V(); ones=V(); vRb=V(2); vSt=V(2); vRa=V(8); vFl=V()
    pre=[]
    P=lambda t: pre.append(t)
    P(f"v_bfe_u32 v{vt}, v{vL}, 2, 2")
    P(f"v_lshl_add_u32 v{vt}, v{vH}, 2, v{vt}")
    P(f"v_lshlrev_b32 v{vPhA}, 5, v{vt}")
    P(f"v_bfe_u32 v{vt2}, v{vL}, 4, 1")
    P(f"v_lshl_add_u32 v{vPhA}, v{vt2}, 4, v{vPhA}")
    P(f"v_bfe_u32 v{vt2}, v{vL}, 1, 1")
    P(f"v_lshl_add_u32 v{vPhA}, v{vt2}, 3, v{vPhA}")
    P(f"s_lshl_b32 s{sA}, s{sHG}, 10")
    P(f"v_add_u32 v{vPhA}, s{sA}, v{vPhA}")
    for hd in range(2):
        P(f"ds_read_b64_tr_b16 v[{wf+4*hd}:{wf+4*hd+1}], v{vPhA} offset:{L_WPHI+512*hd}")
        P(f"ds_read_b64_tr_b16 v[{wf+4*hd+2}:{wf+4*hd+3}], v{vPhA} offset:{L_WPHI+512*hd+256}")
    P(f"v_bfe_u32 v{vSg}, v{vL}, 2, 1")
    P(f"v_mul_u32_u24 v{vSg}, 0x8000, v{vSg}")
    P(f"v_lshl_or_b32 v{vSg}, v{vSg}, 16, v{vSg}")
    P(f"v_mov_b32 v{ones}, 0x3f803f80")
    P(f"v_and_b32 v{vt}, 15, v{vM}")
    P(f"v_lshlrev_b32 v{vt}, 4, v{vt}")
    P(f"v_lshl_add_u32 v{vt}, v{vH}, 9, v{vt}")
    P(f"v_lshlrev_b32 v{vt2}, 5, v{vH}")
    P(f"v_add_u32 v{vt2}, 2048, v{vt2}")
    P(f"s_mul_i32 s{sA}, s{sTBW}, 4352")
    P(f"s_mul_i32 s{sB}, s{sHG}, {2*WSL}")
    P(f"s_add_u32 s{sA}, s{sA}, s{sB}")
    P(f"s_add_u32 s{sA}, s{sA}, {L_WR}")
    P(f"v_cndmask_b32 v{vRb}, v{vt2}, v{vt}, s[{sMaskLo}:{sMaskLo+1}]")
    P(f"v_cndmask_b32 v{vRb+1}, v{vt}, v{vt2}, s[{sMaskLo}:{sMaskLo+1}]")
    P(f"v_add_u32 v{vRb}, s{sA}, v{vRb}")
    P(f"v_add_u32 v{vRb+1}, s{sA}, v{vRb+1}")
    P(f"v_mov_b32 v{vt}, 256")
    P(f"v_mov_b32 v{vt2}, 16")
    P(f"v_cndmask_b32 v{vSt}, v{vt2}, v{vt}, s[{sMaskLo}:{sMaskLo+1}]")
    P(f"v_cndmask_b32 v{vSt+1}, v{vt}, v{vt2}, s[{sMaskLo}:{sMaskLo+1}]")
    for hd in range(2):
        for i in range(4):
            c=4*(i&1)+(i>>1)
            P(f"v_mad_u32_u24 v{vRa+4*hd+i}, v{vSt+hd}, {c}, v{vRb+hd}")
    for u in range(8): P(f"v_xor_b32 v{wf+u}, v{wf+u}, v{vSg}")
    P(f"s_mul_i32 s{sA}, s{sHP}, {2*KVH}")
    P(f"s_add_u32 s{sA}, s{sA}, {WS_KV}")
    P(f"s_add_u32 s{srdKV}, s{sWS}, s{sA}")
    P(f"s_addc_u32 s{srdKV+1}, s{sWS+1}, 0")
    P(f"s_and_b32 s{srdKV+1}, s{srdKV+1}, 0xffff")
    P(f"s_mov_b32 s{srdKV+2}, {2*KVH}")
    P(f"s_mov_b32 s{srdKV+3}, 0x20000")
    P(f"s_lshl_b32 s{sE}, s{sHP}, 2")
    P(f"s_add_u32 s{sE}, s{sE}, 64")
    P(f"s_lshl_b32 s{sPhiO}, s{sTT}, 2")
    P(f"s_add_u32 s{sPhiO}, s{sPhiO}, s{sTBW}")
    P(f"s_lshl_b32 s{sPhiO}, s{sPhiO}, 16")
    P(f"s_lshl_b32 s{sA}, s{sHP}, 12")
    P(f"s_add_u32 s{sPhiO}, s{sPhiO}, s{sA}")
    vE=vRb; vEl=vRb+1
    P(f"v_and_b32 v{vE}, 255, v0")
    P(f"v_lshlrev_b32 v{vE}, 2, v{vE}")
    P(f"s_mul_i32 s{sB}, s{sHG}, {2*WSL}")
    P(f"v_add_u32 v{vEl}, s{sB}, v{vE}")
    pend=[]
    for j in range(32):
        S=j>>2
        if j%4==0:
            k.wait_tag(f"w{S}")
            k.wait_tag(f"x{S}")
            k.wait_lg(0)
            k("s_barrier")
            if S in MK: st.mark(k,MK[S])
        if j<2 or 'I' in DBG: reads(j)
        if j==0:
            dma_w(1); dma_x(1)
        if j%4==0 and S+2<8 and 'D' not in DBG:
            pend+=dma_w_l(S+2)+dma_x_l(S+2)
        if j>1:
            take=pend[:2]; pend=pend[2:]
            mfmas(j-2, take, [] if 'I' in DBG else reads_l(j))
        if j>=6:
            n=0 if 'Q' in DBG else 4
            while pre and n>0:
                t=pre.pop(0); k(t); n-=1
                if t.startswith("s_add_u32 s{}".format(srdKV)): k(pre.pop(0))
        if j==2:
            k(f"s_cmp_eq_u32 s{sFirst}, 1")
            k(f"s_cbranch_scc1 L_{name}_A_ev4")
            k.label(f"L_{name}_A_ev4ret")
            vm_ev4=k.vm_total
        if j==21:
            k(f"s_lshl_b32 s{sT}, s{sGo}, 10")
            k(f"buffer_load_dwordx4 v[{gx}:{gx+3}], v{vGa}, s[{srdX}:{srdX+3}], s{sT} offen")
            k(f"buffer_load_dwordx4 v[{gx+4}:{gx+7}], v{vGa}, s[{srdX}:{srdX+3}], s{sT} offen offset:16")
        if j==13:
            vm_ev8=k.vm_total
            k(f"s_cmp_eq_u32 s{sFirst}, 1")
            k(f"s_cbranch_scc1 L_{name}_A_ev8")
            k.label(f"L_{name}_A_ev8ret")
        if j==27:
            assert 'Q' in DBG or not pre, len(pre)
            vm_poll0=k.vm_total
            k(f"s_cmp_eq_u32 s{sTBW}, 0")
            k(f"s_cbranch_scc1 L_{name}_A_poll0")
            k.label(f"L_{name}_A_poll0ret")
    assert not pend
    for t in pre: k(t)
    mfmas(30); mfmas(31)
    fa=F[2]; fb=F[0]
    kb=fa; qb=fa+8; vb=fb
    for u in range(8): k(f"v_cvt_pk_bf16_f32 v{kb+u}, v{accK+2*u}, v{accK+2*u+1}")
    pkA=V(16,4); pkB=V(16,4)
    k(f"v_mfma_f32_32x32x16_bf16 v[{pkA}:{pkA+15}], v[{wf}:{wf+3}], v[{kb}:{kb+3}], 0")
    k(f"v_mfma_f32_32x32x16_bf16 v[{pkB}:{pkB+15}], v[{wf+4}:{wf+7}], v[{kb+4}:{kb+7}], 0")
    for u in range(8): k(f"v_cvt_pk_bf16_f32 v{qb+u}, v{accQ+2*u}, v{accQ+2*u+1}")
    pqA=accK; pqB=accQ
    k(f"v_mfma_f32_32x32x16_bf16 v[{pqA}:{pqA+15}], v[{wf}:{wf+3}], v[{qb}:{qb+3}], 0")
    k(f"v_mfma_f32_32x32x16_bf16 v[{pqB}:{pqB+15}], v[{wf+4}:{wf+7}], v[{qb+4}:{qb+7}], 0")
    for u in range(8): k(f"v_cvt_pk_bf16_f32 v{vb+u}, v{accV+2*u}, v{accV+2*u+1}")
    vA_=accV; vB_=accV+8
    for u in range(8): k(f"v_cndmask_b32 v{vA_+u}, v{ones}, v{vb+u}, s[{sMaskLo}:{sMaskLo+1}]")
    for u in range(8): k(f"v_cndmask_b32 v{vB_+u}, v{vb+u}, v{ones}, s[{sMaskLo}:{sMaskLo+1}]")
    phA=V(8,4); phB=V(8,4); tmp=V(8,2)
    softmax2(k,[(pkA,phA),(pkB,phB)],tmp,sL2E)
    TA=pkA; TB=pkB
    k(f"v_mfma_f32_32x32x16_bf16 v[{TA}:{TA+15}], v[{phA}:{phA+3}], v[{I}:{I+3}], 0")
    k(f"v_mfma_f32_32x32x16_bf16 v[{TB}:{TB+15}], v[{phB}:{phB+3}], v[{I}:{I+3}], 0")
    k(f"v_mfma_f32_32x32x16_bf16 v[{TA}:{TA+15}], v[{phA+4}:{phA+7}], v[{I+4}:{I+7}], v[{TA}:{TA+15}]")
    k(f"v_mfma_f32_32x32x16_bf16 v[{TB}:{TB+15}], v[{phB+4}:{phB+7}], v[{I+4}:{I+7}], v[{TB}:{TB+15}]")
    gs=V()
    k(f"v_mov_b32 v{gs}, 0")
    for u in range(8): k(f"v_dot2c_f32_bf16 v{gs}, v{gx+u}, v{gw+u}")
    for n in (8,4,2,1): k(f"v_add_f32_dpp v{gs}, v{gs}, v{gs} row_ror:{n} row_mask:0xf bank_mask:0xf")
    k(f"v_add_f32_dpp v{gs}, v{gs}, v{gs} row_bcast:15 row_mask:0xa bank_mask:0xf")
    k(f"v_cvt_pk_bf16_f32 v{gs}, v{gs}, v{gs}")
    k(f"v_lshlrev_b32 v{gs}, 16, v{gs}")
    k(f"v_mul_f32 v{gs}, {NLOG2E:#x}, v{gs}")
    k(f"v_exp_f32 v{gs}, v{gs}")
    k(f"v_add_f32 v{gs}, 1.0, v{gs}")
    k(f"v_rcp_f32 v{gs}, v{gs}")
    k(f"v_cvt_pk_bf16_f32 v{gs}, v{gs}, v{gs}")
    k(f"v_lshlrev_b32 v{gs}, 16, v{gs}")
    k(f"v_lshlrev_b32 v{vt}, 2, v{vH}")
    k(f"v_bfe_u32 v{vt2}, v{vL}, 4, 1")
    k(f"v_subrev_u32 v{vt2}, 1, v{vt2}")
    k(f"v_and_b32 v{vt2}, 0x80000000, v{vt2}")
    k(f"v_or_b32 v{vt}, v{vt}, v{vt2}")
    k(f"s_lshl_b32 s{sA}, s{sGo}, 2")
    k(f"s_add_u32 s{sA}, s{sA}, {WS_G}")
    k(f"buffer_store_dword v{gs}, v{vt}, s[{srdWS}:{srdWS+3}], s{sA} offen")
    ptA=phA; ptB=phB
    for u in range(8): k(f"v_cvt_pk_bf16_f32 v{ptA+u}, v{TA+2*u}, v{TA+2*u+1}")
    for u in range(8): k(f"v_cvt_pk_bf16_f32 v{ptB+u}, v{TB+2*u}, v{TB+2*u+1}")
    kvA=TA; kvB=TB
    k(f"v_mfma_f32_32x32x16_bf16 v[{kvA}:{kvA+15}], v[{ptA}:{ptA+3}], v[{vA_}:{vA_+3}], 0")
    k(f"v_mfma_f32_32x32x16_bf16 v[{kvB}:{kvB+15}], v[{ptB}:{ptB+3}], v[{vB_}:{vB_+3}], 0")
    k(f"v_mfma_f32_32x32x16_bf16 v[{kvA}:{kvA+15}], v[{ptA+4}:{ptA+7}], v[{vA_+4}:{vA_+7}], v[{kvA}:{kvA+15}]")
    k(f"v_mfma_f32_32x32x16_bf16 v[{kvB}:{kvB+15}], v[{ptB+4}:{ptB+7}], v[{vB_+4}:{vB_+7}], v[{kvB}:{kvB+15}]")
    for hd,kvr in ((0,kvA),(1,kvB)):
        for i in range(4):
            k(f"ds_write_b128 v{vRa+4*hd+i}, v[{kvr+4*i}:{kvr+4*i+3}] offset:{hd*KVH}")
    vm_poll=k.vm_total
    k(f"s_cmp_eq_u32 s{sTBW}, 0")
    k(f"s_cbranch_scc1 L_{name}_A_poll")
    k.label(f"L_{name}_A_flagok")
    k.barrier()
    rd=accV; rd2=fb
    for u in range(5):
        for w in range(4):
            k(f"ds_read_b32 v{rd+4*u+w if u<4 else rd2+w}, v{vEl} offset:{L_WR+w*4352+1024*u}")
    for u in range(5):
        b=rd+4*u if u<4 else rd2
        k(f"v_add_f32 v{b}, v{b}, v{b+1}")
        k(f"v_add_f32 v{b+2}, v{b+2}, v{b+3}")
        k(f"v_add_f32 v{b}, v{b}, v{b+2}")
        if u<4: k(f"buffer_atomic_add_f32 v{b}, v{vE}, s[{srdKV}:{srdKV+3}], 0 offen offset:{1024*u} sc1")
        else:
            k(f"v_add_u32 v{vt}, 4096, v{vE}")
            k(f"buffer_atomic_add_f32 v{b}, v{vt}, s[{srdKV}:{srdKV+3}], 0 offen sc1")
    pq_o=gx
    assert gw==gx+8
    softmax2(k,[(pqA,pq_o),(pqB,pq_o+8)],tmp,sL2E)
    for q in range(4):
        k(f"buffer_store_dwordx4 v[{pq_o+4*q}:{pq_o+4*q+3}], v{vL16}, s[{srdWS}:{srdWS+3}], s{sPhiO} offen offset:{q*1024} {STF}")
    st.finish(k,sWS,sW,accQ)
    k("s_endpgm")
    k.auto=False
    k.label(f"L_{name}_A_ev4")
    k(f"s_mul_i32 s{sR}, s{sHP}, {2*KVH}")
    k(f"s_add_u32 s{sR}, s{sR}, {WS_KV}")
    for u in range(5):
        if u<4:
            k(f"buffer_store_dwordx4 v[{z4}:{z4+3}], v{vL16}, s[{srdWS}:{srdWS+3}], s{sR} offen offset:{u*1024} sc1")
        else:
            k(f"s_add_u32 s{sR}, s{sR}, 4096")
            k(f"s_mov_b64 exec, 0xffff")
            k(f"buffer_store_dwordx4 v[{z4}:{z4+3}], v{vL16}, s[{srdWS}:{srdWS+3}], s{sR} offen sc1")
            k(f"s_mov_b64 exec, -1")
    k(f"s_branch L_{name}_A_ev4ret")
    k.label(f"L_{name}_A_ev8")
    k(f"s_waitcnt vmcnt({vm_ev8-vm_ev4})")
    k(f"v_mov_b32 v{vOne}, 1")
    k(f"s_lshl_b32 s{sR}, s{sHP}, 2")
    k(f"s_add_u32 s{sR}, s{sR}, 64")
    k(f"s_mov_b64 exec, 1")
    k(f"buffer_store_dword v{vOne}, v{vZ}, s[{srdDBG}:{srdDBG+3}], s{sR} offen sc1")
    k(f"s_mov_b64 exec, -1")
    k(f"s_branch L_{name}_A_ev8ret")
    k.label(f"L_{name}_A_poll0")
    k(f"buffer_load_dword v{vFl}, v{vZ}, s[{srdDBG}:{srdDBG+3}], s{sE} offen sc1")
    k(f"s_branch L_{name}_A_poll0ret")
    k.label(f"L_{name}_A_poll")
    k(f"s_mov_b32 s{sTick}, 0")
    k(f"s_waitcnt vmcnt({vm_poll-vm_poll0})")
    k.label(f"L_{name}_A_poll1")
    k(f"v_readfirstlane_b32 s{sR}, v{vFl}")
    k("s_nop 0")
    k(f"s_cmp_lg_u32 s{sR}, 0")
    k(f"s_cbranch_scc1 L_{name}_A_flagok")
    k(f"s_add_u32 s{sTick}, s{sTick}, 1")
    k(f"s_cmp_ge_u32 s{sTick}, 0x40000")
    k(f"s_cbranch_scc1 L_{name}_A_flagok")
    k("s_sleep 1")
    k(f"buffer_load_dword v{vFl}, v{vZ}, s[{srdDBG}:{srdDBG+3}], s{sE} offen sc1")
    k("s_waitcnt vmcnt(0)")
    k(f"s_branch L_{name}_A_poll1")
    k.auto=True
    return V.hi
```

```python
from dsl import *
from common import *
import os
GMODE=os.environ.get('GMODE','post')
DB=os.environ.get('DBGB','')
STF=os.environ.get('STF','')
PRIO=os.environ.get('PRIOB','')
from k1a import mk_srd,sWO,sWQ,srdT,sX,sLA,sAI,sCR,sCI,sLDT,sDS,sWS,sW,sXCD,sIDX,srdX,srdWS,LOG2E,NLOG2E

UC=4160
CH=31744
KOFF=16640
P1=4640
L_WOB=4*CH
XB=32768
INV2PI=0x3e22f983

def cmul(k,dst,w,z,t):
    k(f"v_pk_mul_f32 v[{t}:{t+1}], v[{w}:{w+1}], v[{z}:{z+1}] op_sel:[0,0] op_sel_hi:[0,1]")
    k(f"v_pk_fma_f32 v[{dst}:{dst+1}], v[{w}:{w+1}], v[{z}:{z+1}], v[{t}:{t+1}] op_sel:[1,1,0] op_sel_hi:[1,0,1] neg_lo:[0,1,0]")

def gen_b(k,name,st):
    k.comment("===== type B: S4D kernel generation + causal conv for 2 channels =====")
    V=Alloc("v",1,256)
    sA=64; sB=65; sT=39; sD0=66; sCh=67; sRole=68; sLdt=69; sDsk=70; sCB=71; sSel0=72; sSel1=73; sEx=74; sTab=76
    vL=V(); vt=V(); vt2=V(); vt3=V(); t0=V(2,2); t1=V(2,2)
    vI=V(); vQ=V(); vA=V(); vB=V()
    mark0=V.mark()
    sP=80; sDP=81; sWp=82
    k(f"s_lshl_b32 s{sD0}, s{sXCD}, 6")
    k(f"s_lshl_b32 s{sA}, s{sIDX}, 2")
    k(f"s_add_u32 s{sD0}, s{sD0}, s{sA}")
    k(f"s_lshr_b32 s{sCh}, s{sW}, 1")
    k(f"s_and_b32 s{sRole}, s{sW}, 1")
    k(f"s_lshr_b32 s{sP}, s{sW}, 2")
    k(f"s_and_b32 s{sWp}, s{sW}, 3")
    k(f"s_lshl_b32 s{sA}, s{sP}, 1")
    k(f"s_add_u32 s{sDP}, s{sD0}, s{sA}")
    k(f"v_and_b32 v{vL}, 63, v0")
    k(f"s_add_u32 s{sA}, s{sD0}, s{sCh}")
    k(f"s_lshl_b32 s{sA}, s{sA}, 8")
    vP=V()
    k(f"v_lshlrev_b32 v{vP}, 2, v{vL}")
    k(f"v_add_u32 v{vP}, s{sA}, v{vP}")
    k(f"s_lshl_b32 s{sB}, s{sDP}, 1")
    k("s_waitcnt lgkmcnt(0)")
    k(f"s_load_dword s{sLdt}, s[{sLDT}:{sLDT+1}], s{sB}")
    k(f"s_load_dword s{sDsk}, s[{sDS}:{sDS+1}], s{sB}")
    pl=V(); pa=V(); pcr=V(); pci=V()
    k(f"global_load_dword v{pl}, v{vP}, s[{sLA}:{sLA+1}]")
    k(f"global_load_dword v{pa}, v{vP}, s[{sAI}:{sAI+1}]")
    k(f"global_load_dword v{pcr}, v{vP}, s[{sCR}:{sCR+1}]")
    k(f"global_load_dword v{pci}, v{vP}, s[{sCI}:{sCI+1}]", tag="par")
    mk_srd(k,srdX,sX,2048*512*2)
    g=V(14,2); vG=V(); vH3=V(); vPf=V()
    k(f"v_and_b32 v{vt}, 15, v{vL}")
    k(f"v_lshlrev_b32 v{vt}, 10, v{vt}")
    k(f"s_lshl_b32 s{sA}, s{sIDX}, 7")
    k(f"s_lshl_b32 s{sT}, s{sW}, 4")
    k(f"s_add_u32 s{sA}, s{sA}, s{sT}")
    k(f"s_lshl_b32 s{sA}, s{sA}, 10")
    k(f"s_lshl_b32 s{sT}, s{sXCD}, 7")
    k(f"s_add_u32 s{sA}, s{sA}, s{sT}")
    k(f"s_mov_b64 exec, 0xffff")
    k(f"buffer_load_dword v{vPf}, v{vt}, s[{srdX}:{srdX+3}], s{sA} offen")
    k(f"s_mov_b64 exec, -1")
    if 'T' not in os.environ.get('DBGB',''):
        sS1=83; sTo=84
        k(f"s_lshr_b32 s{sA}, s{sIDX}, 2")
        k(f"s_and_b32 s{sT}, s{sIDX}, 3")
        k(f"s_add_u32 s{sA}, s{sA}, s{sT}")
        k(f"s_and_b32 s{sA}, s{sA}, 3")
        k(f"s_lshl_b32 s{sS1}, s{sA}, 1")
        k(f"s_add_u32 s{sS1}, s{sS1}, 1")
        k(f"s_and_b32 s{sA}, s{sXCD}, 3")
        k(f"s_lshl_b32 s{sA}, s{sA}, 2")
        k(f"s_add_u32 s{sA}, s{sA}, s{sT}")
        k(f"s_lshl_b32 s{sA}, s{sA}, 7")
        k(f"s_lshl_b32 s{sT}, s{sW}, 4")
        k(f"s_add_u32 s{sA}, s{sA}, s{sT}")
        k(f"s_lshl_b32 s{sA}, s{sA}, 10")
        k(f"s_lshl_b32 s{sT}, s{sS1}, 7")
        k(f"s_add_u32 s{sTo}, s{sA}, s{sT}")
        k(f"v_and_b32 v{vt}, 15, v{vL}")
        k(f"v_lshlrev_b32 v{vt}, 10, v{vt}")
        k(f"s_mov_b64 exec, 0xffff")
        k(f"buffer_load_dword v{vPf}, v{vt}, s[{srdX}:{srdX+3}], s{sTo} offen")
        k(f"s_mov_b64 exec, -1")
        mk_srd(k,srdT,sWQ,512*1536*2)
        k(f"v_mul_u32_u24 v{vt}, 171, v{vL}")
        k(f"v_lshrrev_b32 v{vt}, 9, v{vt}")
        k(f"v_mul_u32_u24 v{vt2}, 3, v{vt}")
        k(f"v_sub_u32 v{vt2}, v{vL}, v{vt2}")
        k(f"v_mul_u32_u24 v{vt}, 3072, v{vt}")
        k(f"v_lshl_add_u32 v{vt}, v{vt2}, 10, v{vt}")
        k(f"s_lshl_b32 s{sA}, s{sS1}, 6")
        k(f"s_lshl_b32 s{sT}, s{sW}, 3")
        k(f"s_add_u32 s{sA}, s{sA}, s{sT}")
        k(f"s_mul_i32 s{sA}, s{sA}, 3072")
        k(f"s_lshr_b32 s{sT}, s{sXCD}, 2")
        k(f"s_lshl_b32 s{sT}, s{sT}, 2")
        k(f"s_lshr_b32 s{sTo}, s{sIDX}, 2")
        k(f"s_add_u32 s{sT}, s{sT}, s{sTo}")
        k(f"s_lshl_b32 s{sT}, s{sT}, 7")
        k(f"s_add_u32 s{sA}, s{sA}, s{sT}")
        k(f"s_mov_b64 exec, 0xffffff")
        k(f"buffer_load_dword v{vPf}, v{vt}, s[{srdT}:{srdT+3}], s{sA} offen")
        k(f"s_mov_b64 exec, -1")
    sFr=78
    k(f"s_lshl_b32 s{sFr}, s{sXCD}, 4")
    k(f"s_add_u32 s{sFr}, s{sFr}, s{sIDX}")
    k(f"s_lshl_b32 s{sFr}, s{sFr}, 2")
    k(f"s_add_u32 s{sFr}, s{sFr}, s{sWp}")
    mk_srd(k,srdT,sWO,512*512*2)
    k(f"v_lshrrev_b32 v{vt}, 2, v{vL}")
    k(f"v_and_b32 v{vt2}, 3, v{vL}")
    k(f"v_lshlrev_b32 v{vt2}, 4, v{vt2}")
    k(f"v_lshl_add_u32 v{vt}, v{vt}, 10, v{vt2}")
    k(f"s_and_b32 s{sA}, s{sFr}, 31")
    k(f"s_lshl_b32 s{sA}, s{sA}, 14")
    k(f"s_lshr_b32 s{sT}, s{sFr}, 5")
    k(f"s_lshl_b32 s{sT}, s{sT}, 6")
    k(f"s_add_u32 s{sT}, s{sA}, s{sT}")
    k(f"s_lshl_b32 s{sA}, s{sW}, 10")
    k(f"s_add_u32 m0, s{sA}, {L_WOB}")
    k(f"s_nop 0")
    k(f"buffer_load_dwordx4 v{vt}, s[{srdT}:{srdT+3}], s{sT} offen lds", tag="wo")
    k(f"v_lshlrev_b32 v{vG}, 12, v0")
    k(f"s_lshl_b32 s{sA}, s{sD0}, 1")
    k(f"v_add_u32 v{vG}, s{sA}, v{vG}")
    k(f"v_subrev_u32 v{vH3}, 3072, v{vG}")
    side=[]
    for r in range(4):
        side.append([f"buffer_load_dwordx2 v[{g+6+2*r}:{g+7+2*r}], v{vG}, s[{srdX}:{srdX+3}], 0 offen offset:{r*1024}"])
    side.append(["s_mov_b64 exec, 1"]+[f"buffer_load_dwordx2 v[{g+2*r}:{g+2*r+1}], v{vH3}, s[{srdX}:{srdX+3}], 0 offen offset:{r*1024}" for r in range(3)]+["s_mov_b64 exec, -1"])
    mk_srd(k,srdWS,sWS,WS_SIZE)
    k(f"s_mul_i32 s{sCB}, s{sCh}, {CH}")
    k(f"s_mov_b32 s{sTab}, s{sCB}")
    aX=V(16)
    k(f"v_and_b32 v{vt}, 1, v{vL}")
    k(f"v_lshlrev_b32 v{vt}, 3, v{vt}")
    k(f"v_lshrrev_b32 v{vt2}, 1, v{vL}")
    k(f"v_lshl_add_u32 v{vt}, v{vt2}, 4, v{vt}")
    k(f"v_add_u32 v{aX}, s{sTab}, v{vt}")
    for x in range(1,16): k(f"v_xor_b32 v{aX+x}, {x<<4}, v{aX}")
    k(f"v_and_b32 v{vI}, 15, v{vL}")
    k(f"v_lshrrev_b32 v{vQ}, 4, v{vL}")
    def rdaddr(dst,rowreg):
        k(f"v_and_b32 v{vt}, 15, v{rowreg}")
        k(f"v_xor_b32 v{vt}, v{vt}, v{vQ}")
        k(f"v_lshlrev_b32 v{vt}, 4, v{vt}")
        k(f"v_lshl_add_u32 v{vt}, v{rowreg}, 9, v{vt}")
        k(f"v_add_u32 v{dst}, s{sTab}, v{vt}")
        for ks in range(1,4): k(f"v_xor_b32 v{dst+ks}, {ks<<6}, v{dst}")
    rF=V(4); rG1=V(4); rG2=V(4)
    rdaddr(rF,vI)
    def rne(dst,kk):
        k(f"v_bfe_u32 v{dst}, v{vI}, {kk}, 1")
        k(f"v_add3_u32 v{dst}, v{dst}, v{vI}, {(1<<(kk-1))-1}")
        k(f"v_lshrrev_b32 v{dst}, {kk}, v{dst}")
    z4=V(4,4)
    for u in range(4): k(f"v_mov_b32 v{z4+u}, 0")
    vDt=V(); vDs=V()
    k("s_waitcnt lgkmcnt(0)")
    k(f"s_lshl_b32 s{sA}, s{sLdt}, 16")
    k(f"s_and_b32 s{sB}, s{sLdt}, 0xffff0000")
    k(f"s_bitcmp0_b32 s{sCh}, 0")
    k(f"s_cselect_b32 s{sLdt}, s{sA}, s{sB}")
    k(f"s_lshl_b32 s{sA}, s{sDsk}, 16")
    k(f"s_and_b32 s{sB}, s{sDsk}, 0xffff0000")
    k(f"s_bitcmp0_b32 s{sCh}, 0")
    k(f"s_cselect_b32 s{sDsk}, s{sA}, s{sB}")
    k(f"v_mov_b32 v{vDt}, {LOG2E:#x}")
    k(f"v_mul_f32 v{vDt}, s{sLdt}, v{vDt}")
    k(f"v_exp_f32 v{vDt}, v{vDt}")
    k(f"v_cvt_pk_bf16_f32 v{vDt}, v{vDt}, v{vDt}")
    k(f"v_lshlrev_b32 v{vDt}, 16, v{vDt}")
    k(f"v_cmp_eq_u32 vcc, 0, v{vL}")
    k(f"v_mov_b32 v{vt}, s{sDsk}")
    k(f"v_cndmask_b32 v{vDs}, 0, v{vt}, vcc")
    import struct
    re2=V(2); fr=V(2); cc=[V(2,2),V(2,2)]; T0=[V(2,2),V(2,2)]; T1=[V(2,2),V(2,2)]
    def unpack(dst,src,m):
        if m==0: k(f"v_lshlrev_b32 v{dst}, 16, v{src}")
        else: k(f"v_and_b32 v{dst}, 0xffff0000, v{src}")
    def both(f):
        for m in range(2): f(m)
    def mode_params(need_c):
        both(lambda m: unpack(re2+m,pl,m))
        both(lambda m: k(f"v_mul_f32 v{re2+m}, {LOG2E:#x}, v{re2+m}"))
        both(lambda m: k(f"v_exp_f32 v{re2+m}, v{re2+m}"))
        both(lambda m: unpack(fr+m,pa,m))
        k(f"v_cvt_pk_bf16_f32 v{vt}, v{re2}, v{re2+1}")
        both(lambda m: k(f"v_mul_f32 v{fr+m}, v{fr+m}, v{vDt}"))
        both(lambda m: unpack(re2+m,vt,m))
        both(lambda m: k(f"v_mul_f32 v{fr+m}, {INV2PI:#x}, v{fr+m}"))
        both(lambda m: k(f"v_mul_f32 v{re2+m}, v{re2+m}, v{vDt}"))
        both(lambda m: k(f"v_mul_f32 v{re2+m}, {NLOG2E:#x}, v{re2+m}"))
        if need_c:
            both(lambda m: unpack(cc[m],pcr,m))
            both(lambda m: unpack(cc[m]+1,pci,m))
            k(f"v_add_f32 v{vt}, v{vDt}, v{vDt}")
            both(lambda m: k(f"v_mul_f32 v{cc[m]}, v{cc[m]}, v{vt}"))
            both(lambda m: k(f"v_mul_f32 v{cc[m]+1}, v{cc[m]+1}, v{vt}"))
    def Edirect(dst,p):
        lit=struct.unpack("<I",struct.pack("<f",float(p)))[0]
        if p==1:
            both(lambda m: k(f"v_exp_f32 v{T1[m]}, v{re2+m}"))
            both(lambda m: k(f"v_fract_f32 v{T1[m]+1}, v{fr+m}"))
        else:
            both(lambda m: k(f"v_mul_f32 v{T1[m]}, {lit:#x}, v{re2+m}"))
            both(lambda m: k(f"v_mul_f32 v{T1[m]+1}, {lit:#x}, v{fr+m}"))
            both(lambda m: k(f"v_exp_f32 v{T1[m]}, v{T1[m]}"))
            both(lambda m: k(f"v_fract_f32 v{T1[m]+1}, v{T1[m]+1}"))
        both(lambda m: k(f"v_cos_f32 v{dst[m]}, v{T1[m]+1}"))
        both(lambda m: k(f"v_sin_f32 v{dst[m]+1}, v{T1[m]+1}"))
        both(lambda m: k(f"v_pk_mul_f32 v[{dst[m]}:{dst[m]+1}], v[{dst[m]}:{dst[m]+1}], v[{T1[m]}:{T1[m]+1}] op_sel_hi:[1,0]"))
    def cmul2(dst,w,z,T):
        both(lambda m: k(f"v_pk_mul_f32 v[{T[m]}:{T[m]+1}], v[{w[m]}:{w[m]+1}], v[{z[m]}:{z[m]+1}] op_sel:[0,0] op_sel_hi:[0,1]"))
        both(lambda m: k(f"v_pk_fma_f32 v[{dst[m]}:{dst[m]+1}], v[{w[m]}:{w[m]+1}], v[{z[m]}:{z[m]+1}], v[{T[m]}:{T[m]+1}] op_sel:[1,1,0] op_sel_hi:[1,0,1] neg_lo:[0,1,0]"))
    pk=[V(2,2),V(2,2)]
    pkc=[0]
    sidel=[]
    def wrow(row,w,neg):
        r=pk[pkc[0]&1]; pkc[0]+=1
        both(lambda m: k(f"v_cvt_pk_bf16_f32 v{r+m}, v{w[m]}, {'-' if neg else ''}v{w[m]+1}"))
        if 'W' not in DB: k(f"ds_write_b64 v{aX+(row&15)}, v[{r}:{r+1}] offset:{row*512}")
        if sidel and GMODE[0]=='i' and pkc[0]%int(GMODE[1:])==0:
            for l in sidel.pop(0): k(l)
    P2=lambda: [V(2,2),V(2,2)]
    wA=P2(); wB=P2(); zz=P2(); e4=P2(); e8=P2(); e12=P2(); e16=P2(); eb=P2()
    def mov2(dst,src):
        for m in range(2):
            k(f"v_mov_b32 v{dst[m]}, v{src[m]}"); k(f"v_mov_b32 v{dst[m]+1}, v{src[m]+1}")
    def table_role0():
        mode_params(True)
        Edirect(zz,16)
        Edirect(wB,256)
        cmul2(wB,wB,cc,T0)
        for a in range(16):
            src=cc if a==0 else wA
            wrow(a,src,True); wrow(16+a,wB,True)
            if a<15:
                cmul2(wA,src,zz,T0); cmul2(wB,wB,zz,T1)
    def table_role1():
        mode_params(False)
        Edirect(zz,1)
        r=pk[pkc[0]&1]; pkc[0]+=1
        k(f"v_mov_b32 v{r}, 0x3f80"); k(f"v_mov_b32 v{r+1}, 0x3f80")
        k(f"ds_write_b64 v{aX+0}, v[{r}:{r+1}] offset:{32*512}")
        keep={4:e4,8:e8,12:e12,16:e16}
        Edirect(eb,512)
        wrow(33,zz,False)
        wrow(50,eb,False)
        cur=zz
        for b in range(2,17):
            dst=keep.get(b,wA)
            cmul2(dst,cur,zz,T0)
            cur=dst
            wrow(32+b if b<16 else 49,cur,False)
            if b in keep:
                cmul2(wB,eb,cur,T1)
                wrow(50+2*(b//4),wB,False)
        for (p,row) in ((1024,51),(1536,57)):
            Edirect(eb,p)
            wrow(row,eb,False)
            cmul2(wB,eb,e8,T0); wrow(row+2,wB,False)
            cmul2(wB,eb,e16,T1); wrow(row+4,wB,False)
    uo={}
    def u_prep():
        for r in range(3):
            for dw in range(2):
                k(f"v_mov_b32_dpp v{g+2*r+dw}, v{g+2*(r+4)+dw} wave_shr:1 row_mask:0xf bank_mask:0xf")
        k(f"s_mov_b32 s{sSel0}, 0x05040100")
        k(f"s_mov_b32 s{sSel1}, 0x07060302")
        uo['z']=V(); uo['u']=V(); uo['u2']=V(); uo['o']=V(32,2)
        k(f"v_lshrrev_b32 v{vt}, 4, v{vL}")
        k(f"v_mul_u32_u24 v{vt}, {CH}, v{vt}")
        k(f"v_bfe_u32 v{vt2}, v{vL}, 2, 2")
        k(f"v_mul_u32_u24 v{vt2}, {UC}, v{vt2}")
        k(f"v_add_u32 v{vt}, v{vt}, v{vt2}")
        k(f"v_and_b32 v{vt2}, 3, v{vL}")
        k(f"v_lshl_add_u32 v{uo['z']}, v{vt2}, 4, v{vt}")
        k(f"v_sub_u32 v{uo['u']}, 511, v0")
        k(f"v_lshlrev_b32 v{uo['u']}, 3, v{uo['u']}")
        k(f"v_add_u32 v{uo['u2']}, {2*CH}, v{uo['u']}")
        G=lambda r,dw: g+2*(r+3)+dw
        for ch in range(4):
            sel=sSel0 if ch%2==0 else sSel1; dw=ch>>1
            for c in range(4):
                o=uo['o']+2*(4*ch+c)
                k(f"v_perm_b32 v{o}, v{G(c-1,dw)}, v{G(c,dw)}, s{sel}")
                k(f"v_perm_b32 v{o+1}, v{G(c-3,dw)}, v{G(c-2,dw)}, s{sel}")
    def u_write():
        k(f"ds_write_b128 v{uo['z']}, v[{z4}:{z4+3}] offset:4096")
        for ch in range(4):
            for c in range(4):
                o=uo['o']+2*(4*ch+c)
                k(f"ds_write_b64 v{uo['u'] if ch<2 else uo['u2']}, v[{o}:{o+1}] offset:{(ch%2)*CH+c*UC}")
    acc=V(16,4)
    fr_=[V(20,4),V(20,4),V(20,4)]
    def kreads(role,u):
        hi,ks=u>>2,u&3; f=fr_[u%3]; o=hi*256
        k(f"ds_read_b128 v[{f}:{f+3}], v{rF+ks} offset:{o}")
        if role==0:
            k(f"ds_read_b128 v[{f+8}:{f+11}], v{rF+ks} offset:{o+16384}")
            k(f"ds_read_b128 v[{f+4}:{f+7}], v{rF+ks} offset:{o+8192}")
            k(f"ds_read_b128 v[{f+12}:{f+15}], v{rG1+ks} offset:{o}")
            k(f"ds_read_b128 v[{f+16}:{f+19}], v{rG2+ks} offset:{o}")
        else:
            k(f"ds_read_b128 v[{f+8}:{f+11}], v{rG1+ks} offset:{o}")
            k(f"ds_read_b128 v[{f+4}:{f+7}], v{rF+ks} offset:{o+8192}")
            k(f"ds_read_b128 v[{f+12}:{f+15}], v{rG2+ks} offset:{o}")
    def kmf(role,u):
        f=fr_[u%3]
        if role==0: pairs=[(0,f+8,f),(1,f+12,f+4),(2,f+16,f),(3,f+16,f+4)]
        else: pairs=[(0,f+8,f),(1,f+8,f+4),(2,f+12,f),(3,f+12,f+4)]
        for (T,a,b) in pairs:
            cin="0" if u==0 else f"v[{acc+4*T}:{acc+4*T+3}]"
            k(f"v_mfma_f32_16x16x32_bf16 v[{acc+4*T}:{acc+4*T+3}], v[{a}:{a+3}], v[{b}:{b+3}], {cin}")
    def kmfma(role):
        kreads(role,0); kreads(role,1)
        for u in range(8):
            if u+2<8: kreads(role,u+2)
            kmf(role,u)
    def wo_frag():
        wof=V(4,4); vWoA=V()
        k(f"v_bfe_u32 v{vt}, v{vL}, 2, 2")
        k(f"v_lshrrev_b32 v{vt2}, 5, v{vL}")
        k(f"v_lshl_add_u32 v{vt}, v{vt2}, 2, v{vt}")
        k(f"v_lshlrev_b32 v{vWoA}, 6, v{vt}")
        k(f"v_bfe_u32 v{vt2}, v{vL}, 4, 1")
        k(f"v_lshl_add_u32 v{vWoA}, v{vt2}, 5, v{vWoA}")
        k(f"v_and_b32 v{vt2}, 3, v{vL}")
        k(f"v_lshl_add_u32 v{vWoA}, v{vt2}, 3, v{vWoA}")
        k(f"s_lshl_b32 s{sA}, s{sW}, 10")
        k(f"s_add_u32 s{sA}, s{sA}, {L_WOB}")
        k(f"v_add_u32 v{vWoA}, s{sA}, v{vWoA}")
        k.wait_tag("wo")
        k(f"ds_read_b64_tr_b16 v[{wof}:{wof+1}], v{vWoA}")
        k(f"ds_read_b64_tr_b16 v[{wof+2}:{wof+3}], v{vWoA} offset:512")
        k(f"v_lshlrev_b32 v{vt}, 4, v{vL}")
        k(f"s_lshl_b32 s{sA}, s{sFr}, 10")
        k(f"s_add_u32 s{sA}, s{sA}, {WS_WO}")
        k(f"buffer_store_dwordx4 v[{wof}:{wof+3}], v{vt}, s[{srdWS}:{srdWS+3}], s{sA} offen {STF}")
    row=V()
    k(f"s_cmp_eq_u32 s{sRole}, 0")
    k(f"s_cbranch_scc0 L_{name}_B1")
    snap=k.snapshot(); mark=V.mark()
    for role in range(2):
        if role==1:
            k.restore(snap); V.reset(mark); k.label(f"L_{name}_B1")
        if role==0:
            rne(row,1)
            k(f"v_lshrrev_b32 v{vt2}, 3, v{row}")
            k(f"v_lshl_add_u32 v{row}, v{row}, 1, v{vt2}")
            k(f"v_add_u32 v{row}, 32, v{row}")
            rdaddr(rG1,row)
            rne(row,2); k(f"v_lshlrev_b32 v{row}, 1, v{row}"); k(f"v_add_u32 v{row}, 50, v{row}"); rdaddr(rG2,row)
        else:
            rne(row,3); k(f"v_lshlrev_b32 v{row}, 1, v{row}"); k(f"v_add_u32 v{row}, 51, v{row}"); rdaddr(rG1,row)
            k(f"v_add_u32 v{row}, 6, v{row}"); rdaddr(rG2,row)
        tab=table_role0 if role==0 else table_role1
        st.mark(k,1)
        if PRIO: k(f"s_setprio {PRIO}")
        flat=[l for blk in side for l in blk]
        if GMODE=='split':
            k.wait_tag("par")
            k(f"s_cmp_eq_u32 s{sP}, 0")
            k(f"s_cbranch_scc0 L_{name}_B{role}_g0")
            vmq=list(k.vm)
            for l in flat: k(l)
            k.label(f"L_{name}_B{role}_g0")
            k.vm=vmq
            tab()
            k(f"s_cmp_eq_u32 s{sP}, 1")
            k(f"s_cbranch_scc0 L_{name}_B{role}_g1")
            for l in flat: k(l)
            k.label(f"L_{name}_B{role}_g1")
        else:
            sidel.clear(); sidel.extend([list(x) for x in side] if 'G' not in DB else [])
            if GMODE=='pre':
                k.wait_tag("par")
                for blk in sidel:
                    for l in blk: k(l)
                sidel.clear()
            tab()
            for blk in sidel:
                for l in blk: k(l)
            sidel.clear()
        if 'O' not in DB:
            m2=V.mark(); wo_frag(); V.reset(m2)
        st.mark(k,2)
        k.barrier()
        kmfma(role)
        st.mark(k,3)
        u_prep()
        vK=vt3
        k(f"s_add_u32 s{sTab}, s{sCB}, {KOFF}")
        k(f"v_lshlrev_b32 v{vK}, 5, v{vL}")
        k(f"v_add_u32 v{vK}, s{sTab}, v{vK}")
        kp=V(8,4); vKz=V()
        if role==0:
            k(f"v_add_f32 v{acc}, v{acc}, v{vDs}")
            k(f"v_lshlrev_b32 v{vKz}, 3, v{vL}")
            k(f"v_add_u32 v{vKz}, s{sTab}, v{vKz}")
        for T in range(4):
            k(f"v_cvt_pk_bf16_f32 v{kp+2*T}, v{acc+4*T}, v{acc+4*T+1}")
            k(f"v_cvt_pk_bf16_f32 v{kp+2*T+1}, v{acc+4*T+2}, v{acc+4*T+3}")
        for b0 in range(2):
            for d in range(2): k(f"v_permlane32_swap_b32 v{kp+2*b0+d}, v{kp+2*(b0+2)+d}")
        for b1 in range(2):
            for d in range(2): k(f"v_permlane16_swap_b32 v{kp+4*b1+d}, v{kp+4*b1+2+d}")
        k.barrier()
        if role==0:
            k(f"ds_write_b64 v{vKz}, v[{z4}:{z4+1}]")
            k(f"ds_write_b64 v{vKz}, v[{z4}:{z4+1}] offset:{P1}")
        o=2048*role
        k(f"ds_write_b128 v{vK}, v[{kp}:{kp+3}] offset:{o+464}")
        k(f"ds_write_b128 v{vK}, v[{kp+4}:{kp+7}] offset:{o+480}")
        k(f"ds_write_b128 v{vK}, v[{kp+2}:{kp+5}] offset:{P1+o+464}")
        k(f"ds_write_b64 v{vK}, v[{kp}:{kp+1}] offset:{P1+o+456}")
        k(f"ds_write_b64 v{vK}, v[{kp+6}:{kp+7}] offset:{P1+o+480}")
        u_write()
        k(f"v_and_b32 v{vt}, 3, v{vI}")
        k(f"v_mul_u32_u24 v{vA}, {UC}, v{vt}")
        k(f"v_lshrrev_b32 v{vt}, 2, v{vI}")
        k(f"v_sub_u32 v{vt}, v{vQ}, v{vt}")
        k(f"v_add_u32 v{vt}, 3, v{vt}")
        k(f"v_lshl_add_u32 v{vA}, v{vt}, 4, v{vA}")
        k(f"v_add_u32 v{vA}, s{sCB}, v{vA}")
        k(f"v_lshrrev_b32 v{vt}, 1, v{vI}")
        k(f"v_lshlrev_b32 v{vB}, 6, v{vt}")
        k(f"v_lshl_add_u32 v{vB}, v{vQ}, 4, v{vB}")
        k(f"v_and_b32 v{vt}, 1, v{vI}")
        k(f"v_mul_u32_u24 v{vt}, {P1-16}, v{vt}")
        k(f"v_sub_u32 v{vt}, {P1}, v{vt}")
        k(f"v_add3_u32 v{vB}, v{vB}, v{vt}, s{sTab}")
        k.barrier()
        V.reset(mark0)
        y=V(32,4)
        S=[V(64,4),V(64,4)]
        def loads(r,s):
            L=[]
            for c in range(8):
                L.append(f"ds_read_b128 v[{s+4*c}:{s+4*c+3}], v{vA} offset:{64*(56+r-8*c)}")
                L.append(f"ds_read_b128 v[{s+32+4*c}:{s+32+4*c+3}], v{vB} offset:{64*(r+8*c)}")
            return L
        classes=[4*role+i for i in range(4)]
        for l in loads(classes[0],S[0]): k(l)
        started=set()
        for ci,r in enumerate(classes):
            s=S[ci&1]
            nxt=loads(classes[ci+1],S[(ci+1)&1]) if ci+1<4 else []
            order=[]
            for d in range(8):
                for a in range(8):
                    for c in range(8):
                        if max(a,c)==d and a+c<=7: order.append((a,c))
            n=0
            for (a,c) in order:
                i=a+c
                cin="0" if i not in started else f"v[{y+4*i}:{y+4*i+3}]"
                started.add(i)
                k(f"v_mfma_f32_16x16x32_bf16 v[{y+4*i}:{y+4*i+3}], v[{s+4*c}:{s+4*c+3}], v[{s+32+4*a}:{s+32+4*a+3}], {cin}")
                n+=1
                if nxt and n>=4 and n%2==0: k(nxt.pop(0))
            for l in nxt: k(l)
        st.mark(k,4)
        vXw=vt3; vXr=vA
        k(f"v_lshlrev_b32 v{vt}, 4, v{vL}")
        k(f"s_lshl_b32 s{sA}, s{sW}, 12")
        k(f"s_add_u32 s{sA}, s{sA}, {L_WOB}")
        k(f"v_add_u32 v{vXw}, s{sA}, v{vt}")
        k(f"s_xor_b32 s{sA}, s{sA}, 4096") if False else None
        k(f"s_xor_b32 s{sB}, s{sW}, 1")
        k(f"s_lshl_b32 s{sB}, s{sB}, 12")
        k(f"s_add_u32 s{sB}, s{sB}, {L_WOB}")
        k(f"v_add_u32 v{vXr}, s{sB}, v{vt}")
        mine=[4*role+i for i in range(4)]; theirs=[4*(1-role)+i for i in range(4)]
        for n_,i in enumerate(theirs):
            k(f"ds_write_b128 v{vXw}, v[{y+4*i}:{y+4*i+3}] offset:{1024*n_}")
        vS=vB
        k(f"v_lshrrev_b32 v{vt}, 1, v{vI}")
        k(f"v_lshlrev_b32 v{vS}, 6, v{vt}")
        k(f"v_lshl_add_u32 v{vS}, v{vQ}, 4, v{vS}")
        k(f"v_and_b32 v{vt}, 1, v{vI}")
        k(f"v_lshl_add_u32 v{vS}, v{vt}, 3, v{vS}")
        k(f"s_add_u32 s{sA}, s{sD0}, s{sCh}")
        k(f"s_lshl_b32 s{sA}, s{sA}, 12")
        k(f"s_add_u32 s{sA}, s{sA}, {WS_B+role*4*512}")
        k.barrier()
        rr=S[0]
        for n_ in range(4):
            k(f"ds_read_b128 v[{rr+4*n_}:{rr+4*n_+3}], v{vXr} offset:{1024*n_}")
        for n_,i in enumerate(mine):
            b=rr+4*n_
            k(f"v_pk_add_f32 v[{b}:{b+1}], v[{b}:{b+1}], v[{y+4*i}:{y+4*i+1}]")
            k(f"v_pk_add_f32 v[{b+2}:{b+3}], v[{b+2}:{b+3}], v[{y+4*i+2}:{y+4*i+3}]")
            k(f"v_cvt_pk_bf16_f32 v{b}, v{b}, v{b+1}")
            k(f"v_cvt_pk_bf16_f32 v{b+1}, v{b+2}, v{b+3}")
            k(f"buffer_store_dwordx2 v[{b}:{b+1}], v{vS}, s[{srdWS}:{srdWS+3}], s{sA} offen offset:{512*n_} {STF}")
        st.mark(k,5)
        st.finish(k,sWS,sW,y)
        k("s_endpgm")
    return V.hi
```

```python
from dsl import *
from common import *
import os
DBG2=os.environ.get('DBG2','')

def gen_k2(name="fin_kernel", stamp=False):
    k = Kern()
    S = Stamper(stamp,1)
    V = Alloc("v", 1, 256)
    sOUT=4; sWS=6; srdW=8; srdO=12; sW=16; sTB=17; sDB=18; sT=19; sA=20; sB=21
    sPhi=22; sKv=23; sWo=24; sBb=25; sG=26; sOo=27; sRh=28; sRc=29; sH=30; sC=31
    k(f"s_cmp_ge_u32 s2, 256")
    k(f"s_cbranch_scc1 L_{name}_end")
    S.start(k); S.mark(k,6)
    k(f"s_load_dwordx2 s[{sOUT}:{sOUT+1}], s[0:1], {KA['out']}")
    k(f"s_load_dwordx2 s[{sWS}:{sWS+1}], s[0:1], {KA['ws']}")
    vLane=V(); vT=V(); vH=V(); vPhi=V(); vKv=V(4); vB=V(); vG=V(); vO=V(); vtmp=V(); vtmp2=V()
    k(f"v_lshrrev_b32 v{vtmp}, 6, v0")
    k(f"v_and_b32 v{vLane}, 63, v0")
    k(f"v_readfirstlane_b32 s{sW}, v{vtmp}")
    k(f"v_and_b32 v{vT}, 31, v{vLane}")
    k(f"v_lshrrev_b32 v{vH}, 5, v{vLane}")
    k(f"v_lshlrev_b32 v{vPhi}, 4, v{vLane}")
    k(f"s_and_b32 s{sA}, s2, 7")
    k(f"s_lshr_b32 s{sB}, s2, 5")
    k(f"s_lshr_b32 s{sDB}, s2, 3")
    k(f"s_and_b32 s{sDB}, s{sDB}, 3")
    k(f"s_and_b32 s{sT}, s{sA}, 3")
    k(f"s_lshl_b32 s{sT}, s{sT}, 4")
    k(f"s_lshr_b32 s{sA}, s{sA}, 2")
    k(f"s_lshl_b32 s{sA}, s{sA}, 3")
    k(f"s_add_u32 s{sTB}, s{sT}, s{sA}")
    k(f"s_add_u32 s{sTB}, s{sTB}, s{sB}")
    k(f"v_lshlrev_b32 v{vtmp}, 4, v{vT}")
    k(f"v_lshl_add_u32 v{vtmp}, v{vH}, 8, v{vtmp}")
    k(f"v_lshlrev_b32 v{vtmp2}, 4, v{vH}")
    k(f"v_add_u32 v{vtmp2}, 2048, v{vtmp2}")
    k(f"v_cmp_gt_u32 vcc, 16, v{vT}")
    k(f"v_cndmask_b32 v{vKv}, v{vtmp2}, v{vtmp}, vcc")
    k(f"v_mov_b32 v{vtmp}, 512")
    k(f"v_mov_b32 v{vtmp2}, 32")
    k(f"v_cndmask_b32 v{vtmp}, v{vtmp2}, v{vtmp}, vcc")
    for u in range(1,4): k(f"v_add_u32 v{vKv+u}, v{vKv+u-1}, v{vtmp}")
    k(f"s_lshl_b32 s{sA}, s{sTB}, 16")
    k(f"s_lshl_b32 s{sB}, s{sW}, 14")
    k(f"s_add_u32 s{sPhi}, s{sA}, s{sB}")
    k(f"s_mul_i32 s{sKv}, s{sW}, {8*KVH}")
    k(f"s_add_u32 s{sKv}, s{sKv}, {WS_KV}")
    k(f"s_lshl_b32 s{sA}, s{sDB}, 2")
    k(f"s_add_u32 s{sA}, s{sA}, s{sW}")
    k(f"s_lshl_b32 s{sWo}, s{sA}, 15")
    k(f"s_add_u32 s{sWo}, s{sWo}, {WS_WO}")
    k(f"s_lshl_b32 s{sBb}, s{sA}, 17")
    k(f"s_lshl_b32 s{sB}, s{sTB}, 6")
    k(f"s_add_u32 s{sBb}, s{sBb}, s{sB}")
    k(f"s_add_u32 s{sBb}, s{sBb}, {WS_B}")
    k(f"s_lshl_b32 s{sB}, s{sTB}, 7")
    k(f"s_add_u32 s{sG}, s{sB}, {WS_G}")
    k(f"s_lshl_b32 s{sOo}, s{sTB}, 15")
    k(f"s_lshl_b32 s{sB}, s{sA}, 6")
    k(f"s_add_u32 s{sOo}, s{sOo}, s{sB}")
    k("s_waitcnt lgkmcnt(0)")
    k(f"s_mov_b32 s{srdW}, s{sWS}")
    k(f"s_and_b32 s{srdW+1}, s{sWS+1}, 0xffff")
    k(f"s_mov_b32 s{srdW+2}, {WS_SIZE}")
    k(f"s_mov_b32 s{srdW+3}, 0x20000")
    phi = [V(8,4) for _ in range(8)]
    kvf = [V(16,4) for _ in range(3)]
    L_KV=32768
    k(f"s_mul_i32 s{sRh}, s{sW}, {8*KVH}")
    k(f"s_add_u32 s{sRh}, s{sRh}, {L_KV}")
    for u in range(4): k(f"v_add_u32 v{vKv+u}, s{sRh}, v{vKv+u}")
    sT2=33; sLb=34
    def g_kv(c): return [(f"s_add_u32 m0, s{sRh}, {c*1024}",None),(f"s_add_u32 s{sT2}, s{sKv}, {c*1024}",None),
                         (f"buffer_load_dwordx4 v{vPhi}, s[{srdW}:{srdW+3}], s{sT2} offen lds",f"kv{c}")]
    def g_phi(hh,s):
        g=[]
        g.append((f"s_add_u32 s{sT2}, s{sPhi}, {hh*2048+s*1024}",None))
        g.append((f"buffer_load_dwordx4 v[{phi[hh]+4*s}:{phi[hh]+4*s+3}], v{vPhi}, s[{srdW}:{srdW+3}], s{sT2} offen",None))
        return g
    def g_wo(c): return [(f"s_add_u32 s{sT2}, s{sWo}, {c*1024}",None),(f"buffer_load_dwordx4 a[{4*c}:{4*c+3}], v{vPhi}, s[{srdW}:{srdW+3}], s{sT2} offen",f"wo{c}")]
    seq=[]; nk=0; nw=0
    WPH=eval(os.environ.get('K2W','[0,0,0,2,4,4,4,4]'))
    for hh in range(8):
        need=min(17,(KVH*(hh+1)+1023)//1024)
        while nk<need: seq.append(g_kv(nk)); nk+=1
        seq.append(g_phi(hh,0)); seq.append(g_phi(hh,1))
        for _ in range(WPH[hh]): seq.append(g_wo(nw)); nw+=1
    while nw<32: seq.append(g_wo(nw)); nw+=1
    def rd_kv(hh):
        f=kvf[hh%3]
        k.wait_tag(f"kv{(KVH*(hh+1)-1)//1024}")
        for q in range(4):
            k(f"ds_read_b128 v[{f+4*q}:{f+4*q+3}], v{vKv+q} offset:{hh*KVH}")
    NPRE=int(os.environ.get('K2NPRE','20'))
    for g in seq[:NPRE]:
        for (t,tg) in g: k(t,tag=tg)
    rest=seq[NPRE:]
    bdw = V(8,2); vg=V()
    k(f"v_lshrrev_b32 v{vB}, 2, v{vLane}")
    k(f"v_lshlrev_b32 v{vB}, 12, v{vB}")
    k(f"v_and_b32 v{vtmp}, 3, v{vLane}")
    k(f"v_lshl_add_u32 v{vB}, v{vtmp}, 4, v{vB}")
    k(f"v_lshlrev_b32 v{vG}, 2, v{vT}")
    k(f"v_lshlrev_b32 v{vO}, 10, v{vT}")
    k(f"v_lshl_add_u32 v{vO}, v{vH}, 4, v{vO}")
    L_BT=L_KV+4*8*KVH
    vBr=V()
    bgl=[]
    for u in range(2):
        bgl.append([(f"s_add_u32 m0, s{sLb}, {u*1024}",None),(f"s_add_u32 s{sT2}, s{sBb}, {u*16*4096}",None),
                    (f"buffer_load_dwordx4 v{vB}, s[{srdW}:{srdW+3}], s{sT2} offen lds","bt")])
    bgl.append([(f"buffer_load_dword v{vg}, v{vG}, s[{srdW}:{srdW+3}], s{sG} offen",None)])
    rest=rest[:-8]+bgl+rest[-8:]
    k(f"s_lshl_b32 s{sLb}, s{sW}, 11")
    k(f"s_add_u32 s{sLb}, s{sLb}, {L_BT}")
    k(f"v_bfe_u32 v{vtmp}, v{vLane}, 2, 2")
    k(f"v_lshl_add_u32 v{vtmp}, v{vH}, 2, v{vtmp}")
    k(f"v_lshlrev_b32 v{vBr}, 6, v{vtmp}")
    k(f"v_bfe_u32 v{vtmp}, v{vLane}, 4, 1")
    k(f"v_lshl_add_u32 v{vBr}, v{vtmp}, 5, v{vBr}")
    k(f"v_and_b32 v{vtmp}, 3, v{vLane}")
    k(f"v_lshl_add_u32 v{vBr}, v{vtmp}, 3, v{vBr}")
    k(f"v_add_u32 v{vBr}, s{sLb}, v{vBr}")
    k(f"s_mov_b32 s{srdO}, s{sOUT}")
    k(f"s_and_b32 s{srdO+1}, s{sOUT+1}, 0xffff")
    k(f"s_mov_b32 s{srdO+2}, {2048*512*2}")
    k(f"s_mov_b32 s{srdO+3}, 0x20000")
    vOw=V()
    k(f"s_lshl_b32 s{sA}, s{sW}, 13")
    k(f"v_add_u32 v{vOw}, s{sA}, v{vPhi}")
    D=[V(16,4),V(16,4)]
    def p1_mfma(hh):
        f=kvf[hh%3]; d=D[hh%2]
        for q in range(8):
            k(f"v_cvt_pk_bf16_f32 v{f+q}, v{f+2*q}, v{f+2*q+1}")
        k(f"v_mfma_f32_32x32x16_bf16 v[{d}:{d+15}], v[{f}:{f+3}], v[{phi[hh]}:{phi[hh]+3}], 0")
        k(f"v_mfma_f32_32x32x16_bf16 v[{d}:{d+15}], v[{f+4}:{f+7}], v[{phi[hh]+4}:{phi[hh]+7}], v[{d}:{d+15}]")
    def p1_fin(hh):
        d=D[hh%2]; of=kvf[hh%3]+8
        k(f"v_add_f32 v{vtmp}, 0x358637bd, v{d+8}")
        k(f"v_rcp_f32 v{vtmp}, v{vtmp}")
        for j in range(4):
            k(f"v_pk_mul_f32 v[{d+2*j}:{d+2*j+1}], v[{d+2*j}:{d+2*j+1}], v[{vtmp}:{vtmp+1}] op_sel_hi:[1,0]") if vtmp%2==0 else None
        if vtmp%2:
            for j in range(8): k(f"v_mul_f32 v{d+j}, v{d+j}, v{vtmp}")
        for j in range(4):
            k(f"v_cvt_pk_bf16_f32 v{of+j}, v{d+2*j}, v{d+2*j+1}")
        k(f"ds_write_b128 v{vOw}, v[{of}:{of+3}] offset:{hh*1024}")
    S.mark(k,1)
    k.bg=rest; k.bg_every=int(os.environ.get('K2EV','6'))
    rd_kv(0); rd_kv(1)
    p1_mfma(0)
    for hh in range(8):
        if hh+1<8: p1_mfma(hh+1)
        p1_fin(hh)
        if hh+2<8: rd_kv(hh+2)
    S.mark(k,2)
    k.barrier()
    S.mark(k,3)
    acc=D[0]
    ob=[phi[0]+4*i for i in range(8)]
    def rd(c): k(f"ds_read_b128 v[{ob[c%8]}:{ob[c%8]+3}], v{vPhi} offset:{c*1024}")
    if 'F' not in DBG2: k.bg_flush()
    else: k.bg_every=int(os.environ.get('K2EV2','4'))
    for c in range(8): rd(c)
    for c in range(32):
        cin = "0" if c==0 else f"v[{acc}:{acc+15}]"
        k(f"v_mfma_f32_32x32x16_bf16 v[{acc}:{acc+15}], a[{4*c}:{4*c+3}], v[{ob[c%8]}:{ob[c%8]+3}], {cin}")
        if c+8<32: rd(c+8)
        if c==6:
            k.wait_tag("bt")
            for i in range(4):
                k(f"ds_read_b64_tr_b16 v[{bdw+2*i}:{bdw+2*i+1}], v{vBr} offset:{i*512}")
        if c==8:
            vomg=vtmp2; bl=kvf[0]; od=kvf[1]
            k(f"v_sub_f32 v{vomg}, 1.0, v{vg}")
            k(f"v_cvt_pk_bf16_f32 v{vomg}, v{vomg}, v{vomg}")
            k(f"v_lshlrev_b32 v{vomg}, 16, v{vomg}")
        if 9<=c<17:
            q=c-9
            k(f"v_lshlrev_b32 v{bl+2*q}, 16, v{bdw+q}")
            k(f"v_and_b32 v{bl+2*q+1}, 0xffff0000, v{bdw+q}")
        if 17<=c<25:
            q=c-17
            k(f"v_mul_f32 v{bl+2*q}, v{vomg}, v{bl+2*q}")
            k(f"v_mul_f32 v{bl+2*q+1}, v{vomg}, v{bl+2*q+1}")
    S.mark(k,4)
    for r in range(16):
        k(f"v_fmac_f32 v{bl+r}, v{vg}, v{acc+r}")
    for q in range(8):
        k(f"v_cvt_pk_bf16_f32 v{od+q}, v{bl+2*q}, v{bl+2*q+1}")
    for p in range(2):
        b=od+4*p
        k(f"v_permlane32_swap_b32 v{b}, v{b+2}")
        k(f"v_permlane32_swap_b32 v{b+1}, v{b+3}")
        k(f"buffer_store_dwordx4 v[{b}:{b+3}], v{vO}, s[{srdO}:{srdO+3}], s{sOo} offen offset:{32*p}")
    S.mark(k,5)
    S.finish(k,sWS,sW,phi[0])
    k.label(f"L_{name}_end")
    k("s_endpgm")
    assert V.hi<=256
    txt = head(name)+k.text()+kd(name, 256+128, 102 if stamp else 40, 256)
    return txt
if __name__=="__main__":
    print(gen_k2())
```

```python
from dsl import *
from common import *
from k1a import *
import os
PAIR=int(os.environ.get('PAIR','1'))
CPF=int(os.environ.get('CPF','1'))
try:
    from k1b import gen_b
except ImportError:
    gen_b=None
def gen_k1(name="mix_kernel", with_b=True, stamp=False, with_a=True):
    k=Kern()
    S=Stamper(stamp,0)
    k(f"s_cmp_ge_u32 s2, 256")
    k(f"s_cbranch_scc1 L_{name}_end")
    S.start(k); S.mark(k,6)
    k(f"s_load_dwordx16 s[4:19], s[0:1], 0")
    k(f"s_load_dwordx8 s[20:27], s[0:1], 64")
    k(f"s_load_dwordx4 s[28:31], s[0:1], 96")
    k(f"s_load_dwordx2 s[32:33], s[0:1], 112")
    k(f"v_lshrrev_b32 v1, 6, v0")
    k(f"s_and_b32 s{sXCD}, s2, 7")
    k(f"v_readfirstlane_b32 s{sW}, v1")
    if CPF:
        k(f"s_getpc_b64 s[38:39]")
        k.label(f"L_{name}_pc")
        k(f"s_lshr_b32 s37, s2, 3")
        k(f"s_lshl_b32 s37, s37, 3")
        k(f"v_add_u32 v2, s37, v1")
        k(f"v_lshlrev_b32 v2, 7, v2")
        k.raw(f"  v_min_u32 v2, (L_code_end - L_{name}_pc - 4), v2")
        k(f"v_mov_b32 v3, s39")
        k(f"v_add_co_u32 v2, vcc, s38, v2")
        k(f"v_addc_co_u32 v3, vcc, 0, v3, vcc")
        k(f"s_mov_b64 exec, 1")
        k(f"global_load_dword v255, v[2:3], off")
        k(f"s_mov_b64 exec, -1")
    k(f"s_lshr_b32 s37, s2, 3")
    k(f"s_lshr_b32 s{sIDX}, s37, 1")
    k(f"s_bitcmp1_b32 s37, 0")
    k(f"s_cbranch_scc1 L_{name}_B")
    st=k.snapshot()
    if with_a: hiA=gen_a(k,name,S)
    else:
        k("s_endpgm"); hiA=0
    k.restore(st)
    k.label(f"L_{name}_B")
    hiB=0
    if with_b and gen_b:
        hiB=gen_b(k,name,S)
    k.label(f"L_{name}_end")
    k("s_endpgm")
    hi=max(hiA,hiB)
    nv=256 if CPF else (hi+7)//8*8
    assert hi<=255
    return head(name)+k.text()+kd(name, nv, 102 if stamp else 96, nv)
if __name__=="__main__":
    print(gen_k1(with_b=False))
```

```python
from dsl import *
from common import *
import os
DBG=os.environ.get('DBG','')
STF=os.environ.get('STF','')
TP=eval(os.environ.get('TP','(0,3,3)'))
NTB=int(os.environ.get('TB','1'))
MK=eval(os.environ.get('MK','{0:2,1:3,2:4,4:5}'))

sX=4; sWQ=6; sWPHI=8; sWO=10; sLA=14; sAI=16; sCR=18; sCI=20; sLDT=22; sDS=24; sGW=26; sOUT=28; sDBG=30; sWS=32
sW=34
sXCD=35; sIDX=36
srdX=40; srdWq=44; srdWS=48; srdKV=52; srdDBG=56; srdT=60
L_WPHI=0
L_WR=2048; WSL=24576; NWS=3
L_XR=L_WR+NWS*WSL; XSL=16384; NXS=3
K1_LDS=159744
LOG2E=0x3fb8aa3b; NLOG2E=0xbfb8aa3b
RED0=L_WR
def red_base(g,w): return (L_WR if g==0 else L_WR+2*WSL)+w*4352

def mk_srd(k,srd,ptr,size):
    k(f"s_mov_b32 s{srd}, s{ptr}")
    k(f"s_and_b32 s{srd+1}, s{ptr+1}, 0xffff")
    k(f"s_mov_b32 s{srd+2}, {size}")
    k(f"s_mov_b32 s{srd+3}, 0x20000")

def softmax2(k, blocks, tmp, sL2E, fill=None):
    nb=len(blocks)
    def each(f):
        for b in range(nb): f(b,*blocks[b])
    T=[tmp+4*b for b in range(nb)]
    each(lambda b,p,o: k(f"v_max3_f32 v{T[b]}, v{p}, v{p+1}, v{p+2}"))
    for u in range(6):
        each(lambda b,p,o: k(f"v_max3_f32 v{T[b]}, v{T[b]}, v{p+3+2*u}, v{p+4+2*u}"))
    each(lambda b,p,o: k(f"v_max_f32 v{T[b]}, v{T[b]}, v{p+15}"))
    each(lambda b,p,o: k(f"v_mul_f32 v{T[b]}, {NLOG2E:#x}, v{T[b]}"))
    for u in range(8):
        each(lambda b,p,o: k(f"v_pk_fma_f32 v[{p+2*u}:{p+2*u+1}], v[{p+2*u}:{p+2*u+1}], s[{sL2E}:{sL2E+1}], v[{T[b]}:{T[b]+1}] op_sel_hi:[1,1,0]"))
    for u in range(16):
        each(lambda b,p,o: k(f"v_exp_f32 v{p+u}, v{p+u}"))
    S=[t+2 for t in T]
    each(lambda b,p,o: k(f"v_pk_add_f32 v[{S[b]}:{S[b]+1}], v[{p}:{p+1}], v[{p+2}:{p+3}]"))
    for u in range(2,8):
        each(lambda b,p,o: k(f"v_pk_add_f32 v[{S[b]}:{S[b]+1}], v[{S[b]}:{S[b]+1}], v[{p+2*u}:{p+2*u+1}]"))
    each(lambda b,p,o: k(f"v_add_f32 v{T[b]}, v{S[b]}, v{S[b]+1}"))
    each(lambda b,p,o: k(f"v_rcp_f32 v{T[b]}, v{T[b]}"))
    for u in range(8):
        each(lambda b,p,o: k(f"v_pk_mul_f32 v[{p+2*u}:{p+2*u+1}], v[{p+2*u}:{p+2*u+1}], v[{T[b]}:{T[b]+1}] op_sel_hi:[1,0]"))
    for u in range(8):
        each(lambda b,p,o: k(f"v_cvt_pk_bf16_f32 v{o+u}, v{p+2*u}, v{p+2*u+1}"))

def gen_a(k, name, st):
    V=Alloc("v",1,256)
    sTT=37; sHP=38; sT=39; sA=64; sB=65; sX0=66; sWo_=68; sMx=69; sMw=70
    sL2E=74; sMaskLo=76; sTick=80; sPhiO=81; sGo=82; sE=83; sFirst=84
    k.label(f"L_{name}_A")
    sHQ=67; sTBW=78; sHG=79
    k(f"s_and_b32 s{sA}, s{sXCD}, 3")
    k(f"s_lshl_b32 s{sA}, s{sA}, 2")
    k(f"s_and_b32 s{sB}, s{sIDX}, 3")
    k(f"s_add_u32 s{sTT}, s{sA}, s{sB}")
    k(f"s_lshr_b32 s{sA}, s{sXCD}, 2")
    k(f"s_lshl_b32 s{sA}, s{sA}, 2")
    k(f"s_lshr_b32 s{sB}, s{sIDX}, 2")
    k(f"s_add_u32 s{sHQ}, s{sA}, s{sB}")
    k(f"s_and_b32 s{sTBW}, s{sW}, 3")
    k(f"s_lshr_b32 s{sHG}, s{sW}, 2")
    k(f"s_lshl_b32 s{sA}, s{sHQ}, 1")
    k(f"s_add_u32 s{sHP}, s{sA}, s{sHG}")
    vL=V(); vXg=V(2); vWg=V(3); vt=V(); vt2=V(); vt3=V()
    k(f"v_and_b32 v{vL}, 63, v0")
    k(f"v_lshrrev_b32 v{vt}, 4, v{vL}")
    k(f"v_xor_b32 v{vt}, v{vt}, v{vL}")
    k(f"v_and_b32 v{vt}, 7, v{vt}")
    k(f"v_lshlrev_b32 v{vt}, 4, v{vt}")
    k(f"v_lshrrev_b32 v{vt2}, 3, v{vL}")
    k(f"v_lshl_add_u32 v{vXg}, v{vt2}, 10, v{vt}")
    k(f"v_xor_b32 v{vXg+1}, 64, v{vXg}")
    k(f"v_add_u32 v{vXg+1}, 8192, v{vXg+1}")
    for i in range(3):
        k(f"v_add_u32 v{vt3}, {64*i}, v{vL}")
        k(f"v_mul_u32_u24 v{vt}, 171, v{vt3}")
        k(f"v_lshrrev_b32 v{vt}, 12, v{vt}")
        k(f"v_mul_u32_u24 v{vt2}, 24, v{vt}")
        k(f"v_sub_u32 v{vt2}, v{vt3}, v{vt2}")
        k(f"v_bfe_u32 v{vt3}, v{vt}, 1, 1")
        k(f"v_lshlrev_b32 v{vt3}, 2, v{vt3}")
        k(f"v_xor_b32 v{vt2}, v{vt2}, v{vt3}")
        k(f"v_mul_u32_u24 v{vWg+i}, 3072, v{vt}")
        k(f"v_lshrrev_b32 v{vt3}, 3, v{vt2}")
        k(f"v_lshl_add_u32 v{vWg+i}, v{vt3}, 10, v{vWg+i}")
        k(f"v_and_b32 v{vt2}, 7, v{vt2}")
        k(f"v_lshl_add_u32 v{vWg+i}, v{vt2}, 4, v{vWg+i}")
    k(f"s_lshl_b32 s{sX0}, s{sTT}, 17")
    k(f"s_lshl_b32 s{sA}, s{sW}, 14")
    k(f"s_add_u32 s{sX0}, s{sX0}, s{sA}")
    k(f"s_mul_i32 s{sWo_}, s{sW}, {8*3072}")
    k(f"s_lshl_b32 s{sA}, s{sHQ}, 7")
    k(f"s_add_u32 s{sWo_}, s{sWo_}, s{sA}")
    k(f"s_lshl_b32 s{sMx}, s{sW}, 11")
    k(f"s_add_u32 s{sMx}, s{sMx}, {L_XR}")
    k(f"s_mul_i32 s{sMw}, s{sW}, 3072")
    k(f"s_add_u32 s{sMw}, s{sMw}, {L_WR}")
    sXk=71; sWk=72; sXc=73; sWc=85
    k(f"s_lshr_b32 s{sA}, s{sIDX}, 2")
    k(f"s_and_b32 s{sB}, s{sIDX}, 3")
    k(f"s_add_u32 s{sA}, s{sA}, s{sB}")
    k(f"s_and_b32 s{sA}, s{sA}, 3")
    k(f"s_lshl_b32 s{sA}, s{sA}, 1")
    if 'N' in DBG: k(f"s_mov_b32 s{sA}, 0")
    k(f"s_lshl_b32 s{sXk}, s{sA}, 7")
    k(f"s_mul_i32 s{sWk}, s{sA}, {64*3072}")
    k("s_waitcnt lgkmcnt(0)")
    mk_srd(k,srdX,sX,2048*512*2)
    mk_srd(k,srdWq,sWQ,512*1536*2)
    def dma_x_l(S):
        L=[]; slot=S%NXS
        for i in range(2):
            g=[]
            if i==0:
                if S>0:
                    g.append((f"s_add_u32 s{sXk}, s{sXk}, 128",None))
                    g.append((f"s_and_b32 s{sXk}, s{sXk}, 0x3ff",None))
                g.append((f"s_add_u32 s{sXc}, s{sX0}, s{sXk}",None))
            g+=[(f"s_add_u32 m0, s{sMx}, {slot*XSL+i*1024}",None),("s_nop 0",None),
                (f"buffer_load_dwordx4 v{vXg+i}, s[{srdX}:{srdX+3}], s{sXc} offen lds",f"x{S}")]
            L.append(g)
        return L
    def dma_w_l(S):
        slot=S%NWS; L=[]
        for i in range(3):
            g=[]
            if i==0:
                if S>0:
                    g.append((f"s_add_u32 s{sWk}, s{sWk}, {64*3072}",None))
                    g.append((f"s_cmp_eq_u32 s{sWk}, {512*3072}",None))
                    g.append((f"s_cselect_b32 s{sWk}, 0, s{sWk}",None))
                g.append((f"s_add_u32 s{sWc}, s{sWo_}, s{sWk}",None))
            g.append((f"s_add_u32 m0, s{sMw}, {slot*WSL+i*1024}",None))
            g.append(("s_nop 0",None))
            g.append((f"buffer_load_dwordx4 v{vWg+i}, s[{srdWq}:{srdWq+3}], s{sWc} offen lds",f"w{S}"))
            L.append(g)
        return L
    def emit_g(g):
        for (t,tag) in g: k(t,tag=tag)
    def dma_x(S):
        for g in dma_x_l(S): emit_g(g)
    def dma_w(S):
        for g in dma_w_l(S): emit_g(g)
    dma_x(0); dma_w(0)
    if 1 not in MK.values(): st.mark(k,1)
    gx=V(8,4); gw=V(8,4); vGa=V(); vGw=V()
    k(f"v_and_b32 v{vt}, 31, v{vL}")
    k(f"v_lshlrev_b32 v{vGw}, 5, v{vt}")
    k(f"v_lshrrev_b32 v{vt}, 5, v{vL}")
    k(f"v_lshl_add_u32 v{vGa}, v{vt}, 10, v{vGw}")
    k(f"s_lshl_b32 s{sA}, s{sTT}, 7")
    k(f"s_and_b32 s{sB}, s{sHQ}, 7")
    k(f"s_lshl_b32 s{sB}, s{sB}, 4")
    k(f"s_add_u32 s{sA}, s{sA}, s{sB}")
    k(f"s_lshl_b32 s{sB}, s{sW}, 1")
    k(f"s_add_u32 s{sGo}, s{sA}, s{sB}")
    k(f"global_load_dwordx4 v[{gw}:{gw+3}], v{vGw}, s[{sGW}:{sGW+1}]")
    k(f"global_load_dwordx4 v[{gw+4}:{gw+7}], v{vGw}, s[{sGW}:{sGW+1}] offset:16")
    mk_srd(k,srdDBG,sDBG,256)
    mk_srd(k,srdT,sWPHI,32*512)
    mk_srd(k,srdWS,sWS,WS_SIZE)
    vZ=V(); vL16=V(); vOne=V(); sR=3
    k(f"v_mov_b32 v{vZ}, 0")
    k(f"v_lshlrev_b32 v{vL16}, 4, v{vL}")
    k(f"s_lshl_b32 s{sT}, s{sHP}, 10")
    k(f"s_lshl_b32 s{sA}, s{sHG}, 10")
    k(f"s_add_u32 m0, s{sA}, {L_WPHI}")
    k(f"s_lshl_b32 s{sA}, s{sHP}, 2")
    k(f"buffer_load_dwordx4 v{vL16}, s[{srdT}:{srdT+3}], s{sT} offen lds", tag="wphi")
    k(f"s_mov_b32 s{sL2E}, {LOG2E:#x}")
    k(f"s_mov_b32 s{sL2E+1}, {LOG2E:#x}")
    k(f"s_mov_b32 s{sMaskLo}, 0x0000ffff")
    k(f"s_mov_b32 s{sMaskLo+1}, 0x0000ffff")
    k(f"s_or_b32 s{sA}, s{sTT}, s{sTBW}")
    k(f"s_cmp_eq_u32 s{sA}, 0")
    k(f"s_cselect_b32 s{sFirst}, 1, 0")
    vM=V(); vH=V()
    k(f"v_and_b32 v{vM}, 31, v{vL}")
    k(f"v_lshrrev_b32 v{vH}, 5, v{vL}")
    vXr=V(4); vWr=V()
    k(f"v_lshrrev_b32 v{vt}, 1, v{vM}")
    k(f"v_and_b32 v{vt}, 7, v{vt}")
    k(f"v_xor_b32 v{vt}, v{vt}, v{vH}")
    k(f"v_lshlrev_b32 v{vt}, 4, v{vt}")
    k(f"v_lshl_add_u32 v{vXr}, v{vM}, 7, v{vt}")
    k(f"s_lshl_b32 s{sA}, s{sTBW}, 12")
    k(f"s_add_u32 s{sA}, s{sA}, {L_XR}")
    k(f"v_add_u32 v{vXr}, s{sA}, v{vXr}")
    for ks in range(1,4): k(f"v_xor_b32 v{vXr+ks}, {ks<<5}, v{vXr}")
    k(f"v_bfe_u32 v{vt}, v{vL}, 2, 2")
    k(f"v_lshl_add_u32 v{vt2}, v{vH}, 3, v{vt}")
    k(f"v_mul_u32_u24 v{vWr}, 384, v{vt2}")
    k(f"v_bfe_u32 v{vt2}, v{vL}, 4, 1")
    k(f"v_lshlrev_b32 v{vt2}, 5, v{vt2}")
    k(f"v_and_b32 v{vt3}, 3, v{vL}")
    k(f"v_lshl_add_u32 v{vt2}, v{vt3}, 3, v{vt2}")
    k(f"s_lshl_b32 s{sA}, s{sHG}, 6")
    k(f"v_add_u32 v{vt2}, s{sA}, v{vt2}")
    k(f"v_lshrrev_b32 v{vt}, 1, v{vt}")
    k(f"v_lshlrev_b32 v{vt}, 6, v{vt}")
    k(f"v_xor_b32 v{vt2}, v{vt2}, v{vt}")
    k(f"v_add_u32 v{vWr}, v{vWr}, v{vt2}")
    k(f"v_add_u32 v{vWr}, {L_WR}, v{vWr}")
    vWr2=V()
    k(f"v_add_u32 v{vWr2}, {2*WSL}, v{vWr}")
    I=V(8,4)
    for s in range(2):
        k(f"v_lshlrev_b32 v{vt}, 4, v{vH}")
        k(f"v_sub_u32 v{vt}, v{vM}, v{vt}")
        if s: k(f"v_subrev_u32 v{vt}, 8, v{vt}")
        k(f"v_and_b32 v{vt2}, 1, v{vt}")
        k(f"v_lshlrev_b32 v{vt2}, 4, v{vt2}")
        k(f"v_mov_b32 v{vt3}, 0x3f80")
        k(f"v_lshlrev_b32 v{vt2}, v{vt2}, v{vt3}")
        k(f"v_lshrrev_b32 v{vt}, 1, v{vt}")
        for u in range(4):
            k(f"v_cmp_eq_u32 vcc, {u}, v{vt}")
            k(f"v_cndmask_b32 v{I+4*s+u}, 0, v{vt2}, vcc")
    z4=V(4,4)
    for u in range(4): k(f"v_mov_b32 v{z4+u}, 0")
    accQ=V(16,4); accK=V(16,4); accV=V(16,4)
    F=[V(16,4),V(16,4),V(16,4)]
    def reads_l(j):
        f=F[j%3]; S=j>>2; ks=j&3
        if 'R' in DBG: return []
        L=[f"ds_read_b128 v[{f}:{f+3}], v{vXr+ks} offset:{(S%NXS)*XSL}"]
        for seg in range(3):
            for half in range(2):
                L.append(f"ds_read_b64_tr_b16 v[{f+4+4*seg+2*half}:{f+5+4*seg+2*half}], v{vWr2 if S%NWS==2 else vWr} offset:{(S%NWS%2)*WSL+ks*16*384+half*4*384+seg*128}")
        return L
    def reads(j):
        for l in reads_l(j): k(l)
    RSPLIT=eval(os.environ.get('RSPLIT','(2,2,3)'))
    def mfmas(j, fill=(), rd=()):
        f=F[j%3]; fill=list(fill); rd=list(rd)
        c=lambda a: "0" if j==0 else f"v[{a}:{a+15}]"
        M=[f"v_mfma_f32_32x32x16_bf16 v[{accQ}:{accQ+15}], v[{f+4}:{f+7}], v[{f}:{f+3}], {c(accQ)}",
           f"v_mfma_f32_32x32x16_bf16 v[{accK}:{accK+15}], v[{f+8}:{f+11}], v[{f}:{f+3}], {c(accK)}",
           f"v_mfma_f32_32x32x16_bf16 v[{accV}:{accV+15}], v[{f}:{f+3}], v[{f+12}:{f+15}], {c(accV)}"]
        for n,m in enumerate(M):
            if 'M' not in DBG: k(m)
            for _ in range(RSPLIT[n]):
                if rd: k(rd.pop(0))
            if fill: emit_g(fill.pop(0))
        for l in rd: k(l)
        for g in fill: emit_g(g)
    wf=V(8,4); vPhA=V(); vSg=V(); ones=V(); vRb=V(2); vSt=V(2); vRa=V(8); vFl=V()
    pre=[]
    P=lambda t: pre.append(t)
    P(f"v_bfe_u32 v{vt}, v{vL}, 2, 2")
    P(f"v_lshl_add_u32 v{vt}, v{vH}, 2, v{vt}")
    P(f"v_lshlrev_b32 v{vPhA}, 5, v{vt}")
    P(f"v_bfe_u32 v{vt2}, v{vL}, 4, 1")
    P(f"v_lshl_add_u32 v{vPhA}, v{vt2}, 4, v{vPhA}")
    P(f"v_bfe_u32 v{vt2}, v{vL}, 1, 1")
    P(f"v_lshl_add_u32 v{vPhA}, v{vt2}, 3, v{vPhA}")
    P(f"s_lshl_b32 s{sA}, s{sHG}, 10")
    P(f"v_add_u32 v{vPhA}, s{sA}, v{vPhA}")
    for hd in range(2):
        P(f"ds_read_b64_tr_b16 v[{wf+4*hd}:{wf+4*hd+1}], v{vPhA} offset:{L_WPHI+512*hd}")
        P(f"ds_read_b64_tr_b16 v[{wf+4*hd+2}:{wf+4*hd+3}], v{vPhA} offset:{L_WPHI+512*hd+256}")
    P(f"v_bfe_u32 v{vSg}, v{vL}, 2, 1")
    P(f"v_mul_u32_u24 v{vSg}, 0x8000, v{vSg}")
    P(f"v_lshl_or_b32 v{vSg}, v{vSg}, 16, v{vSg}")
    P(f"v_mov_b32 v{ones}, 0x3f803f80")
    P(f"v_and_b32 v{vt}, 15, v{vM}")
    P(f"v_lshlrev_b32 v{vt}, 4, v{vt}")
    P(f"v_lshl_add_u32 v{vt}, v{vH}, 9, v{vt}")
    P(f"v_lshlrev_b32 v{vt2}, 5, v{vH}")
    P(f"v_add_u32 v{vt2}, 2048, v{vt2}")
    P(f"s_mul_i32 s{sA}, s{sTBW}, 4352")
    P(f"s_mul_i32 s{sB}, s{sHG}, {2*WSL}")
    P(f"s_add_u32 s{sA}, s{sA}, s{sB}")
    P(f"s_add_u32 s{sA}, s{sA}, {L_WR}")
    P(f"v_cndmask_b32 v{vRb}, v{vt2}, v{vt}, s[{sMaskLo}:{sMaskLo+1}]")
    P(f"v_cndmask_b32 v{vRb+1}, v{vt}, v{vt2}, s[{sMaskLo}:{sMaskLo+1}]")
    P(f"v_add_u32 v{vRb}, s{sA}, v{vRb}")
    P(f"v_add_u32 v{vRb+1}, s{sA}, v{vRb+1}")
    P(f"v_mov_b32 v{vt}, 256")
    P(f"v_mov_b32 v{vt2}, 16")
    P(f"v_cndmask_b32 v{vSt}, v{vt2}, v{vt}, s[{sMaskLo}:{sMaskLo+1}]")
    P(f"v_cndmask_b32 v{vSt+1}, v{vt}, v{vt2}, s[{sMaskLo}:{sMaskLo+1}]")
    for hd in range(2):
        for i in range(4):
            c=4*(i&1)+(i>>1)
            P(f"v_mad_u32_u24 v{vRa+4*hd+i}, v{vSt+hd}, {c}, v{vRb+hd}")
    for u in range(8): P(f"v_xor_b32 v{wf+u}, v{wf+u}, v{vSg}")
    P(f"s_mul_i32 s{sA}, s{sHP}, {2*KVH}")
    P(f"s_add_u32 s{sA}, s{sA}, {WS_KV}")
    P(f"s_add_u32 s{srdKV}, s{sWS}, s{sA}")
    P(f"s_addc_u32 s{srdKV+1}, s{sWS+1}, 0")
    P(f"s_and_b32 s{srdKV+1}, s{srdKV+1}, 0xffff")
    P(f"s_mov_b32 s{srdKV+2}, {2*KVH}")
    P(f"s_mov_b32 s{srdKV+3}, 0x20000")
    P(f"s_lshl_b32 s{sE}, s{sHP}, 2")
    P(f"s_add_u32 s{sE}, s{sE}, 64")
    P(f"s_lshl_b32 s{sPhiO}, s{sTT}, 2")
    P(f"s_add_u32 s{sPhiO}, s{sPhiO}, s{sTBW}")
    P(f"s_lshl_b32 s{sPhiO}, s{sPhiO}, 16")
    P(f"s_lshl_b32 s{sA}, s{sHP}, 12")
    P(f"s_add_u32 s{sPhiO}, s{sPhiO}, s{sA}")
    vE=vRb; vEl=vRb+1
    P(f"v_and_b32 v{vE}, 255, v0")
    P(f"v_lshlrev_b32 v{vE}, 2, v{vE}")
    P(f"s_mul_i32 s{sB}, s{sHG}, {2*WSL}")
    P(f"v_add_u32 v{vEl}, s{sB}, v{vE}")
    late=[t for t in pre if t.startswith("ds_read_b64_tr_b16") or t.startswith(f"v_xor_b32 v{wf}") or any(t.startswith(f"v_xor_b32 v{wf+u},") for u in range(8))]
    early=[t for t in pre if t not in late]
    if 'L' in DBG: late=pre; early=[]
    for t in early: k(t)
    pre=late
    pend=[]
    for j in range(32):
        S=j>>2
        if j%4==0:
            k.wait_tag(f"w{S}")
            k.wait_tag(f"x{S}")
            k.wait_lg(0)
            k("s_barrier")
            if S in MK: st.mark(k,MK[S])
        if j<2 or 'I' in DBG: reads(j)
        if j==0:
            dma_w(1); dma_x(1)
        if j%4==0 and S+2<8 and 'D' not in DBG:
            pend+=dma_w_l(S+2)+dma_x_l(S+2)
        if j>1:
            take=pend[:2]; pend=pend[2:]
            mfmas(j-2, take, [] if 'I' in DBG else reads_l(j))
        if j>=6:
            n=0 if 'Q' in DBG else 4
            while pre and n>0:
                t=pre.pop(0); k(t); n-=1
                if t.startswith("s_add_u32 s{}".format(srdKV)): k(pre.pop(0))
        if j==2:
            k(f"s_cmp_eq_u32 s{sFirst}, 1")
            k(f"s_cbranch_scc1 L_{name}_A_ev4")
            k.label(f"L_{name}_A_ev4ret")
            vm_ev4=k.vm_total
        if j==29:
            k(f"s_lshl_b32 s{sT}, s{sGo}, 10")
            k(f"buffer_load_dwordx4 v[{gx}:{gx+3}], v{vGa}, s[{srdX}:{srdX+3}], s{sT} offen")
            k(f"buffer_load_dwordx4 v[{gx+4}:{gx+7}], v{vGa}, s[{srdX}:{srdX+3}], s{sT} offen offset:16")
        if j==13:
            vm_ev8=k.vm_total
            k(f"s_cmp_eq_u32 s{sFirst}, 1")
            k(f"s_cbranch_scc1 L_{name}_A_ev8")
            k.label(f"L_{name}_A_ev8ret")
        if j==28:
            assert 'Q' in DBG or not pre, len(pre)
            vm_poll0=k.vm_total
            k(f"s_cmp_eq_u32 s{sTBW}, 0")
            k(f"s_cbranch_scc1 L_{name}_A_poll0")
            k.label(f"L_{name}_A_poll0ret")
    assert not pend
    for t in pre: k(t)
    mfmas(30); mfmas(31)
    fa=F[2]; fb=F[0]
    kb=fa; qb=fa+8; vb=fb
    for u in range(8): k(f"v_cvt_pk_bf16_f32 v{kb+u}, v{accK+2*u}, v{accK+2*u+1}")
    pkA=V(16,4); pkB=V(16,4)
    k(f"v_mfma_f32_32x32x16_bf16 v[{pkA}:{pkA+15}], v[{wf}:{wf+3}], v[{kb}:{kb+3}], 0")
    k(f"v_mfma_f32_32x32x16_bf16 v[{pkB}:{pkB+15}], v[{wf+4}:{wf+7}], v[{kb+4}:{kb+7}], 0")
    for u in range(8): k(f"v_cvt_pk_bf16_f32 v{qb+u}, v{accQ+2*u}, v{accQ+2*u+1}")
    pqA=accK; pqB=accQ
    k(f"v_mfma_f32_32x32x16_bf16 v[{pqA}:{pqA+15}], v[{wf}:{wf+3}], v[{qb}:{qb+3}], 0")
    k(f"v_mfma_f32_32x32x16_bf16 v[{pqB}:{pqB+15}], v[{wf+4}:{wf+7}], v[{qb+4}:{qb+7}], 0")
    for u in range(8): k(f"v_cvt_pk_bf16_f32 v{vb+u}, v{accV+2*u}, v{accV+2*u+1}")
    vA_=accV; vB_=accV+8
    for u in range(8): k(f"v_cndmask_b32 v{vA_+u}, v{ones}, v{vb+u}, s[{sMaskLo}:{sMaskLo+1}]")
    for u in range(8): k(f"v_cndmask_b32 v{vB_+u}, v{vb+u}, v{ones}, s[{sMaskLo}:{sMaskLo+1}]")
    phA=V(8,4); phB=V(8,4); tmp=V(8,2)
    softmax2(k,[(pkA,phA),(pkB,phB)],tmp,sL2E)
    TA=pkA; TB=pkB
    k(f"v_mfma_f32_32x32x16_bf16 v[{TA}:{TA+15}], v[{phA}:{phA+3}], v[{I}:{I+3}], 0")
    k(f"v_mfma_f32_32x32x16_bf16 v[{TB}:{TB+15}], v[{phB}:{phB+3}], v[{I}:{I+3}], 0")
    k(f"v_mfma_f32_32x32x16_bf16 v[{TA}:{TA+15}], v[{phA+4}:{phA+7}], v[{I+4}:{I+7}], v[{TA}:{TA+15}]")
    k(f"v_mfma_f32_32x32x16_bf16 v[{TB}:{TB+15}], v[{phB+4}:{phB+7}], v[{I+4}:{I+7}], v[{TB}:{TB+15}]")
    gs=V()
    k(f"v_mov_b32 v{gs}, 0")
    for u in range(8): k(f"v_dot2c_f32_bf16 v{gs}, v{gx+u}, v{gw+u}")
    for n in (8,4,2,1): k(f"v_add_f32_dpp v{gs}, v{gs}, v{gs} row_ror:{n} row_mask:0xf bank_mask:0xf")
    k(f"v_add_f32_dpp v{gs}, v{gs}, v{gs} row_bcast:15 row_mask:0xa bank_mask:0xf")
    k(f"v_cvt_pk_bf16_f32 v{gs}, v{gs}, v{gs}")
    k(f"v_lshlrev_b32 v{gs}, 16, v{gs}")
    k(f"v_mul_f32 v{gs}, {NLOG2E:#x}, v{gs}")
    k(f"v_exp_f32 v{gs}, v{gs}")
    k(f"v_add_f32 v{gs}, 1.0, v{gs}")
    k(f"v_rcp_f32 v{gs}, v{gs}")
    k(f"v_cvt_pk_bf16_f32 v{gs}, v{gs}, v{gs}")
    k(f"v_lshlrev_b32 v{gs}, 16, v{gs}")
    k(f"v_lshlrev_b32 v{vt}, 2, v{vH}")
    k(f"v_bfe_u32 v{vt2}, v{vL}, 4, 1")
    k(f"v_subrev_u32 v{vt2}, 1, v{vt2}")
    k(f"v_and_b32 v{vt2}, 0x80000000, v{vt2}")
    k(f"v_or_b32 v{vt}, v{vt}, v{vt2}")
    k(f"s_lshl_b32 s{sA}, s{sGo}, 2")
    k(f"s_add_u32 s{sA}, s{sA}, {WS_G}")
    k(f"buffer_store_dword v{gs}, v{vt}, s[{srdWS}:{srdWS+3}], s{sA} offen")
    ptA=phA; ptB=phB
    for u in range(8): k(f"v_cvt_pk_bf16_f32 v{ptA+u}, v{TA+2*u}, v{TA+2*u+1}")
    for u in range(8): k(f"v_cvt_pk_bf16_f32 v{ptB+u}, v{TB+2*u}, v{TB+2*u+1}")
    kvA=TA; kvB=TB
    k(f"v_mfma_f32_32x32x16_bf16 v[{kvA}:{kvA+15}], v[{ptA}:{ptA+3}], v[{vA_}:{vA_+3}], 0")
    k(f"v_mfma_f32_32x32x16_bf16 v[{kvB}:{kvB+15}], v[{ptB}:{ptB+3}], v[{vB_}:{vB_+3}], 0")
    k(f"v_mfma_f32_32x32x16_bf16 v[{kvA}:{kvA+15}], v[{ptA+4}:{ptA+7}], v[{vA_+4}:{vA_+7}], v[{kvA}:{kvA+15}]")
    k(f"v_mfma_f32_32x32x16_bf16 v[{kvB}:{kvB+15}], v[{ptB+4}:{ptB+7}], v[{vB_+4}:{vB_+7}], v[{kvB}:{kvB+15}]")
    for hd,kvr in ((0,kvA),(1,kvB)):
        for i in range(4):
            k(f"ds_write_b128 v{vRa+4*hd+i}, v[{kvr+4*i}:{kvr+4*i+3}] offset:{hd*KVH}")
    vm_poll=k.vm_total
    k(f"s_cmp_eq_u32 s{sTBW}, 0")
    k(f"s_cbranch_scc1 L_{name}_A_poll")
    k.label(f"L_{name}_A_flagok")
    k.barrier()
    rd=accV; rd2=fb
    for u in range(5):
        for w in range(4):
            k(f"ds_read_b32 v{rd+4*u+w if u<4 else rd2+w}, v{vEl} offset:{L_WR+w*4352+1024*u}")
    for u in range(5):
        b=rd+4*u if u<4 else rd2
        k(f"v_add_f32 v{b}, v{b}, v{b+1}")
        k(f"v_add_f32 v{b+2}, v{b+2}, v{b+3}")
        k(f"v_add_f32 v{b}, v{b}, v{b+2}")
        if u<4: k(f"buffer_atomic_add_f32 v{b}, v{vE}, s[{srdKV}:{srdKV+3}], 0 offen offset:{1024*u} sc1")
        else:
            k(f"v_add_u32 v{vt}, 4096, v{vE}")
            k(f"buffer_atomic_add_f32 v{b}, v{vt}, s[{srdKV}:{srdKV+3}], 0 offen sc1")
    pq_o=gx
    assert gw==gx+8
    softmax2(k,[(pqA,pq_o),(pqB,pq_o+8)],tmp,sL2E)
    for q in range(4):
        k(f"buffer_store_dwordx4 v[{pq_o+4*q}:{pq_o+4*q+3}], v{vL16}, s[{srdWS}:{srdWS+3}], s{sPhiO} offen offset:{q*1024} {STF}")
    st.finish(k,sWS,sW,accQ)
    k("s_endpgm")
    k.auto=False
    k.label(f"L_{name}_A_ev4")
    k(f"s_mul_i32 s{sR}, s{sHP}, {2*KVH}")
    k(f"s_add_u32 s{sR}, s{sR}, {WS_KV}")
    for u in range(5):
        if u<4:
            k(f"buffer_store_dwordx4 v[{z4}:{z4+3}], v{vL16}, s[{srdWS}:{srdWS+3}], s{sR} offen offset:{u*1024} sc1")
        else:
            k(f"s_add_u32 s{sR}, s{sR}, 4096")
            k(f"s_mov_b64 exec, 0xffff")
            k(f"buffer_store_dwordx4 v[{z4}:{z4+3}], v{vL16}, s[{srdWS}:{srdWS+3}], s{sR} offen sc1")
            k(f"s_mov_b64 exec, -1")
    k(f"s_branch L_{name}_A_ev4ret")
    k.label(f"L_{name}_A_ev8")
    k(f"s_waitcnt vmcnt({vm_ev8-vm_ev4})")
    k(f"v_mov_b32 v{vOne}, 1")
    k(f"s_lshl_b32 s{sR}, s{sHP}, 2")
    k(f"s_add_u32 s{sR}, s{sR}, 64")
    k(f"s_mov_b64 exec, 1")
    k(f"buffer_store_dword v{vOne}, v{vZ}, s[{srdDBG}:{srdDBG+3}], s{sR} offen sc1")
    k(f"s_mov_b64 exec, -1")
    k(f"s_branch L_{name}_A_ev8ret")
    k.label(f"L_{name}_A_poll0")
    k(f"buffer_load_dword v{vFl}, v{vZ}, s[{srdDBG}:{srdDBG+3}], s{sE} offen sc1")
    k(f"s_branch L_{name}_A_poll0ret")
    k.label(f"L_{name}_A_poll")
    k(f"s_mov_b32 s{sTick}, 0")
    k(f"s_waitcnt vmcnt({vm_poll-vm_poll0})")
    k.label(f"L_{name}_A_poll1")
    k(f"v_readfirstlane_b32 s{sR}, v{vFl}")
    k("s_nop 0")
    k(f"s_cmp_lg_u32 s{sR}, 0")
    k(f"s_cbranch_scc1 L_{name}_A_flagok")
    k(f"s_add_u32 s{sTick}, s{sTick}, 1")
    k(f"s_cmp_ge_u32 s{sTick}, 0x40000")
    k(f"s_cbranch_scc1 L_{name}_A_flagok")
    k("s_sleep 1")
    k(f"buffer_load_dword v{vFl}, v{vZ}, s[{srdDBG}:{srdDBG+3}], s{sE} offen sc1")
    k("s_waitcnt vmcnt(0)")
    k(f"s_branch L_{name}_A_poll1")
    k.auto=True
    return V.hi
```

```python
from dsl import *
from common import *
import os
GMODE=os.environ.get('GMODE','split2')
DB=os.environ.get('DBGB','')
STF=os.environ.get('STF','')
TBP=os.environ.get('TBP','xw')
PRIO=os.environ.get('PRIOB','')
from k1a import mk_srd,sWO,sWQ,srdT,sX,sLA,sAI,sCR,sCI,sLDT,sDS,sWS,sW,sXCD,sIDX,srdX,srdWS,LOG2E,NLOG2E

UC=4160
CH=31744
KOFF=16640
P1=4640
L_WOB=4*CH
XB=32768
INV2PI=0x3e22f983

def cmul(k,dst,w,z,t):
    k(f"v_pk_mul_f32 v[{t}:{t+1}], v[{w}:{w+1}], v[{z}:{z+1}] op_sel:[0,0] op_sel_hi:[0,1]")
    k(f"v_pk_fma_f32 v[{dst}:{dst+1}], v[{w}:{w+1}], v[{z}:{z+1}], v[{t}:{t+1}] op_sel:[1,1,0] op_sel_hi:[1,0,1] neg_lo:[0,1,0]")

def gen_b(k,name,st):
    k.comment("===== type B: S4D kernel generation + causal conv for 2 channels =====")
    V=Alloc("v",1,256)
    sA=64; sB=65; sT=39; sD0=66; sCh=67; sRole=68; sLdt=69; sDsk=70; sCB=71; sSel0=72; sSel1=73; sEx=74; sTab=76
    vL=V(); vt=V(); vt2=V(); vt3=V(); t0=V(2,2); t1=V(2,2)
    vI=V(); vQ=V(); vA=V(); vB=V()
    mark0=V.mark()
    sP=80; sDP=81; sWp=82
    k(f"s_lshl_b32 s{sD0}, s{sXCD}, 6")
    k(f"s_lshl_b32 s{sA}, s{sIDX}, 2")
    k(f"s_add_u32 s{sD0}, s{sD0}, s{sA}")
    k(f"s_lshr_b32 s{sCh}, s{sW}, 1")
    k(f"s_and_b32 s{sRole}, s{sW}, 1")
    k(f"s_lshr_b32 s{sP}, s{sW}, 2")
    k(f"s_and_b32 s{sWp}, s{sW}, 3")
    k(f"s_lshl_b32 s{sA}, s{sP}, 1")
    k(f"s_add_u32 s{sDP}, s{sD0}, s{sA}")
    k(f"v_and_b32 v{vL}, 63, v0")
    k(f"s_add_u32 s{sA}, s{sD0}, s{sCh}")
    k(f"s_lshl_b32 s{sA}, s{sA}, 8")
    vP=V()
    k(f"v_lshlrev_b32 v{vP}, 2, v{vL}")
    k(f"v_add_u32 v{vP}, s{sA}, v{vP}")
    k(f"s_lshl_b32 s{sB}, s{sDP}, 1")
    k("s_waitcnt lgkmcnt(0)")
    k(f"s_load_dword s{sLdt}, s[{sLDT}:{sLDT+1}], s{sB}")
    k(f"s_load_dword s{sDsk}, s[{sDS}:{sDS+1}], s{sB}")
    pl=V(); pa=V(); pcr=V(); pci=V()
    k(f"global_load_dword v{pl}, v{vP}, s[{sLA}:{sLA+1}]")
    k(f"global_load_dword v{pa}, v{vP}, s[{sAI}:{sAI+1}]")
    k(f"global_load_dword v{pcr}, v{vP}, s[{sCR}:{sCR+1}]")
    k(f"global_load_dword v{pci}, v{vP}, s[{sCI}:{sCI+1}]", tag="par")
    mk_srd(k,srdX,sX,2048*512*2)
    g=V(14,2); vG=V(); vH3=V(); vPf=V()
    def touch_a():
        k(f"v_and_b32 v{vt}, 15, v{vL}")
        k(f"v_lshlrev_b32 v{vt}, 10, v{vt}")
        k(f"s_lshl_b32 s{sA}, s{sIDX}, 7")
        k(f"s_lshl_b32 s{sT}, s{sW}, 4")
        k(f"s_add_u32 s{sA}, s{sA}, s{sT}")
        k(f"s_lshl_b32 s{sA}, s{sA}, 10")
        k(f"s_lshl_b32 s{sT}, s{sXCD}, 7")
        k(f"s_add_u32 s{sA}, s{sA}, s{sT}")
        k(f"s_mov_b64 exec, 0xffff")
        k(f"buffer_load_dword v{vPf}, v{vt}, s[{srdX}:{srdX+3}], s{sA} offen")
        k(f"s_mov_b64 exec, -1")
    def touch_b():
        if True:
            sS1=83; sTo=84
            k(f"s_lshr_b32 s{sA}, s{sIDX}, 2")
            k(f"s_and_b32 s{sT}, s{sIDX}, 3")
            k(f"s_add_u32 s{sA}, s{sA}, s{sT}")
            k(f"s_and_b32 s{sA}, s{sA}, 3")
            k(f"s_lshl_b32 s{sS1}, s{sA}, 1")
            k(f"s_add_u32 s{sS1}, s{sS1}, 1")
            k(f"s_and_b32 s{sA}, s{sXCD}, 3")
            k(f"s_lshl_b32 s{sA}, s{sA}, 2")
            k(f"s_add_u32 s{sA}, s{sA}, s{sT}")
            k(f"s_lshl_b32 s{sA}, s{sA}, 7")
            k(f"s_lshl_b32 s{sT}, s{sW}, 4")
            k(f"s_add_u32 s{sA}, s{sA}, s{sT}")
            k(f"s_lshl_b32 s{sA}, s{sA}, 10")
            k(f"s_lshl_b32 s{sT}, s{sS1}, 7")
            k(f"s_add_u32 s{sTo}, s{sA}, s{sT}")
            k(f"v_and_b32 v{vt}, 15, v{vL}")
            k(f"v_lshlrev_b32 v{vt}, 10, v{vt}")
            if 'x' in TBP:
                k(f"s_mov_b64 exec, 0xffff")
                k(f"buffer_load_dword v{vPf}, v{vt}, s[{srdX}:{srdX+3}], s{sTo} offen")
                k(f"s_mov_b64 exec, -1")
            mk_srd(k,srdT,sWQ,512*1536*2)
            k(f"v_mul_u32_u24 v{vt}, 171, v{vL}")
            k(f"v_lshrrev_b32 v{vt}, 9, v{vt}")
            k(f"v_mul_u32_u24 v{vt2}, 3, v{vt}")
            k(f"v_sub_u32 v{vt2}, v{vL}, v{vt2}")
            k(f"v_mul_u32_u24 v{vt}, 3072, v{vt}")
            k(f"v_lshl_add_u32 v{vt}, v{vt2}, 10, v{vt}")
            k(f"s_lshl_b32 s{sA}, s{sS1}, 6")
            k(f"s_lshl_b32 s{sT}, s{sW}, 3")
            k(f"s_add_u32 s{sA}, s{sA}, s{sT}")
            k(f"s_mul_i32 s{sA}, s{sA}, 3072")
            k(f"s_lshr_b32 s{sT}, s{sXCD}, 2")
            k(f"s_lshl_b32 s{sT}, s{sT}, 2")
            k(f"s_lshr_b32 s{sTo}, s{sIDX}, 2")
            k(f"s_add_u32 s{sT}, s{sT}, s{sTo}")
            k(f"s_lshl_b32 s{sT}, s{sT}, 7")
            k(f"s_add_u32 s{sA}, s{sA}, s{sT}")
            if 'w' in TBP:
                k(f"s_mov_b64 exec, {'0xffffff' if 'h' not in TBP else '0xfff'}")
                k(f"buffer_load_dword v{vPf}, v{vt}, s[{srdT}:{srdT+3}], s{sA} offen")
                k(f"s_mov_b64 exec, -1")
    TM=os.environ.get('TMODE','a')
    for ch_ in TM:
        if ch_=='a': touch_a()
        if ch_=='b': touch_b()
    sFr=78
    def wo_dma():
        k(f"s_lshl_b32 s{sFr}, s{sXCD}, 4")
        k(f"s_add_u32 s{sFr}, s{sFr}, s{sIDX}")
        k(f"s_lshl_b32 s{sFr}, s{sFr}, 2")
        k(f"s_add_u32 s{sFr}, s{sFr}, s{sWp}")
        mk_srd(k,srdT,sWO,512*512*2)
        k(f"v_lshrrev_b32 v{vt}, 2, v{vL}")
        k(f"v_and_b32 v{vt2}, 3, v{vL}")
        k(f"v_lshlrev_b32 v{vt2}, 4, v{vt2}")
        k(f"v_lshl_add_u32 v{vt}, v{vt}, 10, v{vt2}")
        k(f"s_and_b32 s{sA}, s{sFr}, 31")
        k(f"s_lshl_b32 s{sA}, s{sA}, 14")
        k(f"s_lshr_b32 s{sT}, s{sFr}, 5")
        k(f"s_lshl_b32 s{sT}, s{sT}, 6")
        k(f"s_add_u32 s{sT}, s{sA}, s{sT}")
        k(f"s_lshl_b32 s{sA}, s{sW}, 10")
        k(f"s_add_u32 m0, s{sA}, {L_WOB}")
        k(f"s_nop 0")
        k(f"buffer_load_dwordx4 v{vt}, s[{srdT}:{srdT+3}], s{sT} offen lds", tag="wo")
    k(f"v_lshlrev_b32 v{vG}, 12, v0")
    k(f"s_lshl_b32 s{sA}, s{sD0}, 1")
    k(f"v_add_u32 v{vG}, s{sA}, v{vG}")
    k(f"v_subrev_u32 v{vH3}, 3072, v{vG}")
    side=[]
    for r in range(4):
        side.append([f"buffer_load_dwordx2 v[{g+6+2*r}:{g+7+2*r}], v{vG}, s[{srdX}:{srdX+3}], 0 offen offset:{r*1024}"])
    side.append(["s_mov_b64 exec, 1"]+[f"buffer_load_dwordx2 v[{g+2*r}:{g+2*r+1}], v{vH3}, s[{srdX}:{srdX+3}], 0 offen offset:{r*1024}" for r in range(3)]+["s_mov_b64 exec, -1"])
    mk_srd(k,srdWS,sWS,WS_SIZE)
    k(f"s_mul_i32 s{sCB}, s{sCh}, {CH}")
    k(f"s_mov_b32 s{sTab}, s{sCB}")
    aX=V(16)
    k(f"v_and_b32 v{vt}, 1, v{vL}")
    k(f"v_lshlrev_b32 v{vt}, 3, v{vt}")
    k(f"v_lshrrev_b32 v{vt2}, 1, v{vL}")
    k(f"v_lshl_add_u32 v{vt}, v{vt2}, 4, v{vt}")
    k(f"v_add_u32 v{aX}, s{sTab}, v{vt}")
    for x in range(1,16): k(f"v_xor_b32 v{aX+x}, {x<<4}, v{aX}")
    k(f"v_and_b32 v{vI}, 15, v{vL}")
    k(f"v_lshrrev_b32 v{vQ}, 4, v{vL}")
    def rdaddr(dst,rowreg):
        k(f"v_and_b32 v{vt}, 15, v{rowreg}")
        k(f"v_xor_b32 v{vt}, v{vt}, v{vQ}")
        k(f"v_lshlrev_b32 v{vt}, 4, v{vt}")
        k(f"v_lshl_add_u32 v{vt}, v{rowreg}, 9, v{vt}")
        k(f"v_add_u32 v{dst}, s{sTab}, v{vt}")
        for ks in range(1,4): k(f"v_xor_b32 v{dst+ks}, {ks<<6}, v{dst}")
    rF=V(4); rG1=V(4); rG2=V(4)
    rdaddr(rF,vI)
    def rne(dst,kk):
        k(f"v_bfe_u32 v{dst}, v{vI}, {kk}, 1")
        k(f"v_add3_u32 v{dst}, v{dst}, v{vI}, {(1<<(kk-1))-1}")
        k(f"v_lshrrev_b32 v{dst}, {kk}, v{dst}")
    z4=V(4,4)
    for u in range(4): k(f"v_mov_b32 v{z4+u}, 0")
    vDt=V(); vDs=V()
    k("s_waitcnt lgkmcnt(0)")
    k(f"s_lshl_b32 s{sA}, s{sLdt}, 16")
    k(f"s_and_b32 s{sB}, s{sLdt}, 0xffff0000")
    k(f"s_bitcmp0_b32 s{sCh}, 0")
    k(f"s_cselect_b32 s{sLdt}, s{sA}, s{sB}")
    k(f"s_lshl_b32 s{sA}, s{sDsk}, 16")
    k(f"s_and_b32 s{sB}, s{sDsk}, 0xffff0000")
    k(f"s_bitcmp0_b32 s{sCh}, 0")
    k(f"s_cselect_b32 s{sDsk}, s{sA}, s{sB}")
    k(f"v_mov_b32 v{vDt}, {LOG2E:#x}")
    k(f"v_mul_f32 v{vDt}, s{sLdt}, v{vDt}")
    k(f"v_exp_f32 v{vDt}, v{vDt}")
    k(f"v_cvt_pk_bf16_f32 v{vDt}, v{vDt}, v{vDt}")
    k(f"v_lshlrev_b32 v{vDt}, 16, v{vDt}")
    k(f"v_cmp_eq_u32 vcc, 0, v{vL}")
    k(f"v_mov_b32 v{vt}, s{sDsk}")
    k(f"v_cndmask_b32 v{vDs}, 0, v{vt}, vcc")
    import struct
    re2=V(2); fr=V(2); cc=[V(2,2),V(2,2)]; T0=[V(2,2),V(2,2)]; T1=[V(2,2),V(2,2)]
    def unpack(dst,src,m):
        if m==0: k(f"v_lshlrev_b32 v{dst}, 16, v{src}")
        else: k(f"v_and_b32 v{dst}, 0xffff0000, v{src}")
    def both(f):
        for m in range(2): f(m)
    def mode_params(need_c):
        both(lambda m: unpack(re2+m,pl,m))
        both(lambda m: k(f"v_mul_f32 v{re2+m}, {LOG2E:#x}, v{re2+m}"))
        both(lambda m: k(f"v_exp_f32 v{re2+m}, v{re2+m}"))
        both(lambda m: unpack(fr+m,pa,m))
        k(f"v_cvt_pk_bf16_f32 v{vt}, v{re2}, v{re2+1}")
        both(lambda m: k(f"v_mul_f32 v{fr+m}, v{fr+m}, v{vDt}"))
        both(lambda m: unpack(re2+m,vt,m))
        both(lambda m: k(f"v_mul_f32 v{fr+m}, {INV2PI:#x}, v{fr+m}"))
        both(lambda m: k(f"v_mul_f32 v{re2+m}, v{re2+m}, v{vDt}"))
        both(lambda m: k(f"v_mul_f32 v{re2+m}, {NLOG2E:#x}, v{re2+m}"))
        if need_c:
            both(lambda m: unpack(cc[m],pcr,m))
            both(lambda m: unpack(cc[m]+1,pci,m))
            k(f"v_add_f32 v{vt}, v{vDt}, v{vDt}")
            both(lambda m: k(f"v_mul_f32 v{cc[m]}, v{cc[m]}, v{vt}"))
            both(lambda m: k(f"v_mul_f32 v{cc[m]+1}, v{cc[m]+1}, v{vt}"))
    def Edirect(dst,p):
        lit=struct.unpack("<I",struct.pack("<f",float(p)))[0]
        if p==1:
            both(lambda m: k(f"v_exp_f32 v{T1[m]}, v{re2+m}"))
            both(lambda m: k(f"v_fract_f32 v{T1[m]+1}, v{fr+m}"))
        else:
            both(lambda m: k(f"v_mul_f32 v{T1[m]}, {lit:#x}, v{re2+m}"))
            both(lambda m: k(f"v_mul_f32 v{T1[m]+1}, {lit:#x}, v{fr+m}"))
            both(lambda m: k(f"v_exp_f32 v{T1[m]}, v{T1[m]}"))
            both(lambda m: k(f"v_fract_f32 v{T1[m]+1}, v{T1[m]+1}"))
        both(lambda m: k(f"v_cos_f32 v{dst[m]}, v{T1[m]+1}"))
        both(lambda m: k(f"v_sin_f32 v{dst[m]+1}, v{T1[m]+1}"))
        both(lambda m: k(f"v_pk_mul_f32 v[{dst[m]}:{dst[m]+1}], v[{dst[m]}:{dst[m]+1}], v[{T1[m]}:{T1[m]+1}] op_sel_hi:[1,0]"))
    def cmul2(dst,w,z,T):
        both(lambda m: k(f"v_pk_mul_f32 v[{T[m]}:{T[m]+1}], v[{w[m]}:{w[m]+1}], v[{z[m]}:{z[m]+1}] op_sel:[0,0] op_sel_hi:[0,1]"))
        both(lambda m: k(f"v_pk_fma_f32 v[{dst[m]}:{dst[m]+1}], v[{w[m]}:{w[m]+1}], v[{z[m]}:{z[m]+1}], v[{T[m]}:{T[m]+1}] op_sel:[1,1,0] op_sel_hi:[1,0,1] neg_lo:[0,1,0]"))
    pk=[V(2,2),V(2,2)]
    pkc=[0]
    sidel=[]
    def wrow(row,w,neg):
        r=pk[pkc[0]&1]; pkc[0]+=1
        both(lambda m: k(f"v_cvt_pk_bf16_f32 v{r+m}, v{w[m]}, {'-' if neg else ''}v{w[m]+1}"))
        if 'W' not in DB: k(f"ds_write_b64 v{aX+(row&15)}, v[{r}:{r+1}] offset:{row*512}")
        if sidel and GMODE[0]=='i' and pkc[0]%int(GMODE[1:])==0:
            for l in sidel.pop(0): k(l)
    P2=lambda: [V(2,2),V(2,2)]
    wA=P2(); wB=P2(); zz=P2(); e4=P2(); e8=P2(); e12=P2(); e16=P2(); eb=P2()
    def mov2(dst,src):
        for m in range(2):
            k(f"v_mov_b32 v{dst[m]}, v{src[m]}"); k(f"v_mov_b32 v{dst[m]+1}, v{src[m]+1}")
    def table_role0(mid=None):
        mode_params(True)
        Edirect(zz,16)
        Edirect(wB,256)
        cmul2(wB,wB,cc,T0)
        if mid: mid()
        for a in range(16):
            src=cc if a==0 else wA
            wrow(a,src,True); wrow(16+a,wB,True)
            if a<15:
                cmul2(wA,src,zz,T0); cmul2(wB,wB,zz,T1)
    def table_role1(mid=None):
        mode_params(False)
        Edirect(zz,1)
        r=pk[pkc[0]&1]; pkc[0]+=1
        k(f"v_mov_b32 v{r}, 0x3f80"); k(f"v_mov_b32 v{r+1}, 0x3f80")
        k(f"ds_write_b64 v{aX+0}, v[{r}:{r+1}] offset:{32*512}")
        keep={4:e4,8:e8,12:e12,16:e16}
        Edirect(eb,512)
        wrow(33,zz,False)
        wrow(50,eb,False)
        if mid: mid()
        cur=zz
        for b in range(2,17):
            dst=keep.get(b,wA)
            cmul2(dst,cur,zz,T0)
            cur=dst
            wrow(32+b if b<16 else 49,cur,False)
            if b in keep:
                cmul2(wB,eb,cur,T1)
                wrow(50+2*(b//4),wB,False)
        for (p,row) in ((1024,51),(1536,57)):
            Edirect(eb,p)
            wrow(row,eb,False)
            cmul2(wB,eb,e8,T0); wrow(row+2,wB,False)
            cmul2(wB,eb,e16,T1); wrow(row+4,wB,False)
    uo={}
    def u_prep():
        for r in range(3):
            for dw in range(2):
                k(f"v_mov_b32_dpp v{g+2*r+dw}, v{g+2*(r+4)+dw} wave_shr:1 row_mask:0xf bank_mask:0xf")
        k(f"s_mov_b32 s{sSel0}, 0x05040100")
        k(f"s_mov_b32 s{sSel1}, 0x07060302")
        uo['z']=V(); uo['u']=V(); uo['u2']=V(); uo['o']=V(32,2)
        k(f"v_lshrrev_b32 v{vt}, 4, v{vL}")
        k(f"v_mul_u32_u24 v{vt}, {CH}, v{vt}")
        k(f"v_bfe_u32 v{vt2}, v{vL}, 2, 2")
        k(f"v_mul_u32_u24 v{vt2}, {UC}, v{vt2}")
        k(f"v_add_u32 v{vt}, v{vt}, v{vt2}")
        k(f"v_and_b32 v{vt2}, 3, v{vL}")
        k(f"v_lshl_add_u32 v{uo['z']}, v{vt2}, 4, v{vt}")
        k(f"v_sub_u32 v{uo['u']}, 511, v0")
        k(f"v_lshlrev_b32 v{uo['u']}, 3, v{uo['u']}")
        k(f"v_add_u32 v{uo['u2']}, {2*CH}, v{uo['u']}")
        G=lambda r,dw: g+2*(r+3)+dw
        for ch in range(4):
            sel=sSel0 if ch%2==0 else sSel1; dw=ch>>1
            for c in range(4):
                o=uo['o']+2*(4*ch+c)
                k(f"v_perm_b32 v{o}, v{G(c-1,dw)}, v{G(c,dw)}, s{sel}")
                k(f"v_perm_b32 v{o+1}, v{G(c-3,dw)}, v{G(c-2,dw)}, s{sel}")
    def u_write():
        k(f"ds_write_b128 v{uo['z']}, v[{z4}:{z4+3}] offset:4096")
        for ch in range(4):
            for c in range(4):
                o=uo['o']+2*(4*ch+c)
                k(f"ds_write_b64 v{uo['u'] if ch<2 else uo['u2']}, v[{o}:{o+1}] offset:{(ch%2)*CH+c*UC}")
    acc=V(16,4)
    fr_=[V(20,4),V(20,4),V(20,4)]
    def kreads(role,u):
        hi,ks=u>>2,u&3; f=fr_[u%3]; o=hi*256
        k(f"ds_read_b128 v[{f}:{f+3}], v{rF+ks} offset:{o}")
        if role==0:
            k(f"ds_read_b128 v[{f+8}:{f+11}], v{rF+ks} offset:{o+16384}")
            k(f"ds_read_b128 v[{f+4}:{f+7}], v{rF+ks} offset:{o+8192}")
            k(f"ds_read_b128 v[{f+12}:{f+15}], v{rG1+ks} offset:{o}")
            k(f"ds_read_b128 v[{f+16}:{f+19}], v{rG2+ks} offset:{o}")
        else:
            k(f"ds_read_b128 v[{f+8}:{f+11}], v{rG1+ks} offset:{o}")
            k(f"ds_read_b128 v[{f+4}:{f+7}], v{rF+ks} offset:{o+8192}")
            k(f"ds_read_b128 v[{f+12}:{f+15}], v{rG2+ks} offset:{o}")
    def kmf(role,u):
        f=fr_[u%3]
        if role==0: pairs=[(0,f+8,f),(1,f+12,f+4),(2,f+16,f),(3,f+16,f+4)]
        else: pairs=[(0,f+8,f),(1,f+8,f+4),(2,f+12,f),(3,f+12,f+4)]
        for (T,a,b) in pairs:
            cin="0" if u==0 else f"v[{acc+4*T}:{acc+4*T+3}]"
            k(f"v_mfma_f32_16x16x32_bf16 v[{acc+4*T}:{acc+4*T+3}], v[{a}:{a+3}], v[{b}:{b+3}], {cin}")
    def kmfma(role):
        kreads(role,0); kreads(role,1)
        for u in range(8):
            if u+2<8: kreads(role,u+2)
            kmf(role,u)
    def wo_frag():
        wof=fr_[0]; vWoA=fr_[0]+4
        k(f"v_bfe_u32 v{vt}, v{vL}, 2, 2")
        k(f"v_lshrrev_b32 v{vt2}, 5, v{vL}")
        k(f"v_lshl_add_u32 v{vt}, v{vt2}, 2, v{vt}")
        k(f"v_lshlrev_b32 v{vWoA}, 6, v{vt}")
        k(f"v_bfe_u32 v{vt2}, v{vL}, 4, 1")
        k(f"v_lshl_add_u32 v{vWoA}, v{vt2}, 5, v{vWoA}")
        k(f"v_and_b32 v{vt2}, 3, v{vL}")
        k(f"v_lshl_add_u32 v{vWoA}, v{vt2}, 3, v{vWoA}")
        k(f"s_lshl_b32 s{sA}, s{sW}, 10")
        k(f"s_add_u32 s{sA}, s{sA}, {L_WOB}")
        k(f"v_add_u32 v{vWoA}, s{sA}, v{vWoA}")
        k.wait_tag("wo")
        k(f"ds_read_b64_tr_b16 v[{wof}:{wof+1}], v{vWoA}")
        k(f"ds_read_b64_tr_b16 v[{wof+2}:{wof+3}], v{vWoA} offset:512")
        k(f"v_lshlrev_b32 v{vt}, 4, v{vL}")
        k(f"s_lshl_b32 s{sA}, s{sFr}, 10")
        k(f"s_add_u32 s{sA}, s{sA}, {WS_WO}")
        k(f"buffer_store_dwordx4 v[{wof}:{wof+3}], v{vt}, s[{srdWS}:{srdWS+3}], s{sA} offen {STF}")
    row=V()
    k(f"s_cmp_eq_u32 s{sRole}, 0")
    k(f"s_cbranch_scc0 L_{name}_B1")
    snap=k.snapshot(); mark=V.mark()
    for role in range(2):
        if role==1:
            k.restore(snap); V.reset(mark); k.label(f"L_{name}_B1")
        if role==0:
            rne(row,1)
            k(f"v_lshrrev_b32 v{vt2}, 3, v{row}")
            k(f"v_lshl_add_u32 v{row}, v{row}, 1, v{vt2}")
            k(f"v_add_u32 v{row}, 32, v{row}")
            rdaddr(rG1,row)
            rne(row,2); k(f"v_lshlrev_b32 v{row}, 1, v{row}"); k(f"v_add_u32 v{row}, 50, v{row}"); rdaddr(rG2,row)
        else:
            rne(row,3); k(f"v_lshlrev_b32 v{row}, 1, v{row}"); k(f"v_add_u32 v{row}, 51, v{row}"); rdaddr(rG1,row)
            k(f"v_add_u32 v{row}, 6, v{row}"); rdaddr(rG2,row)
        tab=table_role0 if role==0 else table_role1
        st.mark(k,1)
        if PRIO: k(f"s_setprio {PRIO}")
        if 'A' in TM or 'B' in TM:
            k.wait_tag("par")
            if 'B' in TM: touch_b()
            if 'A' in TM: touch_a()
        flat=[l for blk in side for l in blk]
        if GMODE=='split2':
            st_={}
            def mid():
                k(f"s_cmp_eq_u32 s{sP}, 1")
                k(f"s_cbranch_scc0 L_{name}_B{role}_g0")
                vmq=list(k.vm)
                for l in flat: k(l)
                k.label(f"L_{name}_B{role}_g0")
                k.vm=vmq
            tab(mid)
            k(f"s_cmp_eq_u32 s{sP}, 0")
            k(f"s_cbranch_scc0 L_{name}_B{role}_g1")
            for l in flat: k(l)
            k.label(f"L_{name}_B{role}_g1")
        elif GMODE=='ink':
            tab()
        elif GMODE=='split':
            k.wait_tag("par")
            k(f"s_cmp_eq_u32 s{sP}, 0")
            k(f"s_cbranch_scc0 L_{name}_B{role}_g0")
            vmq=list(k.vm)
            for l in flat: k(l)
            k.label(f"L_{name}_B{role}_g0")
            k.vm=vmq
            tab()
            k(f"s_cmp_eq_u32 s{sP}, 1")
            k(f"s_cbranch_scc0 L_{name}_B{role}_g1")
            for l in flat: k(l)
            k.label(f"L_{name}_B{role}_g1")
        else:
            sidel.clear(); sidel.extend([list(x) for x in side] if 'G' not in DB else [])
            if GMODE=='pre':
                k.wait_tag("par")
                for blk in sidel:
                    for l in blk: k(l)
                sidel.clear()
            tab()
            for blk in sidel:
                for l in blk: k(l)
            sidel.clear()
        st.mark(k,2)
        k.barrier()
        wo_dma()
        if GMODE=='ink':
            k.bg=[[(l,None) for l in blk] for blk in side]; k.bg_every=int(os.environ.get('GEV','6'))
        kmfma(role)
        k.bg_flush()
        st.mark(k,3)
        u_prep()
        vK=vt3
        k(f"s_add_u32 s{sTab}, s{sCB}, {KOFF}")
        k(f"v_lshlrev_b32 v{vK}, 5, v{vL}")
        k(f"v_add_u32 v{vK}, s{sTab}, v{vK}")
        kp=V(8,4); vKz=V()
        if role==0:
            k(f"v_add_f32 v{acc}, v{acc}, v{vDs}")
            k(f"v_lshlrev_b32 v{vKz}, 3, v{vL}")
            k(f"v_add_u32 v{vKz}, s{sTab}, v{vKz}")
        for T in range(4):
            k(f"v_cvt_pk_bf16_f32 v{kp+2*T}, v{acc+4*T}, v{acc+4*T+1}")
            k(f"v_cvt_pk_bf16_f32 v{kp+2*T+1}, v{acc+4*T+2}, v{acc+4*T+3}")
        for b0 in range(2):
            for d in range(2): k(f"v_permlane32_swap_b32 v{kp+2*b0+d}, v{kp+2*(b0+2)+d}")
        for b1 in range(2):
            for d in range(2): k(f"v_permlane16_swap_b32 v{kp+4*b1+d}, v{kp+4*b1+2+d}")
        k.barrier()
        if role==0:
            k(f"ds_write_b64 v{vKz}, v[{z4}:{z4+1}]")
            k(f"ds_write_b64 v{vKz}, v[{z4}:{z4+1}] offset:{P1}")
        o=2048*role
        k(f"ds_write_b128 v{vK}, v[{kp}:{kp+3}] offset:{o+464}")
        k(f"ds_write_b128 v{vK}, v[{kp+4}:{kp+7}] offset:{o+480}")
        k(f"ds_write_b128 v{vK}, v[{kp+2}:{kp+5}] offset:{P1+o+464}")
        k(f"ds_write_b64 v{vK}, v[{kp}:{kp+1}] offset:{P1+o+456}")
        k(f"ds_write_b64 v{vK}, v[{kp+6}:{kp+7}] offset:{P1+o+480}")
        u_write()
        wo_frag()
        k(f"v_and_b32 v{vt}, 3, v{vI}")
        k(f"v_mul_u32_u24 v{vA}, {UC}, v{vt}")
        k(f"v_lshrrev_b32 v{vt}, 2, v{vI}")
        k(f"v_sub_u32 v{vt}, v{vQ}, v{vt}")
        k(f"v_add_u32 v{vt}, 3, v{vt}")
        k(f"v_lshl_add_u32 v{vA}, v{vt}, 4, v{vA}")
        k(f"v_add_u32 v{vA}, s{sCB}, v{vA}")
        k(f"v_lshrrev_b32 v{vt}, 1, v{vI}")
        k(f"v_lshlrev_b32 v{vB}, 6, v{vt}")
        k(f"v_lshl_add_u32 v{vB}, v{vQ}, 4, v{vB}")
        k(f"v_and_b32 v{vt}, 1, v{vI}")
        k(f"v_mul_u32_u24 v{vt}, {P1-16}, v{vt}")
        k(f"v_sub_u32 v{vt}, {P1}, v{vt}")
        k(f"v_add3_u32 v{vB}, v{vB}, v{vt}, s{sTab}")
        k.barrier()
        V.reset(mark0)
        y=V(32,4)
        S=[V(64,4),V(64,4)]
        def loads(r,s):
            L=[]
            for c in range(8):
                L.append(f"ds_read_b128 v[{s+4*c}:{s+4*c+3}], v{vA} offset:{64*(56+r-8*c)}")
                L.append(f"ds_read_b128 v[{s+32+4*c}:{s+32+4*c+3}], v{vB} offset:{64*(r+8*c)}")
            return L
        classes=[4*role+i for i in range(4)]
        for l in loads(classes[0],S[0]): k(l)
        started=set()
        for ci,r in enumerate(classes):
            s=S[ci&1]
            nxt=loads(classes[ci+1],S[(ci+1)&1]) if ci+1<4 else []
            order=[]
            for d in range(8):
                for a in range(8):
                    for c in range(8):
                        if max(a,c)==d and a+c<=7: order.append((a,c))
            n=0
            for (a,c) in order:
                i=a+c
                cin="0" if i not in started else f"v[{y+4*i}:{y+4*i+3}]"
                started.add(i)
                k(f"v_mfma_f32_16x16x32_bf16 v[{y+4*i}:{y+4*i+3}], v[{s+4*c}:{s+4*c+3}], v[{s+32+4*a}:{s+32+4*a+3}], {cin}")
                n+=1
                if nxt and n>=4 and n%2==0: k(nxt.pop(0))
            for l in nxt: k(l)
        st.mark(k,4)
        vXw=vt3; vXr=vA
        k(f"v_lshlrev_b32 v{vt}, 4, v{vL}")
        k(f"s_lshl_b32 s{sA}, s{sW}, 12")
        k(f"s_add_u32 s{sA}, s{sA}, {L_WOB}")
        k(f"v_add_u32 v{vXw}, s{sA}, v{vt}")
        k(f"s_xor_b32 s{sA}, s{sA}, 4096") if False else None
        k(f"s_xor_b32 s{sB}, s{sW}, 1")
        k(f"s_lshl_b32 s{sB}, s{sB}, 12")
        k(f"s_add_u32 s{sB}, s{sB}, {L_WOB}")
        k(f"v_add_u32 v{vXr}, s{sB}, v{vt}")
        mine=[4*role+i for i in range(4)]; theirs=[4*(1-role)+i for i in range(4)]
        for n_,i in enumerate(theirs):
            k(f"ds_write_b128 v{vXw}, v[{y+4*i}:{y+4*i+3}] offset:{1024*n_}")
        vS=vB
        k(f"v_lshrrev_b32 v{vt}, 1, v{vI}")
        k(f"v_lshlrev_b32 v{vS}, 6, v{vt}")
        k(f"v_lshl_add_u32 v{vS}, v{vQ}, 4, v{vS}")
        k(f"v_and_b32 v{vt}, 1, v{vI}")
        k(f"v_lshl_add_u32 v{vS}, v{vt}, 3, v{vS}")
        k(f"s_add_u32 s{sA}, s{sD0}, s{sCh}")
        k(f"s_lshl_b32 s{sA}, s{sA}, 12")
        k(f"s_add_u32 s{sA}, s{sA}, {WS_B+role*4*512}")
        k.barrier()
        rr=S[0]
        for n_ in range(4):
            k(f"ds_read_b128 v[{rr+4*n_}:{rr+4*n_+3}], v{vXr} offset:{1024*n_}")
        for n_,i in enumerate(mine):
            b=rr+4*n_
            k(f"v_pk_add_f32 v[{b}:{b+1}], v[{b}:{b+1}], v[{y+4*i}:{y+4*i+1}]")
            k(f"v_pk_add_f32 v[{b+2}:{b+3}], v[{b+2}:{b+3}], v[{y+4*i+2}:{y+4*i+3}]")
            k(f"v_cvt_pk_bf16_f32 v{b}, v{b}, v{b+1}")
            k(f"v_cvt_pk_bf16_f32 v{b+1}, v{b+2}, v{b+3}")
            k(f"buffer_store_dwordx2 v[{b}:{b+1}], v{vS}, s[{srdWS}:{srdWS+3}], s{sA} offen offset:{512*n_} {STF}")
        st.mark(k,5)
        st.finish(k,sWS,sW,y)
        k("s_endpgm")
    return V.hi
```

```python
from dsl import *
from common import *
import os
DBG2=os.environ.get('DBG2','')

def gen_k2(name="fin_kernel", stamp=False):
    k = Kern()
    S = Stamper(stamp,1)
    V = Alloc("v", 1, 256)
    sOUT=4; sWS=6; srdW=8; srdO=12; sW=16; sTB=17; sDB=18; sT=19; sA=20; sB=21
    sPhi=22; sKv=23; sWo=24; sBb=25; sG=26; sOo=27; sRh=28; sRc=29; sH=30; sC=31
    k(f"s_cmp_ge_u32 s2, 256")
    k(f"s_cbranch_scc1 L_{name}_end")
    S.start(k); S.mark(k,6)
    k(f"s_load_dwordx2 s[{sOUT}:{sOUT+1}], s[0:1], {KA['out']}")
    k(f"s_load_dwordx2 s[{sWS}:{sWS+1}], s[0:1], {KA['ws']}")
    vLane=V(); vT=V(); vH=V(); vPhi=V(); vKv=V(4); vB=V(); vG=V(); vO=V(); vtmp=V(); vtmp2=V()
    k(f"v_lshrrev_b32 v{vtmp}, 6, v0")
    k(f"v_and_b32 v{vLane}, 63, v0")
    k(f"v_readfirstlane_b32 s{sW}, v{vtmp}")
    k(f"v_and_b32 v{vT}, 31, v{vLane}")
    k(f"v_lshrrev_b32 v{vH}, 5, v{vLane}")
    k(f"v_lshlrev_b32 v{vPhi}, 4, v{vLane}")
    k(f"s_and_b32 s{sA}, s2, 7")
    k(f"s_lshr_b32 s{sB}, s2, 5")
    k(f"s_lshr_b32 s{sDB}, s2, 3")
    k(f"s_and_b32 s{sDB}, s{sDB}, 3")
    k(f"s_and_b32 s{sT}, s{sA}, 3")
    k(f"s_lshl_b32 s{sT}, s{sT}, 4")
    k(f"s_lshr_b32 s{sA}, s{sA}, 2")
    k(f"s_lshl_b32 s{sA}, s{sA}, 3")
    k(f"s_add_u32 s{sTB}, s{sT}, s{sA}")
    k(f"s_add_u32 s{sTB}, s{sTB}, s{sB}")
    k(f"v_lshlrev_b32 v{vtmp}, 4, v{vT}")
    k(f"v_lshl_add_u32 v{vtmp}, v{vH}, 8, v{vtmp}")
    k(f"v_lshlrev_b32 v{vtmp2}, 4, v{vH}")
    k(f"v_add_u32 v{vtmp2}, 2048, v{vtmp2}")
    k(f"v_cmp_gt_u32 vcc, 16, v{vT}")
    k(f"v_cndmask_b32 v{vKv}, v{vtmp2}, v{vtmp}, vcc")
    k(f"v_mov_b32 v{vtmp}, 512")
    k(f"v_mov_b32 v{vtmp2}, 32")
    k(f"v_cndmask_b32 v{vtmp}, v{vtmp2}, v{vtmp}, vcc")
    for u in range(1,4): k(f"v_add_u32 v{vKv+u}, v{vKv+u-1}, v{vtmp}")
    k(f"s_lshl_b32 s{sA}, s{sTB}, 16")
    k(f"s_lshl_b32 s{sB}, s{sW}, 14")
    k(f"s_add_u32 s{sPhi}, s{sA}, s{sB}")
    k(f"s_mul_i32 s{sKv}, s{sW}, {8*KVH}")
    k(f"s_add_u32 s{sKv}, s{sKv}, {WS_KV}")
    k(f"s_lshl_b32 s{sA}, s{sDB}, 2")
    k(f"s_add_u32 s{sA}, s{sA}, s{sW}")
    k(f"s_lshl_b32 s{sWo}, s{sA}, 15")
    k(f"s_add_u32 s{sWo}, s{sWo}, {WS_WO}")
    k(f"s_lshl_b32 s{sBb}, s{sA}, 17")
    k(f"s_lshl_b32 s{sB}, s{sTB}, 6")
    k(f"s_add_u32 s{sBb}, s{sBb}, s{sB}")
    k(f"s_add_u32 s{sBb}, s{sBb}, {WS_B}")
    k(f"s_lshl_b32 s{sB}, s{sTB}, 7")
    k(f"s_add_u32 s{sG}, s{sB}, {WS_G}")
    k(f"s_lshl_b32 s{sOo}, s{sTB}, 15")
    k(f"s_lshl_b32 s{sB}, s{sA}, 6")
    k(f"s_add_u32 s{sOo}, s{sOo}, s{sB}")
    k("s_waitcnt lgkmcnt(0)")
    k(f"s_mov_b32 s{srdW}, s{sWS}")
    k(f"s_and_b32 s{srdW+1}, s{sWS+1}, 0xffff")
    k(f"s_mov_b32 s{srdW+2}, {WS_SIZE}")
    k(f"s_mov_b32 s{srdW+3}, 0x20000")
    phi = [V(8,4) for _ in range(8)]
    kvf = [V(16,4) for _ in range(3)]
    L_KV=32768
    k(f"s_mul_i32 s{sRh}, s{sW}, {8*KVH}")
    k(f"s_add_u32 s{sRh}, s{sRh}, {L_KV}")
    for u in range(4): k(f"v_add_u32 v{vKv+u}, s{sRh}, v{vKv+u}")
    sT2=33; sLb=34
    def g_kv(c): return [(f"s_add_u32 m0, s{sRh}, {c*1024}",None),(f"s_add_u32 s{sT2}, s{sKv}, {c*1024}",None),
                         (f"buffer_load_dwordx4 v{vPhi}, s[{srdW}:{srdW+3}], s{sT2} offen lds",f"kv{c}")]
    def g_phi(hh,s):
        g=[]
        g.append((f"s_add_u32 s{sT2}, s{sPhi}, {hh*2048+s*1024}",None))
        g.append((f"buffer_load_dwordx4 v[{phi[hh]+4*s}:{phi[hh]+4*s+3}], v{vPhi}, s[{srdW}:{srdW+3}], s{sT2} offen",None))
        return g
    def g_wo(c): return [(f"s_add_u32 s{sT2}, s{sWo}, {c*1024}",None),(f"buffer_load_dwordx4 a[{4*c}:{4*c+3}], v{vPhi}, s[{srdW}:{srdW+3}], s{sT2} offen",f"wo{c}")]
    seq=[]; nk=0
    wo_order=[8*w_+2*r+e for r in range(4) for w_ in range(4) for e in range(2)]
    WPH=eval(os.environ.get('K2W','[0,0,4,4,4,4,4,4]'))
    wq=list(wo_order)
    for hh in range(8):
        need=min(17,(KVH*(hh+1)+1023)//1024)
        while nk<need: seq.append(g_kv(nk)); nk+=1
        seq.append(g_phi(hh,0)); seq.append(g_phi(hh,1))
        for _ in range(WPH[hh]): seq.append(g_wo(wq.pop(0)))
    tail_wo=[g_wo(c) for c in wq]
    def rd_kv(hh):
        f=kvf[hh%3]
        k.wait_tag(f"kv{(KVH*(hh+1)-1)//1024}")
        for q in range(4):
            k(f"ds_read_b128 v[{f+4*q}:{f+4*q+3}], v{vKv+q} offset:{hh*KVH}")
    NPRE=int(os.environ.get('K2NPRE','20'))
    for g in seq[:NPRE]:
        for (t,tg) in g: k(t,tag=tg)
    rest=seq[NPRE:]
    bdw = V(8,2); vg=V()
    k(f"v_lshrrev_b32 v{vB}, 2, v{vLane}")
    k(f"v_lshlrev_b32 v{vB}, 12, v{vB}")
    k(f"v_and_b32 v{vtmp}, 3, v{vLane}")
    k(f"v_lshl_add_u32 v{vB}, v{vtmp}, 4, v{vB}")
    k(f"v_lshlrev_b32 v{vG}, 2, v{vT}")
    k(f"v_lshlrev_b32 v{vO}, 10, v{vT}")
    k(f"v_lshl_add_u32 v{vO}, v{vH}, 4, v{vO}")
    L_BT=L_KV+4*8*KVH
    vBr=V()
    bgl=[]
    for u in range(2):
        bgl.append([(f"s_add_u32 m0, s{sLb}, {u*1024}",None),(f"s_add_u32 s{sT2}, s{sBb}, {u*16*4096}",None),
                    (f"buffer_load_dwordx4 v{vB}, s[{srdW}:{srdW+3}], s{sT2} offen lds","bt")])
    bgl.append([(f"buffer_load_dword v{vg}, v{vG}, s[{srdW}:{srdW+3}], s{sG} offen",None)])
    rest=rest+bgl+tail_wo
    k(f"s_lshl_b32 s{sLb}, s{sW}, 11")
    k(f"s_add_u32 s{sLb}, s{sLb}, {L_BT}")
    k(f"v_bfe_u32 v{vtmp}, v{vLane}, 2, 2")
    k(f"v_lshl_add_u32 v{vtmp}, v{vH}, 2, v{vtmp}")
    k(f"v_lshlrev_b32 v{vBr}, 6, v{vtmp}")
    k(f"v_bfe_u32 v{vtmp}, v{vLane}, 4, 1")
    k(f"v_lshl_add_u32 v{vBr}, v{vtmp}, 5, v{vBr}")
    k(f"v_and_b32 v{vtmp}, 3, v{vLane}")
    k(f"v_lshl_add_u32 v{vBr}, v{vtmp}, 3, v{vBr}")
    k(f"v_add_u32 v{vBr}, s{sLb}, v{vBr}")
    k(f"s_mov_b32 s{srdO}, s{sOUT}")
    k(f"s_and_b32 s{srdO+1}, s{sOUT+1}, 0xffff")
    k(f"s_mov_b32 s{srdO+2}, {2048*512*2}")
    k(f"s_mov_b32 s{srdO+3}, 0x20000")
    vOw=V()
    k(f"s_lshl_b32 s{sA}, s{sW}, 13")
    k(f"v_add_u32 v{vOw}, s{sA}, v{vPhi}")
    D=[V(16,4),V(16,4)]
    def p1_mfma(hh):
        f=kvf[hh%3]; d=D[hh%2]
        for q in range(8):
            k(f"v_cvt_pk_bf16_f32 v{f+q}, v{f+2*q}, v{f+2*q+1}")
        k(f"v_mfma_f32_32x32x16_bf16 v[{d}:{d+15}], v[{f}:{f+3}], v[{phi[hh]}:{phi[hh]+3}], 0")
        k(f"v_mfma_f32_32x32x16_bf16 v[{d}:{d+15}], v[{f+4}:{f+7}], v[{phi[hh]+4}:{phi[hh]+7}], v[{d}:{d+15}]")
    def p1_fin(hh):
        d=D[hh%2]; of=kvf[hh%3]+8
        k(f"v_add_f32 v{vtmp}, 0x358637bd, v{d+8}")
        k(f"v_rcp_f32 v{vtmp}, v{vtmp}")
        for j in range(4):
            k(f"v_pk_mul_f32 v[{d+2*j}:{d+2*j+1}], v[{d+2*j}:{d+2*j+1}], v[{vtmp}:{vtmp+1}] op_sel_hi:[1,0]") if vtmp%2==0 else None
        if vtmp%2:
            for j in range(8): k(f"v_mul_f32 v{d+j}, v{d+j}, v{vtmp}")
        for j in range(4):
            k(f"v_cvt_pk_bf16_f32 v{of+j}, v{d+2*j}, v{d+2*j+1}")
        k(f"ds_write_b128 v{vOw}, v[{of}:{of+3}] offset:{hh*1024}")
    S.mark(k,1)
    k.bg=rest; k.bg_every=int(os.environ.get('K2EV','8'))
    acc=V(16,4); ob=V(32,4)
    first=[True]
    def p2_reads(r):
        for i in range(8):
            c=wo_order[8*r+i]
            k(f"ds_read_b128 v[{ob+4*i}:{ob+4*i+3}], v{vPhi} offset:{c*1024}")
    def p2_mfma(r,i):
        c=wo_order[8*r+i]
        cin="0" if first[0] else f"v[{acc}:{acc+15}]"; first[0]=False
        k(f"v_mfma_f32_32x32x16_bf16 v[{acc}:{acc+15}], a[{4*c}:{4*c+3}], v[{ob+4*i}:{ob+4*i+3}], {cin}")
    rd_kv(0); rd_kv(1)
    p1_mfma(0)
    pend2=[]
    for hh in range(8):
        if hh+1<8: p1_mfma(hh+1)
        for _ in range(4):
            if pend2: p2_mfma(*pend2.pop(0))
        p1_fin(hh)
        if hh+2<8: rd_kv(hh+2)
        if hh%2==1:
            r=hh//2
            while pend2: p2_mfma(*pend2.pop(0))
            if hh==7: S.mark(k,2)
            k.barrier()
            if hh==7: S.mark(k,3)
            p2_reads(r)
            pend2=[(r,i) for i in range(8)]
    k.bg_flush()
    vomg=vtmp2; bl=kvf[0]; od=kvf[1]
    k.wait_tag("bt")
    for i in range(4):
        k(f"ds_read_b64_tr_b16 v[{bdw+2*i}:{bdw+2*i+1}], v{vBr} offset:{i*512}")
    k(f"v_sub_f32 v{vomg}, 1.0, v{vg}")
    k(f"v_cvt_pk_bf16_f32 v{vomg}, v{vomg}, v{vomg}")
    k(f"v_lshlrev_b32 v{vomg}, 16, v{vomg}")
    for n_ in range(8):
        p2_mfma(*pend2.pop(0))
        q=n_
        k(f"v_lshlrev_b32 v{bl+2*q}, 16, v{bdw+q}")
        k(f"v_and_b32 v{bl+2*q+1}, 0xffff0000, v{bdw+q}")
        k(f"v_mul_f32 v{bl+2*q}, v{vomg}, v{bl+2*q}")
        k(f"v_mul_f32 v{bl+2*q+1}, v{vomg}, v{bl+2*q+1}")
    S.mark(k,4)
    for r in range(16):
        k(f"v_fmac_f32 v{bl+r}, v{vg}, v{acc+r}")
    for q in range(8):
        k(f"v_cvt_pk_bf16_f32 v{od+q}, v{bl+2*q}, v{bl+2*q+1}")
    for p in range(2):
        b=od+4*p
        k(f"v_permlane32_swap_b32 v{b}, v{b+2}")
        k(f"v_permlane32_swap_b32 v{b+1}, v{b+3}")
        k(f"buffer_store_dwordx4 v[{b}:{b+3}], v{vO}, s[{srdO}:{srdO+3}], s{sOo} offen offset:{32*p}")
    S.mark(k,5)
    S.finish(k,sWS,sW,phi[0])
    k.label(f"L_{name}_end")
    k("s_endpgm")
    k.label("L_code_end")
    assert V.hi<=256
    txt = head(name)+k.text()+kd(name, 256+128, 102 if stamp else 40, 256)
    return txt
if __name__=="__main__":
    print(gen_k2())
```

```python
import sys
sys.path.insert(0,"gen")
import importlib
from common import *
import io, contextlib
DESC = """;
"""
def build(parts, launches, path):
    hdr = open("gated_mix__linear_kernel_hedgehog__ssm_conv_s4d__prompt.s.ref").read().split("\n")
    hdr = [l for l in hdr if l.startswith(";") and "@launch" not in l and "Override launch" not in l and "grid=ceil" not in l]
    txt = "\n".join(hdr)+"\n"
    for (name,grid,block,lds) in launches:
        txt += f"; @launch kernel={name} grid=({grid},1,1) block=({block},1,1) lds={lds}\n"
    txt += DESC
    txt += '.amdgcn_target "amdgcn-amd-amdhsa--gfx950"\n.text\n'
    for p in parts: txt += p
    open(path,"w").write(txt)

def build1(part, name, grid, block, lds, path):
    hdr = open("gated_mix__linear_kernel_hedgehog__ssm_conv_s4d__prompt.s.ref").read().split("\n")
    hdr = [l for l in hdr if l.startswith(";") and "@launch" not in l and "Override launch" not in l and "grid=ceil" not in l]
    txt = "\n".join(hdr)+"\n"+f"; @launch grid=({grid},1,1) block=({block},1,1) lds={lds}\n"
    txt += '.amdgcn_target "amdgcn-amd-amdhsa--gfx950"\n.text\n'+part
    open(path,"w").write(txt)
```

```python
from dsl import *
from common import *
from k1a import *
import os
if int(os.environ.get('SPLITQ','0')):
    from k1a2 import gen_a
import os
PAIR=int(os.environ.get('PAIR','1'))
CPF=int(os.environ.get('CPF','0'))
try:
    from k1b import gen_b
except ImportError:
    gen_b=None
def gen_k1(name="mix_kernel", with_b=True, stamp=False, with_a=True, fused=False):
    k=Kern()
    S=Stamper(stamp,0)
    SAB=Stamper(False,0) if fused else S
    k(f"s_cmp_ge_u32 s2, 256")
    k(f"s_cbranch_scc1 L_{name}_end")
    S.start(k); S.mark(k,6)
    k(f"s_load_dwordx16 s[4:19], s[0:1], 0")
    k(f"s_load_dwordx8 s[20:27], s[0:1], 64")
    k(f"s_load_dwordx4 s[28:31], s[0:1], 96")
    k(f"s_load_dwordx2 s[32:33], s[0:1], 112")
    k(f"v_lshrrev_b32 v1, 6, v0")
    k(f"s_and_b32 s{sXCD}, s2, 7")
    k(f"v_readfirstlane_b32 s{sW}, v1")
    if CPF:
        k(f"s_getpc_b64 s[38:39]")
        k.label(f"L_{name}_pc")
        k(f"s_lshr_b32 s37, s2, 3")
        k(f"s_lshl_b32 s37, s37, 3")
        k(f"v_add_u32 v2, s37, v1")
        k(f"v_lshlrev_b32 v2, 7, v2")
        k.raw(f"  v_min_u32 v2, (L_code_end - L_{name}_pc - 4), v2")
        k(f"v_mov_b32 v3, s39")
        k(f"v_add_co_u32 v2, vcc, s38, v2")
        k(f"v_addc_co_u32 v3, vcc, 0, v3, vcc")
        k(f"s_mov_b64 exec, 1")
        k(f"global_load_dword v255, v[2:3], off")
        k(f"s_mov_b64 exec, -1")
    k(f"s_lshr_b32 s37, s2, 3")
    k(f"s_lshr_b32 s{sIDX}, s37, 1")
    k(f"s_bitcmp1_b32 s37, 0")
    k(f"s_cbranch_scc1 L_{name}_B")
    st=k.snapshot()
    if with_a: hiA=gen_a(k,name,SAB,fused)
    else:
        k("s_endpgm"); hiA=0
    k.restore(st)
    k.label(f"L_{name}_B")
    hiB=0
    if with_b and gen_b:
        hiB=gen_b(k,name,SAB,fused)
    if fused:
        from kf import gen_final
        gen_final(k,name,S)
    k.label(f"L_{name}_end")
    k("s_endpgm")
    hi=max(hiA,hiB)
    nv=256
    assert hi<=(251 if fused else 255)
    return head(name)+k.text()+kd(name, nv, 102 if stamp else 96, nv)
if __name__=="__main__":
    print(gen_k1(with_b=False))
```

```python
from dsl import *
from common import *
import os
DBG=os.environ.get('DBG','')
STF=os.environ.get('STF','')
TP=eval(os.environ.get('TP','(0,3,3)'))
NTB=int(os.environ.get('TB','1'))
MK=eval(os.environ.get('MK','{0:2,1:3,2:4,4:5}'))

sX=4; sWQ=6; sWPHI=8; sWO=10; sLA=14; sAI=16; sCR=18; sCI=20; sLDT=22; sDS=24; sGW=26; sOUT=28; sDBG=30; sWS=32
sW=34
sXCD=35; sIDX=36
srdX=40; srdWq=44; srdWS=48; srdKV=52; srdDBG=56; srdT=60
L_WPHI=0
L_WR=2048; WSL=24576; NWS=3
L_XR=L_WR+NWS*WSL; XSL=16384; NXS=3
K1_LDS=159744
LOG2E=0x3fb8aa3b; NLOG2E=0xbfb8aa3b
RED0=L_WR
def red_base(g,w): return (L_WR if g==0 else L_WR+2*WSL)+w*4352

def mk_srd(k,srd,ptr,size):
    k(f"s_mov_b32 s{srd}, s{ptr}")
    k(f"s_and_b32 s{srd+1}, s{ptr+1}, 0xffff")
    k(f"s_mov_b32 s{srd+2}, {size}")
    k(f"s_mov_b32 s{srd+3}, 0x20000")

def softmax2(k, blocks, tmp, sL2E, fill=None):
    nb=len(blocks)
    def each(f):
        for b in range(nb): f(b,*blocks[b])
    T=[tmp+4*b for b in range(nb)]
    each(lambda b,p,o: k(f"v_max3_f32 v{T[b]}, v{p}, v{p+1}, v{p+2}"))
    for u in range(6):
        each(lambda b,p,o: k(f"v_max3_f32 v{T[b]}, v{T[b]}, v{p+3+2*u}, v{p+4+2*u}"))
    each(lambda b,p,o: k(f"v_max_f32 v{T[b]}, v{T[b]}, v{p+15}"))
    each(lambda b,p,o: k(f"v_mul_f32 v{T[b]}, {NLOG2E:#x}, v{T[b]}"))
    for u in range(8):
        each(lambda b,p,o: k(f"v_pk_fma_f32 v[{p+2*u}:{p+2*u+1}], v[{p+2*u}:{p+2*u+1}], s[{sL2E}:{sL2E+1}], v[{T[b]}:{T[b]+1}] op_sel_hi:[1,1,0]"))
    for u in range(16):
        each(lambda b,p,o: k(f"v_exp_f32 v{p+u}, v{p+u}"))
    S=[t+2 for t in T]
    each(lambda b,p,o: k(f"v_pk_add_f32 v[{S[b]}:{S[b]+1}], v[{p}:{p+1}], v[{p+2}:{p+3}]"))
    for u in range(2,8):
        each(lambda b,p,o: k(f"v_pk_add_f32 v[{S[b]}:{S[b]+1}], v[{S[b]}:{S[b]+1}], v[{p+2*u}:{p+2*u+1}]"))
    each(lambda b,p,o: k(f"v_add_f32 v{T[b]}, v{S[b]}, v{S[b]+1}"))
    each(lambda b,p,o: k(f"v_rcp_f32 v{T[b]}, v{T[b]}"))
    for u in range(8):
        each(lambda b,p,o: k(f"v_pk_mul_f32 v[{p+2*u}:{p+2*u+1}], v[{p+2*u}:{p+2*u+1}], v[{T[b]}:{T[b]+1}] op_sel_hi:[1,0]"))
    for u in range(8):
        each(lambda b,p,o: k(f"v_cvt_pk_bf16_f32 v{o+u}, v{p+2*u}, v{p+2*u+1}"))

def gen_a(k, name, st, fused=False):
    from kf import rel_read_rare, rel_read_block
    V=Alloc("v",1,256)
    sTT=37; sHP=38; sT=39; sA=64; sB=65; sX0=66; sWo_=68; sMx=69; sMw=70
    sL2E=74; sMaskLo=76; sTick=80; sPhiO=81; sGo=82; sE=83; sFirst=84
    k.label(f"L_{name}_A")
    sHQ=67; sTBW=78; sHG=79
    k(f"s_and_b32 s{sA}, s{sXCD}, 3")
    k(f"s_lshl_b32 s{sA}, s{sA}, 2")
    k(f"s_and_b32 s{sB}, s{sIDX}, 3")
    k(f"s_add_u32 s{sTT}, s{sA}, s{sB}")
    k(f"s_lshr_b32 s{sA}, s{sXCD}, 2")
    k(f"s_lshl_b32 s{sA}, s{sA}, 2")
    k(f"s_lshr_b32 s{sB}, s{sIDX}, 2")
    k(f"s_add_u32 s{sHQ}, s{sA}, s{sB}")
    k(f"s_and_b32 s{sTBW}, s{sW}, 3")
    k(f"s_lshr_b32 s{sHG}, s{sW}, 2")
    k(f"s_lshl_b32 s{sA}, s{sHQ}, 1")
    k(f"s_add_u32 s{sHP}, s{sA}, s{sHG}")
    vL=V(); vXg=V(2); vWg=V(3); vt=V(); vt2=V(); vt3=V()
    k(f"v_and_b32 v{vL}, 63, v0")
    k(f"v_lshrrev_b32 v{vt}, 4, v{vL}")
    k(f"v_xor_b32 v{vt}, v{vt}, v{vL}")
    k(f"v_and_b32 v{vt}, 7, v{vt}")
    k(f"v_lshlrev_b32 v{vt}, 4, v{vt}")
    k(f"v_lshrrev_b32 v{vt2}, 3, v{vL}")
    k(f"v_lshl_add_u32 v{vXg}, v{vt2}, 10, v{vt}")
    k(f"v_xor_b32 v{vXg+1}, 64, v{vXg}")
    k(f"v_add_u32 v{vXg+1}, 8192, v{vXg+1}")
    for i in range(3):
        k(f"v_add_u32 v{vt3}, {64*i}, v{vL}")
        k(f"v_mul_u32_u24 v{vt}, 171, v{vt3}")
        k(f"v_lshrrev_b32 v{vt}, 12, v{vt}")
        k(f"v_mul_u32_u24 v{vt2}, 24, v{vt}")
        k(f"v_sub_u32 v{vt2}, v{vt3}, v{vt2}")
        k(f"v_bfe_u32 v{vt3}, v{vt}, 1, 1")
        k(f"v_lshlrev_b32 v{vt3}, 2, v{vt3}")
        k(f"v_xor_b32 v{vt2}, v{vt2}, v{vt3}")
        k(f"v_mul_u32_u24 v{vWg+i}, 3072, v{vt}")
        k(f"v_lshrrev_b32 v{vt3}, 3, v{vt2}")
        k(f"v_lshl_add_u32 v{vWg+i}, v{vt3}, 10, v{vWg+i}")
        k(f"v_and_b32 v{vt2}, 7, v{vt2}")
        k(f"v_lshl_add_u32 v{vWg+i}, v{vt2}, 4, v{vWg+i}")
    k(f"s_lshl_b32 s{sX0}, s{sTT}, 17")
    k(f"s_lshl_b32 s{sA}, s{sW}, 14")
    k(f"s_add_u32 s{sX0}, s{sX0}, s{sA}")
    k(f"s_mul_i32 s{sWo_}, s{sW}, {8*3072}")
    k(f"s_lshl_b32 s{sA}, s{sHQ}, 7")
    k(f"s_add_u32 s{sWo_}, s{sWo_}, s{sA}")
    k(f"s_lshl_b32 s{sMx}, s{sW}, 11")
    k(f"s_add_u32 s{sMx}, s{sMx}, {L_XR}")
    k(f"s_mul_i32 s{sMw}, s{sW}, 3072")
    k(f"s_add_u32 s{sMw}, s{sMw}, {L_WR}")
    sXk=71; sWk=72; sXc=73; sWc=85
    k(f"s_lshr_b32 s{sA}, s{sIDX}, 2")
    k(f"s_and_b32 s{sB}, s{sIDX}, 3")
    k(f"s_add_u32 s{sA}, s{sA}, s{sB}")
    k(f"s_and_b32 s{sA}, s{sA}, 3")
    k(f"s_lshl_b32 s{sA}, s{sA}, 1")
    if 'N' in DBG: k(f"s_mov_b32 s{sA}, 0")
    k(f"s_lshl_b32 s{sXk}, s{sA}, 7")
    k(f"s_mul_i32 s{sWk}, s{sA}, {64*3072}")
    k("s_waitcnt lgkmcnt(0)")
    mk_srd(k,srdX,sX,2048*512*2)
    mk_srd(k,srdWq,sWQ,512*1536*2)
    def dma_x_l(S):
        L=[]; slot=S%NXS
        for i in range(2):
            g=[]
            if i==0:
                if S>0:
                    g.append((f"s_add_u32 s{sXk}, s{sXk}, 128",None))
                    g.append((f"s_and_b32 s{sXk}, s{sXk}, 0x3ff",None))
                g.append((f"s_add_u32 s{sXc}, s{sX0}, s{sXk}",None))
            g+=[(f"s_add_u32 m0, s{sMx}, {slot*XSL+i*1024}",None),("s_nop 0",None),
                (f"buffer_load_dwordx4 v{vXg+i}, s[{srdX}:{srdX+3}], s{sXc} offen lds",f"x{S}")]
            L.append(g)
        return L
    def dma_w_l(S):
        slot=S%NWS; L=[]
        for i in range(3):
            g=[]
            if i==0:
                if S>0:
                    g.append((f"s_add_u32 s{sWk}, s{sWk}, {64*3072}",None))
                    g.append((f"s_cmp_eq_u32 s{sWk}, {512*3072}",None))
                    g.append((f"s_cselect_b32 s{sWk}, 0, s{sWk}",None))
                g.append((f"s_add_u32 s{sWc}, s{sWo_}, s{sWk}",None))
            g.append((f"s_add_u32 m0, s{sMw}, {slot*WSL+i*1024}",None))
            g.append(("s_nop 0",None))
            g.append((f"buffer_load_dwordx4 v{vWg+i}, s[{srdWq}:{srdWq+3}], s{sWc} offen lds",f"w{S}"))
            L.append(g)
        return L
    def emit_g(g):
        for (t,tag) in g: k(t,tag=tag)
    def dma_x(S):
        for g in dma_x_l(S): emit_g(g)
    def dma_w(S):
        for g in dma_w_l(S): emit_g(g)
    dma_x(0); dma_w(0)
    if 1 not in MK.values(): st.mark(k,1)
    gx=V(8,4); gw=V(8,4); vGa=V(); vGw=V()
    k(f"v_and_b32 v{vt}, 31, v{vL}")
    k(f"v_lshlrev_b32 v{vGw}, 5, v{vt}")
    k(f"v_lshrrev_b32 v{vt}, 5, v{vL}")
    k(f"v_lshl_add_u32 v{vGa}, v{vt}, 10, v{vGw}")
    k(f"s_lshl_b32 s{sA}, s{sTT}, 7")
    k(f"s_and_b32 s{sB}, s{sHQ}, 7")
    k(f"s_lshl_b32 s{sB}, s{sB}, 4")
    k(f"s_add_u32 s{sA}, s{sA}, s{sB}")
    k(f"s_lshl_b32 s{sB}, s{sW}, 1")
    k(f"s_add_u32 s{sGo}, s{sA}, s{sB}")
    k(f"global_load_dwordx4 v[{gw}:{gw+3}], v{vGw}, s[{sGW}:{sGW+1}]")
    k(f"global_load_dwordx4 v[{gw+4}:{gw+7}], v{vGw}, s[{sGW}:{sGW+1}] offset:16")
    mk_srd(k,srdDBG,sDBG,256)
    mk_srd(k,srdT,sWPHI,32*512)
    mk_srd(k,srdWS,sWS,WS_SIZE)
    vZ=V(); vL16=V(); vOne=V(); sR=3
    k(f"v_mov_b32 v{vZ}, 0")
    k(f"v_lshlrev_b32 v{vL16}, 4, v{vL}")
    k(f"s_lshl_b32 s{sT}, s{sHP}, 10")
    k(f"s_lshl_b32 s{sA}, s{sHG}, 10")
    k(f"s_add_u32 m0, s{sA}, {L_WPHI}")
    k(f"s_lshl_b32 s{sA}, s{sHP}, 2")
    k(f"buffer_load_dwordx4 v{vL16}, s[{srdT}:{srdT+3}], s{sT} offen lds", tag="wphi")
    if fused: rel_read_rare(k,name,"A",vZ)
    k(f"s_mov_b32 s{sL2E}, {LOG2E:#x}")
    k(f"s_mov_b32 s{sL2E+1}, {LOG2E:#x}")
    k(f"s_mov_b32 s{sMaskLo}, 0x0000ffff")
    k(f"s_mov_b32 s{sMaskLo+1}, 0x0000ffff")
    k(f"s_or_b32 s{sA}, s{sTT}, s{sTBW}")
    k(f"s_cmp_eq_u32 s{sA}, 0")
    k(f"s_cselect_b32 s{sFirst}, 1, 0")
    vM=V(); vH=V()
    k(f"v_and_b32 v{vM}, 31, v{vL}")
    k(f"v_lshrrev_b32 v{vH}, 5, v{vL}")
    vXr=V(4); vWr=V()
    k(f"v_lshrrev_b32 v{vt}, 1, v{vM}")
    k(f"v_and_b32 v{vt}, 7, v{vt}")
    k(f"v_xor_b32 v{vt}, v{vt}, v{vH}")
    k(f"v_lshlrev_b32 v{vt}, 4, v{vt}")
    k(f"v_lshl_add_u32 v{vXr}, v{vM}, 7, v{vt}")
    k(f"s_lshl_b32 s{sA}, s{sTBW}, 12")
    k(f"s_add_u32 s{sA}, s{sA}, {L_XR}")
    k(f"v_add_u32 v{vXr}, s{sA}, v{vXr}")
    for ks in range(1,4): k(f"v_xor_b32 v{vXr+ks}, {ks<<5}, v{vXr}")
    k(f"v_bfe_u32 v{vt}, v{vL}, 2, 2")
    k(f"v_lshl_add_u32 v{vt2}, v{vH}, 3, v{vt}")
    k(f"v_mul_u32_u24 v{vWr}, 384, v{vt2}")
    k(f"v_bfe_u32 v{vt2}, v{vL}, 4, 1")
    k(f"v_lshlrev_b32 v{vt2}, 5, v{vt2}")
    k(f"v_and_b32 v{vt3}, 3, v{vL}")
    k(f"v_lshl_add_u32 v{vt2}, v{vt3}, 3, v{vt2}")
    k(f"s_lshl_b32 s{sA}, s{sHG}, 6")
    k(f"v_add_u32 v{vt2}, s{sA}, v{vt2}")
    k(f"v_lshrrev_b32 v{vt}, 1, v{vt}")
    k(f"v_lshlrev_b32 v{vt}, 6, v{vt}")
    k(f"v_xor_b32 v{vt2}, v{vt2}, v{vt}")
    k(f"v_add_u32 v{vWr}, v{vWr}, v{vt2}")
    k(f"v_add_u32 v{vWr}, {L_WR}, v{vWr}")
    vWr2=V()
    k(f"v_add_u32 v{vWr2}, {2*WSL}, v{vWr}")
    I=V(8,4)
    for s in range(2):
        k(f"v_lshlrev_b32 v{vt}, 4, v{vH}")
        k(f"v_sub_u32 v{vt}, v{vM}, v{vt}")
        if s: k(f"v_subrev_u32 v{vt}, 8, v{vt}")
        k(f"v_and_b32 v{vt2}, 1, v{vt}")
        k(f"v_lshlrev_b32 v{vt2}, 4, v{vt2}")
        k(f"v_mov_b32 v{vt3}, 0x3f80")
        k(f"v_lshlrev_b32 v{vt2}, v{vt2}, v{vt3}")
        k(f"v_lshrrev_b32 v{vt}, 1, v{vt}")
        for u in range(4):
            k(f"v_cmp_eq_u32 vcc, {u}, v{vt}")
            k(f"v_cndmask_b32 v{I+4*s+u}, 0, v{vt2}, vcc")
    z4=V(4,4)
    for u in range(4): k(f"v_mov_b32 v{z4+u}, 0")
    accQ=V(16,4); accK=V(16,4); accV=V(16,4)
    F=[V(16,4),V(16,4),V(16,4)]
    def reads_l(j):
        f=F[j%3]; S=j>>2; ks=j&3
        if 'R' in DBG: return []
        L=[f"ds_read_b128 v[{f}:{f+3}], v{vXr+ks} offset:{(S%NXS)*XSL}"]
        for seg in range(3):
            for half in range(2):
                L.append(f"ds_read_b64_tr_b16 v[{f+4+4*seg+2*half}:{f+5+4*seg+2*half}], v{vWr2 if S%NWS==2 else vWr} offset:{(S%NWS%2)*WSL+ks*16*384+half*4*384+seg*128}")
        return L
    def reads(j):
        for l in reads_l(j): k(l)
    RSPLIT=eval(os.environ.get('RSPLIT','(2,2,3)'))
    def mfmas(j, fill=(), rd=()):
        f=F[j%3]; fill=list(fill); rd=list(rd)
        c=lambda a: "0" if j==0 else f"v[{a}:{a+15}]"
        M=[f"v_mfma_f32_32x32x16_bf16 v[{accQ}:{accQ+15}], v[{f+4}:{f+7}], v[{f}:{f+3}], {c(accQ)}",
           f"v_mfma_f32_32x32x16_bf16 v[{accK}:{accK+15}], v[{f+8}:{f+11}], v[{f}:{f+3}], {c(accK)}",
           f"v_mfma_f32_32x32x16_bf16 v[{accV}:{accV+15}], v[{f}:{f+3}], v[{f+12}:{f+15}], {c(accV)}"]
        for n,m in enumerate(M):
            if 'M' not in DBG: k(m)
            for _ in range(RSPLIT[n]):
                if rd: k(rd.pop(0))
            if fill: emit_g(fill.pop(0))
        for l in rd: k(l)
        for g in fill: emit_g(g)
    wf=V(8,4); vPhA=V(); vSg=V(); ones=V(); vRb=V(2); vSt=V(2); vRa=V(8); vFl=V()
    pre=[]
    P=lambda t: pre.append(t)
    P(f"v_bfe_u32 v{vt}, v{vL}, 2, 2")
    P(f"v_lshl_add_u32 v{vt}, v{vH}, 2, v{vt}")
    P(f"v_lshlrev_b32 v{vPhA}, 5, v{vt}")
    P(f"v_bfe_u32 v{vt2}, v{vL}, 4, 1")
    P(f"v_lshl_add_u32 v{vPhA}, v{vt2}, 4, v{vPhA}")
    P(f"v_bfe_u32 v{vt2}, v{vL}, 1, 1")
    P(f"v_lshl_add_u32 v{vPhA}, v{vt2}, 3, v{vPhA}")
    P(f"s_lshl_b32 s{sA}, s{sHG}, 10")
    P(f"v_add_u32 v{vPhA}, s{sA}, v{vPhA}")
    for hd in range(2):
        P(f"ds_read_b64_tr_b16 v[{wf+4*hd}:{wf+4*hd+1}], v{vPhA} offset:{L_WPHI+512*hd}")
        P(f"ds_read_b64_tr_b16 v[{wf+4*hd+2}:{wf+4*hd+3}], v{vPhA} offset:{L_WPHI+512*hd+256}")
    P(f"v_bfe_u32 v{vSg}, v{vL}, 2, 1")
    P(f"v_mul_u32_u24 v{vSg}, 0x8000, v{vSg}")
    P(f"v_lshl_or_b32 v{vSg}, v{vSg}, 16, v{vSg}")
    P(f"v_mov_b32 v{ones}, 0x3f803f80")
    P(f"v_and_b32 v{vt}, 15, v{vM}")
    P(f"v_lshlrev_b32 v{vt}, 4, v{vt}")
    P(f"v_lshl_add_u32 v{vt}, v{vH}, 9, v{vt}")
    P(f"v_lshlrev_b32 v{vt2}, 5, v{vH}")
    P(f"v_add_u32 v{vt2}, 2048, v{vt2}")
    P(f"s_mul_i32 s{sA}, s{sTBW}, 4352")
    P(f"s_mul_i32 s{sB}, s{sHG}, {2*WSL}")
    P(f"s_add_u32 s{sA}, s{sA}, s{sB}")
    P(f"s_add_u32 s{sA}, s{sA}, {L_WR}")
    P(f"v_cndmask_b32 v{vRb}, v{vt2}, v{vt}, s[{sMaskLo}:{sMaskLo+1}]")
    P(f"v_cndmask_b32 v{vRb+1}, v{vt}, v{vt2}, s[{sMaskLo}:{sMaskLo+1}]")
    P(f"v_add_u32 v{vRb}, s{sA}, v{vRb}")
    P(f"v_add_u32 v{vRb+1}, s{sA}, v{vRb+1}")
    P(f"v_mov_b32 v{vt}, 256")
    P(f"v_mov_b32 v{vt2}, 16")
    P(f"v_cndmask_b32 v{vSt}, v{vt2}, v{vt}, s[{sMaskLo}:{sMaskLo+1}]")
    P(f"v_cndmask_b32 v{vSt+1}, v{vt}, v{vt2}, s[{sMaskLo}:{sMaskLo+1}]")
    for hd in range(2):
        for i in range(4):
            c=4*(i&1)+(i>>1)
            P(f"v_mad_u32_u24 v{vRa+4*hd+i}, v{vSt+hd}, {c}, v{vRb+hd}")
    for u in range(8): P(f"v_xor_b32 v{wf+u}, v{wf+u}, v{vSg}")
    P(f"s_mul_i32 s{sA}, s{sHP}, {2*KVH}")
    P(f"s_add_u32 s{sA}, s{sA}, {WS_KV}")
    P(f"s_add_u32 s{srdKV}, s{sWS}, s{sA}")
    P(f"s_addc_u32 s{srdKV+1}, s{sWS+1}, 0")
    P(f"s_and_b32 s{srdKV+1}, s{srdKV+1}, 0xffff")
    P(f"s_mov_b32 s{srdKV+2}, {2*KVH}")
    P(f"s_mov_b32 s{srdKV+3}, 0x20000")
    P(f"s_lshl_b32 s{sE}, s{sHP}, 2")
    P(f"s_add_u32 s{sE}, s{sE}, 64")
    P(f"s_lshl_b32 s{sPhiO}, s{sTT}, 2")
    P(f"s_add_u32 s{sPhiO}, s{sPhiO}, s{sTBW}")
    P(f"s_lshl_b32 s{sPhiO}, s{sPhiO}, 16")
    P(f"s_lshl_b32 s{sA}, s{sHP}, 12")
    P(f"s_add_u32 s{sPhiO}, s{sPhiO}, s{sA}")
    vE=vRb; vEl=vRb+1
    P(f"v_and_b32 v{vE}, 255, v0")
    P(f"v_lshlrev_b32 v{vE}, 2, v{vE}")
    P(f"s_mul_i32 s{sB}, s{sHG}, {2*WSL}")
    P(f"v_add_u32 v{vEl}, s{sB}, v{vE}")
    late=[t for t in pre if t.startswith("ds_read_b64_tr_b16") or t.startswith(f"v_xor_b32 v{wf}") or any(t.startswith(f"v_xor_b32 v{wf+u},") for u in range(8))]
    early=[t for t in pre if t not in late]
    if 'L' in DBG: late=pre; early=[]
    for t in early: k(t)
    pre=late
    pend=[]
    for j in range(32):
        S=j>>2
        if j%4==0:
            k.wait_tag(f"w{S}")
            k.wait_tag(f"x{S}")
            k.wait_lg(0)
            k("s_barrier")
            if S in MK: st.mark(k,MK[S])
        if j<2 or 'I' in DBG: reads(j)
        if j==0:
            dma_w(1); dma_x(1)
        if j%4==0 and S+2<8 and 'D' not in DBG:
            pend+=dma_w_l(S+2)+dma_x_l(S+2)
        if j>1:
            take=pend[:2]; pend=pend[2:]
            mfmas(j-2, take, [] if 'I' in DBG else reads_l(j))
        if j>=6:
            n=0 if 'Q' in DBG else 4
            while pre and n>0:
                t=pre.pop(0); k(t); n-=1
                if t.startswith("s_add_u32 s{}".format(srdKV)): k(pre.pop(0))
        if j==2:
            k(f"s_cmp_eq_u32 s{sFirst}, 1")
            k(f"s_cbranch_scc1 L_{name}_A_ev4")
            k.label(f"L_{name}_A_ev4ret")
            vm_ev4=k.vm_total
        if j==29:
            k(f"s_lshl_b32 s{sT}, s{sGo}, 10")
            k(f"buffer_load_dwordx4 v[{gx}:{gx+3}], v{vGa}, s[{srdX}:{srdX+3}], s{sT} offen")
            k(f"buffer_load_dwordx4 v[{gx+4}:{gx+7}], v{vGa}, s[{srdX}:{srdX+3}], s{sT} offen offset:16")
        if j==13:
            vm_ev8=k.vm_total
            k(f"s_cmp_eq_u32 s{sFirst}, 1")
            k(f"s_cbranch_scc1 L_{name}_A_ev8")
            k.label(f"L_{name}_A_ev8ret")
        if j==28:
            assert 'Q' in DBG or not pre, len(pre)
            vm_poll0=k.vm_total
            k(f"s_cmp_eq_u32 s{sTBW}, 0")
            k(f"s_cbranch_scc1 L_{name}_A_poll0")
            k.label(f"L_{name}_A_poll0ret")
    assert not pend
    for t in pre: k(t)
    mfmas(30); mfmas(31)
    fa=F[2]; fb=F[0]
    kb=fa; qb=fa+8; vb=fb
    for u in range(8): k(f"v_cvt_pk_bf16_f32 v{kb+u}, v{accK+2*u}, v{accK+2*u+1}")
    pkA=V(16,4); pkB=V(16,4)
    k(f"v_mfma_f32_32x32x16_bf16 v[{pkA}:{pkA+15}], v[{wf}:{wf+3}], v[{kb}:{kb+3}], 0")
    k(f"v_mfma_f32_32x32x16_bf16 v[{pkB}:{pkB+15}], v[{wf+4}:{wf+7}], v[{kb+4}:{kb+7}], 0")
    for u in range(8): k(f"v_cvt_pk_bf16_f32 v{qb+u}, v{accQ+2*u}, v{accQ+2*u+1}")
    pqA=accK; pqB=accQ
    k(f"v_mfma_f32_32x32x16_bf16 v[{pqA}:{pqA+15}], v[{wf}:{wf+3}], v[{qb}:{qb+3}], 0")
    k(f"v_mfma_f32_32x32x16_bf16 v[{pqB}:{pqB+15}], v[{wf+4}:{wf+7}], v[{qb+4}:{qb+7}], 0")
    for u in range(8): k(f"v_cvt_pk_bf16_f32 v{vb+u}, v{accV+2*u}, v{accV+2*u+1}")
    vA_=accV; vB_=accV+8
    for u in range(8): k(f"v_cndmask_b32 v{vA_+u}, v{ones}, v{vb+u}, s[{sMaskLo}:{sMaskLo+1}]")
    for u in range(8): k(f"v_cndmask_b32 v{vB_+u}, v{vb+u}, v{ones}, s[{sMaskLo}:{sMaskLo+1}]")
    phA=V(8,4); phB=V(8,4); tmp=V(8,2)
    softmax2(k,[(pkA,phA),(pkB,phB)],tmp,sL2E)
    TA=pkA; TB=pkB
    k(f"v_mfma_f32_32x32x16_bf16 v[{TA}:{TA+15}], v[{phA}:{phA+3}], v[{I}:{I+3}], 0")
    k(f"v_mfma_f32_32x32x16_bf16 v[{TB}:{TB+15}], v[{phB}:{phB+3}], v[{I}:{I+3}], 0")
    k(f"v_mfma_f32_32x32x16_bf16 v[{TA}:{TA+15}], v[{phA+4}:{phA+7}], v[{I+4}:{I+7}], v[{TA}:{TA+15}]")
    k(f"v_mfma_f32_32x32x16_bf16 v[{TB}:{TB+15}], v[{phB+4}:{phB+7}], v[{I+4}:{I+7}], v[{TB}:{TB+15}]")
    gs=V()
    k(f"v_mov_b32 v{gs}, 0")
    for u in range(8): k(f"v_dot2c_f32_bf16 v{gs}, v{gx+u}, v{gw+u}")
    for n in (8,4,2,1): k(f"v_add_f32_dpp v{gs}, v{gs}, v{gs} row_ror:{n} row_mask:0xf bank_mask:0xf")
    k(f"v_add_f32_dpp v{gs}, v{gs}, v{gs} row_bcast:15 row_mask:0xa bank_mask:0xf")
    k(f"v_cvt_pk_bf16_f32 v{gs}, v{gs}, v{gs}")
    k(f"v_lshlrev_b32 v{gs}, 16, v{gs}")
    k(f"v_mul_f32 v{gs}, {NLOG2E:#x}, v{gs}")
    k(f"v_exp_f32 v{gs}, v{gs}")
    k(f"v_add_f32 v{gs}, 1.0, v{gs}")
    k(f"v_rcp_f32 v{gs}, v{gs}")
    k(f"v_cvt_pk_bf16_f32 v{gs}, v{gs}, v{gs}")
    k(f"v_lshlrev_b32 v{gs}, 16, v{gs}")
    k(f"v_lshlrev_b32 v{vt}, 2, v{vH}")
    k(f"v_bfe_u32 v{vt2}, v{vL}, 4, 1")
    k(f"v_subrev_u32 v{vt2}, 1, v{vt2}")
    k(f"v_and_b32 v{vt2}, 0x80000000, v{vt2}")
    k(f"v_or_b32 v{vt}, v{vt}, v{vt2}")
    k(f"s_lshl_b32 s{sA}, s{sGo}, 2")
    k(f"s_add_u32 s{sA}, s{sA}, {WS_G}")
    k(f"buffer_store_dword v{gs}, v{vt}, s[{srdWS}:{srdWS+3}], s{sA} offen {STF}")
    ptA=phA; ptB=phB
    for u in range(8): k(f"v_cvt_pk_bf16_f32 v{ptA+u}, v{TA+2*u}, v{TA+2*u+1}")
    for u in range(8): k(f"v_cvt_pk_bf16_f32 v{ptB+u}, v{TB+2*u}, v{TB+2*u+1}")
    kvA=TA; kvB=TB
    k(f"v_mfma_f32_32x32x16_bf16 v[{kvA}:{kvA+15}], v[{ptA}:{ptA+3}], v[{vA_}:{vA_+3}], 0")
    k(f"v_mfma_f32_32x32x16_bf16 v[{kvB}:{kvB+15}], v[{ptB}:{ptB+3}], v[{vB_}:{vB_+3}], 0")
    k(f"v_mfma_f32_32x32x16_bf16 v[{kvA}:{kvA+15}], v[{ptA+4}:{ptA+7}], v[{vA_+4}:{vA_+7}], v[{kvA}:{kvA+15}]")
    k(f"v_mfma_f32_32x32x16_bf16 v[{kvB}:{kvB+15}], v[{ptB+4}:{ptB+7}], v[{vB_+4}:{vB_+7}], v[{kvB}:{kvB+15}]")
    for hd,kvr in ((0,kvA),(1,kvB)):
        for i in range(4):
            k(f"ds_write_b128 v{vRa+4*hd+i}, v[{kvr+4*i}:{kvr+4*i+3}] offset:{hd*KVH}")
    vm_poll=k.vm_total
    k(f"s_cmp_eq_u32 s{sTBW}, 0")
    k(f"s_cbranch_scc1 L_{name}_A_poll")
    k.label(f"L_{name}_A_flagok")
    k.barrier()
    rd=accV; rd2=fb
    for u in range(5):
        for w in range(4):
            k(f"ds_read_b32 v{rd+4*u+w if u<4 else rd2+w}, v{vEl} offset:{L_WR+w*4352+1024*u}")
    for u in range(5):
        b=rd+4*u if u<4 else rd2
        k(f"v_add_f32 v{b}, v{b}, v{b+1}")
        k(f"v_add_f32 v{b+2}, v{b+2}, v{b+3}")
        k(f"v_add_f32 v{b}, v{b}, v{b+2}")
        if u<4: k(f"buffer_atomic_add_f32 v{b}, v{vE}, s[{srdKV}:{srdKV+3}], 0 offen offset:{1024*u} sc1")
        else:
            k(f"v_add_u32 v{vt}, 4096, v{vE}")
            k(f"buffer_atomic_add_f32 v{b}, v{vt}, s[{srdKV}:{srdKV+3}], 0 offen sc1")
    pq_o=gx
    assert gw==gx+8
    softmax2(k,[(pqA,pq_o),(pqB,pq_o+8)],tmp,sL2E)
    for q in range(4):
        k(f"buffer_store_dwordx4 v[{pq_o+4*q}:{pq_o+4*q+3}], v{vL16}, s[{srdWS}:{srdWS+3}], s{sPhiO} offen offset:{q*1024} {STF}")
    if fused: k(f"s_branch L_{name}_F")
    else:
        st.finish(k,sWS,sW,accQ)
        k("s_endpgm")
    k.auto=False
    if fused: rel_read_block(k,name,"A",vZ,srdWS)
    k.label(f"L_{name}_A_ev4")
    k(f"s_mul_i32 s{sR}, s{sHP}, {2*KVH}")
    k(f"s_add_u32 s{sR}, s{sR}, {WS_KV}")
    for u in range(5):
        if u<4:
            k(f"buffer_store_dwordx4 v[{z4}:{z4+3}], v{vL16}, s[{srdWS}:{srdWS+3}], s{sR} offen offset:{u*1024} sc1")
        else:
            k(f"s_add_u32 s{sR}, s{sR}, 4096")
            k(f"s_mov_b64 exec, 0xffff")
            k(f"buffer_store_dwordx4 v[{z4}:{z4+3}], v{vL16}, s[{srdWS}:{srdWS+3}], s{sR} offen sc1")
            k(f"s_mov_b64 exec, -1")
    k(f"s_branch L_{name}_A_ev4ret")
    k.label(f"L_{name}_A_ev8")
    k(f"s_waitcnt vmcnt({vm_ev8-vm_ev4})")
    k(f"v_mov_b32 v{vOne}, 1")
    k(f"s_lshl_b32 s{sR}, s{sHP}, 2")
    k(f"s_add_u32 s{sR}, s{sR}, 64")
    k(f"s_mov_b64 exec, 1")
    k(f"buffer_store_dword v{vOne}, v{vZ}, s[{srdDBG}:{srdDBG+3}], s{sR} offen sc1")
    k(f"s_mov_b64 exec, -1")
    k(f"s_branch L_{name}_A_ev8ret")
    k.label(f"L_{name}_A_poll0")
    k(f"buffer_load_dword v{vFl}, v{vZ}, s[{srdDBG}:{srdDBG+3}], s{sE} offen sc1")
    k(f"s_branch L_{name}_A_poll0ret")
    k.label(f"L_{name}_A_poll")
    k(f"s_mov_b32 s{sTick}, 0")
    k(f"s_waitcnt vmcnt({vm_poll-vm_poll0})")
    k.label(f"L_{name}_A_poll1")
    k(f"v_readfirstlane_b32 s{sR}, v{vFl}")
    k("s_nop 0")
    k(f"s_cmp_lg_u32 s{sR}, 0")
    k(f"s_cbranch_scc1 L_{name}_A_flagok")
    k(f"s_add_u32 s{sTick}, s{sTick}, 1")
    k(f"s_cmp_ge_u32 s{sTick}, 0x40000")
    k(f"s_cbranch_scc1 L_{name}_A_flagok")
    k("s_sleep 1")
    k(f"buffer_load_dword v{vFl}, v{vZ}, s[{srdDBG}:{srdDBG+3}], s{sE} offen sc1")
    k("s_waitcnt vmcnt(0)")
    k(f"s_branch L_{name}_A_poll1")
    k.auto=True
    return V.hi
```

```python
from dsl import *
from common import *
import os
GMODE=os.environ.get('GMODE','split2')
DB=os.environ.get('DBGB','')
STF=os.environ.get('STF','')
TBP=os.environ.get('TBP','xw')
PRIO=os.environ.get('PRIOB','')
from k1a import mk_srd,sWO,sWQ,srdT,sX,sLA,sAI,sCR,sCI,sLDT,sDS,sWS,sW,sXCD,sIDX,srdX,srdWS,LOG2E,NLOG2E

UC=4160
CH=31744
KOFF=16640
P1=4640
L_WOB=4*CH
XB=32768
INV2PI=0x3e22f983

def cmul(k,dst,w,z,t):
    k(f"v_pk_mul_f32 v[{t}:{t+1}], v[{w}:{w+1}], v[{z}:{z+1}] op_sel:[0,0] op_sel_hi:[0,1]")
    k(f"v_pk_fma_f32 v[{dst}:{dst+1}], v[{w}:{w+1}], v[{z}:{z+1}], v[{t}:{t+1}] op_sel:[1,1,0] op_sel_hi:[1,0,1] neg_lo:[0,1,0]")

def gen_b(k,name,st,fused=False):
    from kf import rel_read_rare, rel_read_block
    V=Alloc("v",1,256)
    sA=64; sB=65; sT=39; sD0=66; sCh=67; sRole=68; sLdt=69; sDsk=70; sCB=71; sSel0=72; sSel1=73; sEx=74; sTab=76
    vL=V(); vt=V(); vt2=V(); vt3=V(); t0=V(2,2); t1=V(2,2)
    vI=V(); vQ=V(); vA=V(); vB=V()
    mark0=V.mark()
    sP=80; sDP=81; sWp=82
    k(f"s_lshl_b32 s{sD0}, s{sXCD}, 6")
    k(f"s_lshl_b32 s{sA}, s{sIDX}, 2")
    k(f"s_add_u32 s{sD0}, s{sD0}, s{sA}")
    k(f"s_lshr_b32 s{sCh}, s{sW}, 1")
    k(f"s_and_b32 s{sRole}, s{sW}, 1")
    k(f"s_lshr_b32 s{sP}, s{sW}, 2")
    k(f"s_and_b32 s{sWp}, s{sW}, 3")
    k(f"s_lshl_b32 s{sA}, s{sP}, 1")
    k(f"s_add_u32 s{sDP}, s{sD0}, s{sA}")
    k(f"v_and_b32 v{vL}, 63, v0")
    k(f"s_add_u32 s{sA}, s{sD0}, s{sCh}")
    k(f"s_lshl_b32 s{sA}, s{sA}, 8")
    vP=V()
    k(f"v_lshlrev_b32 v{vP}, 2, v{vL}")
    k(f"v_add_u32 v{vP}, s{sA}, v{vP}")
    k(f"s_lshl_b32 s{sB}, s{sDP}, 1")
    k("s_waitcnt lgkmcnt(0)")
    k(f"s_load_dword s{sLdt}, s[{sLDT}:{sLDT+1}], s{sB}")
    k(f"s_load_dword s{sDsk}, s[{sDS}:{sDS+1}], s{sB}")
    pl=V(); pa=V(); pcr=V(); pci=V()
    k(f"global_load_dword v{pl}, v{vP}, s[{sLA}:{sLA+1}]")
    k(f"global_load_dword v{pa}, v{vP}, s[{sAI}:{sAI+1}]")
    k(f"global_load_dword v{pcr}, v{vP}, s[{sCR}:{sCR+1}]")
    k(f"global_load_dword v{pci}, v{vP}, s[{sCI}:{sCI+1}]", tag="par")
    mk_srd(k,srdX,sX,2048*512*2)
    g=V(14,2); vG=V(); vH3=V(); vPf=V()
    def touch_a():
        k(f"v_and_b32 v{vt}, 15, v{vL}")
        k(f"v_lshlrev_b32 v{vt}, 10, v{vt}")
        k(f"s_lshl_b32 s{sA}, s{sIDX}, 7")
        k(f"s_lshl_b32 s{sT}, s{sW}, 4")
        k(f"s_add_u32 s{sA}, s{sA}, s{sT}")
        k(f"s_lshl_b32 s{sA}, s{sA}, 10")
        k(f"s_lshl_b32 s{sT}, s{sXCD}, 7")
        k(f"s_add_u32 s{sA}, s{sA}, s{sT}")
        k(f"s_mov_b64 exec, 0xffff")
        k(f"buffer_load_dword v{vPf}, v{vt}, s[{srdX}:{srdX+3}], s{sA} offen")
        k(f"s_mov_b64 exec, -1")
    def touch_b():
        if True:
            sS1=83; sTo=84
            k(f"s_lshr_b32 s{sA}, s{sIDX}, 2")
            k(f"s_and_b32 s{sT}, s{sIDX}, 3")
            k(f"s_add_u32 s{sA}, s{sA}, s{sT}")
            k(f"s_and_b32 s{sA}, s{sA}, 3")
            k(f"s_lshl_b32 s{sS1}, s{sA}, 1")
            k(f"s_add_u32 s{sS1}, s{sS1}, 1")
            k(f"s_and_b32 s{sA}, s{sXCD}, 3")
            k(f"s_lshl_b32 s{sA}, s{sA}, 2")
            k(f"s_add_u32 s{sA}, s{sA}, s{sT}")
            k(f"s_lshl_b32 s{sA}, s{sA}, 7")
            k(f"s_lshl_b32 s{sT}, s{sW}, 4")
            k(f"s_add_u32 s{sA}, s{sA}, s{sT}")
            k(f"s_lshl_b32 s{sA}, s{sA}, 10")
            k(f"s_lshl_b32 s{sT}, s{sS1}, 7")
            k(f"s_add_u32 s{sTo}, s{sA}, s{sT}")
            k(f"v_and_b32 v{vt}, 15, v{vL}")
            k(f"v_lshlrev_b32 v{vt}, 10, v{vt}")
            if 'x' in TBP:
                k(f"s_mov_b64 exec, 0xffff")
                k(f"buffer_load_dword v{vPf}, v{vt}, s[{srdX}:{srdX+3}], s{sTo} offen")
                k(f"s_mov_b64 exec, -1")
            mk_srd(k,srdT,sWQ,512*1536*2)
            k(f"v_mul_u32_u24 v{vt}, 171, v{vL}")
            k(f"v_lshrrev_b32 v{vt}, 9, v{vt}")
            k(f"v_mul_u32_u24 v{vt2}, 3, v{vt}")
            k(f"v_sub_u32 v{vt2}, v{vL}, v{vt2}")
            k(f"v_mul_u32_u24 v{vt}, 3072, v{vt}")
            k(f"v_lshl_add_u32 v{vt}, v{vt2}, 10, v{vt}")
            k(f"s_lshl_b32 s{sA}, s{sS1}, 6")
            k(f"s_lshl_b32 s{sT}, s{sW}, 3")
            k(f"s_add_u32 s{sA}, s{sA}, s{sT}")
            k(f"s_mul_i32 s{sA}, s{sA}, 3072")
            k(f"s_lshr_b32 s{sT}, s{sXCD}, 2")
            k(f"s_lshl_b32 s{sT}, s{sT}, 2")
            k(f"s_lshr_b32 s{sTo}, s{sIDX}, 2")
            k(f"s_add_u32 s{sT}, s{sT}, s{sTo}")
            k(f"s_lshl_b32 s{sT}, s{sT}, 7")
            k(f"s_add_u32 s{sA}, s{sA}, s{sT}")
            if 'w' in TBP:
                k(f"s_mov_b64 exec, {'0xffffff' if 'h' not in TBP else '0xfff'}")
                k(f"buffer_load_dword v{vPf}, v{vt}, s[{srdT}:{srdT+3}], s{sA} offen")
                k(f"s_mov_b64 exec, -1")
    TM=os.environ.get('TMODE','a')
    for ch_ in TM:
        if ch_=='a': touch_a()
        if ch_=='b': touch_b()
    sFr=78
    def wo_dma():
        k(f"s_lshl_b32 s{sFr}, s{sXCD}, 4")
        k(f"s_add_u32 s{sFr}, s{sFr}, s{sIDX}")
        k(f"s_lshl_b32 s{sFr}, s{sFr}, 2")
        k(f"s_add_u32 s{sFr}, s{sFr}, s{sWp}")
        mk_srd(k,srdT,sWO,512*512*2)
        k(f"v_lshrrev_b32 v{vt}, 2, v{vL}")
        k(f"v_and_b32 v{vt2}, 3, v{vL}")
        k(f"v_lshlrev_b32 v{vt2}, 4, v{vt2}")
        k(f"v_lshl_add_u32 v{vt}, v{vt}, 10, v{vt2}")
        k(f"s_and_b32 s{sA}, s{sFr}, 31")
        k(f"s_lshl_b32 s{sA}, s{sA}, 14")
        k(f"s_lshr_b32 s{sT}, s{sFr}, 5")
        k(f"s_lshl_b32 s{sT}, s{sT}, 6")
        k(f"s_add_u32 s{sT}, s{sA}, s{sT}")
        k(f"s_lshl_b32 s{sA}, s{sW}, 10")
        k(f"s_add_u32 m0, s{sA}, {L_WOB}")
        k(f"s_nop 0")
        k(f"buffer_load_dwordx4 v{vt}, s[{srdT}:{srdT+3}], s{sT} offen lds", tag="wo")
    k(f"v_lshlrev_b32 v{vG}, 12, v0")
    k(f"s_lshl_b32 s{sA}, s{sD0}, 1")
    k(f"v_add_u32 v{vG}, s{sA}, v{vG}")
    k(f"v_subrev_u32 v{vH3}, 3072, v{vG}")
    side=[]
    for r in range(4):
        side.append([f"buffer_load_dwordx2 v[{g+6+2*r}:{g+7+2*r}], v{vG}, s[{srdX}:{srdX+3}], 0 offen offset:{r*1024}"])
    side.append(["s_mov_b64 exec, 1"]+[f"buffer_load_dwordx2 v[{g+2*r}:{g+2*r+1}], v{vH3}, s[{srdX}:{srdX+3}], 0 offen offset:{r*1024}" for r in range(3)]+["s_mov_b64 exec, -1"])
    mk_srd(k,srdWS,sWS,WS_SIZE)
    if fused:
        vZb=V(); k(f"v_mov_b32 v{vZb}, 0")
        rel_read_rare(k,name,"B",vZb)
    k(f"s_mul_i32 s{sCB}, s{sCh}, {CH}")
    k(f"s_mov_b32 s{sTab}, s{sCB}")
    aX=V(16)
    k(f"v_and_b32 v{vt}, 1, v{vL}")
    k(f"v_lshlrev_b32 v{vt}, 3, v{vt}")
    k(f"v_lshrrev_b32 v{vt2}, 1, v{vL}")
    k(f"v_lshl_add_u32 v{vt}, v{vt2}, 4, v{vt}")
    k(f"v_add_u32 v{aX}, s{sTab}, v{vt}")
    for x in range(1,16): k(f"v_xor_b32 v{aX+x}, {x<<4}, v{aX}")
    k(f"v_and_b32 v{vI}, 15, v{vL}")
    k(f"v_lshrrev_b32 v{vQ}, 4, v{vL}")
    def rdaddr(dst,rowreg):
        k(f"v_and_b32 v{vt}, 15, v{rowreg}")
        k(f"v_xor_b32 v{vt}, v{vt}, v{vQ}")
        k(f"v_lshlrev_b32 v{vt}, 4, v{vt}")
        k(f"v_lshl_add_u32 v{vt}, v{rowreg}, 9, v{vt}")
        k(f"v_add_u32 v{dst}, s{sTab}, v{vt}")
        for ks in range(1,4): k(f"v_xor_b32 v{dst+ks}, {ks<<6}, v{dst}")
    rF=V(4); rG1=V(4); rG2=V(4)
    rdaddr(rF,vI)
    def rne(dst,kk):
        k(f"v_bfe_u32 v{dst}, v{vI}, {kk}, 1")
        k(f"v_add3_u32 v{dst}, v{dst}, v{vI}, {(1<<(kk-1))-1}")
        k(f"v_lshrrev_b32 v{dst}, {kk}, v{dst}")
    z4=V(4,4)
    for u in range(4): k(f"v_mov_b32 v{z4+u}, 0")
    vDt=V(); vDs=V()
    k("s_waitcnt lgkmcnt(0)")
    k(f"s_lshl_b32 s{sA}, s{sLdt}, 16")
    k(f"s_and_b32 s{sB}, s{sLdt}, 0xffff0000")
    k(f"s_bitcmp0_b32 s{sCh}, 0")
    k(f"s_cselect_b32 s{sLdt}, s{sA}, s{sB}")
    k(f"s_lshl_b32 s{sA}, s{sDsk}, 16")
    k(f"s_and_b32 s{sB}, s{sDsk}, 0xffff0000")
    k(f"s_bitcmp0_b32 s{sCh}, 0")
    k(f"s_cselect_b32 s{sDsk}, s{sA}, s{sB}")
    k(f"v_mov_b32 v{vDt}, {LOG2E:#x}")
    k(f"v_mul_f32 v{vDt}, s{sLdt}, v{vDt}")
    k(f"v_exp_f32 v{vDt}, v{vDt}")
    k(f"v_cvt_pk_bf16_f32 v{vDt}, v{vDt}, v{vDt}")
    k(f"v_lshlrev_b32 v{vDt}, 16, v{vDt}")
    k(f"v_cmp_eq_u32 vcc, 0, v{vL}")
    k(f"v_mov_b32 v{vt}, s{sDsk}")
    k(f"v_cndmask_b32 v{vDs}, 0, v{vt}, vcc")
    import struct
    re2=V(2); fr=V(2); cc=[V(2,2),V(2,2)]; T0=[V(2,2),V(2,2)]; T1=[V(2,2),V(2,2)]
    def unpack(dst,src,m):
        if m==0: k(f"v_lshlrev_b32 v{dst}, 16, v{src}")
        else: k(f"v_and_b32 v{dst}, 0xffff0000, v{src}")
    def both(f):
        for m in range(2): f(m)
    def mode_params(need_c):
        both(lambda m: unpack(re2+m,pl,m))
        both(lambda m: k(f"v_mul_f32 v{re2+m}, {LOG2E:#x}, v{re2+m}"))
        both(lambda m: k(f"v_exp_f32 v{re2+m}, v{re2+m}"))
        both(lambda m: unpack(fr+m,pa,m))
        k(f"v_cvt_pk_bf16_f32 v{vt}, v{re2}, v{re2+1}")
        both(lambda m: k(f"v_mul_f32 v{fr+m}, v{fr+m}, v{vDt}"))
        both(lambda m: unpack(re2+m,vt,m))
        both(lambda m: k(f"v_mul_f32 v{fr+m}, {INV2PI:#x}, v{fr+m}"))
        both(lambda m: k(f"v_mul_f32 v{re2+m}, v{re2+m}, v{vDt}"))
        both(lambda m: k(f"v_mul_f32 v{re2+m}, {NLOG2E:#x}, v{re2+m}"))
        if need_c:
            both(lambda m: unpack(cc[m],pcr,m))
            both(lambda m: unpack(cc[m]+1,pci,m))
            k(f"v_add_f32 v{vt}, v{vDt}, v{vDt}")
            both(lambda m: k(f"v_mul_f32 v{cc[m]}, v{cc[m]}, v{vt}"))
            both(lambda m: k(f"v_mul_f32 v{cc[m]+1}, v{cc[m]+1}, v{vt}"))
    def Edirect(dst,p):
        lit=struct.unpack("<I",struct.pack("<f",float(p)))[0]
        if p==1:
            both(lambda m: k(f"v_exp_f32 v{T1[m]}, v{re2+m}"))
            both(lambda m: k(f"v_fract_f32 v{T1[m]+1}, v{fr+m}"))
        else:
            both(lambda m: k(f"v_mul_f32 v{T1[m]}, {lit:#x}, v{re2+m}"))
            both(lambda m: k(f"v_mul_f32 v{T1[m]+1}, {lit:#x}, v{fr+m}"))
            both(lambda m: k(f"v_exp_f32 v{T1[m]}, v{T1[m]}"))
            both(lambda m: k(f"v_fract_f32 v{T1[m]+1}, v{T1[m]+1}"))
        both(lambda m: k(f"v_cos_f32 v{dst[m]}, v{T1[m]+1}"))
        both(lambda m: k(f"v_sin_f32 v{dst[m]+1}, v{T1[m]+1}"))
        both(lambda m: k(f"v_pk_mul_f32 v[{dst[m]}:{dst[m]+1}], v[{dst[m]}:{dst[m]+1}], v[{T1[m]}:{T1[m]+1}] op_sel_hi:[1,0]"))
    def cmul2(dst,w,z,T):
        both(lambda m: k(f"v_pk_mul_f32 v[{T[m]}:{T[m]+1}], v[{w[m]}:{w[m]+1}], v[{z[m]}:{z[m]+1}] op_sel:[0,0] op_sel_hi:[0,1]"))
        both(lambda m: k(f"v_pk_fma_f32 v[{dst[m]}:{dst[m]+1}], v[{w[m]}:{w[m]+1}], v[{z[m]}:{z[m]+1}], v[{T[m]}:{T[m]+1}] op_sel:[1,1,0] op_sel_hi:[1,0,1] neg_lo:[0,1,0]"))
    pk=[V(2,2),V(2,2)]
    pkc=[0]
    sidel=[]
    def wrow(row,w,neg):
        r=pk[pkc[0]&1]; pkc[0]+=1
        both(lambda m: k(f"v_cvt_pk_bf16_f32 v{r+m}, v{w[m]}, {'-' if neg else ''}v{w[m]+1}"))
        if 'W' not in DB: k(f"ds_write_b64 v{aX+(row&15)}, v[{r}:{r+1}] offset:{row*512}")
        if sidel and GMODE[0]=='i' and pkc[0]%int(GMODE[1:])==0:
            for l in sidel.pop(0): k(l)
    P2=lambda: [V(2,2),V(2,2)]
    wA=P2(); wB=P2(); zz=P2(); e4=P2(); e8=P2(); e12=P2(); e16=P2(); eb=P2()
    def mov2(dst,src):
        for m in range(2):
            k(f"v_mov_b32 v{dst[m]}, v{src[m]}"); k(f"v_mov_b32 v{dst[m]+1}, v{src[m]+1}")
    def table_role0(mid=None):
        mode_params(True)
        Edirect(zz,16)
        Edirect(wB,256)
        cmul2(wB,wB,cc,T0)
        if mid: mid()
        for a in range(16):
            src=cc if a==0 else wA
            wrow(a,src,True); wrow(16+a,wB,True)
            if a<15:
                cmul2(wA,src,zz,T0); cmul2(wB,wB,zz,T1)
    def table_role1(mid=None):
        mode_params(False)
        Edirect(zz,1)
        r=pk[pkc[0]&1]; pkc[0]+=1
        k(f"v_mov_b32 v{r}, 0x3f80"); k(f"v_mov_b32 v{r+1}, 0x3f80")
        k(f"ds_write_b64 v{aX+0}, v[{r}:{r+1}] offset:{32*512}")
        keep={4:e4,8:e8,12:e12,16:e16}
        Edirect(eb,512)
        wrow(33,zz,False)
        wrow(50,eb,False)
        if mid: mid()
        cur=zz
        for b in range(2,17):
            dst=keep.get(b,wA)
            cmul2(dst,cur,zz,T0)
            cur=dst
            wrow(32+b if b<16 else 49,cur,False)
            if b in keep:
                cmul2(wB,eb,cur,T1)
                wrow(50+2*(b//4),wB,False)
        for (p,row) in ((1024,51),(1536,57)):
            Edirect(eb,p)
            wrow(row,eb,False)
            cmul2(wB,eb,e8,T0); wrow(row+2,wB,False)
            cmul2(wB,eb,e16,T1); wrow(row+4,wB,False)
    uo={}
    def u_prep():
        for r in range(3):
            for dw in range(2):
                k(f"v_mov_b32_dpp v{g+2*r+dw}, v{g+2*(r+4)+dw} wave_shr:1 row_mask:0xf bank_mask:0xf")
        k(f"s_mov_b32 s{sSel0}, 0x05040100")
        k(f"s_mov_b32 s{sSel1}, 0x07060302")
        uo['z']=V(); uo['u']=V(); uo['u2']=V(); uo['o']=V(32,2)
        k(f"v_lshrrev_b32 v{vt}, 4, v{vL}")
        k(f"v_mul_u32_u24 v{vt}, {CH}, v{vt}")
        k(f"v_bfe_u32 v{vt2}, v{vL}, 2, 2")
        k(f"v_mul_u32_u24 v{vt2}, {UC}, v{vt2}")
        k(f"v_add_u32 v{vt}, v{vt}, v{vt2}")
        k(f"v_and_b32 v{vt2}, 3, v{vL}")
        k(f"v_lshl_add_u32 v{uo['z']}, v{vt2}, 4, v{vt}")
        k(f"v_sub_u32 v{uo['u']}, 511, v0")
        k(f"v_lshlrev_b32 v{uo['u']}, 3, v{uo['u']}")
        k(f"v_add_u32 v{uo['u2']}, {2*CH}, v{uo['u']}")
        G=lambda r,dw: g+2*(r+3)+dw
        for ch in range(4):
            sel=sSel0 if ch%2==0 else sSel1; dw=ch>>1
            for c in range(4):
                o=uo['o']+2*(4*ch+c)
                k(f"v_perm_b32 v{o}, v{G(c-1,dw)}, v{G(c,dw)}, s{sel}")
                k(f"v_perm_b32 v{o+1}, v{G(c-3,dw)}, v{G(c-2,dw)}, s{sel}")
    def u_write():
        k(f"ds_write_b128 v{uo['z']}, v[{z4}:{z4+3}] offset:4096")
        for ch in range(4):
            for c in range(4):
                o=uo['o']+2*(4*ch+c)
                k(f"ds_write_b64 v{uo['u'] if ch<2 else uo['u2']}, v[{o}:{o+1}] offset:{(ch%2)*CH+c*UC}")
    acc=V(16,4)
    fr_=[V(20,4),V(20,4),V(20,4)]
    def kreads(role,u):
        hi,ks=u>>2,u&3; f=fr_[u%3]; o=hi*256
        k(f"ds_read_b128 v[{f}:{f+3}], v{rF+ks} offset:{o}")
        if role==0:
            k(f"ds_read_b128 v[{f+8}:{f+11}], v{rF+ks} offset:{o+16384}")
            k(f"ds_read_b128 v[{f+4}:{f+7}], v{rF+ks} offset:{o+8192}")
            k(f"ds_read_b128 v[{f+12}:{f+15}], v{rG1+ks} offset:{o}")
            k(f"ds_read_b128 v[{f+16}:{f+19}], v{rG2+ks} offset:{o}")
        else:
            k(f"ds_read_b128 v[{f+8}:{f+11}], v{rG1+ks} offset:{o}")
            k(f"ds_read_b128 v[{f+4}:{f+7}], v{rF+ks} offset:{o+8192}")
            k(f"ds_read_b128 v[{f+12}:{f+15}], v{rG2+ks} offset:{o}")
    def kmf(role,u):
        f=fr_[u%3]
        if role==0: pairs=[(0,f+8,f),(1,f+12,f+4),(2,f+16,f),(3,f+16,f+4)]
        else: pairs=[(0,f+8,f),(1,f+8,f+4),(2,f+12,f),(3,f+12,f+4)]
        for (T,a,b) in pairs:
            cin="0" if u==0 else f"v[{acc+4*T}:{acc+4*T+3}]"
            k(f"v_mfma_f32_16x16x32_bf16 v[{acc+4*T}:{acc+4*T+3}], v[{a}:{a+3}], v[{b}:{b+3}], {cin}")
    def kmfma(role):
        kreads(role,0); kreads(role,1)
        for u in range(8):
            if u+2<8: kreads(role,u+2)
            kmf(role,u)
    def wo_frag():
        wof=fr_[0]; vWoA=fr_[0]+4
        k(f"v_bfe_u32 v{vt}, v{vL}, 2, 2")
        k(f"v_lshrrev_b32 v{vt2}, 5, v{vL}")
        k(f"v_lshl_add_u32 v{vt}, v{vt2}, 2, v{vt}")
        k(f"v_lshlrev_b32 v{vWoA}, 6, v{vt}")
        k(f"v_bfe_u32 v{vt2}, v{vL}, 4, 1")
        k(f"v_lshl_add_u32 v{vWoA}, v{vt2}, 5, v{vWoA}")
        k(f"v_and_b32 v{vt2}, 3, v{vL}")
        k(f"v_lshl_add_u32 v{vWoA}, v{vt2}, 3, v{vWoA}")
        k(f"s_lshl_b32 s{sA}, s{sW}, 10")
        k(f"s_add_u32 s{sA}, s{sA}, {L_WOB}")
        k(f"v_add_u32 v{vWoA}, s{sA}, v{vWoA}")
        k.wait_tag("wo")
        k(f"ds_read_b64_tr_b16 v[{wof}:{wof+1}], v{vWoA}")
        k(f"ds_read_b64_tr_b16 v[{wof+2}:{wof+3}], v{vWoA} offset:512")
        k(f"v_lshlrev_b32 v{vt}, 4, v{vL}")
        k(f"s_lshl_b32 s{sA}, s{sFr}, 10")
        k(f"s_add_u32 s{sA}, s{sA}, {WS_WO}")
        k(f"buffer_store_dwordx4 v[{wof}:{wof+3}], v{vt}, s[{srdWS}:{srdWS+3}], s{sA} offen {STF}")
    row=V()
    k(f"s_cmp_eq_u32 s{sRole}, 0")
    k(f"s_cbranch_scc0 L_{name}_B1")
    snap=k.snapshot(); mark=V.mark()
    for role in range(2):
        if role==1:
            k.restore(snap); V.reset(mark); k.label(f"L_{name}_B1")
        if role==0:
            rne(row,1)
            k(f"v_lshrrev_b32 v{vt2}, 3, v{row}")
            k(f"v_lshl_add_u32 v{row}, v{row}, 1, v{vt2}")
            k(f"v_add_u32 v{row}, 32, v{row}")
            rdaddr(rG1,row)
            rne(row,2); k(f"v_lshlrev_b32 v{row}, 1, v{row}"); k(f"v_add_u32 v{row}, 50, v{row}"); rdaddr(rG2,row)
        else:
            rne(row,3); k(f"v_lshlrev_b32 v{row}, 1, v{row}"); k(f"v_add_u32 v{row}, 51, v{row}"); rdaddr(rG1,row)
            k(f"v_add_u32 v{row}, 6, v{row}"); rdaddr(rG2,row)
        tab=table_role0 if role==0 else table_role1
        st.mark(k,1)
        if PRIO: k(f"s_setprio {PRIO}")
        if 'A' in TM or 'B' in TM:
            k.wait_tag("par")
            if 'B' in TM: touch_b()
            if 'A' in TM: touch_a()
        flat=[l for blk in side for l in blk]
        if GMODE=='split2':
            st_={}
            def mid():
                k(f"s_cmp_eq_u32 s{sP}, 1")
                k(f"s_cbranch_scc0 L_{name}_B{role}_g0")
                vmq=list(k.vm)
                for l in flat: k(l)
                k.label(f"L_{name}_B{role}_g0")
                k.vm=vmq
            tab(mid)
            k(f"s_cmp_eq_u32 s{sP}, 0")
            k(f"s_cbranch_scc0 L_{name}_B{role}_g1")
            for l in flat: k(l)
            k.label(f"L_{name}_B{role}_g1")
        elif GMODE=='ink':
            tab()
        elif GMODE=='split':
            k.wait_tag("par")
            k(f"s_cmp_eq_u32 s{sP}, 0")
            k(f"s_cbranch_scc0 L_{name}_B{role}_g0")
            vmq=list(k.vm)
            for l in flat: k(l)
            k.label(f"L_{name}_B{role}_g0")
            k.vm=vmq
            tab()
            k(f"s_cmp_eq_u32 s{sP}, 1")
            k(f"s_cbranch_scc0 L_{name}_B{role}_g1")
            for l in flat: k(l)
            k.label(f"L_{name}_B{role}_g1")
        else:
            sidel.clear(); sidel.extend([list(x) for x in side] if 'G' not in DB else [])
            if GMODE=='pre':
                k.wait_tag("par")
                for blk in sidel:
                    for l in blk: k(l)
                sidel.clear()
            tab()
            for blk in sidel:
                for l in blk: k(l)
            sidel.clear()
        st.mark(k,2)
        k.barrier()
        if not fused: wo_dma()
        if GMODE=='ink':
            k.bg=[[(l,None) for l in blk] for blk in side]; k.bg_every=int(os.environ.get('GEV','6'))
        kmfma(role)
        k.bg_flush()
        st.mark(k,3)
        u_prep()
        vK=vt3
        k(f"s_add_u32 s{sTab}, s{sCB}, {KOFF}")
        k(f"v_lshlrev_b32 v{vK}, 5, v{vL}")
        k(f"v_add_u32 v{vK}, s{sTab}, v{vK}")
        kp=V(8,4); vKz=V()
        if role==0:
            k(f"v_add_f32 v{acc}, v{acc}, v{vDs}")
            k(f"v_lshlrev_b32 v{vKz}, 3, v{vL}")
            k(f"v_add_u32 v{vKz}, s{sTab}, v{vKz}")
        for T in range(4):
            k(f"v_cvt_pk_bf16_f32 v{kp+2*T}, v{acc+4*T}, v{acc+4*T+1}")
            k(f"v_cvt_pk_bf16_f32 v{kp+2*T+1}, v{acc+4*T+2}, v{acc+4*T+3}")
        for b0 in range(2):
            for d in range(2): k(f"v_permlane32_swap_b32 v{kp+2*b0+d}, v{kp+2*(b0+2)+d}")
        for b1 in range(2):
            for d in range(2): k(f"v_permlane16_swap_b32 v{kp+4*b1+d}, v{kp+4*b1+2+d}")
        k.barrier()
        if role==0:
            k(f"ds_write_b64 v{vKz}, v[{z4}:{z4+1}]")
            k(f"ds_write_b64 v{vKz}, v[{z4}:{z4+1}] offset:{P1}")
        o=2048*role
        k(f"ds_write_b128 v{vK}, v[{kp}:{kp+3}] offset:{o+464}")
        k(f"ds_write_b128 v{vK}, v[{kp+4}:{kp+7}] offset:{o+480}")
        k(f"ds_write_b128 v{vK}, v[{kp+2}:{kp+5}] offset:{P1+o+464}")
        k(f"ds_write_b64 v{vK}, v[{kp}:{kp+1}] offset:{P1+o+456}")
        k(f"ds_write_b64 v{vK}, v[{kp+6}:{kp+7}] offset:{P1+o+480}")
        u_write()
        if not fused: wo_frag()
        k(f"v_and_b32 v{vt}, 3, v{vI}")
        k(f"v_mul_u32_u24 v{vA}, {UC}, v{vt}")
        k(f"v_lshrrev_b32 v{vt}, 2, v{vI}")
        k(f"v_sub_u32 v{vt}, v{vQ}, v{vt}")
        k(f"v_add_u32 v{vt}, 3, v{vt}")
        k(f"v_lshl_add_u32 v{vA}, v{vt}, 4, v{vA}")
        k(f"v_add_u32 v{vA}, s{sCB}, v{vA}")
        k(f"v_lshrrev_b32 v{vt}, 1, v{vI}")
        k(f"v_lshlrev_b32 v{vB}, 6, v{vt}")
        k(f"v_lshl_add_u32 v{vB}, v{vQ}, 4, v{vB}")
        k(f"v_and_b32 v{vt}, 1, v{vI}")
        k(f"v_mul_u32_u24 v{vt}, {P1-16}, v{vt}")
        k(f"v_sub_u32 v{vt}, {P1}, v{vt}")
        k(f"v_add3_u32 v{vB}, v{vB}, v{vt}, s{sTab}")
        k.barrier()
        V.reset(mark0)
        y=V(32,4)
        S=[V(64,4),V(64,4)]
        def loads(r,s):
            L=[]
            for c in range(8):
                L.append(f"ds_read_b128 v[{s+4*c}:{s+4*c+3}], v{vA} offset:{64*(56+r-8*c)}")
                L.append(f"ds_read_b128 v[{s+32+4*c}:{s+32+4*c+3}], v{vB} offset:{64*(r+8*c)}")
            return L
        classes=[4*role+i for i in range(4)]
        for l in loads(classes[0],S[0]): k(l)
        started=set()
        for ci,r in enumerate(classes):
            s=S[ci&1]
            nxt=loads(classes[ci+1],S[(ci+1)&1]) if ci+1<4 else []
            order=[]
            for d in range(8):
                for a in range(8):
                    for c in range(8):
                        if max(a,c)==d and a+c<=7: order.append((a,c))
            n=0
            for (a,c) in order:
                i=a+c
                cin="0" if i not in started else f"v[{y+4*i}:{y+4*i+3}]"
                started.add(i)
                k(f"v_mfma_f32_16x16x32_bf16 v[{y+4*i}:{y+4*i+3}], v[{s+4*c}:{s+4*c+3}], v[{s+32+4*a}:{s+32+4*a+3}], {cin}")
                n+=1
                if nxt and n>=4 and n%2==0: k(nxt.pop(0))
            for l in nxt: k(l)
        st.mark(k,4)
        vXw=vt3; vXr=vA
        k(f"v_lshlrev_b32 v{vt}, 4, v{vL}")
        k(f"s_lshl_b32 s{sA}, s{sW}, 12")
        k(f"s_add_u32 s{sA}, s{sA}, {L_WOB}")
        k(f"v_add_u32 v{vXw}, s{sA}, v{vt}")
        k(f"s_xor_b32 s{sA}, s{sA}, 4096") if False else None
        k(f"s_xor_b32 s{sB}, s{sW}, 1")
        k(f"s_lshl_b32 s{sB}, s{sB}, 12")
        k(f"s_add_u32 s{sB}, s{sB}, {L_WOB}")
        k(f"v_add_u32 v{vXr}, s{sB}, v{vt}")
        mine=[4*role+i for i in range(4)]; theirs=[4*(1-role)+i for i in range(4)]
        for n_,i in enumerate(theirs):
            k(f"ds_write_b128 v{vXw}, v[{y+4*i}:{y+4*i+3}] offset:{1024*n_}")
        vS=vB
        k(f"v_lshrrev_b32 v{vt}, 1, v{vI}")
        k(f"v_lshlrev_b32 v{vS}, 6, v{vt}")
        k(f"v_lshl_add_u32 v{vS}, v{vQ}, 4, v{vS}")
        k(f"v_and_b32 v{vt}, 1, v{vI}")
        k(f"v_lshl_add_u32 v{vS}, v{vt}, 3, v{vS}")
        k(f"s_add_u32 s{sA}, s{sD0}, s{sCh}")
        k(f"s_lshl_b32 s{sA}, s{sA}, 12")
        k(f"s_add_u32 s{sA}, s{sA}, {WS_B+role*4*512}")
        k.barrier()
        rr=S[0]
        for n_ in range(4):
            k(f"ds_read_b128 v[{rr+4*n_}:{rr+4*n_+3}], v{vXr} offset:{1024*n_}")
        for n_,i in enumerate(mine):
            b=rr+4*n_
            k(f"v_pk_add_f32 v[{b}:{b+1}], v[{b}:{b+1}], v[{y+4*i}:{y+4*i+1}]")
            k(f"v_pk_add_f32 v[{b+2}:{b+3}], v[{b+2}:{b+3}], v[{y+4*i+2}:{y+4*i+3}]")
            k(f"v_cvt_pk_bf16_f32 v{b}, v{b}, v{b+1}")
            k(f"v_cvt_pk_bf16_f32 v{b+1}, v{b+2}, v{b+3}")
            k(f"buffer_store_dwordx2 v[{b}:{b+1}], v{vS}, s[{srdWS}:{srdWS+3}], s{sA} offen offset:{512*n_} {STF}")
        st.mark(k,5)
        if fused: k(f"s_branch L_{name}_F")
        else:
            st.finish(k,sWS,sW,y)
            k("s_endpgm")
    if fused:
        k.auto=False; rel_read_block(k,name,"B",vZb,srdWS); k.auto=True
    return V.hi
```

```python
from dsl import *
from common import *
from k1a import sX,sWO,sOUT,sDBG,sWS,sW,srdWS,srdDBG,srdT,srdX,mk_srd
import os
WS_REL=WS_G+(16<<10)
NREL=32
CNT_OFF=int(os.environ.get('CNTOFF','192'))
vV0=253
L_KVL=0; KVW=9216; L_OB=8*KVW; L_BT=L_OB+32768; L_RX=L_BT+8192

def rel_read_rare(k,name,path,vzero):
    k(f"s_cmp_eq_u32 s{sW}, 0")
    k(f"s_cbranch_scc1 L_{name}_{path}_rel")
    k.label(f"L_{name}_{path}_relret")
def rel_read_block(k,name,path,vzero,srd):
    k.label(f"L_{name}_{path}_rel")
    k(f"s_lshr_b32 s3, s2, 3")
    k(f"s_lshl_b32 s3, s3, 7")
    k(f"s_add_u32 s3, s3, {WS_REL}")
    k(f"s_mov_b64 exec, 1")
    k(f"buffer_load_dword v{vV0}, v{vzero}, s[{srd}:{srd+3}], s3 offen sc1")
    k(f"s_mov_b64 exec, -1")
    k(f"s_branch L_{name}_{path}_relret")

def gen_final(k,name,st):
    V=Alloc("v",1,251)
    k.clear_state()
    k.label(f"L_{name}_F")
    sTB=66; sDB=67; sA=64; sB=65; sT=39; sHalf=68; sD32=69; sPhi=70; sKv=71; sBb=72; sG=73; sOo=74; sM=75; sCnt=76; sOld=77; sHp=78
    srdO=52; srdWo=60
    k("s_waitcnt vmcnt(0) lgkmcnt(0)")
    k("s_barrier")
    vL=V(); vT=V(); vH=V(); vL16=V(); vZ=V(); vt=V(); vt2=V(); vOne=V()
    k(f"v_and_b32 v{vL}, 63, v0")
    k(f"v_mov_b32 v{vZ}, 0")
    k(f"v_mov_b32 v{vOne}, 1")
    mk_srd(k,srdDBG,sDBG,256)
    mk_srd(k,srdWS,sWS,WS_SIZE)
    k(f"s_cmp_eq_u32 s{sW}, 0")
    k(f"s_cbranch_scc1 L_{name}_F_arr")
    k.label(f"L_{name}_F_arrret")
    st.mark(k,1)
    k(f"s_and_b32 s{sA}, s2, 7")
    k(f"s_lshr_b32 s{sB}, s2, 5")
    k(f"s_lshr_b32 s{sDB}, s2, 3")
    k(f"s_and_b32 s{sDB}, s{sDB}, 3")
    k(f"s_and_b32 s{sT}, s{sA}, 3")
    k(f"s_lshl_b32 s{sT}, s{sT}, 4")
    k(f"s_lshr_b32 s{sA}, s{sA}, 2")
    k(f"s_lshl_b32 s{sA}, s{sA}, 3")
    k(f"s_add_u32 s{sTB}, s{sT}, s{sA}")
    k(f"s_add_u32 s{sTB}, s{sTB}, s{sB}")
    k(f"s_lshr_b32 s{sHalf}, s{sW}, 2")
    k(f"s_and_b32 s{sD32}, s{sW}, 3")
    mk_srd(k,srdWo,sWO,512*512*2)
    vWg=V()
    k(f"v_lshrrev_b32 v{vt}, 4, v{vL}")
    k(f"v_lshlrev_b32 v{vt2}, 2, v{vt}")
    k(f"v_xor_b32 v{vt2}, v{vt2}, v{vL}")
    k(f"v_and_b32 v{vt2}, 15, v{vt2}")
    k(f"v_lshlrev_b32 v{vt2}, 4, v{vt2}")
    k(f"v_lshl_add_u32 v{vWg}, v{vt}, 10, v{vt2}")
    k(f"s_lshl_b32 s{sA}, s{sW}, 16")
    k(f"s_lshl_b32 s{sB}, s{sDB}, 8")
    k(f"s_add_u32 s{sA}, s{sA}, s{sB}")
    k(f"s_lshl_b32 s{sM}, s{sW}, 14")
    for u in range(16):
        k(f"s_add_u32 m0, s{sM}, {u*1024}")
        k(f"s_add_u32 s{sT}, s{sA}, {u*4096}")
        k(f"buffer_load_dwordx4 v{vWg}, s[{srdWo}:{srdWo+3}], s{sT} offen lds", tag="wo")
    k(f"s_cmp_eq_u32 s{sW}, 0")
    k(f"s_cbranch_scc1 L_{name}_F_rls")
    k.label(f"L_{name}_F_rlsret")
    k(f"v_and_b32 v{vT}, 31, v{vL}")
    k(f"v_lshrrev_b32 v{vH}, 5, v{vL}")
    k(f"v_lshlrev_b32 v{vL16}, 4, v{vL}")
    vWr=V(); vKv=V(4); vB=V(); vG=V(); vO=V(); vBr=V(); vKw=V(); vOw=V(); vOr=V(); vBw=V(); vXw=V(); vXr=V()
    k(f"v_bfe_u32 v{vt}, v{vL}, 2, 2")
    k(f"v_lshl_add_u32 v{vt2}, v{vH}, 2, v{vt}")
    k(f"v_lshlrev_b32 v{vWr}, 8, v{vt2}")
    k(f"v_xor_b32 v{vt}, s{sD32}, v{vt}")
    k(f"v_lshl_add_u32 v{vWr}, v{vt}, 6, v{vWr}")
    k(f"v_bfe_u32 v{vt}, v{vL}, 4, 1")
    k(f"v_lshl_add_u32 v{vWr}, v{vt}, 5, v{vWr}")
    k(f"v_and_b32 v{vt}, 3, v{vL}")
    k(f"v_lshl_add_u32 v{vWr}, v{vt}, 3, v{vWr}")
    k(f"s_lshl_b32 s{sA}, s{sHalf}, 16")
    k(f"v_add_u32 v{vWr}, s{sA}, v{vWr}")
    k(f"v_lshlrev_b32 v{vt}, 4, v{vT}")
    k(f"v_lshl_add_u32 v{vt}, v{vH}, 8, v{vt}")
    k(f"v_lshlrev_b32 v{vt2}, 4, v{vH}")
    k(f"v_add_u32 v{vt2}, 2048, v{vt2}")
    k(f"v_cmp_gt_u32 vcc, 16, v{vT}")
    k(f"v_cndmask_b32 v{vKv}, v{vt2}, v{vt}, vcc")
    k(f"v_mov_b32 v{vt}, 512")
    k(f"v_mov_b32 v{vt2}, 32")
    k(f"v_cndmask_b32 v{vt}, v{vt2}, v{vt}, vcc")
    k(f"s_mul_i32 s{sA}, s{sW}, {KVW}")
    k(f"v_add_u32 v{vKv}, s{sA}, v{vKv}")
    for u in range(1,4): k(f"v_add_u32 v{vKv+u}, v{vKv+u-1}, v{vt}")
    k(f"v_add_u32 v{vKw}, s{sA}, v{vL16}")
    k(f"s_lshl_b32 s{sA}, s{sW}, 12")
    k(f"s_add_u32 s{sA}, s{sA}, {L_OB}")
    k(f"v_add_u32 v{vOw}, s{sA}, v{vL16}")
    k(f"s_lshl_b32 s{sA}, s{sHalf}, 14")
    k(f"s_add_u32 s{sA}, s{sA}, {L_OB}")
    k(f"v_add_u32 v{vOr}, s{sA}, v{vL16}")
    k(f"v_lshrrev_b32 v{vB}, 2, v{vL}")
    k(f"v_lshlrev_b32 v{vB}, 12, v{vB}")
    k(f"v_and_b32 v{vt}, 3, v{vL}")
    k(f"v_lshl_add_u32 v{vB}, v{vt}, 4, v{vB}")
    k(f"s_lshl_b32 s{sA}, s{sW}, 10")
    k(f"s_add_u32 s{sA}, s{sA}, {L_BT}")
    k(f"v_add_u32 v{vBw}, s{sA}, v{vL16}")
    k(f"v_bfe_u32 v{vt}, v{vL}, 2, 2")
    k(f"v_lshl_add_u32 v{vt}, v{vH}, 2, v{vt}")
    k(f"v_lshlrev_b32 v{vBr}, 6, v{vt}")
    k(f"v_bfe_u32 v{vt}, v{vL}, 4, 1")
    k(f"v_lshl_add_u32 v{vBr}, v{vt}, 5, v{vBr}")
    k(f"v_and_b32 v{vt}, 3, v{vL}")
    k(f"v_lshl_add_u32 v{vBr}, v{vt}, 3, v{vBr}")
    k(f"s_lshl_b32 s{sA}, s{sD32}, 11")
    k(f"s_lshl_b32 s{sB}, s{sHalf}, 10")
    k(f"s_add_u32 s{sA}, s{sA}, s{sB}")
    k(f"s_add_u32 s{sA}, s{sA}, {L_BT}")
    k(f"v_add_u32 v{vBr}, s{sA}, v{vBr}")
    k(f"s_lshl_b32 s{sA}, s{sW}, 11")
    k(f"s_add_u32 s{sA}, s{sA}, {L_RX}")
    k(f"v_add_u32 v{vXw}, s{sA}, v{vL16}")
    k(f"s_xor_b32 s{sA}, s{sW}, 4")
    k(f"s_lshl_b32 s{sA}, s{sA}, 11")
    k(f"s_add_u32 s{sA}, s{sA}, {L_RX}")
    k(f"v_add_u32 v{vXr}, s{sA}, v{vL16}")
    k(f"v_lshlrev_b32 v{vG}, 2, v{vT}")
    k(f"v_lshlrev_b32 v{vO}, 10, v{vT}")
    k(f"v_lshl_add_u32 v{vO}, v{vH}, 4, v{vO}")
    k(f"s_lshl_b32 s{sA}, s{sTB}, 16")
    k(f"s_lshl_b32 s{sB}, s{sW}, 13")
    k(f"s_add_u32 s{sPhi}, s{sA}, s{sB}")
    k(f"s_mul_i32 s{sKv}, s{sW}, {4*KVH}")
    k(f"s_add_u32 s{sKv}, s{sKv}, {WS_KV}")
    k(f"s_lshl_b32 s{sA}, s{sDB}, 7")
    k(f"s_lshl_b32 s{sB}, s{sW}, 4")
    k(f"s_add_u32 s{sA}, s{sA}, s{sB}")
    k(f"s_lshl_b32 s{sBb}, s{sA}, 12")
    k(f"s_lshl_b32 s{sB}, s{sTB}, 6")
    k(f"s_add_u32 s{sBb}, s{sBb}, s{sB}")
    k(f"s_add_u32 s{sBb}, s{sBb}, {WS_B}")
    k(f"s_lshl_b32 s{sB}, s{sTB}, 7")
    k(f"s_add_u32 s{sG}, s{sB}, {WS_G}")
    k(f"s_lshl_b32 s{sOo}, s{sTB}, 15")
    k(f"s_lshl_b32 s{sA}, s{sDB}, 8")
    k(f"s_lshl_b32 s{sB}, s{sD32}, 6")
    k(f"s_add_u32 s{sA}, s{sA}, s{sB}")
    k(f"s_lshl_b32 s{sB}, s{sHalf}, 5")
    k(f"s_add_u32 s{sA}, s{sA}, s{sB}")
    k(f"s_add_u32 s{sOo}, s{sOo}, s{sA}")
    mk_srd(k,srdO,sOUT,2048*512*2)
    wo=V(64,4)
    k.wait_tag("wo")
    k("s_barrier")
    for c in range(16):
        k(f"ds_read_b64_tr_b16 v[{wo+4*c}:{wo+4*c+1}], v{vWr} offset:{c*4096}")
        k(f"ds_read_b64_tr_b16 v[{wo+4*c+2}:{wo+4*c+3}], v{vWr} offset:{c*4096+2048}")
    k.wait_lg(0)
    st.mark(k,2)
    k(f"s_cmp_eq_u32 s{sW}, 0")
    k(f"s_cbranch_scc1 L_{name}_F_poll")
    k.label(f"L_{name}_F_pollret")
    k("s_barrier")
    st.mark(k,3)
    phi=V(32,4); kvl=V(36,4); bl4=V(4,4); vg=V()
    def ld_kv(n):
        k(f"s_add_u32 s{sT}, s{sKv}, {n*1024}")
        k(f"buffer_load_dwordx4 v[{kvl+4*n}:{kvl+4*n+3}], v{vL16}, s[{srdWS}:{srdWS+3}], s{sT} offen sc1")
    def ld_phi(hh):
        k(f"s_add_u32 s{sT}, s{sPhi}, {hh*2048}")
        for s in range(2):
            k(f"buffer_load_dwordx4 v[{phi+8*hh+4*s}:{phi+8*hh+4*s+3}], v{vL16}, s[{srdWS}:{srdWS+3}], s{sT} offen offset:{s*1024} sc1")
    for n in range(3): ld_kv(n)
    ld_phi(0)
    for n in range(3,5): ld_kv(n)
    ld_phi(1)
    for n in range(5,7): ld_kv(n)
    ld_phi(2)
    for n in range(7,9): ld_kv(n)
    ld_phi(3)
    k(f"buffer_load_dwordx4 v[{bl4}:{bl4+3}], v{vB}, s[{srdWS}:{srdWS+3}], s{sBb} offen sc1")
    k(f"buffer_load_dword v{vg}, v{vG}, s[{srdWS}:{srdWS+3}], s{sG} offen sc1")
    nkv=[0]
    def st_kv(upto):
        while nkv[0]<upto:
            n=nkv[0]; k(f"ds_write_b128 v{vKw}, v[{kvl+4*n}:{kvl+4*n+3}] offset:{n*1024}"); nkv[0]+=1
    kvf=[V(16,4),V(16,4)]; D=[V(16,4),V(16,4)]
    def rd_kv(hh):
        st_kv(min(9,(KVH*(hh+1)+1023)//1024))
        f=kvf[hh%2]
        for q in range(4): k(f"ds_read_b128 v[{f+4*q}:{f+4*q+3}], v{vKv+q} offset:{hh*KVH}")
    def p1_mfma(hh):
        f=kvf[hh%2]; d=D[hh%2]
        for q in range(8): k(f"v_cvt_pk_bf16_f32 v{f+q}, v{f+2*q}, v{f+2*q+1}")
        k(f"v_mfma_f32_32x32x16_bf16 v[{d}:{d+15}], v[{f}:{f+3}], v[{phi+8*hh}:{phi+8*hh+3}], 0")
        k(f"v_mfma_f32_32x32x16_bf16 v[{d}:{d+15}], v[{f+4}:{f+7}], v[{phi+8*hh+4}:{phi+8*hh+7}], v[{d}:{d+15}]")
    vr_=V(2,2)
    def p1_fin(hh):
        d=D[hh%2]; of=kvf[hh%2]+8
        k(f"v_add_f32 v{vr_}, 0x358637bd, v{d+8}")
        k(f"v_rcp_f32 v{vr_}, v{vr_}")
        for j in range(4):
            k(f"v_pk_mul_f32 v[{d+2*j}:{d+2*j+1}], v[{d+2*j}:{d+2*j+1}], v[{vr_}:{vr_+1}] op_sel_hi:[1,0]")
        for j in range(4): k(f"v_cvt_pk_bf16_f32 v{of+j}, v{d+2*j}, v{d+2*j+1}")
        k(f"ds_write_b128 v{vOw}, v[{of}:{of+3}] offset:{hh*1024}")
    rd_kv(0)
    p1_mfma(0)
    for hh in range(4):
        if hh+1<4:
            rd_kv(hh+1); p1_mfma(hh+1)
        p1_fin(hh)
    k(f"ds_write_b128 v{vBw}, v[{bl4}:{bl4+3}]")
    st.mark(k,4)
    k.barrier()
    acc=D[0]; ob=phi
    bdw=V(4,2); bl=kvf[0]; vomg=vr_
    def rd(c): k(f"ds_read_b128 v[{ob+4*(c%8)}:{ob+4*(c%8)+3}], v{vOr} offset:{c*1024}")
    for c in range(8): rd(c)
    for i in range(2): k(f"ds_read_b64_tr_b16 v[{bdw+2*i}:{bdw+2*i+1}], v{vBr} offset:{i*512}")
    for c in range(16):
        cin="0" if c==0 else f"v[{acc}:{acc+15}]"
        k(f"v_mfma_f32_32x32x16_bf16 v[{acc}:{acc+15}], v[{wo+4*c}:{wo+4*c+3}], v[{ob+4*(c%8)}:{ob+4*(c%8)+3}], {cin}")
        if c+8<16: rd(c+8)
        if c==2:
            k(f"v_sub_f32 v{vomg}, 1.0, v{vg}")
            k(f"v_cvt_pk_bf16_f32 v{vomg}, v{vomg}, v{vomg}")
            k(f"v_lshlrev_b32 v{vomg}, 16, v{vomg}")
        if 3<=c<7:
            q=c-3
            k(f"v_lshlrev_b32 v{bl+2*q}, 16, v{bdw+q}")
            k(f"v_and_b32 v{bl+2*q+1}, 0xffff0000, v{bdw+q}")
            k(f"v_mul_f32 v{bl+2*q}, v{vomg}, v{bl+2*q}")
            k(f"v_mul_f32 v{bl+2*q+1}, v{vomg}, v{bl+2*q+1}")
    k(f"s_cmp_eq_u32 s{sHalf}, 0")
    k(f"s_cbranch_scc1 L_{name}_F_h0")
    snap=k.snapshot()
    for hf in (1,0):
        if hf==0:
            k.restore(snap); k.label(f"L_{name}_F_h0")
        keep=acc+8*hf; send=acc+8*(1-hf)
        for q in range(2): k(f"ds_write_b128 v{vXw}, v[{send+4*q}:{send+4*q+3}] offset:{1024*q}")
        k.barrier()
        rx=kvf[1]
        for q in range(2): k(f"ds_read_b128 v[{rx+4*q}:{rx+4*q+3}], v{vXr} offset:{1024*q}")
        for r in range(8): k(f"v_add_f32 v{keep+r}, v{keep+r}, v{rx+r}")
        for r in range(8): k(f"v_fmac_f32 v{bl+r}, v{vg}, v{keep+r}")
        od=rx
        for q in range(4): k(f"v_cvt_pk_bf16_f32 v{od+q}, v{bl+2*q}, v{bl+2*q+1}")
        k(f"v_permlane32_swap_b32 v{od}, v{od+2}")
        k(f"v_permlane32_swap_b32 v{od+1}, v{od+3}")
        k(f"buffer_store_dwordx4 v[{od}:{od+3}], v{vO}, s[{srdO}:{srdO+3}], s{sOo} offen")
        st.mark(k,5)
        st.finish(k,sWS,sW,wo)
        k("s_endpgm")
    k.auto=False
    k.label(f"L_{name}_F_arr")
    k(f"v_mov_b32 v252, 1")
    k(f"s_mov_b64 exec, 1")
    k(f"buffer_atomic_add v252, v{vZ}, s[{srdDBG}:{srdDBG+3}], 0 offen offset:{CNT_OFF} sc0 sc1")
    k(f"s_mov_b64 exec, -1")
    k(f"s_branch L_{name}_F_arrret")
    k.label(f"L_{name}_F_rls")
    k(f"s_waitcnt vmcnt(16)")
    k(f"v_readfirstlane_b32 s{sOld}, v252")
    k(f"s_nop 0")
    k(f"s_cmp_lg_u32 s{sOld}, 255")
    k(f"s_cbranch_scc1 L_{name}_F_rlsret")
    k(f"v_lshlrev_b32 v251, 7, v{vL}")
    k(f"s_mov_b32 s3, {WS_REL}")
    k(f"s_mov_b32 s{sA}, -1")
    k(f"s_mov_b32 s{sB}, 0")
    k(f"s_mov_b64 exec, s[{sA}:{sA+1}]")
    k(f"buffer_atomic_add v{vOne}, v251, s[{srdWS}:{srdWS+3}], s3 offen sc1")
    k(f"s_mov_b64 exec, -1")
    k(f"s_branch L_{name}_F_rlsret")
    k.label(f"L_{name}_F_poll")
    k(f"v_readfirstlane_b32 s{sOld}, v{vV0}")
    k(f"s_lshr_b32 s3, s2, 3")
    k(f"s_lshl_b32 s3, s3, 7")
    k(f"s_add_u32 s3, s3, {WS_REL}")
    k(f"s_mov_b32 s{sCnt}, 0")
    k.label(f"L_{name}_F_poll1")
    k(f"buffer_load_dword v252, v{vZ}, s[{srdWS}:{srdWS+3}], s3 offen sc1")
    k(f"s_waitcnt vmcnt(0)")
    k(f"v_readfirstlane_b32 s{sA}, v252")
    k(f"s_add_u32 s{sCnt}, s{sCnt}, 1")
    k(f"s_cmp_lg_u32 s{sA}, s{sOld}")
    k(f"s_cbranch_scc1 L_{name}_F_pollret")
    k(f"s_cmp_ge_u32 s{sCnt}, 0x8000")
    k(f"s_cbranch_scc1 L_{name}_F_pollret")
    k(f"s_sleep 2")
    k(f"s_branch L_{name}_F_poll1")
    k.auto=True
    return V.hi
```

```python
from dsl import *
from common import *
import os
DBG=os.environ.get('DBG','')
GATE=os.environ.get('GATE','epi')
QORD=os.environ.get('QORD','last')
XW1=os.environ.get('XW1','pro')
GJ=int(os.environ.get('GJ','29'))
STF=os.environ.get('STF','sc1')
TP=eval(os.environ.get('TP','(0,3,3)'))
NTB=int(os.environ.get('TB','1'))
MK=eval(os.environ.get('MK','{0:2,1:3,2:4,4:5}'))

sX=4; sWQ=6; sWPHI=8; sWO=10; sLA=14; sAI=16; sCR=18; sCI=20; sLDT=22; sDS=24; sGW=26; sOUT=28; sDBG=30; sWS=32
sW=34
sXCD=35; sIDX=36
srdX=40; srdWq=44; srdWS=48; srdKV=52; srdDBG=56; srdT=60
L_WPHI=0
L_WR=2048; WSL=24576; NWS=3
L_XR=L_WR+NWS*WSL; XSL=16384; NXS=3
K1_LDS=159744
LOG2E=0x3fb8aa3b; NLOG2E=0xbfb8aa3b
RED0=L_WR
def red_base(g,w): return (L_WR if g==0 else L_WR+2*WSL)+w*4352

def mk_srd(k,srd,ptr,size):
    k(f"s_mov_b32 s{srd}, s{ptr}")
    k(f"s_and_b32 s{srd+1}, s{ptr+1}, 0xffff")
    k(f"s_mov_b32 s{srd+2}, {size}")
    k(f"s_mov_b32 s{srd+3}, 0x20000")

def softmax2(k, blocks, tmp, sL2E, fill=None):
    nb=len(blocks)
    def each(f):
        for b in range(nb): f(b,*blocks[b])
    T=[tmp+4*b for b in range(nb)]
    each(lambda b,p,o: k(f"v_max3_f32 v{T[b]}, v{p}, v{p+1}, v{p+2}"))
    for u in range(6):
        each(lambda b,p,o: k(f"v_max3_f32 v{T[b]}, v{T[b]}, v{p+3+2*u}, v{p+4+2*u}"))
    each(lambda b,p,o: k(f"v_max_f32 v{T[b]}, v{T[b]}, v{p+15}"))
    each(lambda b,p,o: k(f"v_mul_f32 v{T[b]}, {NLOG2E:#x}, v{T[b]}"))
    for u in range(8):
        each(lambda b,p,o: k(f"v_pk_fma_f32 v[{p+2*u}:{p+2*u+1}], v[{p+2*u}:{p+2*u+1}], s[{sL2E}:{sL2E+1}], v[{T[b]}:{T[b]+1}] op_sel_hi:[1,1,0]"))
    for u in range(16):
        each(lambda b,p,o: k(f"v_exp_f32 v{p+u}, v{p+u}"))
    S=[t+2 for t in T]
    each(lambda b,p,o: k(f"v_pk_add_f32 v[{S[b]}:{S[b]+1}], v[{p}:{p+1}], v[{p+2}:{p+3}]"))
    for u in range(2,8):
        each(lambda b,p,o: k(f"v_pk_add_f32 v[{S[b]}:{S[b]+1}], v[{S[b]}:{S[b]+1}], v[{p+2*u}:{p+2*u+1}]"))
    each(lambda b,p,o: k(f"v_add_f32 v{T[b]}, v{S[b]}, v{S[b]+1}"))
    each(lambda b,p,o: k(f"v_rcp_f32 v{T[b]}, v{T[b]}"))
    for u in range(8):
        each(lambda b,p,o: k(f"v_pk_mul_f32 v[{p+2*u}:{p+2*u+1}], v[{p+2*u}:{p+2*u+1}], v[{T[b]}:{T[b]+1}] op_sel_hi:[1,0]"))
    for u in range(8):
        each(lambda b,p,o: k(f"v_cvt_pk_bf16_f32 v{o+u}, v{p+2*u}, v{p+2*u+1}"))

def gen_a(k, name, st, fused=False):
    from kf import rel_read_rare, rel_read_block
    V=Alloc("v",1,256)
    sTT=37; sHP=38; sT=39; sA=64; sB=65; sX0=66; sWo_=68; sMx=69; sMw=70
    sL2E=74; sMaskLo=76; sTick=80; sGt=86-0 if False else 63; sPhiO=81; sGo=82; sE=83; sFirst=84
    k.label(f"L_{name}_A")
    sHQ=67; sTBW=78; sHG=79
    k(f"s_and_b32 s{sA}, s{sXCD}, 3")
    k(f"s_lshl_b32 s{sA}, s{sA}, 2")
    k(f"s_and_b32 s{sB}, s{sIDX}, 3")
    k(f"s_add_u32 s{sTT}, s{sA}, s{sB}")
    k(f"s_lshr_b32 s{sA}, s{sXCD}, 2")
    k(f"s_lshl_b32 s{sA}, s{sA}, 2")
    k(f"s_lshr_b32 s{sB}, s{sIDX}, 2")
    k(f"s_add_u32 s{sHQ}, s{sA}, s{sB}")
    k(f"s_and_b32 s{sTBW}, s{sW}, 3")
    k(f"s_lshr_b32 s{sHG}, s{sW}, 2")
    k(f"s_lshl_b32 s{sA}, s{sHQ}, 1")
    k(f"s_add_u32 s{sHP}, s{sA}, s{sHG}")
    vL=V(); vXg=V(2); vWg=V(3); vt=V(); vt2=V(); vt3=V()
    k(f"v_and_b32 v{vL}, 63, v0")
    k(f"v_lshrrev_b32 v{vt}, 4, v{vL}")
    k(f"v_xor_b32 v{vt}, v{vt}, v{vL}")
    k(f"v_and_b32 v{vt}, 7, v{vt}")
    k(f"v_lshlrev_b32 v{vt}, 4, v{vt}")
    k(f"v_lshrrev_b32 v{vt2}, 3, v{vL}")
    k(f"v_lshl_add_u32 v{vXg}, v{vt2}, 10, v{vt}")
    k(f"v_xor_b32 v{vXg+1}, 64, v{vXg}")
    k(f"v_add_u32 v{vXg+1}, 8192, v{vXg+1}")
    for i in range(3):
        k(f"v_add_u32 v{vt3}, {64*i}, v{vL}")
        k(f"v_mul_u32_u24 v{vt}, 171, v{vt3}")
        k(f"v_lshrrev_b32 v{vt}, 12, v{vt}")
        k(f"v_mul_u32_u24 v{vt2}, 24, v{vt}")
        k(f"v_sub_u32 v{vt2}, v{vt3}, v{vt2}")
        k(f"v_bfe_u32 v{vt3}, v{vt}, 1, 1")
        k(f"v_lshlrev_b32 v{vt3}, 2, v{vt3}")
        k(f"v_xor_b32 v{vt2}, v{vt2}, v{vt3}")
        k(f"v_mul_u32_u24 v{vWg+i}, 3072, v{vt}")
        k(f"v_lshrrev_b32 v{vt3}, 3, v{vt2}")
        k(f"v_lshl_add_u32 v{vWg+i}, v{vt3}, 10, v{vWg+i}")
        k(f"v_and_b32 v{vt2}, 7, v{vt2}")
        k(f"v_lshl_add_u32 v{vWg+i}, v{vt2}, 4, v{vWg+i}")
    k(f"s_lshl_b32 s{sX0}, s{sTT}, 17")
    k(f"s_lshl_b32 s{sA}, s{sW}, 14")
    k(f"s_add_u32 s{sX0}, s{sX0}, s{sA}")
    k(f"s_mul_i32 s{sWo_}, s{sW}, {8*3072}")
    k(f"s_lshl_b32 s{sA}, s{sHQ}, 7")
    k(f"s_add_u32 s{sWo_}, s{sWo_}, s{sA}")
    k(f"s_lshl_b32 s{sMx}, s{sW}, 11")
    k(f"s_add_u32 s{sMx}, s{sMx}, {L_XR}")
    k(f"s_mul_i32 s{sMw}, s{sW}, 3072")
    k(f"s_add_u32 s{sMw}, s{sMw}, {L_WR}")
    sXk=71; sWk=72; sXc=73; sWc=85
    k(f"s_lshr_b32 s{sA}, s{sIDX}, 2")
    k(f"s_and_b32 s{sB}, s{sIDX}, 3")
    k(f"s_add_u32 s{sA}, s{sA}, s{sB}")
    k(f"s_and_b32 s{sA}, s{sA}, 3")
    k(f"s_lshl_b32 s{sA}, s{sA}, 1")
    if 'N' in DBG: k(f"s_mov_b32 s{sA}, 0")
    k(f"s_lshl_b32 s{sXk}, s{sA}, 7")
    k(f"s_mul_i32 s{sWk}, s{sA}, {64*3072}")
    k("s_waitcnt lgkmcnt(0)")
    mk_srd(k,srdX,sX,2048*512*2)
    mk_srd(k,srdWq,sWQ,512*1536*2)
    def dma_x_l(S):
        L=[]; slot=S%NXS
        for i in range(2):
            g=[]
            if i==0:
                if S>0:
                    g.append((f"s_add_u32 s{sXk}, s{sXk}, 128",None))
                    g.append((f"s_and_b32 s{sXk}, s{sXk}, 0x3ff",None))
                g.append((f"s_add_u32 s{sXc}, s{sX0}, s{sXk}",None))
            g+=[(f"s_add_u32 m0, s{sMx}, {slot*XSL+i*1024}",None),("s_nop 0",None),
                (f"buffer_load_dwordx4 v{vXg+i}, s[{srdX}:{srdX+3}], s{sXc} offen lds",f"x{S}")]
            L.append(g)
        return L
    def dma_w_l(S):
        slot=S%NWS; L=[]
        for i in range(3):
            g=[]
            if i==0:
                if S>0:
                    g.append((f"s_add_u32 s{sWk}, s{sWk}, {64*3072}",None))
                    g.append((f"s_cmp_eq_u32 s{sWk}, {512*3072}",None))
                    g.append((f"s_cselect_b32 s{sWk}, 0, s{sWk}",None))
                g.append((f"s_add_u32 s{sWc}, s{sWo_}, s{sWk}",None))
            g.append((f"s_add_u32 m0, s{sMw}, {slot*WSL+i*1024}",None))
            g.append(("s_nop 0",None))
            g.append((f"buffer_load_dwordx4 v{vWg+i}, s[{srdWq}:{srdWq+3}], s{sWc} offen lds",f"w{S}"))
            L.append(g)
        return L
    def emit_g(g):
        for (t,tag) in g: k(t,tag=tag)
    def dma_x(S):
        for g in dma_x_l(S): emit_g(g)
    def dma_w(S):
        for g in dma_w_l(S): emit_g(g)
    dma_x(0); dma_w(0)
    if XW1=='pro': dma_x(1); dma_w(1)
    if 1 not in MK.values(): st.mark(k,1)
    gx=V(8,4); gw=V(8,4); vGa=V(); vGw=V()
    k(f"v_and_b32 v{vt}, 31, v{vL}")
    k(f"v_lshlrev_b32 v{vGw}, 5, v{vt}")
    k(f"v_lshrrev_b32 v{vt}, 5, v{vL}")
    k(f"v_lshl_add_u32 v{vGa}, v{vt}, 10, v{vGw}")
    k(f"s_lshl_b32 s{sA}, s{sTT}, 7")
    k(f"s_and_b32 s{sB}, s{sHQ}, 7")
    k(f"s_lshl_b32 s{sB}, s{sB}, 4")
    k(f"s_add_u32 s{sA}, s{sA}, s{sB}")
    k(f"s_lshl_b32 s{sB}, s{sW}, 1")
    k(f"s_add_u32 s{sGo}, s{sA}, s{sB}")
    k(f"global_load_dwordx4 v[{gw}:{gw+3}], v{vGw}, s[{sGW}:{sGW+1}]")
    k(f"global_load_dwordx4 v[{gw+4}:{gw+7}], v{vGw}, s[{sGW}:{sGW+1}] offset:16")
    mk_srd(k,srdDBG,sDBG,256)
    mk_srd(k,srdT,sWPHI,32*512)
    mk_srd(k,srdWS,sWS,WS_SIZE)
    vZ=V(); vL16=V(); vOne=V(); sR=3
    k(f"v_mov_b32 v{vZ}, 0")
    k(f"v_lshlrev_b32 v{vL16}, 4, v{vL}")
    k(f"s_lshl_b32 s{sT}, s{sHP}, 10")
    k(f"s_lshl_b32 s{sA}, s{sHG}, 10")
    k(f"s_add_u32 m0, s{sA}, {L_WPHI}")
    k(f"s_lshl_b32 s{sA}, s{sHP}, 2")
    k(f"buffer_load_dwordx4 v{vL16}, s[{srdT}:{srdT+3}], s{sT} offen lds", tag="wphi")
    if fused: rel_read_rare(k,name,"A",vZ)
    k(f"s_mov_b32 s{sL2E}, {LOG2E:#x}")
    k(f"s_mov_b32 s{sL2E+1}, {LOG2E:#x}")
    k(f"s_mov_b32 s{sMaskLo}, 0x0000ffff")
    k(f"s_mov_b32 s{sMaskLo+1}, 0x0000ffff")
    k(f"s_or_b32 s{sA}, s{sTT}, s{sTBW}")
    k(f"s_cmp_eq_u32 s{sA}, 0")
    k(f"s_cselect_b32 s{sFirst}, 1, 0")
    vM=V(); vH=V()
    k(f"v_and_b32 v{vM}, 31, v{vL}")
    k(f"v_lshrrev_b32 v{vH}, 5, v{vL}")
    vXr=V(4); vWr=V()
    k(f"v_lshrrev_b32 v{vt}, 1, v{vM}")
    k(f"v_and_b32 v{vt}, 7, v{vt}")
    k(f"v_xor_b32 v{vt}, v{vt}, v{vH}")
    k(f"v_lshlrev_b32 v{vt}, 4, v{vt}")
    k(f"v_lshl_add_u32 v{vXr}, v{vM}, 7, v{vt}")
    k(f"s_lshl_b32 s{sA}, s{sTBW}, 12")
    k(f"s_add_u32 s{sA}, s{sA}, {L_XR}")
    k(f"v_add_u32 v{vXr}, s{sA}, v{vXr}")
    for ks in range(1,4): k(f"v_xor_b32 v{vXr+ks}, {ks<<5}, v{vXr}")
    k(f"v_bfe_u32 v{vt}, v{vL}, 2, 2")
    k(f"v_lshl_add_u32 v{vt2}, v{vH}, 3, v{vt}")
    k(f"v_mul_u32_u24 v{vWr}, 384, v{vt2}")
    k(f"v_bfe_u32 v{vt2}, v{vL}, 4, 1")
    k(f"v_lshlrev_b32 v{vt2}, 5, v{vt2}")
    k(f"v_and_b32 v{vt3}, 3, v{vL}")
    k(f"v_lshl_add_u32 v{vt2}, v{vt3}, 3, v{vt2}")
    k(f"s_lshl_b32 s{sA}, s{sHG}, 6")
    k(f"v_add_u32 v{vt2}, s{sA}, v{vt2}")
    k(f"v_lshrrev_b32 v{vt}, 1, v{vt}")
    k(f"v_lshlrev_b32 v{vt}, 6, v{vt}")
    k(f"v_xor_b32 v{vt2}, v{vt2}, v{vt}")
    k(f"v_add_u32 v{vWr}, v{vWr}, v{vt2}")
    k(f"v_add_u32 v{vWr}, {L_WR}, v{vWr}")
    vWr2=V()
    k(f"v_add_u32 v{vWr2}, {2*WSL}, v{vWr}")
    I=V(8,4)
    for s in range(2):
        k(f"v_lshlrev_b32 v{vt}, 4, v{vH}")
        k(f"v_sub_u32 v{vt}, v{vM}, v{vt}")
        if s: k(f"v_subrev_u32 v{vt}, 8, v{vt}")
        k(f"v_and_b32 v{vt2}, 1, v{vt}")
        k(f"v_lshlrev_b32 v{vt2}, 4, v{vt2}")
        k(f"v_mov_b32 v{vt3}, 0x3f80")
        k(f"v_lshlrev_b32 v{vt2}, v{vt2}, v{vt3}")
        k(f"v_lshrrev_b32 v{vt}, 1, v{vt}")
        for u in range(4):
            k(f"v_cmp_eq_u32 vcc, {u}, v{vt}")
            k(f"v_cndmask_b32 v{I+4*s+u}, 0, v{vt2}, vcc")
    z4=V(4,4)
    for u in range(4): k(f"v_mov_b32 v{z4+u}, 0")
    accQ=V(16,4); accK=V(16,4); accV=V(16,4)
    F=[V(16,4),V(16,4),V(16,4)]
    def reads_l(j):
        f=F[j%3]; S=j>>2; ks=j&3
        if 'R' in DBG: return []
        L=[f"ds_read_b128 v[{f}:{f+3}], v{vXr+ks} offset:{(S%NXS)*XSL}"]
        for seg in range(3):
            for half in range(2):
                L.append(f"ds_read_b64_tr_b16 v[{f+4+4*seg+2*half}:{f+5+4*seg+2*half}], v{vWr2 if S%NWS==2 else vWr} offset:{(S%NWS%2)*WSL+ks*16*384+half*4*384+seg*128}")
        return L
    def reads(j):
        for l in reads_l(j): k(l)
    RSPLIT=eval(os.environ.get('RSPLIT','(2,2,3)'))
    def mfmas(j, fill=(), rd=()):
        f=F[j%3]; fill=list(fill); rd=list(rd)
        c=lambda a: "0" if j==0 else f"v[{a}:{a+15}]"
        M=[f"v_mfma_f32_32x32x16_bf16 v[{accQ}:{accQ+15}], v[{f+4}:{f+7}], v[{f}:{f+3}], {c(accQ)}",
           f"v_mfma_f32_32x32x16_bf16 v[{accK}:{accK+15}], v[{f+8}:{f+11}], v[{f}:{f+3}], {c(accK)}",
           f"v_mfma_f32_32x32x16_bf16 v[{accV}:{accV+15}], v[{f}:{f+3}], v[{f+12}:{f+15}], {c(accV)}"]
        for n,m in enumerate(M):
            if 'M' not in DBG: k(m)
            for _ in range(RSPLIT[n]):
                if rd: k(rd.pop(0))
            if fill: emit_g(fill.pop(0))
        for l in rd: k(l)
        for g in fill: emit_g(g)
    gs=V(); vgt=V(); vgt2=V()
    def gate_code():
        k(f"v_mov_b32 v{gs}, 0")
        for u in range(8): k(f"v_dot2c_f32_bf16 v{gs}, v{gx+u}, v{gw+u}")
        for n in (8,4,2,1): k(f"v_add_f32_dpp v{gs}, v{gs}, v{gs} row_ror:{n} row_mask:0xf bank_mask:0xf")
        k(f"v_add_f32_dpp v{gs}, v{gs}, v{gs} row_bcast:15 row_mask:0xa bank_mask:0xf")
        k(f"v_cvt_pk_bf16_f32 v{gs}, v{gs}, v{gs}")
        k(f"v_lshlrev_b32 v{gs}, 16, v{gs}")
        k(f"v_mul_f32 v{gs}, {NLOG2E:#x}, v{gs}")
        k(f"v_exp_f32 v{gs}, v{gs}")
        k(f"v_add_f32 v{gs}, 1.0, v{gs}")
        k(f"v_rcp_f32 v{gs}, v{gs}")
        k(f"v_cvt_pk_bf16_f32 v{gs}, v{gs}, v{gs}")
        k(f"v_lshlrev_b32 v{gs}, 16, v{gs}")
        k(f"v_lshlrev_b32 v{vgt}, 2, v{vH}")
        k(f"v_bfe_u32 v{vgt2}, v{vL}, 4, 1")
        k(f"v_subrev_u32 v{vgt2}, 1, v{vgt2}")
        k(f"v_and_b32 v{vgt2}, 0x80000000, v{vgt2}")
        k(f"v_or_b32 v{vgt}, v{vgt}, v{vgt2}")
        k(f"s_lshl_b32 s{sGt}, s{sGo}, 2")
        k(f"s_add_u32 s{sGt}, s{sGt}, {WS_G}")
        k(f"buffer_store_dword v{gs}, v{vgt}, s[{srdWS}:{srdWS+3}], s{sGt} offen {STF}")
    wf=V(8,4); vPhA=V(); vSg=V(); ones=V(); vRb=V(2); vSt=V(2); vRa=V(8); vFl=V()
    pre=[]
    P=lambda t: pre.append(t)
    P(f"v_bfe_u32 v{vt}, v{vL}, 2, 2")
    P(f"v_lshl_add_u32 v{vt}, v{vH}, 2, v{vt}")
    P(f"v_lshlrev_b32 v{vPhA}, 5, v{vt}")
    P(f"v_bfe_u32 v{vt2}, v{vL}, 4, 1")
    P(f"v_lshl_add_u32 v{vPhA}, v{vt2}, 4, v{vPhA}")
    P(f"v_bfe_u32 v{vt2}, v{vL}, 1, 1")
    P(f"v_lshl_add_u32 v{vPhA}, v{vt2}, 3, v{vPhA}")
    P(f"s_lshl_b32 s{sA}, s{sHG}, 10")
    P(f"v_add_u32 v{vPhA}, s{sA}, v{vPhA}")
    for hd in range(2):
        P(f"ds_read_b64_tr_b16 v[{wf+4*hd}:{wf+4*hd+1}], v{vPhA} offset:{L_WPHI+512*hd}")
        P(f"ds_read_b64_tr_b16 v[{wf+4*hd+2}:{wf+4*hd+3}], v{vPhA} offset:{L_WPHI+512*hd+256}")
    P(f"v_bfe_u32 v{vSg}, v{vL}, 2, 1")
    P(f"v_mul_u32_u24 v{vSg}, 0x8000, v{vSg}")
    P(f"v_lshl_or_b32 v{vSg}, v{vSg}, 16, v{vSg}")
    P(f"v_mov_b32 v{ones}, 0x3f803f80")
    P(f"v_and_b32 v{vt}, 15, v{vM}")
    P(f"v_lshlrev_b32 v{vt}, 4, v{vt}")
    P(f"v_lshl_add_u32 v{vt}, v{vH}, 9, v{vt}")
    P(f"v_lshlrev_b32 v{vt2}, 5, v{vH}")
    P(f"v_add_u32 v{vt2}, 2048, v{vt2}")
    P(f"s_mul_i32 s{sA}, s{sTBW}, 4352")
    P(f"s_mul_i32 s{sB}, s{sHG}, {2*WSL}")
    P(f"s_add_u32 s{sA}, s{sA}, s{sB}")
    P(f"s_add_u32 s{sA}, s{sA}, {L_WR}")
    P(f"v_cndmask_b32 v{vRb}, v{vt2}, v{vt}, s[{sMaskLo}:{sMaskLo+1}]")
    P(f"v_cndmask_b32 v{vRb+1}, v{vt}, v{vt2}, s[{sMaskLo}:{sMaskLo+1}]")
    P(f"v_add_u32 v{vRb}, s{sA}, v{vRb}")
    P(f"v_add_u32 v{vRb+1}, s{sA}, v{vRb+1}")
    P(f"v_mov_b32 v{vt}, 256")
    P(f"v_mov_b32 v{vt2}, 16")
    P(f"v_cndmask_b32 v{vSt}, v{vt2}, v{vt}, s[{sMaskLo}:{sMaskLo+1}]")
    P(f"v_cndmask_b32 v{vSt+1}, v{vt}, v{vt2}, s[{sMaskLo}:{sMaskLo+1}]")
    for hd in range(2):
        for i in range(4):
            c=4*(i&1)+(i>>1)
            P(f"v_mad_u32_u24 v{vRa+4*hd+i}, v{vSt+hd}, {c}, v{vRb+hd}")
    for u in range(8): P(f"v_xor_b32 v{wf+u}, v{wf+u}, v{vSg}")
    P(f"s_mul_i32 s{sA}, s{sHP}, {2*KVH}")
    P(f"s_add_u32 s{sA}, s{sA}, {WS_KV}")
    P(f"s_add_u32 s{srdKV}, s{sWS}, s{sA}")
    P(f"s_addc_u32 s{srdKV+1}, s{sWS+1}, 0")
    P(f"s_and_b32 s{srdKV+1}, s{srdKV+1}, 0xffff")
    P(f"s_mov_b32 s{srdKV+2}, {2*KVH}")
    P(f"s_mov_b32 s{srdKV+3}, 0x20000")
    P(f"s_lshl_b32 s{sE}, s{sHP}, 2")
    P(f"s_add_u32 s{sE}, s{sE}, 64")
    P(f"s_lshl_b32 s{sPhiO}, s{sTT}, 2")
    P(f"s_add_u32 s{sPhiO}, s{sPhiO}, s{sTBW}")
    P(f"s_lshl_b32 s{sPhiO}, s{sPhiO}, 16")
    P(f"s_lshl_b32 s{sA}, s{sHP}, 12")
    P(f"s_add_u32 s{sPhiO}, s{sPhiO}, s{sA}")
    vE=vRb; vEl=vRb+1
    P(f"v_and_b32 v{vE}, 255, v0")
    P(f"v_lshlrev_b32 v{vE}, 2, v{vE}")
    P(f"s_mul_i32 s{sB}, s{sHG}, {2*WSL}")
    P(f"v_add_u32 v{vEl}, s{sB}, v{vE}")
    late=[t for t in pre if t.startswith("ds_read_b64_tr_b16") or t.startswith(f"v_xor_b32 v{wf}") or any(t.startswith(f"v_xor_b32 v{wf+u},") for u in range(8))]
    early=[t for t in pre if t not in late]
    if 'L' in DBG: late=pre; early=[]
    for t in early: k(t)
    pre=late
    pend=[]
    for j in range(32):
        S=j>>2
        if j%4==0:
            k.wait_tag(f"w{S}")
            k.wait_tag(f"x{S}")
            k.wait_lg(0)
            k("s_barrier")
            if S in MK: st.mark(k,MK[S])
        if j<2 or 'I' in DBG: reads(j)
        if j==0 and XW1!='pro':
            dma_w(1); dma_x(1)
        if j%4==0 and S+2<8 and 'D' not in DBG:
            pend+=dma_w_l(S+2)+dma_x_l(S+2)
        if j>1:
            take=pend[:2]; pend=pend[2:]
            mfmas(j-2, take, [] if 'I' in DBG else reads_l(j))
        if j>=6:
            n=0 if 'Q' in DBG else 4
            while pre and n>0:
                t=pre.pop(0); k(t); n-=1
                if t.startswith("s_add_u32 s{}".format(srdKV)): k(pre.pop(0))
        if j==2:
            k(f"s_cmp_eq_u32 s{sFirst}, 1")
            k(f"s_cbranch_scc1 L_{name}_A_ev4")
            k.label(f"L_{name}_A_ev4ret")
            vm_ev4=k.vm_total
        if j==GJ:
            k(f"s_lshl_b32 s{sT}, s{sGo}, 10")
            k(f"buffer_load_dwordx4 v[{gx}:{gx+3}], v{vGa}, s[{srdX}:{srdX+3}], s{sT} offen")
            k(f"buffer_load_dwordx4 v[{gx+4}:{gx+7}], v{vGa}, s[{srdX}:{srdX+3}], s{sT} offen offset:16")
        if GATE=='loop' and j==GJ+8: gate_code()
        if j==13:
            vm_ev8=k.vm_total
            k(f"s_cmp_eq_u32 s{sFirst}, 1")
            k(f"s_cbranch_scc1 L_{name}_A_ev8")
            k.label(f"L_{name}_A_ev8ret")
        if j==28:
            assert 'Q' in DBG or not pre, len(pre)
            vm_poll0=k.vm_total
            k(f"s_cmp_eq_u32 s{sTBW}, 0")
            k(f"s_cbranch_scc1 L_{name}_A_poll0")
            k.label(f"L_{name}_A_poll0ret")
    assert not pend
    for t in pre: k(t)
    mfmas(30); mfmas(31)
    fa=F[2]; fb=F[0]
    kb=fa; qb=fa+8; vb=fb
    for u in range(8): k(f"v_cvt_pk_bf16_f32 v{kb+u}, v{accK+2*u}, v{accK+2*u+1}")
    pkA=V(16,4); pkB=V(16,4)
    k(f"v_mfma_f32_32x32x16_bf16 v[{pkA}:{pkA+15}], v[{wf}:{wf+3}], v[{kb}:{kb+3}], 0")
    k(f"v_mfma_f32_32x32x16_bf16 v[{pkB}:{pkB+15}], v[{wf+4}:{wf+7}], v[{kb+4}:{kb+7}], 0")
    for u in range(8): k(f"v_cvt_pk_bf16_f32 v{qb+u}, v{accQ+2*u}, v{accQ+2*u+1}")
    pqA=accK; pqB=accQ
    k(f"v_mfma_f32_32x32x16_bf16 v[{pqA}:{pqA+15}], v[{wf}:{wf+3}], v[{qb}:{qb+3}], 0")
    k(f"v_mfma_f32_32x32x16_bf16 v[{pqB}:{pqB+15}], v[{wf+4}:{wf+7}], v[{qb+4}:{qb+7}], 0")
    for u in range(8): k(f"v_cvt_pk_bf16_f32 v{vb+u}, v{accV+2*u}, v{accV+2*u+1}")
    vA_=accV; vB_=accV+8
    for u in range(8): k(f"v_cndmask_b32 v{vA_+u}, v{ones}, v{vb+u}, s[{sMaskLo}:{sMaskLo+1}]")
    for u in range(8): k(f"v_cndmask_b32 v{vB_+u}, v{vb+u}, v{ones}, s[{sMaskLo}:{sMaskLo+1}]")
    phA=V(8,4); phB=V(8,4); tmp=V(8,2)
    softmax2(k,[(pkA,phA),(pkB,phB)],tmp,sL2E)
    TA=pkA; TB=pkB
    k(f"v_mfma_f32_32x32x16_bf16 v[{TA}:{TA+15}], v[{phA}:{phA+3}], v[{I}:{I+3}], 0")
    k(f"v_mfma_f32_32x32x16_bf16 v[{TB}:{TB+15}], v[{phB}:{phB+3}], v[{I}:{I+3}], 0")
    k(f"v_mfma_f32_32x32x16_bf16 v[{TA}:{TA+15}], v[{phA+4}:{phA+7}], v[{I+4}:{I+7}], v[{TA}:{TA+15}]")
    k(f"v_mfma_f32_32x32x16_bf16 v[{TB}:{TB+15}], v[{phB+4}:{phB+7}], v[{I+4}:{I+7}], v[{TB}:{TB+15}]")
    if GATE=='epi': gate_code()
    ptA=phA; ptB=phB
    for u in range(8): k(f"v_cvt_pk_bf16_f32 v{ptA+u}, v{TA+2*u}, v{TA+2*u+1}")
    for u in range(8): k(f"v_cvt_pk_bf16_f32 v{ptB+u}, v{TB+2*u}, v{TB+2*u+1}")
    kvA=TA; kvB=TB
    k(f"v_mfma_f32_32x32x16_bf16 v[{kvA}:{kvA+15}], v[{ptA}:{ptA+3}], v[{vA_}:{vA_+3}], 0")
    k(f"v_mfma_f32_32x32x16_bf16 v[{kvB}:{kvB+15}], v[{ptB}:{ptB+3}], v[{vB_}:{vB_+3}], 0")
    k(f"v_mfma_f32_32x32x16_bf16 v[{kvA}:{kvA+15}], v[{ptA+4}:{ptA+7}], v[{vA_+4}:{vA_+7}], v[{kvA}:{kvA+15}]")
    k(f"v_mfma_f32_32x32x16_bf16 v[{kvB}:{kvB+15}], v[{ptB+4}:{ptB+7}], v[{vB_+4}:{vB_+7}], v[{kvB}:{kvB+15}]")
    for hd,kvr in ((0,kvA),(1,kvB)):
        for i in range(4):
            k(f"ds_write_b128 v{vRa+4*hd+i}, v[{kvr+4*i}:{kvr+4*i+3}] offset:{hd*KVH}")
    def q_part():
        pq_o=gx
        assert gw==gx+8
        softmax2(k,[(pqA,pq_o),(pqB,pq_o+8)],tmp,sL2E)
        for q in range(4):
            k(f"buffer_store_dwordx4 v[{pq_o+4*q}:{pq_o+4*q+3}], v{vL16}, s[{srdWS}:{srdWS+3}], s{sPhiO} offen offset:{q*1024} {STF}")
    if QORD=='mid': q_part()
    vm_poll=k.vm_total
    k(f"s_cmp_eq_u32 s{sTBW}, 0")
    k(f"s_cbranch_scc1 L_{name}_A_poll")
    k.label(f"L_{name}_A_flagok")
    k.barrier()
    rd=accV; rd2=fb
    for u in range(5):
        for w in range(4):
            k(f"ds_read_b32 v{rd+4*u+w if u<4 else rd2+w}, v{vEl} offset:{L_WR+w*4352+1024*u}")
    for u in range(5):
        b=rd+4*u if u<4 else rd2
        k(f"v_add_f32 v{b}, v{b}, v{b+1}")
        k(f"v_add_f32 v{b+2}, v{b+2}, v{b+3}")
        k(f"v_add_f32 v{b}, v{b}, v{b+2}")
        if u<4: k(f"buffer_atomic_add_f32 v{b}, v{vE}, s[{srdKV}:{srdKV+3}], 0 offen offset:{1024*u} sc1")
        else:
            k(f"v_add_u32 v{vt}, 4096, v{vE}")
            k(f"buffer_atomic_add_f32 v{b}, v{vt}, s[{srdKV}:{srdKV+3}], 0 offen sc1")
    if QORD=='last': q_part()
    if fused: k(f"s_branch L_{name}_F")
    else:
        st.finish(k,sWS,sW,accQ)
        k("s_endpgm")
    k.auto=False
    if fused: rel_read_block(k,name,"A",vZ,srdWS)
    k.label(f"L_{name}_A_ev4")
    k(f"s_mul_i32 s{sR}, s{sHP}, {2*KVH}")
    k(f"s_add_u32 s{sR}, s{sR}, {WS_KV}")
    for u in range(5):
        if u<4:
            k(f"buffer_store_dwordx4 v[{z4}:{z4+3}], v{vL16}, s[{srdWS}:{srdWS+3}], s{sR} offen offset:{u*1024} sc1")
        else:
            k(f"s_add_u32 s{sR}, s{sR}, 4096")
            k(f"s_mov_b64 exec, 0xffff")
            k(f"buffer_store_dwordx4 v[{z4}:{z4+3}], v{vL16}, s[{srdWS}:{srdWS+3}], s{sR} offen sc1")
            k(f"s_mov_b64 exec, -1")
    k(f"s_branch L_{name}_A_ev4ret")
    k.label(f"L_{name}_A_ev8")
    k(f"s_waitcnt vmcnt({vm_ev8-vm_ev4})")
    k(f"v_mov_b32 v{vOne}, 1")
    k(f"s_lshl_b32 s{sR}, s{sHP}, 2")
    k(f"s_add_u32 s{sR}, s{sR}, 64")
    k(f"s_mov_b64 exec, 1")
    k(f"buffer_store_dword v{vOne}, v{vZ}, s[{srdDBG}:{srdDBG+3}], s{sR} offen sc1")
    k(f"s_mov_b64 exec, -1")
    k(f"s_branch L_{name}_A_ev8ret")
    k.label(f"L_{name}_A_poll0")
    k(f"buffer_load_dword v{vFl}, v{vZ}, s[{srdDBG}:{srdDBG+3}], s{sE} offen sc1")
    k(f"s_branch L_{name}_A_poll0ret")
    k.label(f"L_{name}_A_poll")
    k(f"s_mov_b32 s{sTick}, 0")
    k(f"s_waitcnt vmcnt({vm_poll-vm_poll0})")
    k.label(f"L_{name}_A_poll1")
    k(f"v_readfirstlane_b32 s{sR}, v{vFl}")
    k("s_nop 0")
    k(f"s_cmp_lg_u32 s{sR}, 0")
    k(f"s_cbranch_scc1 L_{name}_A_flagok")
    k(f"s_add_u32 s{sTick}, s{sTick}, 1")
    k(f"s_cmp_ge_u32 s{sTick}, 0x40000")
    k(f"s_cbranch_scc1 L_{name}_A_flagok")
    k("s_sleep 1")
    k(f"buffer_load_dword v{vFl}, v{vZ}, s[{srdDBG}:{srdDBG+3}], s{sE} offen sc1")
    k("s_waitcnt vmcnt(0)")
    k(f"s_branch L_{name}_A_poll1")
    k.auto=True
    return V.hi
```

```python
from dsl import *
from common import *
import os
GMODE=os.environ.get('GMODE','split2')
DB=os.environ.get('DBGB','')
STF=os.environ.get('STF','sc1')
TBP=os.environ.get('TBP','xw')
PRIO=os.environ.get('PRIOB','')
from k1a import mk_srd,sWO,sWQ,srdT,sX,sLA,sAI,sCR,sCI,sLDT,sDS,sWS,sW,sXCD,sIDX,srdX,srdWS,LOG2E,NLOG2E

UC=4160
CH=31744
KOFF=16640
P1=4640
L_WOB=4*CH
XB=32768
INV2PI=0x3e22f983

def cmul(k,dst,w,z,t):
    k(f"v_pk_mul_f32 v[{t}:{t+1}], v[{w}:{w+1}], v[{z}:{z+1}] op_sel:[0,0] op_sel_hi:[0,1]")
    k(f"v_pk_fma_f32 v[{dst}:{dst+1}], v[{w}:{w+1}], v[{z}:{z+1}], v[{t}:{t+1}] op_sel:[1,1,0] op_sel_hi:[1,0,1] neg_lo:[0,1,0]")

def gen_b(k,name,st,fused=False):
    from kf import rel_read_rare, rel_read_block
    V=Alloc("v",1,256)
    sA=64; sB=65; sT=39; sD0=66; sCh=67; sRole=68; sLdt=69; sDsk=70; sCB=71; sSel0=72; sSel1=73; sEx=74; sTab=76
    vL=V(); vt=V(); vt2=V(); vt3=V(); t0=V(2,2); t1=V(2,2)
    vI=V(); vQ=V(); vA=V(); vB=V()
    mark0=V.mark()
    sP=80; sDP=81; sWp=82; sXS=85
    k(f"s_add_u32 s{sXS}, s{sXCD}, {int(os.environ.get('XSH','0'))}")
    k(f"s_and_b32 s{sXS}, s{sXS}, 7")
    k(f"s_lshl_b32 s{sD0}, s{sXS}, 6")
    k(f"s_lshl_b32 s{sA}, s{sIDX}, 2")
    k(f"s_add_u32 s{sD0}, s{sD0}, s{sA}")
    k(f"s_lshr_b32 s{sCh}, s{sW}, 1")
    k(f"s_and_b32 s{sRole}, s{sW}, 1")
    k(f"s_lshr_b32 s{sP}, s{sW}, 2")
    k(f"s_and_b32 s{sWp}, s{sW}, 3")
    k(f"s_lshl_b32 s{sA}, s{sP}, 1")
    k(f"s_add_u32 s{sDP}, s{sD0}, s{sA}")
    k(f"v_and_b32 v{vL}, 63, v0")
    k(f"s_add_u32 s{sA}, s{sD0}, s{sCh}")
    k(f"s_lshl_b32 s{sA}, s{sA}, 8")
    vP=V()
    k(f"v_lshlrev_b32 v{vP}, 2, v{vL}")
    k(f"v_add_u32 v{vP}, s{sA}, v{vP}")
    k(f"s_lshl_b32 s{sB}, s{sDP}, 1")
    k("s_waitcnt lgkmcnt(0)")
    k(f"s_load_dword s{sLdt}, s[{sLDT}:{sLDT+1}], s{sB}")
    k(f"s_load_dword s{sDsk}, s[{sDS}:{sDS+1}], s{sB}")
    pl=V(); pa=V(); pcr=V(); pci=V()
    k(f"global_load_dword v{pl}, v{vP}, s[{sLA}:{sLA+1}]")
    k(f"global_load_dword v{pa}, v{vP}, s[{sAI}:{sAI+1}]")
    k(f"global_load_dword v{pcr}, v{vP}, s[{sCR}:{sCR+1}]")
    k(f"global_load_dword v{pci}, v{vP}, s[{sCI}:{sCI+1}]", tag="par")
    mk_srd(k,srdX,sX,2048*512*2)
    g=V(14,2); vG=V(); vH3=V(); vPf=250
    def touch_a():
        k(f"v_and_b32 v{vt}, 15, v{vL}")
        k(f"v_lshlrev_b32 v{vt}, 10, v{vt}")
        k(f"s_lshl_b32 s{sA}, s{sIDX}, 7")
        k(f"s_lshl_b32 s{sT}, s{sW}, 4")
        k(f"s_add_u32 s{sA}, s{sA}, s{sT}")
        k(f"s_lshl_b32 s{sA}, s{sA}, 10")
        k(f"s_lshl_b32 s{sT}, s{sXS}, 7")
        k(f"s_add_u32 s{sA}, s{sA}, s{sT}")
        k(f"s_mov_b64 exec, 0xffff")
        k(f"buffer_load_dword v{vPf}, v{vt}, s[{srdX}:{srdX+3}], s{sA} offen")
        k(f"s_mov_b64 exec, -1")
    def touch_b():
        if True:
            sS1=83; sTo=84
            k(f"s_lshr_b32 s{sA}, s{sIDX}, 2")
            k(f"s_and_b32 s{sT}, s{sIDX}, 3")
            k(f"s_add_u32 s{sA}, s{sA}, s{sT}")
            k(f"s_and_b32 s{sA}, s{sA}, 3")
            k(f"s_lshl_b32 s{sS1}, s{sA}, 1")
            k(f"s_add_u32 s{sS1}, s{sS1}, 1")
            k(f"s_and_b32 s{sA}, s{sXCD}, 3")
            k(f"s_lshl_b32 s{sA}, s{sA}, 2")
            k(f"s_add_u32 s{sA}, s{sA}, s{sT}")
            k(f"s_lshl_b32 s{sA}, s{sA}, 7")
            k(f"s_lshl_b32 s{sT}, s{sW}, 4")
            k(f"s_add_u32 s{sA}, s{sA}, s{sT}")
            k(f"s_lshl_b32 s{sA}, s{sA}, 10")
            k(f"s_lshl_b32 s{sT}, s{sS1}, 7")
            k(f"s_add_u32 s{sTo}, s{sA}, s{sT}")
            k(f"v_and_b32 v{vt}, 15, v{vL}")
            k(f"v_lshlrev_b32 v{vt}, 10, v{vt}")
            if 'x' in TBP:
                k(f"s_mov_b64 exec, 0xffff")
                k(f"buffer_load_dword v{vPf}, v{vt}, s[{srdX}:{srdX+3}], s{sTo} offen")
                k(f"s_mov_b64 exec, -1")
            mk_srd(k,srdT,sWQ,512*1536*2)
            k(f"v_mul_u32_u24 v{vt}, 171, v{vL}")
            k(f"v_lshrrev_b32 v{vt}, 9, v{vt}")
            k(f"v_mul_u32_u24 v{vt2}, 3, v{vt}")
            k(f"v_sub_u32 v{vt2}, v{vL}, v{vt2}")
            k(f"v_mul_u32_u24 v{vt}, 3072, v{vt}")
            k(f"v_lshl_add_u32 v{vt}, v{vt2}, 10, v{vt}")
            k(f"s_lshl_b32 s{sA}, s{sS1}, 6")
            k(f"s_lshl_b32 s{sT}, s{sW}, 3")
            k(f"s_add_u32 s{sA}, s{sA}, s{sT}")
            k(f"s_mul_i32 s{sA}, s{sA}, 3072")
            k(f"s_lshr_b32 s{sT}, s{sXCD}, 2")
            k(f"s_lshl_b32 s{sT}, s{sT}, 2")
            k(f"s_lshr_b32 s{sTo}, s{sIDX}, 2")
            k(f"s_add_u32 s{sT}, s{sT}, s{sTo}")
            k(f"s_lshl_b32 s{sT}, s{sT}, 7")
            k(f"s_add_u32 s{sA}, s{sA}, s{sT}")
            if 'w' in TBP:
                k(f"s_mov_b64 exec, {'0xffffff' if 'h' not in TBP else '0xfff'}")
                k(f"buffer_load_dword v{vPf}, v{vt}, s[{srdT}:{srdT+3}], s{sA} offen")
                k(f"s_mov_b64 exec, -1")
    TM=os.environ.get('TMODE','a')
    for ch_ in TM:
        if ch_=='a': touch_a()
        if ch_=='b': touch_b()
    sFr=78
    def wo_dma():
        k(f"s_lshl_b32 s{sFr}, s{sXCD}, 4")
        k(f"s_add_u32 s{sFr}, s{sFr}, s{sIDX}")
        k(f"s_lshl_b32 s{sFr}, s{sFr}, 2")
        k(f"s_add_u32 s{sFr}, s{sFr}, s{sWp}")
        mk_srd(k,srdT,sWO,512*512*2)
        k(f"v_lshrrev_b32 v{vt}, 2, v{vL}")
        k(f"v_and_b32 v{vt2}, 3, v{vL}")
        k(f"v_lshlrev_b32 v{vt2}, 4, v{vt2}")
        k(f"v_lshl_add_u32 v{vt}, v{vt}, 10, v{vt2}")
        k(f"s_and_b32 s{sA}, s{sFr}, 31")
        k(f"s_lshl_b32 s{sA}, s{sA}, 14")
        k(f"s_lshr_b32 s{sT}, s{sFr}, 5")
        k(f"s_lshl_b32 s{sT}, s{sT}, 6")
        k(f"s_add_u32 s{sT}, s{sA}, s{sT}")
        k(f"s_lshl_b32 s{sA}, s{sW}, 10")
        k(f"s_add_u32 m0, s{sA}, {L_WOB}")
        k(f"s_nop 0")
        k(f"buffer_load_dwordx4 v{vt}, s[{srdT}:{srdT+3}], s{sT} offen lds", tag="wo")
    k(f"v_lshlrev_b32 v{vG}, 12, v0")
    k(f"s_lshl_b32 s{sA}, s{sD0}, 1")
    k(f"v_add_u32 v{vG}, s{sA}, v{vG}")
    k(f"v_subrev_u32 v{vH3}, 3072, v{vG}")
    side=[]
    for r in range(4):
        side.append([f"buffer_load_dwordx2 v[{g+6+2*r}:{g+7+2*r}], v{vG}, s[{srdX}:{srdX+3}], 0 offen offset:{r*1024}"])
    side.append(["s_mov_b64 exec, 1"]+[f"buffer_load_dwordx2 v[{g+2*r}:{g+2*r+1}], v{vH3}, s[{srdX}:{srdX+3}], 0 offen offset:{r*1024}" for r in range(3)]+["s_mov_b64 exec, -1"])
    mk_srd(k,srdWS,sWS,WS_SIZE)
    if fused:
        vZb=V(); k(f"v_mov_b32 v{vZb}, 0")
        rel_read_rare(k,name,"B",vZb)
    k(f"s_mul_i32 s{sCB}, s{sCh}, {CH}")
    k(f"s_mov_b32 s{sTab}, s{sCB}")
    aX=V(16)
    k(f"v_and_b32 v{vt}, 1, v{vL}")
    k(f"v_lshlrev_b32 v{vt}, 3, v{vt}")
    k(f"v_lshrrev_b32 v{vt2}, 1, v{vL}")
    k(f"v_lshl_add_u32 v{vt}, v{vt2}, 4, v{vt}")
    k(f"v_add_u32 v{aX}, s{sTab}, v{vt}")
    for x in range(1,16): k(f"v_xor_b32 v{aX+x}, {x<<4}, v{aX}")
    k(f"v_and_b32 v{vI}, 15, v{vL}")
    k(f"v_lshrrev_b32 v{vQ}, 4, v{vL}")
    def rdaddr(dst,rowreg):
        k(f"v_and_b32 v{vt}, 15, v{rowreg}")
        k(f"v_xor_b32 v{vt}, v{vt}, v{vQ}")
        k(f"v_lshlrev_b32 v{vt}, 4, v{vt}")
        k(f"v_lshl_add_u32 v{vt}, v{rowreg}, 9, v{vt}")
        k(f"v_add_u32 v{dst}, s{sTab}, v{vt}")
        for ks in range(1,4): k(f"v_xor_b32 v{dst+ks}, {ks<<6}, v{dst}")
    rF=V(4); rG1=V(4); rG2=V(4)
    rdaddr(rF,vI)
    def rne(dst,kk):
        k(f"v_bfe_u32 v{dst}, v{vI}, {kk}, 1")
        k(f"v_add3_u32 v{dst}, v{dst}, v{vI}, {(1<<(kk-1))-1}")
        k(f"v_lshrrev_b32 v{dst}, {kk}, v{dst}")
    z4=V(4,4)
    for u in range(4): k(f"v_mov_b32 v{z4+u}, 0")
    vDt=V(); vDs=V()
    k("s_waitcnt lgkmcnt(0)")
    k(f"s_lshl_b32 s{sA}, s{sLdt}, 16")
    k(f"s_and_b32 s{sB}, s{sLdt}, 0xffff0000")
    k(f"s_bitcmp0_b32 s{sCh}, 0")
    k(f"s_cselect_b32 s{sLdt}, s{sA}, s{sB}")
    k(f"s_lshl_b32 s{sA}, s{sDsk}, 16")
    k(f"s_and_b32 s{sB}, s{sDsk}, 0xffff0000")
    k(f"s_bitcmp0_b32 s{sCh}, 0")
    k(f"s_cselect_b32 s{sDsk}, s{sA}, s{sB}")
    k(f"v_mov_b32 v{vDt}, {LOG2E:#x}")
    k(f"v_mul_f32 v{vDt}, s{sLdt}, v{vDt}")
    k(f"v_exp_f32 v{vDt}, v{vDt}")
    k(f"v_cvt_pk_bf16_f32 v{vDt}, v{vDt}, v{vDt}")
    k(f"v_lshlrev_b32 v{vDt}, 16, v{vDt}")
    k(f"v_cmp_eq_u32 vcc, 0, v{vL}")
    k(f"v_mov_b32 v{vt}, s{sDsk}")
    k(f"v_cndmask_b32 v{vDs}, 0, v{vt}, vcc")
    import struct
    re2=V(2); fr=V(2); cc=[V(2,2),V(2,2)]; T0=[V(2,2),V(2,2)]; T1=[V(2,2),V(2,2)]
    def unpack(dst,src,m):
        if m==0: k(f"v_lshlrev_b32 v{dst}, 16, v{src}")
        else: k(f"v_and_b32 v{dst}, 0xffff0000, v{src}")
    def both(f):
        for m in range(2): f(m)
    def mode_params(need_c):
        both(lambda m: unpack(re2+m,pl,m))
        both(lambda m: k(f"v_mul_f32 v{re2+m}, {LOG2E:#x}, v{re2+m}"))
        both(lambda m: k(f"v_exp_f32 v{re2+m}, v{re2+m}"))
        both(lambda m: unpack(fr+m,pa,m))
        k(f"v_cvt_pk_bf16_f32 v{vt}, v{re2}, v{re2+1}")
        both(lambda m: k(f"v_mul_f32 v{fr+m}, v{fr+m}, v{vDt}"))
        both(lambda m: unpack(re2+m,vt,m))
        both(lambda m: k(f"v_mul_f32 v{fr+m}, {INV2PI:#x}, v{fr+m}"))
        both(lambda m: k(f"v_mul_f32 v{re2+m}, v{re2+m}, v{vDt}"))
        both(lambda m: k(f"v_mul_f32 v{re2+m}, {NLOG2E:#x}, v{re2+m}"))
        if need_c:
            both(lambda m: unpack(cc[m],pcr,m))
            both(lambda m: unpack(cc[m]+1,pci,m))
            k(f"v_add_f32 v{vt}, v{vDt}, v{vDt}")
            both(lambda m: k(f"v_mul_f32 v{cc[m]}, v{cc[m]}, v{vt}"))
            both(lambda m: k(f"v_mul_f32 v{cc[m]+1}, v{cc[m]+1}, v{vt}"))
    def Edirect(dst,p):
        lit=struct.unpack("<I",struct.pack("<f",float(p)))[0]
        if p==1:
            both(lambda m: k(f"v_exp_f32 v{T1[m]}, v{re2+m}"))
            both(lambda m: k(f"v_fract_f32 v{T1[m]+1}, v{fr+m}"))
        else:
            both(lambda m: k(f"v_mul_f32 v{T1[m]}, {lit:#x}, v{re2+m}"))
            both(lambda m: k(f"v_mul_f32 v{T1[m]+1}, {lit:#x}, v{fr+m}"))
            both(lambda m: k(f"v_exp_f32 v{T1[m]}, v{T1[m]}"))
            both(lambda m: k(f"v_fract_f32 v{T1[m]+1}, v{T1[m]+1}"))
        both(lambda m: k(f"v_cos_f32 v{dst[m]}, v{T1[m]+1}"))
        both(lambda m: k(f"v_sin_f32 v{dst[m]+1}, v{T1[m]+1}"))
        both(lambda m: k(f"v_pk_mul_f32 v[{dst[m]}:{dst[m]+1}], v[{dst[m]}:{dst[m]+1}], v[{T1[m]}:{T1[m]+1}] op_sel_hi:[1,0]"))
    def cmul2(dst,w,z,T):
        both(lambda m: k(f"v_pk_mul_f32 v[{T[m]}:{T[m]+1}], v[{w[m]}:{w[m]+1}], v[{z[m]}:{z[m]+1}] op_sel:[0,0] op_sel_hi:[0,1]"))
        both(lambda m: k(f"v_pk_fma_f32 v[{dst[m]}:{dst[m]+1}], v[{w[m]}:{w[m]+1}], v[{z[m]}:{z[m]+1}], v[{T[m]}:{T[m]+1}] op_sel:[1,1,0] op_sel_hi:[1,0,1] neg_lo:[0,1,0]"))
    pk=[V(2,2),V(2,2)]
    pkc=[0]
    sidel=[]
    def wrow(row,w,neg):
        r=pk[pkc[0]&1]; pkc[0]+=1
        both(lambda m: k(f"v_cvt_pk_bf16_f32 v{r+m}, v{w[m]}, {'-' if neg else ''}v{w[m]+1}"))
        if 'W' not in DB: k(f"ds_write_b64 v{aX+(row&15)}, v[{r}:{r+1}] offset:{row*512}")
        if sidel and GMODE[0]=='i' and pkc[0]%int(GMODE[1:])==0:
            for l in sidel.pop(0): k(l)
    P2=lambda: [V(2,2),V(2,2)]
    wA=P2(); wB=P2(); zz=P2(); e4=P2(); e8=P2(); e12=P2(); e16=P2(); eb=P2()
    def mov2(dst,src):
        for m in range(2):
            k(f"v_mov_b32 v{dst[m]}, v{src[m]}"); k(f"v_mov_b32 v{dst[m]+1}, v{src[m]+1}")
    def table_role0(mid=None):
        mode_params(True)
        Edirect(zz,16)
        Edirect(wB,256)
        cmul2(wB,wB,cc,T0)
        if mid: mid()
        for a in range(16):
            src=cc if a==0 else wA
            wrow(a,src,True); wrow(16+a,wB,True)
            if a<15:
                cmul2(wA,src,zz,T0); cmul2(wB,wB,zz,T1)
    def table_role1(mid=None):
        mode_params(False)
        Edirect(zz,1)
        r=pk[pkc[0]&1]; pkc[0]+=1
        k(f"v_mov_b32 v{r}, 0x3f80"); k(f"v_mov_b32 v{r+1}, 0x3f80")
        k(f"ds_write_b64 v{aX+0}, v[{r}:{r+1}] offset:{32*512}")
        keep={4:e4,8:e8,12:e12,16:e16}
        Edirect(eb,512)
        wrow(33,zz,False)
        wrow(50,eb,False)
        if mid: mid()
        cur=zz
        for b in range(2,17):
            dst=keep.get(b,wA)
            cmul2(dst,cur,zz,T0)
            cur=dst
            wrow(32+b if b<16 else 49,cur,False)
            if b in keep:
                cmul2(wB,eb,cur,T1)
                wrow(50+2*(b//4),wB,False)
        for (p,row) in ((1024,51),(1536,57)):
            Edirect(eb,p)
            wrow(row,eb,False)
            cmul2(wB,eb,e8,T0); wrow(row+2,wB,False)
            cmul2(wB,eb,e16,T1); wrow(row+4,wB,False)
    uo={}
    def u_prep():
        for r in range(3):
            for dw in range(2):
                k(f"v_mov_b32_dpp v{g+2*r+dw}, v{g+2*(r+4)+dw} wave_shr:1 row_mask:0xf bank_mask:0xf")
        k(f"s_mov_b32 s{sSel0}, 0x05040100")
        k(f"s_mov_b32 s{sSel1}, 0x07060302")
        uo['z']=V(); uo['u']=V(); uo['u2']=V(); uo['o']=V(32,2)
        k(f"v_lshrrev_b32 v{vt}, 4, v{vL}")
        k(f"v_mul_u32_u24 v{vt}, {CH}, v{vt}")
        k(f"v_bfe_u32 v{vt2}, v{vL}, 2, 2")
        k(f"v_mul_u32_u24 v{vt2}, {UC}, v{vt2}")
        k(f"v_add_u32 v{vt}, v{vt}, v{vt2}")
        k(f"v_and_b32 v{vt2}, 3, v{vL}")
        k(f"v_lshl_add_u32 v{uo['z']}, v{vt2}, 4, v{vt}")
        k(f"v_sub_u32 v{uo['u']}, 511, v0")
        k(f"v_lshlrev_b32 v{uo['u']}, 3, v{uo['u']}")
        k(f"v_add_u32 v{uo['u2']}, {2*CH}, v{uo['u']}")
        G=lambda r,dw: g+2*(r+3)+dw
        for ch in range(4):
            sel=sSel0 if ch%2==0 else sSel1; dw=ch>>1
            for c in range(4):
                o=uo['o']+2*(4*ch+c)
                k(f"v_perm_b32 v{o}, v{G(c-1,dw)}, v{G(c,dw)}, s{sel}")
                k(f"v_perm_b32 v{o+1}, v{G(c-3,dw)}, v{G(c-2,dw)}, s{sel}")
    def u_write():
        k(f"ds_write_b128 v{uo['z']}, v[{z4}:{z4+3}] offset:4096")
        for ch in range(4):
            for c in range(4):
                o=uo['o']+2*(4*ch+c)
                k(f"ds_write_b64 v{uo['u'] if ch<2 else uo['u2']}, v[{o}:{o+1}] offset:{(ch%2)*CH+c*UC}")
    acc=V(16,4)
    fr_=[V(20,4),V(20,4),V(20,4)]
    def kreads(role,u):
        hi,ks=u>>2,u&3; f=fr_[u%3]; o=hi*256
        k(f"ds_read_b128 v[{f}:{f+3}], v{rF+ks} offset:{o}")
        if role==0:
            k(f"ds_read_b128 v[{f+8}:{f+11}], v{rF+ks} offset:{o+16384}")
            k(f"ds_read_b128 v[{f+4}:{f+7}], v{rF+ks} offset:{o+8192}")
            k(f"ds_read_b128 v[{f+12}:{f+15}], v{rG1+ks} offset:{o}")
            k(f"ds_read_b128 v[{f+16}:{f+19}], v{rG2+ks} offset:{o}")
        else:
            k(f"ds_read_b128 v[{f+8}:{f+11}], v{rG1+ks} offset:{o}")
            k(f"ds_read_b128 v[{f+4}:{f+7}], v{rF+ks} offset:{o+8192}")
            k(f"ds_read_b128 v[{f+12}:{f+15}], v{rG2+ks} offset:{o}")
    def kmf(role,u):
        f=fr_[u%3]
        if role==0: pairs=[(0,f+8,f),(1,f+12,f+4),(2,f+16,f),(3,f+16,f+4)]
        else: pairs=[(0,f+8,f),(1,f+8,f+4),(2,f+12,f),(3,f+12,f+4)]
        for (T,a,b) in pairs:
            cin="0" if u==0 else f"v[{acc+4*T}:{acc+4*T+3}]"
            k(f"v_mfma_f32_16x16x32_bf16 v[{acc+4*T}:{acc+4*T+3}], v[{a}:{a+3}], v[{b}:{b+3}], {cin}")
    def kmfma(role):
        kreads(role,0); kreads(role,1)
        for u in range(8):
            if u+2<8: kreads(role,u+2)
            kmf(role,u)
    def wo_frag():
        wof=fr_[0]; vWoA=fr_[0]+4
        k(f"v_bfe_u32 v{vt}, v{vL}, 2, 2")
        k(f"v_lshrrev_b32 v{vt2}, 5, v{vL}")
        k(f"v_lshl_add_u32 v{vt}, v{vt2}, 2, v{vt}")
        k(f"v_lshlrev_b32 v{vWoA}, 6, v{vt}")
        k(f"v_bfe_u32 v{vt2}, v{vL}, 4, 1")
        k(f"v_lshl_add_u32 v{vWoA}, v{vt2}, 5, v{vWoA}")
        k(f"v_and_b32 v{vt2}, 3, v{vL}")
        k(f"v_lshl_add_u32 v{vWoA}, v{vt2}, 3, v{vWoA}")
        k(f"s_lshl_b32 s{sA}, s{sW}, 10")
        k(f"s_add_u32 s{sA}, s{sA}, {L_WOB}")
        k(f"v_add_u32 v{vWoA}, s{sA}, v{vWoA}")
        k.wait_tag("wo")
        k(f"ds_read_b64_tr_b16 v[{wof}:{wof+1}], v{vWoA}")
        k(f"ds_read_b64_tr_b16 v[{wof+2}:{wof+3}], v{vWoA} offset:512")
        k(f"v_lshlrev_b32 v{vt}, 4, v{vL}")
        k(f"s_lshl_b32 s{sA}, s{sFr}, 10")
        k(f"s_add_u32 s{sA}, s{sA}, {WS_WO}")
        k(f"buffer_store_dwordx4 v[{wof}:{wof+3}], v{vt}, s[{srdWS}:{srdWS+3}], s{sA} offen {STF}")
    row=V()
    k(f"s_cmp_eq_u32 s{sRole}, 0")
    k(f"s_cbranch_scc0 L_{name}_B1")
    snap=k.snapshot(); mark=V.mark()
    for role in range(2):
        if role==1:
            k.restore(snap); V.reset(mark); k.label(f"L_{name}_B1")
        if role==0:
            rne(row,1)
            k(f"v_lshrrev_b32 v{vt2}, 3, v{row}")
            k(f"v_lshl_add_u32 v{row}, v{row}, 1, v{vt2}")
            k(f"v_add_u32 v{row}, 32, v{row}")
            rdaddr(rG1,row)
            rne(row,2); k(f"v_lshlrev_b32 v{row}, 1, v{row}"); k(f"v_add_u32 v{row}, 50, v{row}"); rdaddr(rG2,row)
        else:
            rne(row,3); k(f"v_lshlrev_b32 v{row}, 1, v{row}"); k(f"v_add_u32 v{row}, 51, v{row}"); rdaddr(rG1,row)
            k(f"v_add_u32 v{row}, 6, v{row}"); rdaddr(rG2,row)
        tab=table_role0 if role==0 else table_role1
        st.mark(k,1)
        if PRIO: k(f"s_setprio {PRIO}")
        if 'A' in TM or 'B' in TM:
            k.wait_tag("par")
            if 'B' in TM: touch_b()
            if 'A' in TM: touch_a()
        flat=[l for blk in side for l in blk]
        if GMODE=='split2':
            st_={}
            def mid():
                k(f"s_cmp_eq_u32 s{sP}, 1")
                k(f"s_cbranch_scc0 L_{name}_B{role}_g0")
                vmq=list(k.vm)
                for l in flat: k(l)
                k.label(f"L_{name}_B{role}_g0")
                k.vm=vmq
            tab(mid)
            k(f"s_cmp_eq_u32 s{sP}, 0")
            k(f"s_cbranch_scc0 L_{name}_B{role}_g1")
            for l in flat: k(l)
            k.label(f"L_{name}_B{role}_g1")
        elif GMODE=='ink':
            tab()
        elif GMODE=='split':
            k.wait_tag("par")
            k(f"s_cmp_eq_u32 s{sP}, 0")
            k(f"s_cbranch_scc0 L_{name}_B{role}_g0")
            vmq=list(k.vm)
            for l in flat: k(l)
            k.label(f"L_{name}_B{role}_g0")
            k.vm=vmq
            tab()
            k(f"s_cmp_eq_u32 s{sP}, 1")
            k(f"s_cbranch_scc0 L_{name}_B{role}_g1")
            for l in flat: k(l)
            k.label(f"L_{name}_B{role}_g1")
        else:
            sidel.clear(); sidel.extend([list(x) for x in side] if 'G' not in DB else [])
            if GMODE=='pre':
                k.wait_tag("par")
                for blk in sidel:
                    for l in blk: k(l)
                sidel.clear()
            tab()
            for blk in sidel:
                for l in blk: k(l)
            sidel.clear()
        st.mark(k,2)
        k.barrier()
        if not fused: wo_dma()
        else:
            mk_srd(k,srdT,sWO,512*512*2)
            k(f"v_and_b32 v{vt}, 31, v{vL}")
            k(f"v_lshlrev_b32 v{vt}, 7, v{vt}")
            k(f"s_lshl_b32 s{sA}, s{sIDX}, 3")
            k(f"s_add_u32 s{sA}, s{sA}, s{sW}")
            k(f"s_lshl_b32 s{sA}, s{sA}, 12")
            k(f"buffer_load_dword v{vPf}, v{vt}, s[{srdT}:{srdT+3}], s{sA} offen")
        if GMODE=='ink':
            k.bg=[[(l,None) for l in blk] for blk in side]; k.bg_every=int(os.environ.get('GEV','6'))
        kmfma(role)
        k.bg_flush()
        st.mark(k,3)
        u_prep()
        vK=vt3
        k(f"s_add_u32 s{sTab}, s{sCB}, {KOFF}")
        k(f"v_lshlrev_b32 v{vK}, 5, v{vL}")
        k(f"v_add_u32 v{vK}, s{sTab}, v{vK}")
        kp=V(8,4); vKz=V()
        if role==0:
            k(f"v_add_f32 v{acc}, v{acc}, v{vDs}")
            k(f"v_lshlrev_b32 v{vKz}, 3, v{vL}")
            k(f"v_add_u32 v{vKz}, s{sTab}, v{vKz}")
        for T in range(4):
            k(f"v_cvt_pk_bf16_f32 v{kp+2*T}, v{acc+4*T}, v{acc+4*T+1}")
            k(f"v_cvt_pk_bf16_f32 v{kp+2*T+1}, v{acc+4*T+2}, v{acc+4*T+3}")
        for b0 in range(2):
            for d in range(2): k(f"v_permlane32_swap_b32 v{kp+2*b0+d}, v{kp+2*(b0+2)+d}")
        for b1 in range(2):
            for d in range(2): k(f"v_permlane16_swap_b32 v{kp+4*b1+d}, v{kp+4*b1+2+d}")
        k.barrier()
        if role==0:
            k(f"ds_write_b64 v{vKz}, v[{z4}:{z4+1}]")
            k(f"ds_write_b64 v{vKz}, v[{z4}:{z4+1}] offset:{P1}")
        o=2048*role
        k(f"ds_write_b128 v{vK}, v[{kp}:{kp+3}] offset:{o+464}")
        k(f"ds_write_b128 v{vK}, v[{kp+4}:{kp+7}] offset:{o+480}")
        k(f"ds_write_b128 v{vK}, v[{kp+2}:{kp+5}] offset:{P1+o+464}")
        k(f"ds_write_b64 v{vK}, v[{kp}:{kp+1}] offset:{P1+o+456}")
        k(f"ds_write_b64 v{vK}, v[{kp+6}:{kp+7}] offset:{P1+o+480}")
        u_write()
        if not fused: wo_frag()
        k(f"v_and_b32 v{vt}, 3, v{vI}")
        k(f"v_mul_u32_u24 v{vA}, {UC}, v{vt}")
        k(f"v_lshrrev_b32 v{vt}, 2, v{vI}")
        k(f"v_sub_u32 v{vt}, v{vQ}, v{vt}")
        k(f"v_add_u32 v{vt}, 3, v{vt}")
        k(f"v_lshl_add_u32 v{vA}, v{vt}, 4, v{vA}")
        k(f"v_add_u32 v{vA}, s{sCB}, v{vA}")
        k(f"v_lshrrev_b32 v{vt}, 1, v{vI}")
        k(f"v_lshlrev_b32 v{vB}, 6, v{vt}")
        k(f"v_lshl_add_u32 v{vB}, v{vQ}, 4, v{vB}")
        k(f"v_and_b32 v{vt}, 1, v{vI}")
        k(f"v_mul_u32_u24 v{vt}, {P1-16}, v{vt}")
        k(f"v_sub_u32 v{vt}, {P1}, v{vt}")
        k(f"v_add3_u32 v{vB}, v{vB}, v{vt}, s{sTab}")
        k.barrier()
        V.reset(mark0)
        y=V(32,4)
        S=[V(64,4),V(64,4)]
        def loads(r,s):
            L=[]
            for c in range(8):
                L.append(f"ds_read_b128 v[{s+4*c}:{s+4*c+3}], v{vA} offset:{64*(56+r-8*c)}")
                L.append(f"ds_read_b128 v[{s+32+4*c}:{s+32+4*c+3}], v{vB} offset:{64*(r+8*c)}")
            return L
        classes=[4*role+i for i in range(4)]
        for l in loads(classes[0],S[0]): k(l)
        started=set()
        for ci,r in enumerate(classes):
            s=S[ci&1]
            nxt=loads(classes[ci+1],S[(ci+1)&1]) if ci+1<4 else []
            order=[]
            for d in range(8):
                for a in range(8):
                    for c in range(8):
                        if max(a,c)==d and a+c<=7: order.append((a,c))
            n=0
            for (a,c) in order:
                i=a+c
                cin="0" if i not in started else f"v[{y+4*i}:{y+4*i+3}]"
                started.add(i)
                k(f"v_mfma_f32_16x16x32_bf16 v[{y+4*i}:{y+4*i+3}], v[{s+4*c}:{s+4*c+3}], v[{s+32+4*a}:{s+32+4*a+3}], {cin}")
                n+=1
                if nxt and n>=4 and n%2==0: k(nxt.pop(0))
            for l in nxt: k(l)
        st.mark(k,4)
        vXw=vt3; vXr=vA
        k(f"v_lshlrev_b32 v{vt}, 4, v{vL}")
        k(f"s_lshl_b32 s{sA}, s{sW}, 12")
        k(f"s_add_u32 s{sA}, s{sA}, {L_WOB}")
        k(f"v_add_u32 v{vXw}, s{sA}, v{vt}")
        k(f"s_xor_b32 s{sA}, s{sA}, 4096") if False else None
        k(f"s_xor_b32 s{sB}, s{sW}, 1")
        k(f"s_lshl_b32 s{sB}, s{sB}, 12")
        k(f"s_add_u32 s{sB}, s{sB}, {L_WOB}")
        k(f"v_add_u32 v{vXr}, s{sB}, v{vt}")
        mine=[4*role+i for i in range(4)]; theirs=[4*(1-role)+i for i in range(4)]
        for n_,i in enumerate(theirs):
            k(f"ds_write_b128 v{vXw}, v[{y+4*i}:{y+4*i+3}] offset:{1024*n_}")
        vS=vB
        k(f"v_lshrrev_b32 v{vt}, 1, v{vI}")
        k(f"v_lshlrev_b32 v{vS}, 6, v{vt}")
        k(f"v_lshl_add_u32 v{vS}, v{vQ}, 4, v{vS}")
        k(f"v_and_b32 v{vt}, 1, v{vI}")
        k(f"v_lshl_add_u32 v{vS}, v{vt}, 3, v{vS}")
        k(f"s_add_u32 s{sA}, s{sD0}, s{sCh}")
        k(f"s_lshl_b32 s{sA}, s{sA}, 12")
        k(f"s_add_u32 s{sA}, s{sA}, {WS_B+role*4*512}")
        k.barrier()
        rr=S[0]
        for n_ in range(4):
            k(f"ds_read_b128 v[{rr+4*n_}:{rr+4*n_+3}], v{vXr} offset:{1024*n_}")
        for n_,i in enumerate(mine):
            b=rr+4*n_
            k(f"v_pk_add_f32 v[{b}:{b+1}], v[{b}:{b+1}], v[{y+4*i}:{y+4*i+1}]")
            k(f"v_pk_add_f32 v[{b+2}:{b+3}], v[{b+2}:{b+3}], v[{y+4*i+2}:{y+4*i+3}]")
            k(f"v_cvt_pk_bf16_f32 v{b}, v{b}, v{b+1}")
            k(f"v_cvt_pk_bf16_f32 v{b+1}, v{b+2}, v{b+3}")
            k(f"buffer_store_dwordx2 v[{b}:{b+1}], v{vS}, s[{srdWS}:{srdWS+3}], s{sA} offen offset:{512*n_} {STF}")
        st.mark(k,5)
        if fused: k(f"s_branch L_{name}_F")
        else:
            st.finish(k,sWS,sW,y)
            k("s_endpgm")
    if fused:
        k.auto=False; rel_read_block(k,name,"B",vZb,srdWS); k.auto=True
    return V.hi
```

```python
from dsl import *
from common import *
import os
GMODE=os.environ.get('GMODE','split2')
DB=os.environ.get('DBGB','')
STF=os.environ.get('STF','sc1')
TBP=os.environ.get('TBP','xw')
PRIO=os.environ.get('PRIOB','')
from k1a import mk_srd,sWO,sWQ,srdT,sX,sLA,sAI,sCR,sCI,sLDT,sDS,sWS,sW,sXCD,sIDX,srdX,srdWS,LOG2E,NLOG2E

UC=4160
CH=31744
KOFF=16640
P1=4640
L_WOB=4*CH
L_WO2=L_WOB+32768
INV2PI=0x3e22f983

def cmul(k,dst,w,z,t):
    k(f"v_pk_mul_f32 v[{t}:{t+1}], v[{w}:{w+1}], v[{z}:{z+1}] op_sel:[0,0] op_sel_hi:[0,1]")
    k(f"v_pk_fma_f32 v[{dst}:{dst+1}], v[{w}:{w+1}], v[{z}:{z+1}], v[{t}:{t+1}] op_sel:[1,1,0] op_sel_hi:[1,0,1] neg_lo:[0,1,0]")

def gen_b(k,name,st,fused=False):
    from kf import rel_read_rare, rel_read_block
    V=Alloc("v",1,256)
    sA=64; sB=65; sT=39; sD0=66; sCh=67; sRole=68; sLdt=69; sDsk=70; sCB=71; sSel0=72; sSel1=73; sEx=74; sTab=76
    vL=V(); vt=V(); vt2=V(); vt3=V(); t0=V(2,2); t1=V(2,2)
    vI=V(); vQ=V(); vA=V(); vB=V()
    mark0=V.mark()
    sP=80; sDP=81; sWp=82; sXS=85
    k(f"s_add_u32 s{sXS}, s{sXCD}, {int(os.environ.get('XSH','3'))}")
    k(f"s_and_b32 s{sXS}, s{sXS}, 7")
    k(f"s_lshl_b32 s{sD0}, s{sXS}, 6")
    k(f"s_lshl_b32 s{sA}, s{sIDX}, 2")
    k(f"s_add_u32 s{sD0}, s{sD0}, s{sA}")
    k(f"s_lshr_b32 s{sCh}, s{sW}, 1")
    k(f"s_and_b32 s{sRole}, s{sW}, 1")
    k(f"s_lshr_b32 s{sP}, s{sW}, 2")
    k(f"s_and_b32 s{sWp}, s{sW}, 3")
    k(f"s_lshl_b32 s{sA}, s{sP}, 1")
    k(f"s_add_u32 s{sDP}, s{sD0}, s{sA}")
    k(f"v_and_b32 v{vL}, 63, v0")
    k(f"s_add_u32 s{sA}, s{sD0}, s{sCh}")
    k(f"s_lshl_b32 s{sA}, s{sA}, 8")
    vP=V()
    k(f"v_lshlrev_b32 v{vP}, 2, v{vL}")
    k(f"v_add_u32 v{vP}, s{sA}, v{vP}")
    k(f"s_lshl_b32 s{sB}, s{sDP}, 1")
    k("s_waitcnt lgkmcnt(0)")
    k(f"s_load_dword s{sLdt}, s[{sLDT}:{sLDT+1}], s{sB}")
    k(f"s_load_dword s{sDsk}, s[{sDS}:{sDS+1}], s{sB}")
    pl=V(); pa=V(); pcr=V(); pci=V()
    k(f"global_load_dword v{pl}, v{vP}, s[{sLA}:{sLA+1}]")
    k(f"global_load_dword v{pa}, v{vP}, s[{sAI}:{sAI+1}]")
    k(f"global_load_dword v{pcr}, v{vP}, s[{sCR}:{sCR+1}]")
    k(f"global_load_dword v{pci}, v{vP}, s[{sCI}:{sCI+1}]", tag="par")
    mk_srd(k,srdX,sX,2048*512*2)
    g=V(14,2); vG=V(); vH3=V(); vPf=250
    def touch_a():
        k(f"v_and_b32 v{vt}, 15, v{vL}")
        k(f"v_lshlrev_b32 v{vt}, 10, v{vt}")
        k(f"s_lshl_b32 s{sA}, s{sIDX}, 7")
        k(f"s_lshl_b32 s{sT}, s{sW}, 4")
        k(f"s_add_u32 s{sA}, s{sA}, s{sT}")
        k(f"s_lshl_b32 s{sA}, s{sA}, 10")
        k(f"s_lshl_b32 s{sT}, s{sXS}, 7")
        k(f"s_add_u32 s{sA}, s{sA}, s{sT}")
        k(f"s_mov_b64 exec, 0xffff")
        k(f"buffer_load_dword v{vPf}, v{vt}, s[{srdX}:{srdX+3}], s{sA} offen")
        k(f"s_mov_b64 exec, -1")
    def touch_b():
        if True:
            sS1=83; sTo=84
            k(f"s_lshr_b32 s{sA}, s{sIDX}, 2")
            k(f"s_and_b32 s{sT}, s{sIDX}, 3")
            k(f"s_add_u32 s{sA}, s{sA}, s{sT}")
            k(f"s_and_b32 s{sA}, s{sA}, 3")
            k(f"s_lshl_b32 s{sS1}, s{sA}, 1")
            k(f"s_add_u32 s{sS1}, s{sS1}, 1")
            k(f"s_and_b32 s{sA}, s{sXCD}, 3")
            k(f"s_lshl_b32 s{sA}, s{sA}, 2")
            k(f"s_add_u32 s{sA}, s{sA}, s{sT}")
            k(f"s_lshl_b32 s{sA}, s{sA}, 7")
            k(f"s_lshl_b32 s{sT}, s{sW}, 4")
            k(f"s_add_u32 s{sA}, s{sA}, s{sT}")
            k(f"s_lshl_b32 s{sA}, s{sA}, 10")
            k(f"s_lshl_b32 s{sT}, s{sS1}, 7")
            k(f"s_add_u32 s{sTo}, s{sA}, s{sT}")
            k(f"v_and_b32 v{vt}, 15, v{vL}")
            k(f"v_lshlrev_b32 v{vt}, 10, v{vt}")
            if 'x' in TBP:
                k(f"s_mov_b64 exec, 0xffff")
                k(f"buffer_load_dword v{vPf}, v{vt}, s[{srdX}:{srdX+3}], s{sTo} offen")
                k(f"s_mov_b64 exec, -1")
            mk_srd(k,srdT,sWQ,512*1536*2)
            k(f"v_mul_u32_u24 v{vt}, 171, v{vL}")
            k(f"v_lshrrev_b32 v{vt}, 9, v{vt}")
            k(f"v_mul_u32_u24 v{vt2}, 3, v{vt}")
            k(f"v_sub_u32 v{vt2}, v{vL}, v{vt2}")
            k(f"v_mul_u32_u24 v{vt}, 3072, v{vt}")
            k(f"v_lshl_add_u32 v{vt}, v{vt2}, 10, v{vt}")
            k(f"s_lshl_b32 s{sA}, s{sS1}, 6")
            k(f"s_lshl_b32 s{sT}, s{sW}, 3")
            k(f"s_add_u32 s{sA}, s{sA}, s{sT}")
            k(f"s_mul_i32 s{sA}, s{sA}, 3072")
            k(f"s_lshr_b32 s{sT}, s{sXCD}, 2")
            k(f"s_lshl_b32 s{sT}, s{sT}, 2")
            k(f"s_lshr_b32 s{sTo}, s{sIDX}, 2")
            k(f"s_add_u32 s{sT}, s{sT}, s{sTo}")
            k(f"s_lshl_b32 s{sT}, s{sT}, 7")
            k(f"s_add_u32 s{sA}, s{sA}, s{sT}")
            if 'w' in TBP:
                k(f"s_mov_b64 exec, {'0xffffff' if 'h' not in TBP else '0xfff'}")
                k(f"buffer_load_dword v{vPf}, v{vt}, s[{srdT}:{srdT+3}], s{sA} offen")
                k(f"s_mov_b64 exec, -1")
    TM=os.environ.get('TMODE','a')
    for ch_ in TM:
        if ch_=='a': touch_a()
        if ch_=='b': touch_b()
    sFr=78
    def wo_dma():
        k(f"s_lshl_b32 s{sFr}, s{sXCD}, 4")
        k(f"s_add_u32 s{sFr}, s{sFr}, s{sIDX}")
        k(f"s_lshl_b32 s{sFr}, s{sFr}, 2")
        k(f"s_add_u32 s{sFr}, s{sFr}, s{sWp}")
        mk_srd(k,srdT,sWO,512*512*2)
        k(f"v_lshrrev_b32 v{vt}, 2, v{vL}")
        k(f"v_and_b32 v{vt2}, 3, v{vL}")
        k(f"v_lshlrev_b32 v{vt2}, 4, v{vt2}")
        k(f"v_lshl_add_u32 v{vt}, v{vt}, 10, v{vt2}")
        k(f"s_and_b32 s{sA}, s{sFr}, 31")
        k(f"s_lshl_b32 s{sA}, s{sA}, 14")
        k(f"s_lshr_b32 s{sT}, s{sFr}, 5")
        k(f"s_lshl_b32 s{sT}, s{sT}, 6")
        k(f"s_add_u32 s{sT}, s{sA}, s{sT}")
        k(f"s_lshl_b32 s{sA}, s{sWp}, 10")
        k(f"s_add_u32 m0, s{sA}, {L_WO2}")
        k(f"s_nop 0")
        k(f"buffer_load_dwordx4 v{vt}, s[{srdT}:{srdT+3}], s{sT} offen lds", tag="wo")
    k(f"v_lshlrev_b32 v{vG}, 12, v0")
    k(f"s_lshl_b32 s{sA}, s{sD0}, 1")
    k(f"v_add_u32 v{vG}, s{sA}, v{vG}")
    k(f"v_subrev_u32 v{vH3}, 3072, v{vG}")
    side=[]
    for r in range(4):
        side.append([f"buffer_load_dwordx2 v[{g+6+2*r}:{g+7+2*r}], v{vG}, s[{srdX}:{srdX+3}], 0 offen offset:{r*1024}"])
    side.append(["s_mov_b64 exec, 1"]+[f"buffer_load_dwordx2 v[{g+2*r}:{g+2*r+1}], v{vH3}, s[{srdX}:{srdX+3}], 0 offen offset:{r*1024}" for r in range(3)]+["s_mov_b64 exec, -1"])
    mk_srd(k,srdWS,sWS,WS_SIZE)
    if fused:
        vZb=V(); k(f"v_mov_b32 v{vZb}, 0")
        rel_read_rare(k,name,"B",vZb)
    k(f"s_mul_i32 s{sCB}, s{sCh}, {CH}")
    k(f"s_mov_b32 s{sTab}, s{sCB}")
    aX=V(16)
    k(f"v_and_b32 v{vt}, 1, v{vL}")
    k(f"v_lshlrev_b32 v{vt}, 3, v{vt}")
    k(f"v_lshrrev_b32 v{vt2}, 1, v{vL}")
    k(f"v_lshl_add_u32 v{vt}, v{vt2}, 4, v{vt}")
    k(f"v_add_u32 v{aX}, s{sTab}, v{vt}")
    for x in range(1,16): k(f"v_xor_b32 v{aX+x}, {x<<4}, v{aX}")
    k(f"v_and_b32 v{vI}, 15, v{vL}")
    k(f"v_lshrrev_b32 v{vQ}, 4, v{vL}")
    def rdaddr(dst,rowreg):
        k(f"v_and_b32 v{vt}, 15, v{rowreg}")
        k(f"v_xor_b32 v{vt}, v{vt}, v{vQ}")
        k(f"v_lshlrev_b32 v{vt}, 4, v{vt}")
        k(f"v_lshl_add_u32 v{vt}, v{rowreg}, 9, v{vt}")
        k(f"v_add_u32 v{dst}, s{sTab}, v{vt}")
        for ks in range(1,4): k(f"v_xor_b32 v{dst+ks}, {ks<<6}, v{dst}")
    rF=V(4); rG1=V(4); rG2=V(4)
    rdaddr(rF,vI)
    def rne(dst,kk):
        k(f"v_bfe_u32 v{dst}, v{vI}, {kk}, 1")
        k(f"v_add3_u32 v{dst}, v{dst}, v{vI}, {(1<<(kk-1))-1}")
        k(f"v_lshrrev_b32 v{dst}, {kk}, v{dst}")
    z4=V(4,4)
    for u in range(4): k(f"v_mov_b32 v{z4+u}, 0")
    vDt=V(); vDs=V()
    k("s_waitcnt lgkmcnt(0)")
    k(f"s_lshl_b32 s{sA}, s{sLdt}, 16")
    k(f"s_and_b32 s{sB}, s{sLdt}, 0xffff0000")
    k(f"s_bitcmp0_b32 s{sCh}, 0")
    k(f"s_cselect_b32 s{sLdt}, s{sA}, s{sB}")
    k(f"s_lshl_b32 s{sA}, s{sDsk}, 16")
    k(f"s_and_b32 s{sB}, s{sDsk}, 0xffff0000")
    k(f"s_bitcmp0_b32 s{sCh}, 0")
    k(f"s_cselect_b32 s{sDsk}, s{sA}, s{sB}")
    k(f"v_mov_b32 v{vDt}, {LOG2E:#x}")
    k(f"v_mul_f32 v{vDt}, s{sLdt}, v{vDt}")
    k(f"v_exp_f32 v{vDt}, v{vDt}")
    k(f"v_cvt_pk_bf16_f32 v{vDt}, v{vDt}, v{vDt}")
    k(f"v_lshlrev_b32 v{vDt}, 16, v{vDt}")
    k(f"v_cmp_eq_u32 vcc, 0, v{vL}")
    k(f"v_mov_b32 v{vt}, s{sDsk}")
    k(f"v_cndmask_b32 v{vDs}, 0, v{vt}, vcc")
    import struct
    re2=V(2); fr=V(2); cc=[V(2,2),V(2,2)]; T0=[V(2,2),V(2,2)]; T1=[V(2,2),V(2,2)]
    def unpack(dst,src,m):
        if m==0: k(f"v_lshlrev_b32 v{dst}, 16, v{src}")
        else: k(f"v_and_b32 v{dst}, 0xffff0000, v{src}")
    def both(f):
        for m in range(2): f(m)
    def mode_params(need_c):
        both(lambda m: unpack(re2+m,pl,m))
        both(lambda m: k(f"v_mul_f32 v{re2+m}, {LOG2E:#x}, v{re2+m}"))
        both(lambda m: k(f"v_exp_f32 v{re2+m}, v{re2+m}"))
        both(lambda m: unpack(fr+m,pa,m))
        k(f"v_cvt_pk_bf16_f32 v{vt}, v{re2}, v{re2+1}")
        both(lambda m: k(f"v_mul_f32 v{fr+m}, v{fr+m}, v{vDt}"))
        both(lambda m: unpack(re2+m,vt,m))
        both(lambda m: k(f"v_mul_f32 v{fr+m}, {INV2PI:#x}, v{fr+m}"))
        both(lambda m: k(f"v_mul_f32 v{re2+m}, v{re2+m}, v{vDt}"))
        both(lambda m: k(f"v_mul_f32 v{re2+m}, {NLOG2E:#x}, v{re2+m}"))
        if need_c:
            both(lambda m: unpack(cc[m],pcr,m))
            both(lambda m: unpack(cc[m]+1,pci,m))
            k(f"v_add_f32 v{vt}, v{vDt}, v{vDt}")
            both(lambda m: k(f"v_mul_f32 v{cc[m]}, v{cc[m]}, v{vt}"))
            both(lambda m: k(f"v_mul_f32 v{cc[m]+1}, v{cc[m]+1}, v{vt}"))
    def Edirect(dst,p):
        lit=struct.unpack("<I",struct.pack("<f",float(p)))[0]
        if p==1:
            both(lambda m: k(f"v_exp_f32 v{T1[m]}, v{re2+m}"))
            both(lambda m: k(f"v_fract_f32 v{T1[m]+1}, v{fr+m}"))
        else:
            both(lambda m: k(f"v_mul_f32 v{T1[m]}, {lit:#x}, v{re2+m}"))
            both(lambda m: k(f"v_mul_f32 v{T1[m]+1}, {lit:#x}, v{fr+m}"))
            both(lambda m: k(f"v_exp_f32 v{T1[m]}, v{T1[m]}"))
            both(lambda m: k(f"v_fract_f32 v{T1[m]+1}, v{T1[m]+1}"))
        both(lambda m: k(f"v_cos_f32 v{dst[m]}, v{T1[m]+1}"))
        both(lambda m: k(f"v_sin_f32 v{dst[m]+1}, v{T1[m]+1}"))
        both(lambda m: k(f"v_pk_mul_f32 v[{dst[m]}:{dst[m]+1}], v[{dst[m]}:{dst[m]+1}], v[{T1[m]}:{T1[m]+1}] op_sel_hi:[1,0]"))
    def cmul2(dst,w,z,T):
        both(lambda m: k(f"v_pk_mul_f32 v[{T[m]}:{T[m]+1}], v[{w[m]}:{w[m]+1}], v[{z[m]}:{z[m]+1}] op_sel:[0,0] op_sel_hi:[0,1]"))
        both(lambda m: k(f"v_pk_fma_f32 v[{dst[m]}:{dst[m]+1}], v[{w[m]}:{w[m]+1}], v[{z[m]}:{z[m]+1}], v[{T[m]}:{T[m]+1}] op_sel:[1,1,0] op_sel_hi:[1,0,1] neg_lo:[0,1,0]"))
    pk=[V(2,2),V(2,2)]
    pkc=[0]
    sidel=[]
    def wrow(row,w,neg):
        r=pk[pkc[0]&1]; pkc[0]+=1
        both(lambda m: k(f"v_cvt_pk_bf16_f32 v{r+m}, v{w[m]}, {'-' if neg else ''}v{w[m]+1}"))
        if 'W' not in DB: k(f"ds_write_b64 v{aX+(row&15)}, v[{r}:{r+1}] offset:{row*512}")
        if sidel and GMODE[0]=='i' and pkc[0]%int(GMODE[1:])==0:
            for l in sidel.pop(0): k(l)
    P2=lambda: [V(2,2),V(2,2)]
    wA=P2(); wB=P2(); zz=P2(); e4=P2(); e8=P2(); e12=P2(); e16=P2(); eb=P2()
    def mov2(dst,src):
        for m in range(2):
            k(f"v_mov_b32 v{dst[m]}, v{src[m]}"); k(f"v_mov_b32 v{dst[m]+1}, v{src[m]+1}")
    def table_role0(mid=None):
        mode_params(True)
        Edirect(zz,16)
        Edirect(wB,256)
        cmul2(wB,wB,cc,T0)
        if mid: mid()
        for a in range(16):
            src=cc if a==0 else wA
            wrow(a,src,True); wrow(16+a,wB,True)
            if a<15:
                cmul2(wA,src,zz,T0); cmul2(wB,wB,zz,T1)
    def table_role1(mid=None):
        mode_params(False)
        Edirect(zz,1)
        r=pk[pkc[0]&1]; pkc[0]+=1
        k(f"v_mov_b32 v{r}, 0x3f80"); k(f"v_mov_b32 v{r+1}, 0x3f80")
        k(f"ds_write_b64 v{aX+0}, v[{r}:{r+1}] offset:{32*512}")
        keep={4:e4,8:e8,12:e12,16:e16}
        Edirect(eb,512)
        wrow(33,zz,False)
        wrow(50,eb,False)
        if mid: mid()
        cur=zz
        for b in range(2,17):
            dst=keep.get(b,wA)
            cmul2(dst,cur,zz,T0)
            cur=dst
            wrow(32+b if b<16 else 49,cur,False)
            if b in keep:
                cmul2(wB,eb,cur,T1)
                wrow(50+2*(b//4),wB,False)
        for (p,row) in ((1024,51),(1536,57)):
            Edirect(eb,p)
            wrow(row,eb,False)
            cmul2(wB,eb,e8,T0); wrow(row+2,wB,False)
            cmul2(wB,eb,e16,T1); wrow(row+4,wB,False)
    uo={}
    def u_prep():
        for r in range(3):
            for dw in range(2):
                k(f"v_mov_b32_dpp v{g+2*r+dw}, v{g+2*(r+4)+dw} wave_shr:1 row_mask:0xf bank_mask:0xf")
        k(f"s_mov_b32 s{sSel0}, 0x05040100")
        k(f"s_mov_b32 s{sSel1}, 0x07060302")
        uo['z']=V(); uo['u']=V(); uo['u2']=V(); uo['o']=V(32,2)
        k(f"v_lshrrev_b32 v{vt}, 4, v{vL}")
        k(f"v_mul_u32_u24 v{vt}, {CH}, v{vt}")
        k(f"v_bfe_u32 v{vt2}, v{vL}, 2, 2")
        k(f"v_mul_u32_u24 v{vt2}, {UC}, v{vt2}")
        k(f"v_add_u32 v{vt}, v{vt}, v{vt2}")
        k(f"v_and_b32 v{vt2}, 3, v{vL}")
        k(f"v_lshl_add_u32 v{uo['z']}, v{vt2}, 4, v{vt}")
        k(f"v_sub_u32 v{uo['u']}, 511, v0")
        k(f"v_lshlrev_b32 v{uo['u']}, 3, v{uo['u']}")
        k(f"v_add_u32 v{uo['u2']}, {2*CH}, v{uo['u']}")
        G=lambda r,dw: g+2*(r+3)+dw
        for ch in range(4):
            sel=sSel0 if ch%2==0 else sSel1; dw=ch>>1
            for c in range(4):
                o=uo['o']+2*(4*ch+c)
                k(f"v_perm_b32 v{o}, v{G(c-1,dw)}, v{G(c,dw)}, s{sel}")
                k(f"v_perm_b32 v{o+1}, v{G(c-3,dw)}, v{G(c-2,dw)}, s{sel}")
    def u_write():
        k(f"ds_write_b128 v{uo['z']}, v[{z4}:{z4+3}] offset:4096")
        for ch in range(4):
            for c in range(4):
                o=uo['o']+2*(4*ch+c)
                k(f"ds_write_b64 v{uo['u'] if ch<2 else uo['u2']}, v[{o}:{o+1}] offset:{(ch%2)*CH+c*UC}")
    acc=V(16,4)
    fr_=[V(20,4),V(20,4),V(20,4)]
    def kreads(role,u):
        hi,ks=u>>2,u&3; f=fr_[u%3]; o=hi*256
        k(f"ds_read_b128 v[{f}:{f+3}], v{rF+ks} offset:{o}")
        if role==0:
            k(f"ds_read_b128 v[{f+8}:{f+11}], v{rF+ks} offset:{o+16384}")
            k(f"ds_read_b128 v[{f+4}:{f+7}], v{rF+ks} offset:{o+8192}")
            k(f"ds_read_b128 v[{f+12}:{f+15}], v{rG1+ks} offset:{o}")
            k(f"ds_read_b128 v[{f+16}:{f+19}], v{rG2+ks} offset:{o}")
        else:
            k(f"ds_read_b128 v[{f+8}:{f+11}], v{rG1+ks} offset:{o}")
            k(f"ds_read_b128 v[{f+4}:{f+7}], v{rF+ks} offset:{o+8192}")
            k(f"ds_read_b128 v[{f+12}:{f+15}], v{rG2+ks} offset:{o}")
    def kmf(role,u):
        f=fr_[u%3]
        if role==0: pairs=[(0,f+8,f),(1,f+12,f+4),(2,f+16,f),(3,f+16,f+4)]
        else: pairs=[(0,f+8,f),(1,f+8,f+4),(2,f+12,f),(3,f+12,f+4)]
        for (T,a,b) in pairs:
            cin="0" if u==0 else f"v[{acc+4*T}:{acc+4*T+3}]"
            k(f"v_mfma_f32_16x16x32_bf16 v[{acc+4*T}:{acc+4*T+3}], v[{a}:{a+3}], v[{b}:{b+3}], {cin}")
    def kmfma(role):
        kreads(role,0); kreads(role,1)
        for u in range(8):
            if u+2<8: kreads(role,u+2)
            kmf(role,u)
    wreg=[0]
    def wo_frag():
        wof=wreg[0]; vWoA=wreg[0]+4
        k(f"v_bfe_u32 v{vt}, v{vL}, 2, 2")
        k(f"v_lshrrev_b32 v{vt2}, 5, v{vL}")
        k(f"v_lshl_add_u32 v{vt}, v{vt2}, 2, v{vt}")
        k(f"v_lshlrev_b32 v{vWoA}, 6, v{vt}")
        k(f"v_bfe_u32 v{vt2}, v{vL}, 4, 1")
        k(f"v_lshl_add_u32 v{vWoA}, v{vt2}, 5, v{vWoA}")
        k(f"v_and_b32 v{vt2}, 3, v{vL}")
        k(f"v_lshl_add_u32 v{vWoA}, v{vt2}, 3, v{vWoA}")
        k(f"s_lshl_b32 s{sA}, s{sWp}, 10")
        k(f"s_add_u32 s{sA}, s{sA}, {L_WO2}")
        k(f"v_add_u32 v{vWoA}, s{sA}, v{vWoA}")
        k.wait_tag("wo")
        k(f"ds_read_b64_tr_b16 v[{wof}:{wof+1}], v{vWoA}")
        k(f"ds_read_b64_tr_b16 v[{wof+2}:{wof+3}], v{vWoA} offset:512")
        k(f"v_lshlrev_b32 v{vt}, 4, v{vL}")
        k(f"s_lshl_b32 s{sA}, s{sFr}, 10")
        k(f"s_add_u32 s{sA}, s{sA}, {WS_WO}")
        k(f"buffer_store_dwordx4 v[{wof}:{wof+3}], v{vt}, s[{srdWS}:{srdWS+3}], s{sA} offen {STF}")
    row=V()
    k(f"s_cmp_eq_u32 s{sRole}, 0")
    k(f"s_cbranch_scc0 L_{name}_B1")
    snap=k.snapshot(); mark=V.mark()
    for role in range(2):
        if role==1:
            k.restore(snap); V.reset(mark); k.label(f"L_{name}_B1")
        if role==0:
            rne(row,1)
            k(f"v_lshrrev_b32 v{vt2}, 3, v{row}")
            k(f"v_lshl_add_u32 v{row}, v{row}, 1, v{vt2}")
            k(f"v_add_u32 v{row}, 32, v{row}")
            rdaddr(rG1,row)
            rne(row,2); k(f"v_lshlrev_b32 v{row}, 1, v{row}"); k(f"v_add_u32 v{row}, 50, v{row}"); rdaddr(rG2,row)
        else:
            rne(row,3); k(f"v_lshlrev_b32 v{row}, 1, v{row}"); k(f"v_add_u32 v{row}, 51, v{row}"); rdaddr(rG1,row)
            k(f"v_add_u32 v{row}, 6, v{row}"); rdaddr(rG2,row)
        tab=table_role0 if role==0 else table_role1
        st.mark(k,1)
        if PRIO: k(f"s_setprio {PRIO}")
        if 'A' in TM or 'B' in TM:
            k.wait_tag("par")
            if 'B' in TM: touch_b()
            if 'A' in TM: touch_a()
        flat=[l for blk in side for l in blk]
        if GMODE=='split2':
            st_={}
            def mid():
                k(f"s_cmp_eq_u32 s{sP}, 1")
                k(f"s_cbranch_scc0 L_{name}_B{role}_g0")
                vmq=list(k.vm)
                for l in flat: k(l)
                k.label(f"L_{name}_B{role}_g0")
                k.vm=vmq
            tab(mid)
            k(f"s_cmp_eq_u32 s{sP}, 0")
            k(f"s_cbranch_scc0 L_{name}_B{role}_g1")
            for l in flat: k(l)
            k.label(f"L_{name}_B{role}_g1")
        elif GMODE=='ink':
            tab()
        elif GMODE=='split':
            k.wait_tag("par")
            k(f"s_cmp_eq_u32 s{sP}, 0")
            k(f"s_cbranch_scc0 L_{name}_B{role}_g0")
            vmq=list(k.vm)
            for l in flat: k(l)
            k.label(f"L_{name}_B{role}_g0")
            k.vm=vmq
            tab()
            k(f"s_cmp_eq_u32 s{sP}, 1")
            k(f"s_cbranch_scc0 L_{name}_B{role}_g1")
            for l in flat: k(l)
            k.label(f"L_{name}_B{role}_g1")
        else:
            sidel.clear(); sidel.extend([list(x) for x in side] if 'G' not in DB else [])
            if GMODE=='pre':
                k.wait_tag("par")
                for blk in sidel:
                    for l in blk: k(l)
                sidel.clear()
            tab()
            for blk in sidel:
                for l in blk: k(l)
            sidel.clear()
        st.mark(k,2)
        k.barrier()
        if not fused: wo_dma()
        else:
            mk_srd(k,srdT,sWO,512*512*2)
            k(f"v_and_b32 v{vt}, 31, v{vL}")
            k(f"v_lshlrev_b32 v{vt}, 7, v{vt}")
            k(f"s_lshl_b32 s{sA}, s{sIDX}, 3")
            k(f"s_add_u32 s{sA}, s{sA}, s{sW}")
            k(f"s_lshl_b32 s{sA}, s{sA}, 12")
            k(f"buffer_load_dword v{vPf}, v{vt}, s[{srdT}:{srdT+3}], s{sA} offen")
        if GMODE=='ink':
            k.bg=[[(l,None) for l in blk] for blk in side]; k.bg_every=int(os.environ.get('GEV','6'))
        kmfma(role)
        k.bg_flush()
        st.mark(k,3)
        u_prep()
        vK=vt3
        k(f"s_add_u32 s{sTab}, s{sCB}, {KOFF}")
        k(f"v_lshlrev_b32 v{vK}, 5, v{vL}")
        k(f"v_add_u32 v{vK}, s{sTab}, v{vK}")
        kp=V(8,4); vKz=V()
        if role==0:
            k(f"v_add_f32 v{acc}, v{acc}, v{vDs}")
            k(f"v_lshlrev_b32 v{vKz}, 3, v{vL}")
            k(f"v_add_u32 v{vKz}, s{sTab}, v{vKz}")
        for T in range(4):
            k(f"v_cvt_pk_bf16_f32 v{kp+2*T}, v{acc+4*T}, v{acc+4*T+1}")
            k(f"v_cvt_pk_bf16_f32 v{kp+2*T+1}, v{acc+4*T+2}, v{acc+4*T+3}")
        for b0 in range(2):
            for d in range(2): k(f"v_permlane32_swap_b32 v{kp+2*b0+d}, v{kp+2*(b0+2)+d}")
        for b1 in range(2):
            for d in range(2): k(f"v_permlane16_swap_b32 v{kp+4*b1+d}, v{kp+4*b1+2+d}")
        k.barrier()
        if role==0:
            k(f"ds_write_b64 v{vKz}, v[{z4}:{z4+1}]")
            k(f"ds_write_b64 v{vKz}, v[{z4}:{z4+1}] offset:{P1}")
        o=2048*role
        k(f"ds_write_b128 v{vK}, v[{kp}:{kp+3}] offset:{o+464}")
        k(f"ds_write_b128 v{vK}, v[{kp+4}:{kp+7}] offset:{o+480}")
        k(f"ds_write_b128 v{vK}, v[{kp+2}:{kp+5}] offset:{P1+o+464}")
        k(f"ds_write_b64 v{vK}, v[{kp}:{kp+1}] offset:{P1+o+456}")
        k(f"ds_write_b64 v{vK}, v[{kp+6}:{kp+7}] offset:{P1+o+480}")
        u_write()
        k(f"v_and_b32 v{vt}, 3, v{vI}")
        k(f"v_mul_u32_u24 v{vA}, {UC}, v{vt}")
        k(f"v_lshrrev_b32 v{vt}, 2, v{vI}")
        k(f"v_sub_u32 v{vt}, v{vQ}, v{vt}")
        k(f"v_add_u32 v{vt}, 3, v{vt}")
        k(f"v_lshl_add_u32 v{vA}, v{vt}, 4, v{vA}")
        k(f"v_add_u32 v{vA}, s{sCB}, v{vA}")
        k(f"v_lshrrev_b32 v{vt}, 1, v{vI}")
        k(f"v_lshlrev_b32 v{vB}, 6, v{vt}")
        k(f"v_lshl_add_u32 v{vB}, v{vQ}, 4, v{vB}")
        k(f"v_and_b32 v{vt}, 1, v{vI}")
        k(f"v_mul_u32_u24 v{vt}, {P1-16}, v{vt}")
        k(f"v_sub_u32 v{vt}, {P1}, v{vt}")
        k(f"v_add3_u32 v{vB}, v{vB}, v{vt}, s{sTab}")
        k.barrier()
        V.reset(mark0)
        y=V(32,4)
        S=[V(64,4),V(64,4)]
        wreg[0]=V(8,4)
        def loads(r,s):
            L=[]
            for c in range(8):
                L.append(f"ds_read_b128 v[{s+4*c}:{s+4*c+3}], v{vA} offset:{64*(56+r-8*c)}")
                L.append(f"ds_read_b128 v[{s+32+4*c}:{s+32+4*c+3}], v{vB} offset:{64*(r+8*c)}")
            return L
        classes=[4*role+i for i in range(4)]
        for l in loads(classes[0],S[0]): k(l)
        started=set()
        for ci,r in enumerate(classes):
            s=S[ci&1]
            nxt=loads(classes[ci+1],S[(ci+1)&1]) if ci+1<4 else []
            order=[]
            for d in range(8):
                for a in range(8):
                    for c in range(8):
                        if max(a,c)==d and a+c<=7: order.append((a,c))
            n=0
            for (a,c) in order:
                i=a+c
                cin="0" if i not in started else f"v[{y+4*i}:{y+4*i+3}]"
                started.add(i)
                k(f"v_mfma_f32_16x16x32_bf16 v[{y+4*i}:{y+4*i+3}], v[{s+4*c}:{s+4*c+3}], v[{s+32+4*a}:{s+32+4*a+3}], {cin}")
                n+=1
                if nxt and n>=4 and n%2==0: k(nxt.pop(0))
            for l in nxt: k(l)
            if ci==1 and not fused: wo_frag()
        st.mark(k,4)
        vXw=vt3; vXr=vA
        k(f"v_lshlrev_b32 v{vt}, 4, v{vL}")
        k(f"s_lshl_b32 s{sA}, s{sW}, 12")
        k(f"s_add_u32 s{sA}, s{sA}, {L_WOB}")
        k(f"v_add_u32 v{vXw}, s{sA}, v{vt}")
        k(f"s_xor_b32 s{sA}, s{sA}, 4096") if False else None
        k(f"s_xor_b32 s{sB}, s{sW}, 1")
        k(f"s_lshl_b32 s{sB}, s{sB}, 12")
        k(f"s_add_u32 s{sB}, s{sB}, {L_WOB}")
        k(f"v_add_u32 v{vXr}, s{sB}, v{vt}")
        mine=[4*role+i for i in range(4)]; theirs=[4*(1-role)+i for i in range(4)]
        for n_,i in enumerate(theirs):
            k(f"ds_write_b128 v{vXw}, v[{y+4*i}:{y+4*i+3}] offset:{1024*n_}")
        vS=vB
        k(f"v_lshrrev_b32 v{vt}, 1, v{vI}")
        k(f"v_lshlrev_b32 v{vS}, 6, v{vt}")
        k(f"v_lshl_add_u32 v{vS}, v{vQ}, 4, v{vS}")
        k(f"v_and_b32 v{vt}, 1, v{vI}")
        k(f"v_lshl_add_u32 v{vS}, v{vt}, 3, v{vS}")
        k(f"s_add_u32 s{sA}, s{sD0}, s{sCh}")
        k(f"s_lshl_b32 s{sA}, s{sA}, 12")
        k(f"s_add_u32 s{sA}, s{sA}, {WS_B+role*4*512}")
        k.barrier()
        rr=S[0]
        for n_ in range(4):
            k(f"ds_read_b128 v[{rr+4*n_}:{rr+4*n_+3}], v{vXr} offset:{1024*n_}")
        for n_,i in enumerate(mine):
            b=rr+4*n_
            k(f"v_pk_add_f32 v[{b}:{b+1}], v[{b}:{b+1}], v[{y+4*i}:{y+4*i+1}]")
            k(f"v_pk_add_f32 v[{b+2}:{b+3}], v[{b+2}:{b+3}], v[{y+4*i+2}:{y+4*i+3}]")
            k(f"v_cvt_pk_bf16_f32 v{b}, v{b}, v{b+1}")
            k(f"v_cvt_pk_bf16_f32 v{b+1}, v{b+2}, v{b+3}")
            k(f"buffer_store_dwordx2 v[{b}:{b+1}], v{vS}, s[{srdWS}:{srdWS+3}], s{sA} offen offset:{512*n_} {STF}")
        st.mark(k,5)
        if fused: k(f"s_branch L_{name}_F")
        else:
            st.finish(k,sWS,sW,y)
            k("s_endpgm")
    if fused:
        k.auto=False; rel_read_block(k,name,"B",vZb,srdWS); k.auto=True
    return V.hi
```

```python
from dsl import *
from common import *
import os
GMODE=os.environ.get('GMODE','split2')
DB=os.environ.get('DBGB','')
STF=os.environ.get('STF','sc1')
TBP=os.environ.get('TBP','xw')
PRIO=os.environ.get('PRIOB','')
from k1a import mk_srd,sWO,sWQ,srdT,sX,sLA,sAI,sCR,sCI,sLDT,sDS,sWS,sW,sXCD,sIDX,srdX,srdWS,LOG2E,NLOG2E

UC=4160
CH=31744
KOFF=16640
P1=4640
L_WOB=4*CH
L_WO2=L_WOB+32768
INV2PI=0x3e22f983

def cmul(k,dst,w,z,t):
    k(f"v_pk_mul_f32 v[{t}:{t+1}], v[{w}:{w+1}], v[{z}:{z+1}] op_sel:[0,0] op_sel_hi:[0,1]")
    k(f"v_pk_fma_f32 v[{dst}:{dst+1}], v[{w}:{w+1}], v[{z}:{z+1}], v[{t}:{t+1}] op_sel:[1,1,0] op_sel_hi:[1,0,1] neg_lo:[0,1,0]")

def gen_b(k,name,st,fused=False):
    from kf import rel_read_rare, rel_read_block
    V=Alloc("v",1,256)
    sA=64; sB=65; sT=39; sD0=66; sCh=67; sRole=68; sLdt=69; sDsk=70; sCB=71; sSel0=72; sSel1=73; sEx=74; sTab=76
    vL=V(); vt=V(); vt2=V(); vt3=V(); t0=V(2,2); t1=V(2,2)
    vI=V(); vQ=V(); vA=V(); vB=V()
    mark0=V.mark()
    sP=80; sDP=81; sWp=82; sXS=85
    k(f"s_add_u32 s{sXS}, s{sXCD}, {int(os.environ.get('XSH','3'))}")
    k(f"s_and_b32 s{sXS}, s{sXS}, 7")
    k(f"s_lshl_b32 s{sD0}, s{sXS}, 6")
    k(f"s_lshl_b32 s{sA}, s{sIDX}, 2")
    k(f"s_add_u32 s{sD0}, s{sD0}, s{sA}")
    k(f"s_lshr_b32 s{sCh}, s{sW}, 1")
    k(f"s_and_b32 s{sRole}, s{sW}, 1")
    k(f"s_lshr_b32 s{sP}, s{sW}, 2")
    k(f"s_and_b32 s{sWp}, s{sW}, 3")
    k(f"s_lshl_b32 s{sA}, s{sP}, 1")
    k(f"s_add_u32 s{sDP}, s{sD0}, s{sA}")
    k(f"v_and_b32 v{vL}, 63, v0")
    k(f"s_add_u32 s{sA}, s{sD0}, s{sCh}")
    k(f"s_lshl_b32 s{sA}, s{sA}, 8")
    vP=V()
    k(f"v_lshlrev_b32 v{vP}, 2, v{vL}")
    k(f"v_add_u32 v{vP}, s{sA}, v{vP}")
    k(f"s_lshl_b32 s{sB}, s{sDP}, 1")
    k("s_waitcnt lgkmcnt(0)")
    k(f"s_load_dword s{sLdt}, s[{sLDT}:{sLDT+1}], s{sB}")
    k(f"s_load_dword s{sDsk}, s[{sDS}:{sDS+1}], s{sB}")
    pl=V(); pa=V(); pcr=V(); pci=V()
    k(f"global_load_dword v{pl}, v{vP}, s[{sLA}:{sLA+1}]")
    k(f"global_load_dword v{pa}, v{vP}, s[{sAI}:{sAI+1}]")
    k(f"global_load_dword v{pcr}, v{vP}, s[{sCR}:{sCR+1}]")
    k(f"global_load_dword v{pci}, v{vP}, s[{sCI}:{sCI+1}]", tag="par")
    mk_srd(k,srdX,sX,2048*512*2)
    g=V(14,2); vG=V(); vH3=V(); vPf=250
    def touch_a():
        k(f"v_and_b32 v{vt}, 15, v{vL}")
        k(f"v_lshlrev_b32 v{vt}, 10, v{vt}")
        k(f"s_lshl_b32 s{sA}, s{sIDX}, 7")
        k(f"s_lshl_b32 s{sT}, s{sW}, 4")
        k(f"s_add_u32 s{sA}, s{sA}, s{sT}")
        k(f"s_lshl_b32 s{sA}, s{sA}, 10")
        k(f"s_lshl_b32 s{sT}, s{sXS}, 7")
        k(f"s_add_u32 s{sA}, s{sA}, s{sT}")
        k(f"s_mov_b64 exec, 0xffff")
        k(f"buffer_load_dword v{vPf}, v{vt}, s[{srdX}:{srdX+3}], s{sA} offen")
        k(f"s_mov_b64 exec, -1")
    def touch_b():
        if True:
            sS1=83; sTo=84
            k(f"s_lshr_b32 s{sA}, s{sIDX}, 2")
            k(f"s_and_b32 s{sT}, s{sIDX}, 3")
            k(f"s_add_u32 s{sA}, s{sA}, s{sT}")
            k(f"s_and_b32 s{sA}, s{sA}, 3")
            k(f"s_lshl_b32 s{sS1}, s{sA}, 1")
            k(f"s_add_u32 s{sS1}, s{sS1}, 1")
            k(f"s_and_b32 s{sA}, s{sXCD}, 3")
            k(f"s_lshl_b32 s{sA}, s{sA}, 2")
            k(f"s_add_u32 s{sA}, s{sA}, s{sT}")
            k(f"s_lshl_b32 s{sA}, s{sA}, 7")
            k(f"s_lshl_b32 s{sT}, s{sW}, 4")
            k(f"s_add_u32 s{sA}, s{sA}, s{sT}")
            k(f"s_lshl_b32 s{sA}, s{sA}, 10")
            k(f"s_lshl_b32 s{sT}, s{sS1}, 7")
            k(f"s_add_u32 s{sTo}, s{sA}, s{sT}")
            k(f"v_and_b32 v{vt}, 15, v{vL}")
            k(f"v_lshlrev_b32 v{vt}, 10, v{vt}")
            if 'x' in TBP:
                k(f"s_mov_b64 exec, 0xffff")
                k(f"buffer_load_dword v{vPf}, v{vt}, s[{srdX}:{srdX+3}], s{sTo} offen")
                k(f"s_mov_b64 exec, -1")
            mk_srd(k,srdT,sWQ,512*1536*2)
            k(f"v_mul_u32_u24 v{vt}, 171, v{vL}")
            k(f"v_lshrrev_b32 v{vt}, 9, v{vt}")
            k(f"v_mul_u32_u24 v{vt2}, 3, v{vt}")
            k(f"v_sub_u32 v{vt2}, v{vL}, v{vt2}")
            k(f"v_mul_u32_u24 v{vt}, 3072, v{vt}")
            k(f"v_lshl_add_u32 v{vt}, v{vt2}, 10, v{vt}")
            k(f"s_lshl_b32 s{sA}, s{sS1}, 6")
            k(f"s_lshl_b32 s{sT}, s{sW}, 3")
            k(f"s_add_u32 s{sA}, s{sA}, s{sT}")
            k(f"s_mul_i32 s{sA}, s{sA}, 3072")
            k(f"s_lshr_b32 s{sT}, s{sXCD}, 2")
            k(f"s_lshl_b32 s{sT}, s{sT}, 2")
            k(f"s_lshr_b32 s{sTo}, s{sIDX}, 2")
            k(f"s_add_u32 s{sT}, s{sT}, s{sTo}")
            k(f"s_lshl_b32 s{sT}, s{sT}, 7")
            k(f"s_add_u32 s{sA}, s{sA}, s{sT}")
            if 'w' in TBP:
                k(f"s_mov_b64 exec, {'0xffffff' if 'h' not in TBP else '0xfff'}")
                k(f"buffer_load_dword v{vPf}, v{vt}, s[{srdT}:{srdT+3}], s{sA} offen")
                k(f"s_mov_b64 exec, -1")
    TM=os.environ.get('TMODE','a')
    for ch_ in TM:
        if ch_=='a': touch_a()
        if ch_=='b': touch_b()
    sFr=78
    def wo_dma():
        k(f"s_lshl_b32 s{sFr}, s{sXCD}, 4")
        k(f"s_add_u32 s{sFr}, s{sFr}, s{sIDX}")
        k(f"s_lshl_b32 s{sFr}, s{sFr}, 2")
        k(f"s_add_u32 s{sFr}, s{sFr}, s{sWp}")
        mk_srd(k,srdT,sWO,512*512*2)
        k(f"v_lshrrev_b32 v{vt}, 2, v{vL}")
        k(f"v_and_b32 v{vt2}, 3, v{vL}")
        k(f"v_lshlrev_b32 v{vt2}, 4, v{vt2}")
        k(f"v_lshl_add_u32 v{vt}, v{vt}, 10, v{vt2}")
        k(f"s_and_b32 s{sA}, s{sFr}, 31")
        k(f"s_lshl_b32 s{sA}, s{sA}, 14")
        k(f"s_lshr_b32 s{sT}, s{sFr}, 5")
        k(f"s_lshl_b32 s{sT}, s{sT}, 6")
        k(f"s_add_u32 s{sT}, s{sA}, s{sT}")
        k(f"s_lshl_b32 s{sA}, s{sWp}, 10")
        k(f"s_add_u32 m0, s{sA}, {L_WO2}")
        k(f"s_nop 0")
        k(f"buffer_load_dwordx4 v{vt}, s[{srdT}:{srdT+3}], s{sT} offen lds", tag="wo")
    k(f"v_lshlrev_b32 v{vG}, 12, v0")
    k(f"s_lshl_b32 s{sA}, s{sD0}, 1")
    k(f"v_add_u32 v{vG}, s{sA}, v{vG}")
    k(f"v_subrev_u32 v{vH3}, 3072, v{vG}")
    side=[]
    for r in range(4):
        side.append([f"buffer_load_dwordx2 v[{g+6+2*r}:{g+7+2*r}], v{vG}, s[{srdX}:{srdX+3}], 0 offen offset:{r*1024}"])
    side.append(["s_mov_b64 exec, 1"]+[f"buffer_load_dwordx2 v[{g+2*r}:{g+2*r+1}], v{vH3}, s[{srdX}:{srdX+3}], 0 offen offset:{r*1024}" for r in range(3)]+["s_mov_b64 exec, -1"])
    mk_srd(k,srdWS,sWS,WS_SIZE)
    if fused:
        vZb=V(); k(f"v_mov_b32 v{vZb}, 0")
        rel_read_rare(k,name,"B",vZb)
    k(f"s_mul_i32 s{sCB}, s{sCh}, {CH}")
    k(f"s_mov_b32 s{sTab}, s{sCB}")
    aX=V(16)
    k(f"v_and_b32 v{vt}, 1, v{vL}")
    k(f"v_lshlrev_b32 v{vt}, 3, v{vt}")
    k(f"v_lshrrev_b32 v{vt2}, 1, v{vL}")
    k(f"v_lshl_add_u32 v{vt}, v{vt2}, 4, v{vt}")
    k(f"v_add_u32 v{aX}, s{sTab}, v{vt}")
    for x in range(1,16): k(f"v_xor_b32 v{aX+x}, {x<<4}, v{aX}")
    k(f"v_and_b32 v{vI}, 15, v{vL}")
    k(f"v_lshrrev_b32 v{vQ}, 4, v{vL}")
    def rdaddr(dst,rowreg):
        k(f"v_and_b32 v{vt}, 15, v{rowreg}")
        k(f"v_xor_b32 v{vt}, v{vt}, v{vQ}")
        k(f"v_lshlrev_b32 v{vt}, 4, v{vt}")
        k(f"v_lshl_add_u32 v{vt}, v{rowreg}, 9, v{vt}")
        k(f"v_add_u32 v{dst}, s{sTab}, v{vt}")
        for ks in range(1,4): k(f"v_xor_b32 v{dst+ks}, {ks<<6}, v{dst}")
    rF=V(4); rG1=V(4); rG2=V(4)
    rdaddr(rF,vI)
    def rne(dst,kk):
        k(f"v_bfe_u32 v{dst}, v{vI}, {kk}, 1")
        k(f"v_add3_u32 v{dst}, v{dst}, v{vI}, {(1<<(kk-1))-1}")
        k(f"v_lshrrev_b32 v{dst}, {kk}, v{dst}")
    z4=V(4,4)
    for u in range(4): k(f"v_mov_b32 v{z4+u}, 0")
    vDt=V(); vDs=V()
    k("s_waitcnt lgkmcnt(0)")
    k(f"s_lshl_b32 s{sA}, s{sLdt}, 16")
    k(f"s_and_b32 s{sB}, s{sLdt}, 0xffff0000")
    k(f"s_bitcmp0_b32 s{sCh}, 0")
    k(f"s_cselect_b32 s{sLdt}, s{sA}, s{sB}")
    k(f"s_lshl_b32 s{sA}, s{sDsk}, 16")
    k(f"s_and_b32 s{sB}, s{sDsk}, 0xffff0000")
    k(f"s_bitcmp0_b32 s{sCh}, 0")
    k(f"s_cselect_b32 s{sDsk}, s{sA}, s{sB}")
    k(f"v_mov_b32 v{vDt}, {LOG2E:#x}")
    k(f"v_mul_f32 v{vDt}, s{sLdt}, v{vDt}")
    k(f"v_exp_f32 v{vDt}, v{vDt}")
    k(f"v_cvt_pk_bf16_f32 v{vDt}, v{vDt}, v{vDt}")
    k(f"v_lshlrev_b32 v{vDt}, 16, v{vDt}")
    k(f"v_cmp_eq_u32 vcc, 0, v{vL}")
    k(f"v_mov_b32 v{vt}, s{sDsk}")
    k(f"v_cndmask_b32 v{vDs}, 0, v{vt}, vcc")
    import struct
    re2=V(2); fr=V(2); cc=[V(2,2),V(2,2)]; T0=[V(2,2),V(2,2)]; T1=[V(2,2),V(2,2)]
    def unpack(dst,src,m):
        if m==0: k(f"v_lshlrev_b32 v{dst}, 16, v{src}")
        else: k(f"v_and_b32 v{dst}, 0xffff0000, v{src}")
    def both(f):
        for m in range(2): f(m)
    def mode_params(need_c):
        both(lambda m: unpack(re2+m,pl,m))
        both(lambda m: k(f"v_mul_f32 v{re2+m}, {LOG2E:#x}, v{re2+m}"))
        both(lambda m: k(f"v_exp_f32 v{re2+m}, v{re2+m}"))
        both(lambda m: unpack(fr+m,pa,m))
        k(f"v_cvt_pk_bf16_f32 v{vt}, v{re2}, v{re2+1}")
        both(lambda m: k(f"v_mul_f32 v{fr+m}, v{fr+m}, v{vDt}"))
        both(lambda m: unpack(re2+m,vt,m))
        both(lambda m: k(f"v_mul_f32 v{fr+m}, {INV2PI:#x}, v{fr+m}"))
        both(lambda m: k(f"v_mul_f32 v{re2+m}, v{re2+m}, v{vDt}"))
        both(lambda m: k(f"v_mul_f32 v{re2+m}, {NLOG2E:#x}, v{re2+m}"))
        if need_c:
            both(lambda m: unpack(cc[m],pcr,m))
            both(lambda m: unpack(cc[m]+1,pci,m))
            k(f"v_add_f32 v{vt}, v{vDt}, v{vDt}")
            both(lambda m: k(f"v_mul_f32 v{cc[m]}, v{cc[m]}, v{vt}"))
            both(lambda m: k(f"v_mul_f32 v{cc[m]+1}, v{cc[m]+1}, v{vt}"))
    def Edirect(dst,p):
        lit=struct.unpack("<I",struct.pack("<f",float(p)))[0]
        if p==1:
            both(lambda m: k(f"v_exp_f32 v{T1[m]}, v{re2+m}"))
            both(lambda m: k(f"v_fract_f32 v{T1[m]+1}, v{fr+m}"))
        else:
            both(lambda m: k(f"v_mul_f32 v{T1[m]}, {lit:#x}, v{re2+m}"))
            both(lambda m: k(f"v_mul_f32 v{T1[m]+1}, {lit:#x}, v{fr+m}"))
            both(lambda m: k(f"v_exp_f32 v{T1[m]}, v{T1[m]}"))
            both(lambda m: k(f"v_fract_f32 v{T1[m]+1}, v{T1[m]+1}"))
        both(lambda m: k(f"v_cos_f32 v{dst[m]}, v{T1[m]+1}"))
        both(lambda m: k(f"v_sin_f32 v{dst[m]+1}, v{T1[m]+1}"))
        both(lambda m: k(f"v_pk_mul_f32 v[{dst[m]}:{dst[m]+1}], v[{dst[m]}:{dst[m]+1}], v[{T1[m]}:{T1[m]+1}] op_sel_hi:[1,0]"))
    def cmul2(dst,w,z,T):
        both(lambda m: k(f"v_pk_mul_f32 v[{T[m]}:{T[m]+1}], v[{w[m]}:{w[m]+1}], v[{z[m]}:{z[m]+1}] op_sel:[0,0] op_sel_hi:[0,1]"))
        both(lambda m: k(f"v_pk_fma_f32 v[{dst[m]}:{dst[m]+1}], v[{w[m]}:{w[m]+1}], v[{z[m]}:{z[m]+1}], v[{T[m]}:{T[m]+1}] op_sel:[1,1,0] op_sel_hi:[1,0,1] neg_lo:[0,1,0]"))
    pk=[V(2,2),V(2,2)]
    pkc=[0]
    sidel=[]; rowc=[0]; PACE=eval(os.environ.get('PACE','(2,13,24)'))
    def wrow(row,w,neg):
        r=pk[pkc[0]&1]; pkc[0]+=1
        both(lambda m: k(f"v_cvt_pk_bf16_f32 v{r+m}, v{w[m]}, {'-' if neg else ''}v{w[m]+1}"))
        if 'W' not in DB: k(f"ds_write_b64 v{aX+(row&15)}, v[{r}:{r+1}] offset:{row*512}")
        rowc[0]+=1
        if sidel and GMODE[0]=='i' and GMODE[1:].isdigit() and pkc[0]%int(GMODE[1:])==0:
            for l in sidel.pop(0): k(l)
        if sidel and GMODE=='paced' and rowc[0] in PACE:
            for l in sidel.pop(0): k(l)
    P2=lambda: [V(2,2),V(2,2)]
    wA=P2(); wB=P2(); zz=P2(); e4=P2(); e8=P2(); e12=P2(); e16=P2(); eb=P2()
    def mov2(dst,src):
        for m in range(2):
            k(f"v_mov_b32 v{dst[m]}, v{src[m]}"); k(f"v_mov_b32 v{dst[m]+1}, v{src[m]+1}")
    def table_role0(mid=None):
        mode_params(True)
        Edirect(zz,16)
        Edirect(wB,256)
        cmul2(wB,wB,cc,T0)
        if mid: mid()
        for a in range(16):
            src=cc if a==0 else wA
            wrow(a,src,True); wrow(16+a,wB,True)
            if a<15:
                cmul2(wA,src,zz,T0); cmul2(wB,wB,zz,T1)
    def table_role1(mid=None):
        mode_params(False)
        Edirect(zz,1)
        r=pk[pkc[0]&1]; pkc[0]+=1
        k(f"v_mov_b32 v{r}, 0x3f80"); k(f"v_mov_b32 v{r+1}, 0x3f80")
        k(f"ds_write_b64 v{aX+0}, v[{r}:{r+1}] offset:{32*512}")
        keep={4:e4,8:e8,12:e12,16:e16}
        Edirect(eb,512)
        wrow(33,zz,False)
        wrow(50,eb,False)
        if mid: mid()
        cur=zz
        for b in range(2,17):
            dst=keep.get(b,wA)
            cmul2(dst,cur,zz,T0)
            cur=dst
            wrow(32+b if b<16 else 49,cur,False)
            if b in keep:
                cmul2(wB,eb,cur,T1)
                wrow(50+2*(b//4),wB,False)
        for (p,row) in ((1024,51),(1536,57)):
            Edirect(eb,p)
            wrow(row,eb,False)
            cmul2(wB,eb,e8,T0); wrow(row+2,wB,False)
            cmul2(wB,eb,e16,T1); wrow(row+4,wB,False)
    uo={}
    def u_prep():
        for r in range(3):
            for dw in range(2):
                k(f"v_mov_b32_dpp v{g+2*r+dw}, v{g+2*(r+4)+dw} wave_shr:1 row_mask:0xf bank_mask:0xf")
        k(f"s_mov_b32 s{sSel0}, 0x05040100")
        k(f"s_mov_b32 s{sSel1}, 0x07060302")
        uo['z']=V(); uo['u']=V(); uo['u2']=V(); uo['o']=V(32,2)
        k(f"v_lshrrev_b32 v{vt}, 4, v{vL}")
        k(f"v_mul_u32_u24 v{vt}, {CH}, v{vt}")
        k(f"v_bfe_u32 v{vt2}, v{vL}, 2, 2")
        k(f"v_mul_u32_u24 v{vt2}, {UC}, v{vt2}")
        k(f"v_add_u32 v{vt}, v{vt}, v{vt2}")
        k(f"v_and_b32 v{vt2}, 3, v{vL}")
        k(f"v_lshl_add_u32 v{uo['z']}, v{vt2}, 4, v{vt}")
        k(f"v_sub_u32 v{uo['u']}, 511, v0")
        k(f"v_lshlrev_b32 v{uo['u']}, 3, v{uo['u']}")
        k(f"v_add_u32 v{uo['u2']}, {2*CH}, v{uo['u']}")
        G=lambda r,dw: g+2*(r+3)+dw
        for ch in range(4):
            sel=sSel0 if ch%2==0 else sSel1; dw=ch>>1
            for c in range(4):
                o=uo['o']+2*(4*ch+c)
                k(f"v_perm_b32 v{o}, v{G(c-1,dw)}, v{G(c,dw)}, s{sel}")
                k(f"v_perm_b32 v{o+1}, v{G(c-3,dw)}, v{G(c-2,dw)}, s{sel}")
    def u_write():
        k(f"ds_write_b128 v{uo['z']}, v[{z4}:{z4+3}] offset:4096")
        for ch in range(4):
            for c in range(4):
                o=uo['o']+2*(4*ch+c)
                k(f"ds_write_b64 v{uo['u'] if ch<2 else uo['u2']}, v[{o}:{o+1}] offset:{(ch%2)*CH+c*UC}")
    acc=V(16,4)
    fr_=[V(20,4),V(20,4),V(20,4)]
    def kreads(role,u):
        hi,ks=u>>2,u&3; f=fr_[u%3]; o=hi*256
        k(f"ds_read_b128 v[{f}:{f+3}], v{rF+ks} offset:{o}")
        if role==0:
            k(f"ds_read_b128 v[{f+8}:{f+11}], v{rF+ks} offset:{o+16384}")
            k(f"ds_read_b128 v[{f+4}:{f+7}], v{rF+ks} offset:{o+8192}")
            k(f"ds_read_b128 v[{f+12}:{f+15}], v{rG1+ks} offset:{o}")
            k(f"ds_read_b128 v[{f+16}:{f+19}], v{rG2+ks} offset:{o}")
        else:
            k(f"ds_read_b128 v[{f+8}:{f+11}], v{rG1+ks} offset:{o}")
            k(f"ds_read_b128 v[{f+4}:{f+7}], v{rF+ks} offset:{o+8192}")
            k(f"ds_read_b128 v[{f+12}:{f+15}], v{rG2+ks} offset:{o}")
    def kmf(role,u):
        f=fr_[u%3]
        if role==0: pairs=[(0,f+8,f),(1,f+12,f+4),(2,f+16,f),(3,f+16,f+4)]
        else: pairs=[(0,f+8,f),(1,f+8,f+4),(2,f+12,f),(3,f+12,f+4)]
        for (T,a,b) in pairs:
            cin="0" if u==0 else f"v[{acc+4*T}:{acc+4*T+3}]"
            k(f"v_mfma_f32_16x16x32_bf16 v[{acc+4*T}:{acc+4*T+3}], v[{a}:{a+3}], v[{b}:{b+3}], {cin}")
    def kmfma(role):
        kreads(role,0); kreads(role,1)
        for u in range(8):
            if u+2<8: kreads(role,u+2)
            kmf(role,u)
    wreg=[0]
    def wo_frag():
        wof=wreg[0]; vWoA=wreg[0]+4
        k(f"v_bfe_u32 v{vt}, v{vL}, 2, 2")
        k(f"v_lshrrev_b32 v{vt2}, 5, v{vL}")
        k(f"v_lshl_add_u32 v{vt}, v{vt2}, 2, v{vt}")
        k(f"v_lshlrev_b32 v{vWoA}, 6, v{vt}")
        k(f"v_bfe_u32 v{vt2}, v{vL}, 4, 1")
        k(f"v_lshl_add_u32 v{vWoA}, v{vt2}, 5, v{vWoA}")
        k(f"v_and_b32 v{vt2}, 3, v{vL}")
        k(f"v_lshl_add_u32 v{vWoA}, v{vt2}, 3, v{vWoA}")
        k(f"s_lshl_b32 s{sA}, s{sWp}, 10")
        k(f"s_add_u32 s{sA}, s{sA}, {L_WO2}")
        k(f"v_add_u32 v{vWoA}, s{sA}, v{vWoA}")
        k.wait_tag("wo")
        k(f"ds_read_b64_tr_b16 v[{wof}:{wof+1}], v{vWoA}")
        k(f"ds_read_b64_tr_b16 v[{wof+2}:{wof+3}], v{vWoA} offset:512")
        k(f"v_lshlrev_b32 v{vt}, 4, v{vL}")
        k(f"s_lshl_b32 s{sA}, s{sFr}, 10")
        k(f"s_add_u32 s{sA}, s{sA}, {WS_WO}")
        k(f"buffer_store_dwordx4 v[{wof}:{wof+3}], v{vt}, s[{srdWS}:{srdWS+3}], s{sA} offen {STF}")
    row=V()
    k(f"s_cmp_eq_u32 s{sRole}, 0")
    k(f"s_cbranch_scc0 L_{name}_B1")
    snap=k.snapshot(); mark=V.mark()
    for role in range(2):
        if role==1:
            k.restore(snap); V.reset(mark); k.label(f"L_{name}_B1")
        if role==0:
            rne(row,1)
            k(f"v_lshrrev_b32 v{vt2}, 3, v{row}")
            k(f"v_lshl_add_u32 v{row}, v{row}, 1, v{vt2}")
            k(f"v_add_u32 v{row}, 32, v{row}")
            rdaddr(rG1,row)
            rne(row,2); k(f"v_lshlrev_b32 v{row}, 1, v{row}"); k(f"v_add_u32 v{row}, 50, v{row}"); rdaddr(rG2,row)
        else:
            rne(row,3); k(f"v_lshlrev_b32 v{row}, 1, v{row}"); k(f"v_add_u32 v{row}, 51, v{row}"); rdaddr(rG1,row)
            k(f"v_add_u32 v{row}, 6, v{row}"); rdaddr(rG2,row)
        tab=table_role0 if role==0 else table_role1
        st.mark(k,1)
        if PRIO: k(f"s_setprio {PRIO}")
        if 'A' in TM or 'B' in TM:
            k.wait_tag("par")
            if 'B' in TM: touch_b()
            if 'A' in TM: touch_a()
        flat=[l for blk in side for l in blk]
        if GMODE=='split2':
            st_={}
            def mid():
                k(f"s_cmp_eq_u32 s{sP}, 1")
                k(f"s_cbranch_scc0 L_{name}_B{role}_g0")
                vmq=list(k.vm)
                for l in flat: k(l)
                k.label(f"L_{name}_B{role}_g0")
                k.vm=vmq
            tab(mid)
            k(f"s_cmp_eq_u32 s{sP}, 0")
            k(f"s_cbranch_scc0 L_{name}_B{role}_g1")
            for l in flat: k(l)
            k.label(f"L_{name}_B{role}_g1")
        elif GMODE=='paced':
            rowc[0]=0
            sidel.clear(); sidel.extend([list(x) for x in side])
            tab()
            rest_side=[list(x) for x in sidel]; sidel.clear()
        elif GMODE=='ink':
            tab()
        elif GMODE=='split':
            k.wait_tag("par")
            k(f"s_cmp_eq_u32 s{sP}, 0")
            k(f"s_cbranch_scc0 L_{name}_B{role}_g0")
            vmq=list(k.vm)
            for l in flat: k(l)
            k.label(f"L_{name}_B{role}_g0")
            k.vm=vmq
            tab()
            k(f"s_cmp_eq_u32 s{sP}, 1")
            k(f"s_cbranch_scc0 L_{name}_B{role}_g1")
            for l in flat: k(l)
            k.label(f"L_{name}_B{role}_g1")
        else:
            sidel.clear(); sidel.extend([list(x) for x in side] if 'G' not in DB else [])
            if GMODE=='pre':
                k.wait_tag("par")
                for blk in sidel:
                    for l in blk: k(l)
                sidel.clear()
            tab()
            for blk in sidel:
                for l in blk: k(l)
            sidel.clear()
        st.mark(k,2)
        k.barrier()
        if not fused: wo_dma()
        else:
            mk_srd(k,srdT,sWO,512*512*2)
            k(f"v_and_b32 v{vt}, 31, v{vL}")
            k(f"v_lshlrev_b32 v{vt}, 7, v{vt}")
            k(f"s_lshl_b32 s{sA}, s{sIDX}, 3")
            k(f"s_add_u32 s{sA}, s{sA}, s{sW}")
            k(f"s_lshl_b32 s{sA}, s{sA}, 12")
            k(f"buffer_load_dword v{vPf}, v{vt}, s[{srdT}:{srdT+3}], s{sA} offen")
        if GMODE=='paced':
            k.bg=[[(l,None) for l in blk] for blk in rest_side]; k.bg_every=int(os.environ.get('GEV','10'))
        if GMODE=='ink':
            k.bg=[[(l,None) for l in blk] for blk in side]; k.bg_every=int(os.environ.get('GEV','6'))
        kmfma(role)
        k.bg_flush()
        st.mark(k,3)
        u_prep()
        vK=vt3
        k(f"s_add_u32 s{sTab}, s{sCB}, {KOFF}")
        k(f"v_lshlrev_b32 v{vK}, 5, v{vL}")
        k(f"v_add_u32 v{vK}, s{sTab}, v{vK}")
        kp=V(8,4); vKz=V()
        if role==0:
            k(f"v_add_f32 v{acc}, v{acc}, v{vDs}")
            k(f"v_lshlrev_b32 v{vKz}, 3, v{vL}")
            k(f"v_add_u32 v{vKz}, s{sTab}, v{vKz}")
        for T in range(4):
            k(f"v_cvt_pk_bf16_f32 v{kp+2*T}, v{acc+4*T}, v{acc+4*T+1}")
            k(f"v_cvt_pk_bf16_f32 v{kp+2*T+1}, v{acc+4*T+2}, v{acc+4*T+3}")
        for b0 in range(2):
            for d in range(2): k(f"v_permlane32_swap_b32 v{kp+2*b0+d}, v{kp+2*(b0+2)+d}")
        for b1 in range(2):
            for d in range(2): k(f"v_permlane16_swap_b32 v{kp+4*b1+d}, v{kp+4*b1+2+d}")
        k.barrier()
        if role==0:
            k(f"ds_write_b64 v{vKz}, v[{z4}:{z4+1}]")
            k(f"ds_write_b64 v{vKz}, v[{z4}:{z4+1}] offset:{P1}")
        o=2048*role
        k(f"ds_write_b128 v{vK}, v[{kp}:{kp+3}] offset:{o+464}")
        k(f"ds_write_b128 v{vK}, v[{kp+4}:{kp+7}] offset:{o+480}")
        k(f"ds_write_b128 v{vK}, v[{kp+2}:{kp+5}] offset:{P1+o+464}")
        k(f"ds_write_b64 v{vK}, v[{kp}:{kp+1}] offset:{P1+o+456}")
        k(f"ds_write_b64 v{vK}, v[{kp+6}:{kp+7}] offset:{P1+o+480}")
        u_write()
        k(f"v_and_b32 v{vt}, 3, v{vI}")
        k(f"v_mul_u32_u24 v{vA}, {UC}, v{vt}")
        k(f"v_lshrrev_b32 v{vt}, 2, v{vI}")
        k(f"v_sub_u32 v{vt}, v{vQ}, v{vt}")
        k(f"v_add_u32 v{vt}, 3, v{vt}")
        k(f"v_lshl_add_u32 v{vA}, v{vt}, 4, v{vA}")
        k(f"v_add_u32 v{vA}, s{sCB}, v{vA}")
        k(f"v_lshrrev_b32 v{vt}, 1, v{vI}")
        k(f"v_lshlrev_b32 v{vB}, 6, v{vt}")
        k(f"v_lshl_add_u32 v{vB}, v{vQ}, 4, v{vB}")
        k(f"v_and_b32 v{vt}, 1, v{vI}")
        k(f"v_mul_u32_u24 v{vt}, {P1-16}, v{vt}")
        k(f"v_sub_u32 v{vt}, {P1}, v{vt}")
        k(f"v_add3_u32 v{vB}, v{vB}, v{vt}, s{sTab}")
        k.barrier()
        V.reset(mark0)
        y=V(32,4)
        S=[V(64,4),V(64,4)]
        wreg[0]=V(8,4)
        def loads(r,s):
            L=[]
            for c in range(8):
                L.append(f"ds_read_b128 v[{s+4*c}:{s+4*c+3}], v{vA} offset:{64*(56+r-8*c)}")
                L.append(f"ds_read_b128 v[{s+32+4*c}:{s+32+4*c+3}], v{vB} offset:{64*(r+8*c)}")
            return L
        classes=[4*role+i for i in range(4)]
        for l in loads(classes[0],S[0]): k(l)
        started=set()
        for ci,r in enumerate(classes):
            s=S[ci&1]
            nxt=loads(classes[ci+1],S[(ci+1)&1]) if ci+1<4 else []
            order=[]
            for d in range(8):
                for a in range(8):
                    for c in range(8):
                        if max(a,c)==d and a+c<=7: order.append((a,c))
            n=0
            for (a,c) in order:
                i=a+c
                cin="0" if i not in started else f"v[{y+4*i}:{y+4*i+3}]"
                started.add(i)
                k(f"v_mfma_f32_16x16x32_bf16 v[{y+4*i}:{y+4*i+3}], v[{s+4*c}:{s+4*c+3}], v[{s+32+4*a}:{s+32+4*a+3}], {cin}")
                n+=1
                if nxt and n>=4 and n%2==0: k(nxt.pop(0))
            for l in nxt: k(l)
            if ci==1 and not fused: wo_frag()
        st.mark(k,4)
        vXw=vt3; vXr=vA
        k(f"v_lshlrev_b32 v{vt}, 4, v{vL}")
        k(f"s_lshl_b32 s{sA}, s{sW}, 12")
        k(f"s_add_u32 s{sA}, s{sA}, {L_WOB}")
        k(f"v_add_u32 v{vXw}, s{sA}, v{vt}")
        k(f"s_xor_b32 s{sA}, s{sA}, 4096") if False else None
        k(f"s_xor_b32 s{sB}, s{sW}, 1")
        k(f"s_lshl_b32 s{sB}, s{sB}, 12")
        k(f"s_add_u32 s{sB}, s{sB}, {L_WOB}")
        k(f"v_add_u32 v{vXr}, s{sB}, v{vt}")
        mine=[4*role+i for i in range(4)]; theirs=[4*(1-role)+i for i in range(4)]
        for n_,i in enumerate(theirs):
            k(f"ds_write_b128 v{vXw}, v[{y+4*i}:{y+4*i+3}] offset:{1024*n_}")
        vS=vB
        k(f"v_lshrrev_b32 v{vt}, 1, v{vI}")
        k(f"v_lshlrev_b32 v{vS}, 6, v{vt}")
        k(f"v_lshl_add_u32 v{vS}, v{vQ}, 4, v{vS}")
        k(f"v_and_b32 v{vt}, 1, v{vI}")
        k(f"v_lshl_add_u32 v{vS}, v{vt}, 3, v{vS}")
        k(f"s_add_u32 s{sA}, s{sD0}, s{sCh}")
        k(f"s_lshl_b32 s{sA}, s{sA}, 12")
        k(f"s_add_u32 s{sA}, s{sA}, {WS_B+role*4*512}")
        k.barrier()
        rr=S[0]
        for n_ in range(4):
            k(f"ds_read_b128 v[{rr+4*n_}:{rr+4*n_+3}], v{vXr} offset:{1024*n_}")
        for n_,i in enumerate(mine):
            b=rr+4*n_
            k(f"v_pk_add_f32 v[{b}:{b+1}], v[{b}:{b+1}], v[{y+4*i}:{y+4*i+1}]")
            k(f"v_pk_add_f32 v[{b+2}:{b+3}], v[{b+2}:{b+3}], v[{y+4*i+2}:{y+4*i+3}]")
            k(f"v_cvt_pk_bf16_f32 v{b}, v{b}, v{b+1}")
            k(f"v_cvt_pk_bf16_f32 v{b+1}, v{b+2}, v{b+3}")
            k(f"buffer_store_dwordx2 v[{b}:{b+1}], v{vS}, s[{srdWS}:{srdWS+3}], s{sA} offen offset:{512*n_} {STF}")
        st.mark(k,5)
        if fused: k(f"s_branch L_{name}_F")
        else:
            st.finish(k,sWS,sW,y)
            k("s_endpgm")
    if fused:
        k.auto=False; rel_read_block(k,name,"B",vZb,srdWS); k.auto=True
    return V.hi
```

```python
from dsl import *
from common import *
import os
GMODE=os.environ.get('GMODE','split2')
DB=os.environ.get('DBGB','')
STF=os.environ.get('STF','sc1')
TBP=os.environ.get('TBP','xw')
PRIO=os.environ.get('PRIOB','')
from k1a import mk_srd,sWO,sWQ,srdT,sX,sLA,sAI,sCR,sCI,sLDT,sDS,sWS,sW,sXCD,sIDX,srdX,srdWS,LOG2E,NLOG2E

UC=4160
CH=31744
KOFF=16640
P1=4640
L_WOB=4*CH
XB=32768
INV2PI=0x3e22f983

def cmul(k,dst,w,z,t):
    k(f"v_pk_mul_f32 v[{t}:{t+1}], v[{w}:{w+1}], v[{z}:{z+1}] op_sel:[0,0] op_sel_hi:[0,1]")
    k(f"v_pk_fma_f32 v[{dst}:{dst+1}], v[{w}:{w+1}], v[{z}:{z+1}], v[{t}:{t+1}] op_sel:[1,1,0] op_sel_hi:[1,0,1] neg_lo:[0,1,0]")

def gen_b(k,name,st,fused=False):
    from kf import rel_read_rare, rel_read_block
    V=Alloc("v",1,256)
    sA=64; sB=65; sT=39; sD0=66; sCh=67; sRole=68; sLdt=69; sDsk=70; sCB=71; sSel0=72; sSel1=73; sEx=74; sTab=76
    vL=V(); vt=V(); vt2=V(); vt3=V(); t0=V(2,2); t1=V(2,2)
    vI=V(); vQ=V(); vA=V(); vB=V()
    mark0=V.mark()
    sP=80; sDP=81; sWp=82; sXS=85
    k(f"s_add_u32 s{sXS}, s{sXCD}, {int(os.environ.get('XSH','3'))}")
    k(f"s_and_b32 s{sXS}, s{sXS}, 7")
    k(f"s_lshl_b32 s{sD0}, s{sXS}, 6")
    k(f"s_lshl_b32 s{sA}, s{sIDX}, 2")
    k(f"s_add_u32 s{sD0}, s{sD0}, s{sA}")
    k(f"s_lshr_b32 s{sCh}, s{sW}, 1")
    k(f"s_and_b32 s{sRole}, s{sW}, 1")
    k(f"s_lshr_b32 s{sP}, s{sW}, 2")
    k(f"s_and_b32 s{sWp}, s{sW}, 3")
    k(f"s_lshl_b32 s{sA}, s{sP}, 1")
    k(f"s_add_u32 s{sDP}, s{sD0}, s{sA}")
    k(f"v_and_b32 v{vL}, 63, v0")
    k(f"s_add_u32 s{sA}, s{sD0}, s{sCh}")
    k(f"s_lshl_b32 s{sA}, s{sA}, 8")
    vP=V()
    k(f"v_lshlrev_b32 v{vP}, 2, v{vL}")
    k(f"v_add_u32 v{vP}, s{sA}, v{vP}")
    k(f"s_lshl_b32 s{sB}, s{sDP}, 1")
    k("s_waitcnt lgkmcnt(0)")
    k(f"s_load_dword s{sLdt}, s[{sLDT}:{sLDT+1}], s{sB}")
    k(f"s_load_dword s{sDsk}, s[{sDS}:{sDS+1}], s{sB}")
    pl=V(); pa=V(); pcr=V(); pci=V()
    k(f"global_load_dword v{pl}, v{vP}, s[{sLA}:{sLA+1}]")
    k(f"global_load_dword v{pa}, v{vP}, s[{sAI}:{sAI+1}]")
    k(f"global_load_dword v{pcr}, v{vP}, s[{sCR}:{sCR+1}]")
    k(f"global_load_dword v{pci}, v{vP}, s[{sCI}:{sCI+1}]", tag="par")
    mk_srd(k,srdX,sX,2048*512*2)
    g=V(14,2); vG=V(); vH3=V(); vPf=250
    def touch_a():
        k(f"v_and_b32 v{vt}, 15, v{vL}")
        k(f"v_lshlrev_b32 v{vt}, 10, v{vt}")
        k(f"s_lshl_b32 s{sA}, s{sIDX}, 7")
        k(f"s_lshl_b32 s{sT}, s{sW}, 4")
        k(f"s_add_u32 s{sA}, s{sA}, s{sT}")
        k(f"s_lshl_b32 s{sA}, s{sA}, 10")
        k(f"s_lshl_b32 s{sT}, s{sXS}, 7")
        k(f"s_add_u32 s{sA}, s{sA}, s{sT}")
        k(f"s_mov_b64 exec, 0xffff")
        k(f"buffer_load_dword v{vPf}, v{vt}, s[{srdX}:{srdX+3}], s{sA} offen")
        k(f"s_mov_b64 exec, -1")
    def touch_b():
        if True:
            sS1=83; sTo=84
            k(f"s_lshr_b32 s{sA}, s{sIDX}, 2")
            k(f"s_and_b32 s{sT}, s{sIDX}, 3")
            k(f"s_add_u32 s{sA}, s{sA}, s{sT}")
            k(f"s_and_b32 s{sA}, s{sA}, 3")
            k(f"s_lshl_b32 s{sS1}, s{sA}, 1")
            k(f"s_add_u32 s{sS1}, s{sS1}, 1")
            k(f"s_and_b32 s{sA}, s{sXCD}, 3")
            k(f"s_lshl_b32 s{sA}, s{sA}, 2")
            k(f"s_add_u32 s{sA}, s{sA}, s{sT}")
            k(f"s_lshl_b32 s{sA}, s{sA}, 7")
            k(f"s_lshl_b32 s{sT}, s{sW}, 4")
            k(f"s_add_u32 s{sA}, s{sA}, s{sT}")
            k(f"s_lshl_b32 s{sA}, s{sA}, 10")
            k(f"s_lshl_b32 s{sT}, s{sS1}, 7")
            k(f"s_add_u32 s{sTo}, s{sA}, s{sT}")
            k(f"v_and_b32 v{vt}, 15, v{vL}")
            k(f"v_lshlrev_b32 v{vt}, 10, v{vt}")
            if 'x' in TBP:
                k(f"s_mov_b64 exec, 0xffff")
                k(f"buffer_load_dword v{vPf}, v{vt}, s[{srdX}:{srdX+3}], s{sTo} offen")
                k(f"s_mov_b64 exec, -1")
            mk_srd(k,srdT,sWQ,512*1536*2)
            k(f"v_mul_u32_u24 v{vt}, 171, v{vL}")
            k(f"v_lshrrev_b32 v{vt}, 9, v{vt}")
            k(f"v_mul_u32_u24 v{vt2}, 3, v{vt}")
            k(f"v_sub_u32 v{vt2}, v{vL}, v{vt2}")
            k(f"v_mul_u32_u24 v{vt}, 3072, v{vt}")
            k(f"v_lshl_add_u32 v{vt}, v{vt2}, 10, v{vt}")
            k(f"s_lshl_b32 s{sA}, s{sS1}, 6")
            k(f"s_lshl_b32 s{sT}, s{sW}, 3")
            k(f"s_add_u32 s{sA}, s{sA}, s{sT}")
            k(f"s_mul_i32 s{sA}, s{sA}, 3072")
            k(f"s_lshr_b32 s{sT}, s{sXCD}, 2")
            k(f"s_lshl_b32 s{sT}, s{sT}, 2")
            k(f"s_lshr_b32 s{sTo}, s{sIDX}, 2")
            k(f"s_add_u32 s{sT}, s{sT}, s{sTo}")
            k(f"s_lshl_b32 s{sT}, s{sT}, 7")
            k(f"s_add_u32 s{sA}, s{sA}, s{sT}")
            if 'w' in TBP:
                k(f"s_mov_b64 exec, {'0xffffff' if 'h' not in TBP else '0xfff'}")
                k(f"buffer_load_dword v{vPf}, v{vt}, s[{srdT}:{srdT+3}], s{sA} offen")
                k(f"s_mov_b64 exec, -1")
    TM=os.environ.get('TMODE','a')
    for ch_ in TM:
        if ch_=='a': touch_a()
        if ch_=='b': touch_b()
    sFr=78
    def wo_dma():
        k(f"s_lshl_b32 s{sFr}, s{sXCD}, 4")
        k(f"s_add_u32 s{sFr}, s{sFr}, s{sIDX}")
        k(f"s_lshl_b32 s{sFr}, s{sFr}, 2")
        k(f"s_add_u32 s{sFr}, s{sFr}, s{sWp}")
        mk_srd(k,srdT,sWO,512*512*2)
        k(f"v_lshrrev_b32 v{vt}, 2, v{vL}")
        k(f"v_and_b32 v{vt2}, 3, v{vL}")
        k(f"v_lshlrev_b32 v{vt2}, 4, v{vt2}")
        k(f"v_lshl_add_u32 v{vt}, v{vt}, 10, v{vt2}")
        k(f"s_and_b32 s{sA}, s{sFr}, 31")
        k(f"s_lshl_b32 s{sA}, s{sA}, 14")
        k(f"s_lshr_b32 s{sT}, s{sFr}, 5")
        k(f"s_lshl_b32 s{sT}, s{sT}, 6")
        k(f"s_add_u32 s{sT}, s{sA}, s{sT}")
        k(f"s_lshl_b32 s{sA}, s{sW}, 10")
        k(f"s_add_u32 m0, s{sA}, {L_WOB}")
        k(f"s_nop 0")
        k(f"buffer_load_dwordx4 v{vt}, s[{srdT}:{srdT+3}], s{sT} offen lds", tag="wo")
    k(f"v_lshlrev_b32 v{vG}, 12, v0")
    k(f"s_lshl_b32 s{sA}, s{sD0}, 1")
    k(f"v_add_u32 v{vG}, s{sA}, v{vG}")
    k(f"v_subrev_u32 v{vH3}, 3072, v{vG}")
    side=[]
    for r in range(4):
        side.append([f"buffer_load_dwordx2 v[{g+6+2*r}:{g+7+2*r}], v{vG}, s[{srdX}:{srdX+3}], 0 offen offset:{r*1024}"])
    side.append(["s_mov_b64 exec, 1"]+[f"buffer_load_dwordx2 v[{g+2*r}:{g+2*r+1}], v{vH3}, s[{srdX}:{srdX+3}], 0 offen offset:{r*1024}" for r in range(3)]+["s_mov_b64 exec, -1"])
    mk_srd(k,srdWS,sWS,WS_SIZE)
    if fused:
        vZb=V(); k(f"v_mov_b32 v{vZb}, 0")
        rel_read_rare(k,name,"B",vZb)
    k(f"s_mul_i32 s{sCB}, s{sCh}, {CH}")
    k(f"s_mov_b32 s{sTab}, s{sCB}")
    aX=V(16)
    k(f"v_and_b32 v{vt}, 1, v{vL}")
    k(f"v_lshlrev_b32 v{vt}, 3, v{vt}")
    k(f"v_lshrrev_b32 v{vt2}, 1, v{vL}")
    k(f"v_lshl_add_u32 v{vt}, v{vt2}, 4, v{vt}")
    k(f"v_add_u32 v{aX}, s{sTab}, v{vt}")
    for x in range(1,16): k(f"v_xor_b32 v{aX+x}, {x<<4}, v{aX}")
    k(f"v_and_b32 v{vI}, 15, v{vL}")
    k(f"v_lshrrev_b32 v{vQ}, 4, v{vL}")
    def rdaddr(dst,rowreg):
        k(f"v_and_b32 v{vt}, 15, v{rowreg}")
        k(f"v_xor_b32 v{vt}, v{vt}, v{vQ}")
        k(f"v_lshlrev_b32 v{vt}, 4, v{vt}")
        k(f"v_lshl_add_u32 v{vt}, v{rowreg}, 9, v{vt}")
        k(f"v_add_u32 v{dst}, s{sTab}, v{vt}")
        for ks in range(1,4): k(f"v_xor_b32 v{dst+ks}, {ks<<6}, v{dst}")
    rF=V(4); rG1=V(4); rG2=V(4)
    rdaddr(rF,vI)
    def rne(dst,kk):
        k(f"v_bfe_u32 v{dst}, v{vI}, {kk}, 1")
        k(f"v_add3_u32 v{dst}, v{dst}, v{vI}, {(1<<(kk-1))-1}")
        k(f"v_lshrrev_b32 v{dst}, {kk}, v{dst}")
    z4=V(4,4)
    for u in range(4): k(f"v_mov_b32 v{z4+u}, 0")
    vDt=V(); vDs=V()
    k("s_waitcnt lgkmcnt(0)")
    k(f"s_lshl_b32 s{sA}, s{sLdt}, 16")
    k(f"s_and_b32 s{sB}, s{sLdt}, 0xffff0000")
    k(f"s_bitcmp0_b32 s{sCh}, 0")
    k(f"s_cselect_b32 s{sLdt}, s{sA}, s{sB}")
    k(f"s_lshl_b32 s{sA}, s{sDsk}, 16")
    k(f"s_and_b32 s{sB}, s{sDsk}, 0xffff0000")
    k(f"s_bitcmp0_b32 s{sCh}, 0")
    k(f"s_cselect_b32 s{sDsk}, s{sA}, s{sB}")
    k(f"v_mov_b32 v{vDt}, {LOG2E:#x}")
    k(f"v_mul_f32 v{vDt}, s{sLdt}, v{vDt}")
    k(f"v_exp_f32 v{vDt}, v{vDt}")
    k(f"v_cvt_pk_bf16_f32 v{vDt}, v{vDt}, v{vDt}")
    k(f"v_lshlrev_b32 v{vDt}, 16, v{vDt}")
    k(f"v_cmp_eq_u32 vcc, 0, v{vL}")
    k(f"v_mov_b32 v{vt}, s{sDsk}")
    k(f"v_cndmask_b32 v{vDs}, 0, v{vt}, vcc")
    import struct
    re2=V(2); fr=V(2); cc=[V(2,2),V(2,2)]; T0=[V(2,2),V(2,2)]; T1=[V(2,2),V(2,2)]
    def unpack(dst,src,m):
        if m==0: k(f"v_lshlrev_b32 v{dst}, 16, v{src}")
        else: k(f"v_and_b32 v{dst}, 0xffff0000, v{src}")
    def both(f):
        for m in range(2): f(m)
    def mode_params(need_c):
        both(lambda m: unpack(re2+m,pl,m))
        both(lambda m: k(f"v_mul_f32 v{re2+m}, {LOG2E:#x}, v{re2+m}"))
        both(lambda m: k(f"v_exp_f32 v{re2+m}, v{re2+m}"))
        both(lambda m: unpack(fr+m,pa,m))
        k(f"v_cvt_pk_bf16_f32 v{vt}, v{re2}, v{re2+1}")
        both(lambda m: k(f"v_mul_f32 v{fr+m}, v{fr+m}, v{vDt}"))
        both(lambda m: unpack(re2+m,vt,m))
        both(lambda m: k(f"v_mul_f32 v{fr+m}, {INV2PI:#x}, v{fr+m}"))
        both(lambda m: k(f"v_mul_f32 v{re2+m}, v{re2+m}, v{vDt}"))
        both(lambda m: k(f"v_mul_f32 v{re2+m}, {NLOG2E:#x}, v{re2+m}"))
        if need_c:
            both(lambda m: unpack(cc[m],pcr,m))
            both(lambda m: unpack(cc[m]+1,pci,m))
            k(f"v_add_f32 v{vt}, v{vDt}, v{vDt}")
            both(lambda m: k(f"v_mul_f32 v{cc[m]}, v{cc[m]}, v{vt}"))
            both(lambda m: k(f"v_mul_f32 v{cc[m]+1}, v{cc[m]+1}, v{vt}"))
    def Edirect(dst,p):
        lit=struct.unpack("<I",struct.pack("<f",float(p)))[0]
        if p==1:
            both(lambda m: k(f"v_exp_f32 v{T1[m]}, v{re2+m}"))
            both(lambda m: k(f"v_fract_f32 v{T1[m]+1}, v{fr+m}"))
        else:
            both(lambda m: k(f"v_mul_f32 v{T1[m]}, {lit:#x}, v{re2+m}"))
            both(lambda m: k(f"v_mul_f32 v{T1[m]+1}, {lit:#x}, v{fr+m}"))
            both(lambda m: k(f"v_exp_f32 v{T1[m]}, v{T1[m]}"))
            both(lambda m: k(f"v_fract_f32 v{T1[m]+1}, v{T1[m]+1}"))
        both(lambda m: k(f"v_cos_f32 v{dst[m]}, v{T1[m]+1}"))
        both(lambda m: k(f"v_sin_f32 v{dst[m]+1}, v{T1[m]+1}"))
        both(lambda m: k(f"v_pk_mul_f32 v[{dst[m]}:{dst[m]+1}], v[{dst[m]}:{dst[m]+1}], v[{T1[m]}:{T1[m]+1}] op_sel_hi:[1,0]"))
    def cmul2(dst,w,z,T):
        both(lambda m: k(f"v_pk_mul_f32 v[{T[m]}:{T[m]+1}], v[{w[m]}:{w[m]+1}], v[{z[m]}:{z[m]+1}] op_sel:[0,0] op_sel_hi:[0,1]"))
        both(lambda m: k(f"v_pk_fma_f32 v[{dst[m]}:{dst[m]+1}], v[{w[m]}:{w[m]+1}], v[{z[m]}:{z[m]+1}], v[{T[m]}:{T[m]+1}] op_sel:[1,1,0] op_sel_hi:[1,0,1] neg_lo:[0,1,0]"))
    pk=[V(2,2),V(2,2)]
    pkc=[0]
    sidel=[]
    def wrow(row,w,neg):
        r=pk[pkc[0]&1]; pkc[0]+=1
        both(lambda m: k(f"v_cvt_pk_bf16_f32 v{r+m}, v{w[m]}, {'-' if neg else ''}v{w[m]+1}"))
        if 'W' not in DB: k(f"ds_write_b64 v{aX+(row&15)}, v[{r}:{r+1}] offset:{row*512}")
        if sidel and GMODE[0]=='i' and pkc[0]%int(GMODE[1:])==0:
            for l in sidel.pop(0): k(l)
    P2=lambda: [V(2,2),V(2,2)]
    wA=P2(); wB=P2(); zz=P2(); e4=P2(); e8=P2(); e12=P2(); e16=P2(); eb=P2()
    def mov2(dst,src):
        for m in range(2):
            k(f"v_mov_b32 v{dst[m]}, v{src[m]}"); k(f"v_mov_b32 v{dst[m]+1}, v{src[m]+1}")
    def table_role0(mid=None):
        mode_params(True)
        Edirect(zz,16)
        Edirect(wB,256)
        cmul2(wB,wB,cc,T0)
        if mid: mid()
        for a in range(16):
            src=cc if a==0 else wA
            wrow(a,src,True); wrow(16+a,wB,True)
            if a<15:
                cmul2(wA,src,zz,T0); cmul2(wB,wB,zz,T1)
    def table_role1(mid=None):
        mode_params(False)
        Edirect(zz,1)
        r=pk[pkc[0]&1]; pkc[0]+=1
        k(f"v_mov_b32 v{r}, 0x3f80"); k(f"v_mov_b32 v{r+1}, 0x3f80")
        k(f"ds_write_b64 v{aX+0}, v[{r}:{r+1}] offset:{32*512}")
        keep={4:e4,8:e8,12:e12,16:e16}
        Edirect(eb,512)
        wrow(33,zz,False)
        wrow(50,eb,False)
        if mid: mid()
        cur=zz
        for b in range(2,17):
            dst=keep.get(b,wA)
            cmul2(dst,cur,zz,T0)
            cur=dst
            wrow(32+b if b<16 else 49,cur,False)
            if b in keep:
                cmul2(wB,eb,cur,T1)
                wrow(50+2*(b//4),wB,False)
        for (p,row) in ((1024,51),(1536,57)):
            Edirect(eb,p)
            wrow(row,eb,False)
            cmul2(wB,eb,e8,T0); wrow(row+2,wB,False)
            cmul2(wB,eb,e16,T1); wrow(row+4,wB,False)
    uo={}
    def u_prep():
        for r in range(3):
            for dw in range(2):
                k(f"v_mov_b32_dpp v{g+2*r+dw}, v{g+2*(r+4)+dw} wave_shr:1 row_mask:0xf bank_mask:0xf")
        k(f"s_mov_b32 s{sSel0}, 0x05040100")
        k(f"s_mov_b32 s{sSel1}, 0x07060302")
        uo['z']=V(); uo['u']=V(); uo['u2']=V(); uo['o']=V(32,2)
        k(f"v_lshrrev_b32 v{vt}, 4, v{vL}")
        k(f"v_mul_u32_u24 v{vt}, {CH}, v{vt}")
        k(f"v_bfe_u32 v{vt2}, v{vL}, 2, 2")
        k(f"v_mul_u32_u24 v{vt2}, {UC}, v{vt2}")
        k(f"v_add_u32 v{vt}, v{vt}, v{vt2}")
        k(f"v_and_b32 v{vt2}, 3, v{vL}")
        k(f"v_lshl_add_u32 v{uo['z']}, v{vt2}, 4, v{vt}")
        k(f"v_sub_u32 v{uo['u']}, 511, v0")
        k(f"v_lshlrev_b32 v{uo['u']}, 3, v{uo['u']}")
        k(f"v_add_u32 v{uo['u2']}, {2*CH}, v{uo['u']}")
        G=lambda r,dw: g+2*(r+3)+dw
        for ch in range(4):
            sel=sSel0 if ch%2==0 else sSel1; dw=ch>>1
            for c in range(4):
                o=uo['o']+2*(4*ch+c)
                k(f"v_perm_b32 v{o}, v{G(c-1,dw)}, v{G(c,dw)}, s{sel}")
                k(f"v_perm_b32 v{o+1}, v{G(c-3,dw)}, v{G(c-2,dw)}, s{sel}")
    def u_write():
        k(f"ds_write_b128 v{uo['z']}, v[{z4}:{z4+3}] offset:4096")
        for ch in range(4):
            for c in range(4):
                o=uo['o']+2*(4*ch+c)
                k(f"ds_write_b64 v{uo['u'] if ch<2 else uo['u2']}, v[{o}:{o+1}] offset:{(ch%2)*CH+c*UC}")
    acc=V(16,4)
    fr_=[V(20,4),V(20,4),V(20,4)]
    def kreads(role,u):
        hi,ks=u>>2,u&3; f=fr_[u%3]; o=hi*256
        k(f"ds_read_b128 v[{f}:{f+3}], v{rF+ks} offset:{o}")
        if role==0:
            k(f"ds_read_b128 v[{f+8}:{f+11}], v{rF+ks} offset:{o+16384}")
            k(f"ds_read_b128 v[{f+4}:{f+7}], v{rF+ks} offset:{o+8192}")
            k(f"ds_read_b128 v[{f+12}:{f+15}], v{rG1+ks} offset:{o}")
            k(f"ds_read_b128 v[{f+16}:{f+19}], v{rG2+ks} offset:{o}")
        else:
            k(f"ds_read_b128 v[{f+8}:{f+11}], v{rG1+ks} offset:{o}")
            k(f"ds_read_b128 v[{f+4}:{f+7}], v{rF+ks} offset:{o+8192}")
            k(f"ds_read_b128 v[{f+12}:{f+15}], v{rG2+ks} offset:{o}")
    def kmf(role,u):
        f=fr_[u%3]
        if role==0: pairs=[(0,f+8,f),(1,f+12,f+4),(2,f+16,f),(3,f+16,f+4)]
        else: pairs=[(0,f+8,f),(1,f+8,f+4),(2,f+12,f),(3,f+12,f+4)]
        for (T,a,b) in pairs:
            cin="0" if u==0 else f"v[{acc+4*T}:{acc+4*T+3}]"
            k(f"v_mfma_f32_16x16x32_bf16 v[{acc+4*T}:{acc+4*T+3}], v[{a}:{a+3}], v[{b}:{b+3}], {cin}")
    def kmfma(role):
        kreads(role,0); kreads(role,1)
        for u in range(8):
            if u+2<8: kreads(role,u+2)
            kmf(role,u)
    def wo_frag():
        wof=fr_[0]; vWoA=fr_[0]+4
        k(f"v_bfe_u32 v{vt}, v{vL}, 2, 2")
        k(f"v_lshrrev_b32 v{vt2}, 5, v{vL}")
        k(f"v_lshl_add_u32 v{vt}, v{vt2}, 2, v{vt}")
        k(f"v_lshlrev_b32 v{vWoA}, 6, v{vt}")
        k(f"v_bfe_u32 v{vt2}, v{vL}, 4, 1")
        k(f"v_lshl_add_u32 v{vWoA}, v{vt2}, 5, v{vWoA}")
        k(f"v_and_b32 v{vt2}, 3, v{vL}")
        k(f"v_lshl_add_u32 v{vWoA}, v{vt2}, 3, v{vWoA}")
        k(f"s_lshl_b32 s{sA}, s{sW}, 10")
        k(f"s_add_u32 s{sA}, s{sA}, {L_WOB}")
        k(f"v_add_u32 v{vWoA}, s{sA}, v{vWoA}")
        k.wait_tag("wo")
        k(f"ds_read_b64_tr_b16 v[{wof}:{wof+1}], v{vWoA}")
        k(f"ds_read_b64_tr_b16 v[{wof+2}:{wof+3}], v{vWoA} offset:512")
        k(f"v_lshlrev_b32 v{vt}, 4, v{vL}")
        k(f"s_lshl_b32 s{sA}, s{sFr}, 10")
        k(f"s_add_u32 s{sA}, s{sA}, {WS_WO}")
        k(f"buffer_store_dwordx4 v[{wof}:{wof+3}], v{vt}, s[{srdWS}:{srdWS+3}], s{sA} offen {STF}")
    row=V()
    k(f"s_cmp_eq_u32 s{sRole}, 0")
    k(f"s_cbranch_scc0 L_{name}_B1")
    snap=k.snapshot(); mark=V.mark()
    for role in range(2):
        if role==1:
            k.restore(snap); V.reset(mark); k.label(f"L_{name}_B1")
        if role==0:
            rne(row,1)
            k(f"v_lshrrev_b32 v{vt2}, 3, v{row}")
            k(f"v_lshl_add_u32 v{row}, v{row}, 1, v{vt2}")
            k(f"v_add_u32 v{row}, 32, v{row}")
            rdaddr(rG1,row)
            rne(row,2); k(f"v_lshlrev_b32 v{row}, 1, v{row}"); k(f"v_add_u32 v{row}, 50, v{row}"); rdaddr(rG2,row)
        else:
            rne(row,3); k(f"v_lshlrev_b32 v{row}, 1, v{row}"); k(f"v_add_u32 v{row}, 51, v{row}"); rdaddr(rG1,row)
            k(f"v_add_u32 v{row}, 6, v{row}"); rdaddr(rG2,row)
        tab=table_role0 if role==0 else table_role1
        st.mark(k,1)
        if PRIO: k(f"s_setprio {PRIO}")
        if 'A' in TM or 'B' in TM:
            k.wait_tag("par")
            if 'B' in TM: touch_b()
            if 'A' in TM: touch_a()
        flat=[l for blk in side for l in blk]
        if GMODE=='split2':
            st_={}
            def mid():
                k(f"s_cmp_eq_u32 s{sP}, 1")
                k(f"s_cbranch_scc0 L_{name}_B{role}_g0")
                vmq=list(k.vm)
                for l in flat: k(l)
                k.label(f"L_{name}_B{role}_g0")
                k.vm=vmq
            tab(mid)
            k(f"s_cmp_eq_u32 s{sP}, 0")
            k(f"s_cbranch_scc0 L_{name}_B{role}_g1")
            for l in flat: k(l)
            k.label(f"L_{name}_B{role}_g1")
        elif GMODE=='ink':
            tab()
        elif GMODE=='split':
            k.wait_tag("par")
            k(f"s_cmp_eq_u32 s{sP}, 0")
            k(f"s_cbranch_scc0 L_{name}_B{role}_g0")
            vmq=list(k.vm)
            for l in flat: k(l)
            k.label(f"L_{name}_B{role}_g0")
            k.vm=vmq
            tab()
            k(f"s_cmp_eq_u32 s{sP}, 1")
            k(f"s_cbranch_scc0 L_{name}_B{role}_g1")
            for l in flat: k(l)
            k.label(f"L_{name}_B{role}_g1")
        else:
            sidel.clear(); sidel.extend([list(x) for x in side] if 'G' not in DB else [])
            if GMODE=='pre':
                k.wait_tag("par")
                for blk in sidel:
                    for l in blk: k(l)
                sidel.clear()
            tab()
            for blk in sidel:
                for l in blk: k(l)
            sidel.clear()
        st.mark(k,2)
        k.barrier()
        if not fused: wo_dma()
        else:
            mk_srd(k,srdT,sWO,512*512*2)
            k(f"v_and_b32 v{vt}, 31, v{vL}")
            k(f"v_lshlrev_b32 v{vt}, 7, v{vt}")
            k(f"s_lshl_b32 s{sA}, s{sIDX}, 3")
            k(f"s_add_u32 s{sA}, s{sA}, s{sW}")
            k(f"s_lshl_b32 s{sA}, s{sA}, 12")
            k(f"buffer_load_dword v{vPf}, v{vt}, s[{srdT}:{srdT+3}], s{sA} offen")
        if GMODE=='ink':
            k.bg=[[(l,None) for l in blk] for blk in side]; k.bg_every=int(os.environ.get('GEV','6'))
        kmfma(role)
        k.bg_flush()
        st.mark(k,3)
        u_prep()
        vK=vt3
        k(f"s_add_u32 s{sTab}, s{sCB}, {KOFF}")
        k(f"v_lshlrev_b32 v{vK}, 5, v{vL}")
        k(f"v_add_u32 v{vK}, s{sTab}, v{vK}")
        kp=V(8,4); vKz=V()
        if role==0:
            k(f"v_add_f32 v{acc}, v{acc}, v{vDs}")
            k(f"v_lshlrev_b32 v{vKz}, 3, v{vL}")
            k(f"v_add_u32 v{vKz}, s{sTab}, v{vKz}")
        for T in range(4):
            k(f"v_cvt_pk_bf16_f32 v{kp+2*T}, v{acc+4*T}, v{acc+4*T+1}")
            k(f"v_cvt_pk_bf16_f32 v{kp+2*T+1}, v{acc+4*T+2}, v{acc+4*T+3}")
        for b0 in range(2):
            for d in range(2): k(f"v_permlane32_swap_b32 v{kp+2*b0+d}, v{kp+2*(b0+2)+d}")
        for b1 in range(2):
            for d in range(2): k(f"v_permlane16_swap_b32 v{kp+4*b1+d}, v{kp+4*b1+2+d}")
        k.barrier()
        if role==0:
            k(f"ds_write_b64 v{vKz}, v[{z4}:{z4+1}]")
            k(f"ds_write_b64 v{vKz}, v[{z4}:{z4+1}] offset:{P1}")
        o=2048*role
        k(f"ds_write_b128 v{vK}, v[{kp}:{kp+3}] offset:{o+464}")
        k(f"ds_write_b128 v{vK}, v[{kp+4}:{kp+7}] offset:{o+480}")
        k(f"ds_write_b128 v{vK}, v[{kp+2}:{kp+5}] offset:{P1+o+464}")
        k(f"ds_write_b64 v{vK}, v[{kp}:{kp+1}] offset:{P1+o+456}")
        k(f"ds_write_b64 v{vK}, v[{kp+6}:{kp+7}] offset:{P1+o+480}")
        u_write()
        if not fused: wo_frag()
        k(f"v_and_b32 v{vt}, 3, v{vI}")
        k(f"v_mul_u32_u24 v{vA}, {UC}, v{vt}")
        k(f"v_lshrrev_b32 v{vt}, 2, v{vI}")
        k(f"v_sub_u32 v{vt}, v{vQ}, v{vt}")
        k(f"v_add_u32 v{vt}, 3, v{vt}")
        k(f"v_lshl_add_u32 v{vA}, v{vt}, 4, v{vA}")
        k(f"v_add_u32 v{vA}, s{sCB}, v{vA}")
        k(f"v_lshrrev_b32 v{vt}, 1, v{vI}")
        k(f"v_lshlrev_b32 v{vB}, 6, v{vt}")
        k(f"v_lshl_add_u32 v{vB}, v{vQ}, 4, v{vB}")
        k(f"v_and_b32 v{vt}, 1, v{vI}")
        k(f"v_mul_u32_u24 v{vt}, {P1-16}, v{vt}")
        k(f"v_sub_u32 v{vt}, {P1}, v{vt}")
        k(f"v_add3_u32 v{vB}, v{vB}, v{vt}, s{sTab}")
        k.barrier()
        V.reset(mark0)
        y=V(32,4)
        S=[V(64,4),V(64,4)]
        def loads(r,s):
            L=[]
            for c in range(8):
                L.append(f"ds_read_b128 v[{s+4*c}:{s+4*c+3}], v{vA} offset:{64*(56+r-8*c)}")
                L.append(f"ds_read_b128 v[{s+32+4*c}:{s+32+4*c+3}], v{vB} offset:{64*(r+8*c)}")
            return L
        classes=[4*role+i for i in range(4)]
        for l in loads(classes[0],S[0]): k(l)
        started=set()
        for ci,r in enumerate(classes):
            s=S[ci&1]
            nxt=loads(classes[ci+1],S[(ci+1)&1]) if ci+1<4 else []
            order=[]
            for d in range(8):
                for a in range(8):
                    for c in range(8):
                        if max(a,c)==d and a+c<=7: order.append((a,c))
            n=0
            for (a,c) in order:
                i=a+c
                cin="0" if i not in started else f"v[{y+4*i}:{y+4*i+3}]"
                started.add(i)
                k(f"v_mfma_f32_16x16x32_bf16 v[{y+4*i}:{y+4*i+3}], v[{s+4*c}:{s+4*c+3}], v[{s+32+4*a}:{s+32+4*a+3}], {cin}")
                n+=1
                if nxt and n>=4 and n%2==0: k(nxt.pop(0))
            for l in nxt: k(l)
        st.mark(k,4)
        vXw=vt3; vXr=vA
        k(f"v_lshlrev_b32 v{vt}, 4, v{vL}")
        k(f"s_lshl_b32 s{sA}, s{sW}, 12")
        k(f"s_add_u32 s{sA}, s{sA}, {L_WOB}")
        k(f"v_add_u32 v{vXw}, s{sA}, v{vt}")
        k(f"s_xor_b32 s{sA}, s{sA}, 4096") if False else None
        k(f"s_xor_b32 s{sB}, s{sW}, 1")
        k(f"s_lshl_b32 s{sB}, s{sB}, 12")
        k(f"s_add_u32 s{sB}, s{sB}, {L_WOB}")
        k(f"v_add_u32 v{vXr}, s{sB}, v{vt}")
        mine=[4*role+i for i in range(4)]; theirs=[4*(1-role)+i for i in range(4)]
        for n_,i in enumerate(theirs):
            k(f"ds_write_b128 v{vXw}, v[{y+4*i}:{y+4*i+3}] offset:{1024*n_}")
        vS=vB
        k(f"v_lshrrev_b32 v{vt}, 1, v{vI}")
        k(f"v_lshlrev_b32 v{vS}, 6, v{vt}")
        k(f"v_lshl_add_u32 v{vS}, v{vQ}, 4, v{vS}")
        k(f"v_and_b32 v{vt}, 1, v{vI}")
        k(f"v_lshl_add_u32 v{vS}, v{vt}, 3, v{vS}")
        k(f"s_add_u32 s{sA}, s{sD0}, s{sCh}")
        k(f"s_lshl_b32 s{sA}, s{sA}, 12")
        k(f"s_add_u32 s{sA}, s{sA}, {WS_B+role*4*512}")
        k.barrier()
        rr=S[0]
        for n_ in range(4):
            k(f"ds_read_b128 v[{rr+4*n_}:{rr+4*n_+3}], v{vXr} offset:{1024*n_}")
        for n_,i in enumerate(mine):
            b=rr+4*n_
            k(f"v_pk_add_f32 v[{b}:{b+1}], v[{b}:{b+1}], v[{y+4*i}:{y+4*i+1}]")
            k(f"v_pk_add_f32 v[{b+2}:{b+3}], v[{b+2}:{b+3}], v[{y+4*i+2}:{y+4*i+3}]")
            k(f"v_cvt_pk_bf16_f32 v{b}, v{b}, v{b+1}")
            k(f"v_cvt_pk_bf16_f32 v{b+1}, v{b+2}, v{b+3}")
            k(f"buffer_store_dwordx2 v[{b}:{b+1}], v{vS}, s[{srdWS}:{srdWS+3}], s{sA} offen offset:{512*n_} {STF}")
        st.mark(k,5)
        if fused: k(f"s_branch L_{name}_F")
        else:
            st.finish(k,sWS,sW,y)
            k("s_endpgm")
    if fused:
        k.auto=False; rel_read_block(k,name,"B",vZb,srdWS); k.auto=True
    return V.hi
```

```python
from dsl import *
from common import *
import os
DBG=os.environ.get('DBG','')
GATE=os.environ.get('GATE','epi')
QORD=os.environ.get('QORD','last')
PRIOA=os.environ.get('PRIOA','')
XW1=os.environ.get('XW1','pro')
GJ=int(os.environ.get('GJ','29'))
STF=os.environ.get('STF','sc1')
TP=eval(os.environ.get('TP','(0,3,3)'))
NTB=int(os.environ.get('TB','1'))
MK=eval(os.environ.get('MK','{0:2,1:3,2:4,4:5}'))

sX=4; sWQ=6; sWPHI=8; sWO=10; sLA=14; sAI=16; sCR=18; sCI=20; sLDT=22; sDS=24; sGW=26; sOUT=28; sDBG=30; sWS=32
sW=34
sXCD=35; sIDX=36
srdX=40; srdWq=44; srdWS=48; srdKV=52; srdDBG=56; srdT=60
L_WPHI=0
L_WR=2048; WSL=24576; NWS=3
L_XR=L_WR+NWS*WSL; XSL=16384; NXS=3
K1_LDS=159744
LOG2E=0x3fb8aa3b; NLOG2E=0xbfb8aa3b
RED0=L_WR
def red_base(g,w): return (L_WR if g==0 else L_WR+2*WSL)+w*4352

def mk_srd(k,srd,ptr,size):
    k(f"s_mov_b32 s{srd}, s{ptr}")
    k(f"s_and_b32 s{srd+1}, s{ptr+1}, 0xffff")
    k(f"s_mov_b32 s{srd+2}, {size}")
    k(f"s_mov_b32 s{srd+3}, 0x20000")

def softmax2(k, blocks, tmp, sL2E, fill=None):
    nb=len(blocks)
    def each(f):
        for b in range(nb): f(b,*blocks[b])
    T=[tmp+4*b for b in range(nb)]
    each(lambda b,p,o: k(f"v_max3_f32 v{T[b]}, v{p}, v{p+1}, v{p+2}"))
    for u in range(6):
        each(lambda b,p,o: k(f"v_max3_f32 v{T[b]}, v{T[b]}, v{p+3+2*u}, v{p+4+2*u}"))
    each(lambda b,p,o: k(f"v_max_f32 v{T[b]}, v{T[b]}, v{p+15}"))
    each(lambda b,p,o: k(f"v_mul_f32 v{T[b]}, {NLOG2E:#x}, v{T[b]}"))
    for u in range(8):
        each(lambda b,p,o: k(f"v_pk_fma_f32 v[{p+2*u}:{p+2*u+1}], v[{p+2*u}:{p+2*u+1}], s[{sL2E}:{sL2E+1}], v[{T[b]}:{T[b]+1}] op_sel_hi:[1,1,0]"))
    for u in range(16):
        each(lambda b,p,o: k(f"v_exp_f32 v{p+u}, v{p+u}"))
    S=[t+2 for t in T]
    each(lambda b,p,o: k(f"v_pk_add_f32 v[{S[b]}:{S[b]+1}], v[{p}:{p+1}], v[{p+2}:{p+3}]"))
    for u in range(2,8):
        each(lambda b,p,o: k(f"v_pk_add_f32 v[{S[b]}:{S[b]+1}], v[{S[b]}:{S[b]+1}], v[{p+2*u}:{p+2*u+1}]"))
    each(lambda b,p,o: k(f"v_add_f32 v{T[b]}, v{S[b]}, v{S[b]+1}"))
    each(lambda b,p,o: k(f"v_rcp_f32 v{T[b]}, v{T[b]}"))
    for u in range(8):
        each(lambda b,p,o: k(f"v_pk_mul_f32 v[{p+2*u}:{p+2*u+1}], v[{p+2*u}:{p+2*u+1}], v[{T[b]}:{T[b]+1}] op_sel_hi:[1,0]"))
    for u in range(8):
        each(lambda b,p,o: k(f"v_cvt_pk_bf16_f32 v{o+u}, v{p+2*u}, v{p+2*u+1}"))

def gen_a(k, name, st, fused=False):
    from kf import rel_read_rare, rel_read_block
    V=Alloc("v",1,256)
    sTT=37; sHP=38; sT=39; sA=64; sB=65; sX0=66; sWo_=68; sMx=69; sMw=70
    sL2E=74; sMaskLo=76; sTick=80; sGt=86-0 if False else 63; sPhiO=81; sGo=82; sE=83; sFirst=84
    k.label(f"L_{name}_A")
    sHQ=67; sTBW=78; sHG=79
    k(f"s_and_b32 s{sA}, s{sXCD}, 3")
    k(f"s_lshl_b32 s{sA}, s{sA}, 2")
    k(f"s_and_b32 s{sB}, s{sIDX}, 3")
    k(f"s_add_u32 s{sTT}, s{sA}, s{sB}")
    k(f"s_lshr_b32 s{sA}, s{sXCD}, 2")
    k(f"s_lshl_b32 s{sA}, s{sA}, 2")
    k(f"s_lshr_b32 s{sB}, s{sIDX}, 2")
    k(f"s_add_u32 s{sHQ}, s{sA}, s{sB}")
    k(f"s_and_b32 s{sTBW}, s{sW}, 3")
    k(f"s_lshr_b32 s{sHG}, s{sW}, 2")
    k(f"s_lshl_b32 s{sA}, s{sHQ}, 1")
    k(f"s_add_u32 s{sHP}, s{sA}, s{sHG}")
    vL=V(); vXg=V(2); vWg=V(3); vt=V(); vt2=V(); vt3=V()
    k(f"v_and_b32 v{vL}, 63, v0")
    k(f"v_lshrrev_b32 v{vt}, 4, v{vL}")
    k(f"v_xor_b32 v{vt}, v{vt}, v{vL}")
    k(f"v_and_b32 v{vt}, 7, v{vt}")
    k(f"v_lshlrev_b32 v{vt}, 4, v{vt}")
    k(f"v_lshrrev_b32 v{vt2}, 3, v{vL}")
    k(f"v_lshl_add_u32 v{vXg}, v{vt2}, 10, v{vt}")
    k(f"v_xor_b32 v{vXg+1}, 64, v{vXg}")
    k(f"v_add_u32 v{vXg+1}, 8192, v{vXg+1}")
    for i in range(3):
        k(f"v_add_u32 v{vt3}, {64*i}, v{vL}")
        k(f"v_mul_u32_u24 v{vt}, 171, v{vt3}")
        k(f"v_lshrrev_b32 v{vt}, 12, v{vt}")
        k(f"v_mul_u32_u24 v{vt2}, 24, v{vt}")
        k(f"v_sub_u32 v{vt2}, v{vt3}, v{vt2}")
        k(f"v_bfe_u32 v{vt3}, v{vt}, 1, 1")
        k(f"v_lshlrev_b32 v{vt3}, 2, v{vt3}")
        k(f"v_xor_b32 v{vt2}, v{vt2}, v{vt3}")
        k(f"v_mul_u32_u24 v{vWg+i}, 3072, v{vt}")
        k(f"v_lshrrev_b32 v{vt3}, 3, v{vt2}")
        k(f"v_lshl_add_u32 v{vWg+i}, v{vt3}, 10, v{vWg+i}")
        k(f"v_and_b32 v{vt2}, 7, v{vt2}")
        k(f"v_lshl_add_u32 v{vWg+i}, v{vt2}, 4, v{vWg+i}")
    k(f"s_lshl_b32 s{sX0}, s{sTT}, 17")
    k(f"s_lshl_b32 s{sA}, s{sW}, 14")
    k(f"s_add_u32 s{sX0}, s{sX0}, s{sA}")
    k(f"s_mul_i32 s{sWo_}, s{sW}, {8*3072}")
    k(f"s_lshl_b32 s{sA}, s{sHQ}, 7")
    k(f"s_add_u32 s{sWo_}, s{sWo_}, s{sA}")
    k(f"s_lshl_b32 s{sMx}, s{sW}, 11")
    k(f"s_add_u32 s{sMx}, s{sMx}, {L_XR}")
    k(f"s_mul_i32 s{sMw}, s{sW}, 3072")
    k(f"s_add_u32 s{sMw}, s{sMw}, {L_WR}")
    sXk=71; sWk=72; sXc=73; sWc=85
    k(f"s_lshr_b32 s{sA}, s{sIDX}, 2")
    k(f"s_and_b32 s{sB}, s{sIDX}, 3")
    k(f"s_add_u32 s{sA}, s{sA}, s{sB}")
    k(f"s_and_b32 s{sA}, s{sA}, 3")
    k(f"s_lshl_b32 s{sA}, s{sA}, 1")
    if 'N' in DBG: k(f"s_mov_b32 s{sA}, 0")
    k(f"s_lshl_b32 s{sXk}, s{sA}, 7")
    k(f"s_mul_i32 s{sWk}, s{sA}, {64*3072}")
    k("s_waitcnt lgkmcnt(0)")
    mk_srd(k,srdX,sX,2048*512*2)
    mk_srd(k,srdWq,sWQ,512*1536*2)
    def dma_x_l(S):
        L=[]; slot=S%NXS
        for i in range(2):
            g=[]
            if i==0:
                if S>0:
                    g.append((f"s_add_u32 s{sXk}, s{sXk}, 128",None))
                    g.append((f"s_and_b32 s{sXk}, s{sXk}, 0x3ff",None))
                g.append((f"s_add_u32 s{sXc}, s{sX0}, s{sXk}",None))
            g+=[(f"s_add_u32 m0, s{sMx}, {slot*XSL+i*1024}",None),("s_nop 0",None),
                (f"buffer_load_dwordx4 v{vXg+i}, s[{srdX}:{srdX+3}], s{sXc} offen lds",f"x{S}")]
            L.append(g)
        return L
    def dma_w_l(S):
        slot=S%NWS; L=[]
        for i in range(3):
            g=[]
            if i==0:
                if S>0:
                    g.append((f"s_add_u32 s{sWk}, s{sWk}, {64*3072}",None))
                    g.append((f"s_cmp_eq_u32 s{sWk}, {512*3072}",None))
                    g.append((f"s_cselect_b32 s{sWk}, 0, s{sWk}",None))
                g.append((f"s_add_u32 s{sWc}, s{sWo_}, s{sWk}",None))
            g.append((f"s_add_u32 m0, s{sMw}, {slot*WSL+i*1024}",None))
            g.append(("s_nop 0",None))
            g.append((f"buffer_load_dwordx4 v{vWg+i}, s[{srdWq}:{srdWq+3}], s{sWc} offen lds",f"w{S}"))
            L.append(g)
        return L
    def emit_g(g):
        for (t,tag) in g: k(t,tag=tag)
    def dma_x(S):
        for g in dma_x_l(S): emit_g(g)
    def dma_w(S):
        for g in dma_w_l(S): emit_g(g)
    dma_x(0); dma_w(0)
    if XW1=='pro': dma_x(1); dma_w(1)
    if 1 not in MK.values(): st.mark(k,1)
    gx=V(8,4); gw=V(8,4); vGa=V(); vGw=V()
    k(f"v_and_b32 v{vt}, 31, v{vL}")
    k(f"v_lshlrev_b32 v{vGw}, 5, v{vt}")
    k(f"v_lshrrev_b32 v{vt}, 5, v{vL}")
    k(f"v_lshl_add_u32 v{vGa}, v{vt}, 10, v{vGw}")
    k(f"s_lshl_b32 s{sA}, s{sTT}, 7")
    k(f"s_and_b32 s{sB}, s{sHQ}, 7")
    k(f"s_lshl_b32 s{sB}, s{sB}, 4")
    k(f"s_add_u32 s{sA}, s{sA}, s{sB}")
    k(f"s_lshl_b32 s{sB}, s{sW}, 1")
    k(f"s_add_u32 s{sGo}, s{sA}, s{sB}")
    k(f"global_load_dwordx4 v[{gw}:{gw+3}], v{vGw}, s[{sGW}:{sGW+1}]")
    k(f"global_load_dwordx4 v[{gw+4}:{gw+7}], v{vGw}, s[{sGW}:{sGW+1}] offset:16")
    mk_srd(k,srdDBG,sDBG,256)
    mk_srd(k,srdT,sWPHI,32*512)
    mk_srd(k,srdWS,sWS,WS_SIZE)
    vZ=V(); vL16=V(); vOne=V(); sR=3
    k(f"v_mov_b32 v{vZ}, 0")
    k(f"v_lshlrev_b32 v{vL16}, 4, v{vL}")
    k(f"s_lshl_b32 s{sT}, s{sHP}, 10")
    k(f"s_lshl_b32 s{sA}, s{sHG}, 10")
    k(f"s_add_u32 m0, s{sA}, {L_WPHI}")
    k(f"s_lshl_b32 s{sA}, s{sHP}, 2")
    k(f"buffer_load_dwordx4 v{vL16}, s[{srdT}:{srdT+3}], s{sT} offen lds", tag="wphi")
    if fused: rel_read_rare(k,name,"A",vZ)
    k(f"s_mov_b32 s{sL2E}, {LOG2E:#x}")
    k(f"s_mov_b32 s{sL2E+1}, {LOG2E:#x}")
    k(f"s_mov_b32 s{sMaskLo}, 0x0000ffff")
    k(f"s_mov_b32 s{sMaskLo+1}, 0x0000ffff")
    k(f"s_or_b32 s{sA}, s{sTT}, s{sTBW}")
    k(f"s_cmp_eq_u32 s{sA}, 0")
    k(f"s_cselect_b32 s{sFirst}, 1, 0")
    vM=V(); vH=V()
    k(f"v_and_b32 v{vM}, 31, v{vL}")
    k(f"v_lshrrev_b32 v{vH}, 5, v{vL}")
    vXr=V(4); vWr=V()
    k(f"v_lshrrev_b32 v{vt}, 1, v{vM}")
    k(f"v_and_b32 v{vt}, 7, v{vt}")
    k(f"v_xor_b32 v{vt}, v{vt}, v{vH}")
    k(f"v_lshlrev_b32 v{vt}, 4, v{vt}")
    k(f"v_lshl_add_u32 v{vXr}, v{vM}, 7, v{vt}")
    k(f"s_lshl_b32 s{sA}, s{sTBW}, 12")
    k(f"s_add_u32 s{sA}, s{sA}, {L_XR}")
    k(f"v_add_u32 v{vXr}, s{sA}, v{vXr}")
    for ks in range(1,4): k(f"v_xor_b32 v{vXr+ks}, {ks<<5}, v{vXr}")
    k(f"v_bfe_u32 v{vt}, v{vL}, 2, 2")
    k(f"v_lshl_add_u32 v{vt2}, v{vH}, 3, v{vt}")
    k(f"v_mul_u32_u24 v{vWr}, 384, v{vt2}")
    k(f"v_bfe_u32 v{vt2}, v{vL}, 4, 1")
    k(f"v_lshlrev_b32 v{vt2}, 5, v{vt2}")
    k(f"v_and_b32 v{vt3}, 3, v{vL}")
    k(f"v_lshl_add_u32 v{vt2}, v{vt3}, 3, v{vt2}")
    k(f"s_lshl_b32 s{sA}, s{sHG}, 6")
    k(f"v_add_u32 v{vt2}, s{sA}, v{vt2}")
    k(f"v_lshrrev_b32 v{vt}, 1, v{vt}")
    k(f"v_lshlrev_b32 v{vt}, 6, v{vt}")
    k(f"v_xor_b32 v{vt2}, v{vt2}, v{vt}")
    k(f"v_add_u32 v{vWr}, v{vWr}, v{vt2}")
    k(f"v_add_u32 v{vWr}, {L_WR}, v{vWr}")
    vWr2=V()
    k(f"v_add_u32 v{vWr2}, {2*WSL}, v{vWr}")
    I=V(8,4)
    for s in range(2):
        k(f"v_lshlrev_b32 v{vt}, 4, v{vH}")
        k(f"v_sub_u32 v{vt}, v{vM}, v{vt}")
        if s: k(f"v_subrev_u32 v{vt}, 8, v{vt}")
        k(f"v_and_b32 v{vt2}, 1, v{vt}")
        k(f"v_lshlrev_b32 v{vt2}, 4, v{vt2}")
        k(f"v_mov_b32 v{vt3}, 0x3f80")
        k(f"v_lshlrev_b32 v{vt2}, v{vt2}, v{vt3}")
        k(f"v_lshrrev_b32 v{vt}, 1, v{vt}")
        for u in range(4):
            k(f"v_cmp_eq_u32 vcc, {u}, v{vt}")
            k(f"v_cndmask_b32 v{I+4*s+u}, 0, v{vt2}, vcc")
    z4=V(4,4)
    for u in range(4): k(f"v_mov_b32 v{z4+u}, 0")
    accQ=V(16,4); accK=V(16,4); accV=V(16,4)
    F=[V(16,4),V(16,4),V(16,4)]
    def reads_l(j):
        f=F[j%3]; S=j>>2; ks=j&3
        if 'R' in DBG: return []
        L=[f"ds_read_b128 v[{f}:{f+3}], v{vXr+ks} offset:{(S%NXS)*XSL}"]
        for seg in range(3):
            for half in range(2):
                L.append(f"ds_read_b64_tr_b16 v[{f+4+4*seg+2*half}:{f+5+4*seg+2*half}], v{vWr2 if S%NWS==2 else vWr} offset:{(S%NWS%2)*WSL+ks*16*384+half*4*384+seg*128}")
        return L
    def reads(j):
        for l in reads_l(j): k(l)
    RSPLIT=eval(os.environ.get('RSPLIT','(2,2,3)'))
    def mfmas(j, fill=(), rd=()):
        f=F[j%3]; fill=list(fill); rd=list(rd)
        c=lambda a: "0" if j==0 else f"v[{a}:{a+15}]"
        M=[f"v_mfma_f32_32x32x16_bf16 v[{accQ}:{accQ+15}], v[{f+4}:{f+7}], v[{f}:{f+3}], {c(accQ)}",
           f"v_mfma_f32_32x32x16_bf16 v[{accK}:{accK+15}], v[{f+8}:{f+11}], v[{f}:{f+3}], {c(accK)}",
           f"v_mfma_f32_32x32x16_bf16 v[{accV}:{accV+15}], v[{f}:{f+3}], v[{f+12}:{f+15}], {c(accV)}"]
        for n,m in enumerate(M):
            if 'M' not in DBG: k(m)
            for _ in range(RSPLIT[n]):
                if rd: k(rd.pop(0))
            if fill: emit_g(fill.pop(0))
        for l in rd: k(l)
        for g in fill: emit_g(g)
    gs=V(); vgt=V(); vgt2=V()
    def gate_code():
        k(f"v_mov_b32 v{gs}, 0")
        for u in range(8): k(f"v_dot2c_f32_bf16 v{gs}, v{gx+u}, v{gw+u}")
        for n in (8,4,2,1): k(f"v_add_f32_dpp v{gs}, v{gs}, v{gs} row_ror:{n} row_mask:0xf bank_mask:0xf")
        k(f"v_add_f32_dpp v{gs}, v{gs}, v{gs} row_bcast:15 row_mask:0xa bank_mask:0xf")
        k(f"v_cvt_pk_bf16_f32 v{gs}, v{gs}, v{gs}")
        k(f"v_lshlrev_b32 v{gs}, 16, v{gs}")
        k(f"v_mul_f32 v{gs}, {NLOG2E:#x}, v{gs}")
        k(f"v_exp_f32 v{gs}, v{gs}")
        k(f"v_add_f32 v{gs}, 1.0, v{gs}")
        k(f"v_rcp_f32 v{gs}, v{gs}")
        k(f"v_cvt_pk_bf16_f32 v{gs}, v{gs}, v{gs}")
        k(f"v_lshlrev_b32 v{gs}, 16, v{gs}")
        k(f"v_lshlrev_b32 v{vgt}, 2, v{vH}")
        k(f"v_bfe_u32 v{vgt2}, v{vL}, 4, 1")
        k(f"v_subrev_u32 v{vgt2}, 1, v{vgt2}")
        k(f"v_and_b32 v{vgt2}, 0x80000000, v{vgt2}")
        k(f"v_or_b32 v{vgt}, v{vgt}, v{vgt2}")
        k(f"s_lshl_b32 s{sGt}, s{sGo}, 2")
        k(f"s_add_u32 s{sGt}, s{sGt}, {WS_G}")
        k(f"buffer_store_dword v{gs}, v{vgt}, s[{srdWS}:{srdWS+3}], s{sGt} offen {STF}")
    wf=V(8,4); vPhA=V(); vSg=V(); ones=V(); vRb=V(2); vSt=V(2); vRa=V(8); vFl=V()
    pre=[]
    P=lambda t: pre.append(t)
    P(f"v_bfe_u32 v{vt}, v{vL}, 2, 2")
    P(f"v_lshl_add_u32 v{vt}, v{vH}, 2, v{vt}")
    P(f"v_lshlrev_b32 v{vPhA}, 5, v{vt}")
    P(f"v_bfe_u32 v{vt2}, v{vL}, 4, 1")
    P(f"v_lshl_add_u32 v{vPhA}, v{vt2}, 4, v{vPhA}")
    P(f"v_bfe_u32 v{vt2}, v{vL}, 1, 1")
    P(f"v_lshl_add_u32 v{vPhA}, v{vt2}, 3, v{vPhA}")
    P(f"s_lshl_b32 s{sA}, s{sHG}, 10")
    P(f"v_add_u32 v{vPhA}, s{sA}, v{vPhA}")
    for hd in range(2):
        P(f"ds_read_b64_tr_b16 v[{wf+4*hd}:{wf+4*hd+1}], v{vPhA} offset:{L_WPHI+512*hd}")
        P(f"ds_read_b64_tr_b16 v[{wf+4*hd+2}:{wf+4*hd+3}], v{vPhA} offset:{L_WPHI+512*hd+256}")
    P(f"v_bfe_u32 v{vSg}, v{vL}, 2, 1")
    P(f"v_mul_u32_u24 v{vSg}, 0x8000, v{vSg}")
    P(f"v_lshl_or_b32 v{vSg}, v{vSg}, 16, v{vSg}")
    P(f"v_mov_b32 v{ones}, 0x3f803f80")
    P(f"v_and_b32 v{vt}, 15, v{vM}")
    P(f"v_lshlrev_b32 v{vt}, 4, v{vt}")
    P(f"v_lshl_add_u32 v{vt}, v{vH}, 9, v{vt}")
    P(f"v_lshlrev_b32 v{vt2}, 5, v{vH}")
    P(f"v_add_u32 v{vt2}, 2048, v{vt2}")
    P(f"s_mul_i32 s{sA}, s{sTBW}, 4352")
    P(f"s_mul_i32 s{sB}, s{sHG}, {2*WSL}")
    P(f"s_add_u32 s{sA}, s{sA}, s{sB}")
    P(f"s_add_u32 s{sA}, s{sA}, {L_WR}")
    P(f"v_cndmask_b32 v{vRb}, v{vt2}, v{vt}, s[{sMaskLo}:{sMaskLo+1}]")
    P(f"v_cndmask_b32 v{vRb+1}, v{vt}, v{vt2}, s[{sMaskLo}:{sMaskLo+1}]")
    P(f"v_add_u32 v{vRb}, s{sA}, v{vRb}")
    P(f"v_add_u32 v{vRb+1}, s{sA}, v{vRb+1}")
    P(f"v_mov_b32 v{vt}, 256")
    P(f"v_mov_b32 v{vt2}, 16")
    P(f"v_cndmask_b32 v{vSt}, v{vt2}, v{vt}, s[{sMaskLo}:{sMaskLo+1}]")
    P(f"v_cndmask_b32 v{vSt+1}, v{vt}, v{vt2}, s[{sMaskLo}:{sMaskLo+1}]")
    for hd in range(2):
        for i in range(4):
            c=4*(i&1)+(i>>1)
            P(f"v_mad_u32_u24 v{vRa+4*hd+i}, v{vSt+hd}, {c}, v{vRb+hd}")
    for u in range(8): P(f"v_xor_b32 v{wf+u}, v{wf+u}, v{vSg}")
    P(f"s_mul_i32 s{sA}, s{sHP}, {2*KVH}")
    P(f"s_add_u32 s{sA}, s{sA}, {WS_KV}")
    P(f"s_add_u32 s{srdKV}, s{sWS}, s{sA}")
    P(f"s_addc_u32 s{srdKV+1}, s{sWS+1}, 0")
    P(f"s_and_b32 s{srdKV+1}, s{srdKV+1}, 0xffff")
    P(f"s_mov_b32 s{srdKV+2}, {2*KVH}")
    P(f"s_mov_b32 s{srdKV+3}, 0x20000")
    P(f"s_lshl_b32 s{sE}, s{sHP}, 2")
    P(f"s_add_u32 s{sE}, s{sE}, 64")
    P(f"s_lshl_b32 s{sPhiO}, s{sTT}, 2")
    P(f"s_add_u32 s{sPhiO}, s{sPhiO}, s{sTBW}")
    P(f"s_lshl_b32 s{sPhiO}, s{sPhiO}, 16")
    P(f"s_lshl_b32 s{sA}, s{sHP}, 12")
    P(f"s_add_u32 s{sPhiO}, s{sPhiO}, s{sA}")
    vE=vRb; vEl=vRb+1
    P(f"v_and_b32 v{vE}, 255, v0")
    P(f"v_lshlrev_b32 v{vE}, 2, v{vE}")
    P(f"s_mul_i32 s{sB}, s{sHG}, {2*WSL}")
    P(f"v_add_u32 v{vEl}, s{sB}, v{vE}")
    late=[t for t in pre if t.startswith("ds_read_b64_tr_b16") or t.startswith(f"v_xor_b32 v{wf}") or any(t.startswith(f"v_xor_b32 v{wf+u},") for u in range(8))]
    early=[t for t in pre if t not in late]
    if 'L' in DBG: late=pre; early=[]
    for t in early: k(t)
    pre=late
    if PRIOA:
        k(f"s_cmp_eq_u32 s{sHG}, {PRIOA[0]}")
        k(f"s_cbranch_scc0 L_{name}_A_np")
        k(f"s_setprio 1")
        k.label(f"L_{name}_A_np")
    pend=[]
    for j in range(32):
        S=j>>2
        if j%4==0:
            k.wait_tag(f"w{S}")
            k.wait_tag(f"x{S}")
            k.wait_lg(0)
            k("s_barrier")
            if S in MK: st.mark(k,MK[S])
        if j<2 or 'I' in DBG: reads(j)
        if j==0 and XW1!='pro':
            dma_w(1); dma_x(1)
        if j%4==0 and S+2<8 and 'D' not in DBG:
            pend+=dma_w_l(S+2)+dma_x_l(S+2)
        if j>1:
            take=pend[:2]; pend=pend[2:]
            mfmas(j-2, take, [] if 'I' in DBG else reads_l(j))
        if j>=6:
            n=0 if 'Q' in DBG else 4
            while pre and n>0:
                t=pre.pop(0); k(t); n-=1
                if t.startswith("s_add_u32 s{}".format(srdKV)): k(pre.pop(0))
        if j==2:
            k(f"s_cmp_eq_u32 s{sFirst}, 1")
            k(f"s_cbranch_scc1 L_{name}_A_ev4")
            k.label(f"L_{name}_A_ev4ret")
            vm_ev4=k.vm_total
        if j==GJ:
            k(f"s_lshl_b32 s{sT}, s{sGo}, 10")
            k(f"buffer_load_dwordx4 v[{gx}:{gx+3}], v{vGa}, s[{srdX}:{srdX+3}], s{sT} offen")
            k(f"buffer_load_dwordx4 v[{gx+4}:{gx+7}], v{vGa}, s[{srdX}:{srdX+3}], s{sT} offen offset:16")
        if GATE=='loop' and j==GJ+8: gate_code()
        if j==13:
            vm_ev8=k.vm_total
            k(f"s_cmp_eq_u32 s{sFirst}, 1")
            k(f"s_cbranch_scc1 L_{name}_A_ev8")
            k.label(f"L_{name}_A_ev8ret")
        if j==28:
            assert 'Q' in DBG or not pre, len(pre)
            vm_poll0=k.vm_total
            k(f"s_cmp_eq_u32 s{sTBW}, 0")
            k(f"s_cbranch_scc1 L_{name}_A_poll0")
            k.label(f"L_{name}_A_poll0ret")
    assert not pend
    for t in pre: k(t)
    mfmas(30); mfmas(31)
    fa=F[2]; fb=F[0]
    kb=fa; qb=fa+8; vb=fb
    for u in range(8): k(f"v_cvt_pk_bf16_f32 v{kb+u}, v{accK+2*u}, v{accK+2*u+1}")
    pkA=V(16,4); pkB=V(16,4)
    k(f"v_mfma_f32_32x32x16_bf16 v[{pkA}:{pkA+15}], v[{wf}:{wf+3}], v[{kb}:{kb+3}], 0")
    k(f"v_mfma_f32_32x32x16_bf16 v[{pkB}:{pkB+15}], v[{wf+4}:{wf+7}], v[{kb+4}:{kb+7}], 0")
    for u in range(8): k(f"v_cvt_pk_bf16_f32 v{qb+u}, v{accQ+2*u}, v{accQ+2*u+1}")
    pqA=accK; pqB=accQ
    k(f"v_mfma_f32_32x32x16_bf16 v[{pqA}:{pqA+15}], v[{wf}:{wf+3}], v[{qb}:{qb+3}], 0")
    k(f"v_mfma_f32_32x32x16_bf16 v[{pqB}:{pqB+15}], v[{wf+4}:{wf+7}], v[{qb+4}:{qb+7}], 0")
    for u in range(8): k(f"v_cvt_pk_bf16_f32 v{vb+u}, v{accV+2*u}, v{accV+2*u+1}")
    vA_=accV; vB_=accV+8
    for u in range(8): k(f"v_cndmask_b32 v{vA_+u}, v{ones}, v{vb+u}, s[{sMaskLo}:{sMaskLo+1}]")
    for u in range(8): k(f"v_cndmask_b32 v{vB_+u}, v{vb+u}, v{ones}, s[{sMaskLo}:{sMaskLo+1}]")
    phA=V(8,4); phB=V(8,4); tmp=V(8,2)
    softmax2(k,[(pkA,phA),(pkB,phB)],tmp,sL2E)
    TA=pkA; TB=pkB
    k(f"v_mfma_f32_32x32x16_bf16 v[{TA}:{TA+15}], v[{phA}:{phA+3}], v[{I}:{I+3}], 0")
    k(f"v_mfma_f32_32x32x16_bf16 v[{TB}:{TB+15}], v[{phB}:{phB+3}], v[{I}:{I+3}], 0")
    k(f"v_mfma_f32_32x32x16_bf16 v[{TA}:{TA+15}], v[{phA+4}:{phA+7}], v[{I+4}:{I+7}], v[{TA}:{TA+15}]")
    k(f"v_mfma_f32_32x32x16_bf16 v[{TB}:{TB+15}], v[{phB+4}:{phB+7}], v[{I+4}:{I+7}], v[{TB}:{TB+15}]")
    if GATE=='epi': gate_code()
    ptA=phA; ptB=phB
    for u in range(8): k(f"v_cvt_pk_bf16_f32 v{ptA+u}, v{TA+2*u}, v{TA+2*u+1}")
    for u in range(8): k(f"v_cvt_pk_bf16_f32 v{ptB+u}, v{TB+2*u}, v{TB+2*u+1}")
    kvA=TA; kvB=TB
    k(f"v_mfma_f32_32x32x16_bf16 v[{kvA}:{kvA+15}], v[{ptA}:{ptA+3}], v[{vA_}:{vA_+3}], 0")
    k(f"v_mfma_f32_32x32x16_bf16 v[{kvB}:{kvB+15}], v[{ptB}:{ptB+3}], v[{vB_}:{vB_+3}], 0")
    k(f"v_mfma_f32_32x32x16_bf16 v[{kvA}:{kvA+15}], v[{ptA+4}:{ptA+7}], v[{vA_+4}:{vA_+7}], v[{kvA}:{kvA+15}]")
    k(f"v_mfma_f32_32x32x16_bf16 v[{kvB}:{kvB+15}], v[{ptB+4}:{ptB+7}], v[{vB_+4}:{vB_+7}], v[{kvB}:{kvB+15}]")
    for hd,kvr in ((0,kvA),(1,kvB)):
        for i in range(4):
            k(f"ds_write_b128 v{vRa+4*hd+i}, v[{kvr+4*i}:{kvr+4*i+3}] offset:{hd*KVH}")
    def q_part():
        pq_o=gx
        assert gw==gx+8
        softmax2(k,[(pqA,pq_o),(pqB,pq_o+8)],tmp,sL2E)
        for q in range(4):
            k(f"buffer_store_dwordx4 v[{pq_o+4*q}:{pq_o+4*q+3}], v{vL16}, s[{srdWS}:{srdWS+3}], s{sPhiO} offen offset:{q*1024} {STF}")
    if QORD=='mid': q_part()
    vm_poll=k.vm_total
    k(f"s_cmp_eq_u32 s{sTBW}, 0")
    k(f"s_cbranch_scc1 L_{name}_A_poll")
    k.label(f"L_{name}_A_flagok")
    k.barrier()
    rd=accV; rd2=fb
    for u in range(5):
        for w in range(4):
            k(f"ds_read_b32 v{rd+4*u+w if u<4 else rd2+w}, v{vEl} offset:{L_WR+w*4352+1024*u}")
    for u in range(5):
        b=rd+4*u if u<4 else rd2
        k(f"v_add_f32 v{b}, v{b}, v{b+1}")
        k(f"v_add_f32 v{b+2}, v{b+2}, v{b+3}")
        k(f"v_add_f32 v{b}, v{b}, v{b+2}")
        if u<4: k(f"buffer_atomic_add_f32 v{b}, v{vE}, s[{srdKV}:{srdKV+3}], 0 offen offset:{1024*u} sc1")
        else:
            k(f"v_add_u32 v{vt}, 4096, v{vE}")
            k(f"buffer_atomic_add_f32 v{b}, v{vt}, s[{srdKV}:{srdKV+3}], 0 offen sc1")
    if QORD=='last': q_part()
    if fused: k(f"s_branch L_{name}_F")
    else:
        st.finish(k,sWS,sW,accQ)
        k("s_endpgm")
    k.auto=False
    if fused: rel_read_block(k,name,"A",vZ,srdWS)
    k.label(f"L_{name}_A_ev4")
    k(f"s_mul_i32 s{sR}, s{sHP}, {2*KVH}")
    k(f"s_add_u32 s{sR}, s{sR}, {WS_KV}")
    for u in range(5):
        if u<4:
            k(f"buffer_store_dwordx4 v[{z4}:{z4+3}], v{vL16}, s[{srdWS}:{srdWS+3}], s{sR} offen offset:{u*1024} sc1")
        else:
            k(f"s_add_u32 s{sR}, s{sR}, 4096")
            k(f"s_mov_b64 exec, 0xffff")
            k(f"buffer_store_dwordx4 v[{z4}:{z4+3}], v{vL16}, s[{srdWS}:{srdWS+3}], s{sR} offen sc1")
            k(f"s_mov_b64 exec, -1")
    k(f"s_branch L_{name}_A_ev4ret")
    k.label(f"L_{name}_A_ev8")
    k(f"s_waitcnt vmcnt({vm_ev8-vm_ev4})")
    k(f"v_mov_b32 v{vOne}, 1")
    k(f"s_lshl_b32 s{sR}, s{sHP}, 2")
    k(f"s_add_u32 s{sR}, s{sR}, 64")
    k(f"s_mov_b64 exec, 1")
    k(f"buffer_store_dword v{vOne}, v{vZ}, s[{srdDBG}:{srdDBG+3}], s{sR} offen sc1")
    k(f"s_mov_b64 exec, -1")
    k(f"s_branch L_{name}_A_ev8ret")
    k.label(f"L_{name}_A_poll0")
    k(f"buffer_load_dword v{vFl}, v{vZ}, s[{srdDBG}:{srdDBG+3}], s{sE} offen sc1")
    k(f"s_branch L_{name}_A_poll0ret")
    k.label(f"L_{name}_A_poll")
    k(f"s_mov_b32 s{sTick}, 0")
    k(f"s_waitcnt vmcnt({vm_poll-vm_poll0})")
    k.label(f"L_{name}_A_poll1")
    k(f"v_readfirstlane_b32 s{sR}, v{vFl}")
    k("s_nop 0")
    k(f"s_cmp_lg_u32 s{sR}, 0")
    k(f"s_cbranch_scc1 L_{name}_A_flagok")
    k(f"s_add_u32 s{sTick}, s{sTick}, 1")
    k(f"s_cmp_ge_u32 s{sTick}, 0x40000")
    k(f"s_cbranch_scc1 L_{name}_A_flagok")
    k("s_sleep 1")
    k(f"buffer_load_dword v{vFl}, v{vZ}, s[{srdDBG}:{srdDBG+3}], s{sE} offen sc1")
    k("s_waitcnt vmcnt(0)")
    k(f"s_branch L_{name}_A_poll1")
    k.auto=True
    return V.hi
```

```python
from dsl import *
from common import *
import os
GMODE=os.environ.get('GMODE','paced')
DB=os.environ.get('DBGB','')
STF=os.environ.get('STF','sc1')
TBP=os.environ.get('TBP','xw')
PRIO=os.environ.get('PRIOB','')
from k1a import mk_srd,sWO,sWQ,srdT,sX,sLA,sAI,sCR,sCI,sLDT,sDS,sWS,sW,sXCD,sIDX,srdX,srdWS,LOG2E,NLOG2E

UC=4160
CH=31744
KOFF=16640
P1=4640
L_WOB=4*CH
L_WO2=L_WOB+32768
INV2PI=0x3e22f983

def cmul(k,dst,w,z,t):
    k(f"v_pk_mul_f32 v[{t}:{t+1}], v[{w}:{w+1}], v[{z}:{z+1}] op_sel:[0,0] op_sel_hi:[0,1]")
    k(f"v_pk_fma_f32 v[{dst}:{dst+1}], v[{w}:{w+1}], v[{z}:{z+1}], v[{t}:{t+1}] op_sel:[1,1,0] op_sel_hi:[1,0,1] neg_lo:[0,1,0]")

def gen_b(k,name,st,fused=False):
    from kf import rel_read_rare, rel_read_block
    V=Alloc("v",1,256)
    sA=64; sB=65; sT=39; sD0=66; sCh=67; sRole=68; sLdt=69; sDsk=70; sCB=71; sSel0=72; sSel1=73; sEx=74; sTab=76
    vL=V(); vt=V(); vt2=V(); vt3=V(); t0=V(2,2); t1=V(2,2)
    vI=V(); vQ=V(); vA=V(); vB=V()
    mark0=V.mark()
    sP=80; sDP=81; sWp=82; sXS=85
    k(f"s_add_u32 s{sXS}, s{sXCD}, {int(os.environ.get('XSH','3'))}")
    k(f"s_and_b32 s{sXS}, s{sXS}, 7")
    k(f"s_lshl_b32 s{sD0}, s{sXS}, 6")
    k(f"s_lshl_b32 s{sA}, s{sIDX}, 2")
    k(f"s_add_u32 s{sD0}, s{sD0}, s{sA}")
    k(f"s_lshr_b32 s{sCh}, s{sW}, 1")
    k(f"s_and_b32 s{sRole}, s{sW}, 1")
    k(f"s_lshr_b32 s{sP}, s{sW}, 2")
    k(f"s_and_b32 s{sWp}, s{sW}, 3")
    k(f"s_lshl_b32 s{sA}, s{sP}, 1")
    k(f"s_add_u32 s{sDP}, s{sD0}, s{sA}")
    k(f"v_and_b32 v{vL}, 63, v0")
    k(f"s_add_u32 s{sA}, s{sD0}, s{sCh}")
    k(f"s_lshl_b32 s{sA}, s{sA}, 8")
    vP=V()
    k(f"v_lshlrev_b32 v{vP}, 2, v{vL}")
    k(f"v_add_u32 v{vP}, s{sA}, v{vP}")
    k(f"s_lshl_b32 s{sB}, s{sDP}, 1")
    k("s_waitcnt lgkmcnt(0)")
    k(f"s_load_dword s{sLdt}, s[{sLDT}:{sLDT+1}], s{sB}")
    k(f"s_load_dword s{sDsk}, s[{sDS}:{sDS+1}], s{sB}")
    pl=V(); pa=V(); pcr=V(); pci=V()
    k(f"global_load_dword v{pl}, v{vP}, s[{sLA}:{sLA+1}]")
    k(f"global_load_dword v{pa}, v{vP}, s[{sAI}:{sAI+1}]")
    k(f"global_load_dword v{pcr}, v{vP}, s[{sCR}:{sCR+1}]")
    k(f"global_load_dword v{pci}, v{vP}, s[{sCI}:{sCI+1}]", tag="par")
    mk_srd(k,srdX,sX,2048*512*2)
    g=V(14,2); vG=V(); vH3=V(); vPf=250
    def touch_a():
        k(f"v_and_b32 v{vt}, 15, v{vL}")
        k(f"v_lshlrev_b32 v{vt}, 10, v{vt}")
        k(f"s_lshl_b32 s{sA}, s{sIDX}, 7")
        k(f"s_lshl_b32 s{sT}, s{sW}, 4")
        k(f"s_add_u32 s{sA}, s{sA}, s{sT}")
        k(f"s_lshl_b32 s{sA}, s{sA}, 10")
        k(f"s_lshl_b32 s{sT}, s{sXS}, 7")
        k(f"s_add_u32 s{sA}, s{sA}, s{sT}")
        k(f"s_mov_b64 exec, 0xffff")
        k(f"buffer_load_dword v{vPf}, v{vt}, s[{srdX}:{srdX+3}], s{sA} offen")
        k(f"s_mov_b64 exec, -1")
    def touch_b():
        if True:
            sS1=83; sTo=84
            k(f"s_lshr_b32 s{sA}, s{sIDX}, 2")
            k(f"s_and_b32 s{sT}, s{sIDX}, 3")
            k(f"s_add_u32 s{sA}, s{sA}, s{sT}")
            k(f"s_and_b32 s{sA}, s{sA}, 3")
            k(f"s_lshl_b32 s{sS1}, s{sA}, 1")
            k(f"s_add_u32 s{sS1}, s{sS1}, 1")
            k(f"s_and_b32 s{sA}, s{sXCD}, 3")
            k(f"s_lshl_b32 s{sA}, s{sA}, 2")
            k(f"s_add_u32 s{sA}, s{sA}, s{sT}")
            k(f"s_lshl_b32 s{sA}, s{sA}, 7")
            k(f"s_lshl_b32 s{sT}, s{sW}, 4")
            k(f"s_add_u32 s{sA}, s{sA}, s{sT}")
            k(f"s_lshl_b32 s{sA}, s{sA}, 10")
            k(f"s_lshl_b32 s{sT}, s{sS1}, 7")
            k(f"s_add_u32 s{sTo}, s{sA}, s{sT}")
            k(f"v_and_b32 v{vt}, 15, v{vL}")
            k(f"v_lshlrev_b32 v{vt}, 10, v{vt}")
            if 'x' in TBP:
                k(f"s_mov_b64 exec, 0xffff")
                k(f"buffer_load_dword v{vPf}, v{vt}, s[{srdX}:{srdX+3}], s{sTo} offen")
                k(f"s_mov_b64 exec, -1")
            mk_srd(k,srdT,sWQ,512*1536*2)
            k(f"v_mul_u32_u24 v{vt}, 171, v{vL}")
            k(f"v_lshrrev_b32 v{vt}, 9, v{vt}")
            k(f"v_mul_u32_u24 v{vt2}, 3, v{vt}")
            k(f"v_sub_u32 v{vt2}, v{vL}, v{vt2}")
            k(f"v_mul_u32_u24 v{vt}, 3072, v{vt}")
            k(f"v_lshl_add_u32 v{vt}, v{vt2}, 10, v{vt}")
            k(f"s_lshl_b32 s{sA}, s{sS1}, 6")
            k(f"s_lshl_b32 s{sT}, s{sW}, 3")
            k(f"s_add_u32 s{sA}, s{sA}, s{sT}")
            k(f"s_mul_i32 s{sA}, s{sA}, 3072")
            k(f"s_lshr_b32 s{sT}, s{sXCD}, 2")
            k(f"s_lshl_b32 s{sT}, s{sT}, 2")
            k(f"s_lshr_b32 s{sTo}, s{sIDX}, 2")
            k(f"s_add_u32 s{sT}, s{sT}, s{sTo}")
            k(f"s_lshl_b32 s{sT}, s{sT}, 7")
            k(f"s_add_u32 s{sA}, s{sA}, s{sT}")
            if 'w' in TBP:
                k(f"s_mov_b64 exec, {'0xffffff' if 'h' not in TBP else '0xfff'}")
                k(f"buffer_load_dword v{vPf}, v{vt}, s[{srdT}:{srdT+3}], s{sA} offen")
                k(f"s_mov_b64 exec, -1")
    TM=os.environ.get('TMODE','a')
    for ch_ in TM:
        if ch_=='a': touch_a()
        if ch_=='b': touch_b()
    sFr=78
    def wo_dma():
        k(f"s_lshl_b32 s{sFr}, s{sXCD}, 4")
        k(f"s_add_u32 s{sFr}, s{sFr}, s{sIDX}")
        k(f"s_lshl_b32 s{sFr}, s{sFr}, 2")
        k(f"s_add_u32 s{sFr}, s{sFr}, s{sWp}")
        mk_srd(k,srdT,sWO,512*512*2)
        k(f"v_lshrrev_b32 v{vt}, 2, v{vL}")
        k(f"v_and_b32 v{vt2}, 3, v{vL}")
        k(f"v_lshlrev_b32 v{vt2}, 4, v{vt2}")
        k(f"v_lshl_add_u32 v{vt}, v{vt}, 10, v{vt2}")
        k(f"s_and_b32 s{sA}, s{sFr}, 31")
        k(f"s_lshl_b32 s{sA}, s{sA}, 14")
        k(f"s_lshr_b32 s{sT}, s{sFr}, 5")
        k(f"s_lshl_b32 s{sT}, s{sT}, 6")
        k(f"s_add_u32 s{sT}, s{sA}, s{sT}")
        k(f"s_lshl_b32 s{sA}, s{sWp}, 10")
        k(f"s_add_u32 m0, s{sA}, {L_WO2}")
        k(f"s_nop 0")
        k(f"buffer_load_dwordx4 v{vt}, s[{srdT}:{srdT+3}], s{sT} offen lds", tag="wo")
    k(f"v_lshlrev_b32 v{vG}, 12, v0")
    k(f"s_lshl_b32 s{sA}, s{sD0}, 1")
    k(f"v_add_u32 v{vG}, s{sA}, v{vG}")
    k(f"v_subrev_u32 v{vH3}, 3072, v{vG}")
    side=[]
    for r in range(4):
        side.append([f"buffer_load_dwordx2 v[{g+6+2*r}:{g+7+2*r}], v{vG}, s[{srdX}:{srdX+3}], 0 offen offset:{r*1024}"])
    side.append(["s_mov_b64 exec, 1"]+[f"buffer_load_dwordx2 v[{g+2*r}:{g+2*r+1}], v{vH3}, s[{srdX}:{srdX+3}], 0 offen offset:{r*1024}" for r in range(3)]+["s_mov_b64 exec, -1"])
    mk_srd(k,srdWS,sWS,WS_SIZE)
    if fused:
        vZb=V(); k(f"v_mov_b32 v{vZb}, 0")
        rel_read_rare(k,name,"B",vZb)
    k(f"s_mul_i32 s{sCB}, s{sCh}, {CH}")
    k(f"s_mov_b32 s{sTab}, s{sCB}")
    aX=V(16)
    k(f"v_and_b32 v{vt}, 1, v{vL}")
    k(f"v_lshlrev_b32 v{vt}, 3, v{vt}")
    k(f"v_lshrrev_b32 v{vt2}, 1, v{vL}")
    k(f"v_lshl_add_u32 v{vt}, v{vt2}, 4, v{vt}")
    k(f"v_add_u32 v{aX}, s{sTab}, v{vt}")
    for x in range(1,16): k(f"v_xor_b32 v{aX+x}, {x<<4}, v{aX}")
    k(f"v_and_b32 v{vI}, 15, v{vL}")
    k(f"v_lshrrev_b32 v{vQ}, 4, v{vL}")
    def rdaddr(dst,rowreg):
        k(f"v_and_b32 v{vt}, 15, v{rowreg}")
        k(f"v_xor_b32 v{vt}, v{vt}, v{vQ}")
        k(f"v_lshlrev_b32 v{vt}, 4, v{vt}")
        k(f"v_lshl_add_u32 v{vt}, v{rowreg}, 9, v{vt}")
        k(f"v_add_u32 v{dst}, s{sTab}, v{vt}")
        for ks in range(1,4): k(f"v_xor_b32 v{dst+ks}, {ks<<6}, v{dst}")
    rF=V(4); rG1=V(4); rG2=V(4)
    rdaddr(rF,vI)
    def rne(dst,kk):
        k(f"v_bfe_u32 v{dst}, v{vI}, {kk}, 1")
        k(f"v_add3_u32 v{dst}, v{dst}, v{vI}, {(1<<(kk-1))-1}")
        k(f"v_lshrrev_b32 v{dst}, {kk}, v{dst}")
    z4=V(4,4)
    for u in range(4): k(f"v_mov_b32 v{z4+u}, 0")
    vDt=V(); vDs=V()
    k("s_waitcnt lgkmcnt(0)")
    k(f"s_lshl_b32 s{sA}, s{sLdt}, 16")
    k(f"s_and_b32 s{sB}, s{sLdt}, 0xffff0000")
    k(f"s_bitcmp0_b32 s{sCh}, 0")
    k(f"s_cselect_b32 s{sLdt}, s{sA}, s{sB}")
    k(f"s_lshl_b32 s{sA}, s{sDsk}, 16")
    k(f"s_and_b32 s{sB}, s{sDsk}, 0xffff0000")
    k(f"s_bitcmp0_b32 s{sCh}, 0")
    k(f"s_cselect_b32 s{sDsk}, s{sA}, s{sB}")
    k(f"v_mov_b32 v{vDt}, {LOG2E:#x}")
    k(f"v_mul_f32 v{vDt}, s{sLdt}, v{vDt}")
    k(f"v_exp_f32 v{vDt}, v{vDt}")
    k(f"v_cvt_pk_bf16_f32 v{vDt}, v{vDt}, v{vDt}")
    k(f"v_lshlrev_b32 v{vDt}, 16, v{vDt}")
    k(f"v_cmp_eq_u32 vcc, 0, v{vL}")
    k(f"v_mov_b32 v{vt}, s{sDsk}")
    k(f"v_cndmask_b32 v{vDs}, 0, v{vt}, vcc")
    import struct
    re2=V(2); fr=V(2); cc=[V(2,2),V(2,2)]; T0=[V(2,2),V(2,2)]; T1=[V(2,2),V(2,2)]
    def unpack(dst,src,m):
        if m==0: k(f"v_lshlrev_b32 v{dst}, 16, v{src}")
        else: k(f"v_and_b32 v{dst}, 0xffff0000, v{src}")
    def both(f):
        for m in range(2): f(m)
    def mode_params(need_c):
        both(lambda m: unpack(re2+m,pl,m))
        both(lambda m: k(f"v_mul_f32 v{re2+m}, {LOG2E:#x}, v{re2+m}"))
        both(lambda m: k(f"v_exp_f32 v{re2+m}, v{re2+m}"))
        both(lambda m: unpack(fr+m,pa,m))
        k(f"v_cvt_pk_bf16_f32 v{vt}, v{re2}, v{re2+1}")
        both(lambda m: k(f"v_mul_f32 v{fr+m}, v{fr+m}, v{vDt}"))
        both(lambda m: unpack(re2+m,vt,m))
        both(lambda m: k(f"v_mul_f32 v{fr+m}, {INV2PI:#x}, v{fr+m}"))
        both(lambda m: k(f"v_mul_f32 v{re2+m}, v{re2+m}, v{vDt}"))
        both(lambda m: k(f"v_mul_f32 v{re2+m}, {NLOG2E:#x}, v{re2+m}"))
        if need_c:
            both(lambda m: unpack(cc[m],pcr,m))
            both(lambda m: unpack(cc[m]+1,pci,m))
            k(f"v_add_f32 v{vt}, v{vDt}, v{vDt}")
            both(lambda m: k(f"v_mul_f32 v{cc[m]}, v{cc[m]}, v{vt}"))
            both(lambda m: k(f"v_mul_f32 v{cc[m]+1}, v{cc[m]+1}, v{vt}"))
    def Edirect(dst,p):
        lit=struct.unpack("<I",struct.pack("<f",float(p)))[0]
        if p==1:
            both(lambda m: k(f"v_exp_f32 v{T1[m]}, v{re2+m}"))
            both(lambda m: k(f"v_fract_f32 v{T1[m]+1}, v{fr+m}"))
        else:
            both(lambda m: k(f"v_mul_f32 v{T1[m]}, {lit:#x}, v{re2+m}"))
            both(lambda m: k(f"v_mul_f32 v{T1[m]+1}, {lit:#x}, v{fr+m}"))
            both(lambda m: k(f"v_exp_f32 v{T1[m]}, v{T1[m]}"))
            both(lambda m: k(f"v_fract_f32 v{T1[m]+1}, v{T1[m]+1}"))
        both(lambda m: k(f"v_cos_f32 v{dst[m]}, v{T1[m]+1}"))
        both(lambda m: k(f"v_sin_f32 v{dst[m]+1}, v{T1[m]+1}"))
        both(lambda m: k(f"v_pk_mul_f32 v[{dst[m]}:{dst[m]+1}], v[{dst[m]}:{dst[m]+1}], v[{T1[m]}:{T1[m]+1}] op_sel_hi:[1,0]"))
    def cmul2(dst,w,z,T):
        both(lambda m: k(f"v_pk_mul_f32 v[{T[m]}:{T[m]+1}], v[{w[m]}:{w[m]+1}], v[{z[m]}:{z[m]+1}] op_sel:[0,0] op_sel_hi:[0,1]"))
        both(lambda m: k(f"v_pk_fma_f32 v[{dst[m]}:{dst[m]+1}], v[{w[m]}:{w[m]+1}], v[{z[m]}:{z[m]+1}], v[{T[m]}:{T[m]+1}] op_sel:[1,1,0] op_sel_hi:[1,0,1] neg_lo:[0,1,0]"))
    pk=[V(2,2),V(2,2)]
    pkc=[0]
    sidel=[]; rowc=[0]; PACE=eval(os.environ.get('PACE','(1,11,21)'))
    def wrow(row,w,neg):
        r=pk[pkc[0]&1]; pkc[0]+=1
        both(lambda m: k(f"v_cvt_pk_bf16_f32 v{r+m}, v{w[m]}, {'-' if neg else ''}v{w[m]+1}"))
        if 'W' not in DB: k(f"ds_write_b64 v{aX+(row&15)}, v[{r}:{r+1}] offset:{row*512}")
        rowc[0]+=1
        if sidel and GMODE[0]=='i' and GMODE[1:].isdigit() and pkc[0]%int(GMODE[1:])==0:
            for l in sidel.pop(0): k(l)
        if sidel and GMODE=='paced' and rowc[0] in PACE:
            for l in sidel.pop(0): k(l)
    P2=lambda: [V(2,2),V(2,2)]
    wA=P2(); wB=P2(); zz=P2(); e4=P2(); e8=P2(); e12=P2(); e16=P2(); eb=P2()
    def mov2(dst,src):
        for m in range(2):
            k(f"v_mov_b32 v{dst[m]}, v{src[m]}"); k(f"v_mov_b32 v{dst[m]+1}, v{src[m]+1}")
    def table_role0(mid=None):
        mode_params(True)
        Edirect(zz,16)
        Edirect(wB,256)
        cmul2(wB,wB,cc,T0)
        if mid: mid()
        for a in range(16):
            src=cc if a==0 else wA
            wrow(a,src,True); wrow(16+a,wB,True)
            if a<15:
                cmul2(wA,src,zz,T0); cmul2(wB,wB,zz,T1)
    def table_role1(mid=None):
        mode_params(False)
        Edirect(zz,1)
        r=pk[pkc[0]&1]; pkc[0]+=1
        k(f"v_mov_b32 v{r}, 0x3f80"); k(f"v_mov_b32 v{r+1}, 0x3f80")
        k(f"ds_write_b64 v{aX+0}, v[{r}:{r+1}] offset:{32*512}")
        keep={4:e4,8:e8,12:e12,16:e16}
        Edirect(eb,512)
        wrow(33,zz,False)
        wrow(50,eb,False)
        if mid: mid()
        cur=zz
        for b in range(2,17):
            dst=keep.get(b,wA)
            cmul2(dst,cur,zz,T0)
            cur=dst
            wrow(32+b if b<16 else 49,cur,False)
            if b in keep:
                cmul2(wB,eb,cur,T1)
                wrow(50+2*(b//4),wB,False)
        for (p,row) in ((1024,51),(1536,57)):
            Edirect(eb,p)
            wrow(row,eb,False)
            cmul2(wB,eb,e8,T0); wrow(row+2,wB,False)
            cmul2(wB,eb,e16,T1); wrow(row+4,wB,False)
    uo={}
    def u_prep():
        for r in range(3):
            for dw in range(2):
                k(f"v_mov_b32_dpp v{g+2*r+dw}, v{g+2*(r+4)+dw} wave_shr:1 row_mask:0xf bank_mask:0xf")
        k(f"s_mov_b32 s{sSel0}, 0x05040100")
        k(f"s_mov_b32 s{sSel1}, 0x07060302")
        uo['z']=V(); uo['u']=V(); uo['u2']=V(); uo['o']=V(32,2)
        k(f"v_lshrrev_b32 v{vt}, 4, v{vL}")
        k(f"v_mul_u32_u24 v{vt}, {CH}, v{vt}")
        k(f"v_bfe_u32 v{vt2}, v{vL}, 2, 2")
        k(f"v_mul_u32_u24 v{vt2}, {UC}, v{vt2}")
        k(f"v_add_u32 v{vt}, v{vt}, v{vt2}")
        k(f"v_and_b32 v{vt2}, 3, v{vL}")
        k(f"v_lshl_add_u32 v{uo['z']}, v{vt2}, 4, v{vt}")
        k(f"v_sub_u32 v{uo['u']}, 511, v0")
        k(f"v_lshlrev_b32 v{uo['u']}, 3, v{uo['u']}")
        k(f"v_add_u32 v{uo['u2']}, {2*CH}, v{uo['u']}")
        G=lambda r,dw: g+2*(r+3)+dw
        for ch in range(4):
            sel=sSel0 if ch%2==0 else sSel1; dw=ch>>1
            for c in range(4):
                o=uo['o']+2*(4*ch+c)
                k(f"v_perm_b32 v{o}, v{G(c-1,dw)}, v{G(c,dw)}, s{sel}")
                k(f"v_perm_b32 v{o+1}, v{G(c-3,dw)}, v{G(c-2,dw)}, s{sel}")
    def u_write():
        k(f"ds_write_b128 v{uo['z']}, v[{z4}:{z4+3}] offset:4096")
        for ch in range(4):
            for c in range(4):
                o=uo['o']+2*(4*ch+c)
                k(f"ds_write_b64 v{uo['u'] if ch<2 else uo['u2']}, v[{o}:{o+1}] offset:{(ch%2)*CH+c*UC}")
    acc=V(16,4)
    fr_=[V(20,4),V(20,4),V(20,4)]
    def kreads(role,u):
        hi,ks=u>>2,u&3; f=fr_[u%3]; o=hi*256
        k(f"ds_read_b128 v[{f}:{f+3}], v{rF+ks} offset:{o}")
        if role==0:
            k(f"ds_read_b128 v[{f+8}:{f+11}], v{rF+ks} offset:{o+16384}")
            k(f"ds_read_b128 v[{f+4}:{f+7}], v{rF+ks} offset:{o+8192}")
            k(f"ds_read_b128 v[{f+12}:{f+15}], v{rG1+ks} offset:{o}")
            k(f"ds_read_b128 v[{f+16}:{f+19}], v{rG2+ks} offset:{o}")
        else:
            k(f"ds_read_b128 v[{f+8}:{f+11}], v{rG1+ks} offset:{o}")
            k(f"ds_read_b128 v[{f+4}:{f+7}], v{rF+ks} offset:{o+8192}")
            k(f"ds_read_b128 v[{f+12}:{f+15}], v{rG2+ks} offset:{o}")
    def kmf(role,u):
        f=fr_[u%3]
        if role==0: pairs=[(0,f+8,f),(1,f+12,f+4),(2,f+16,f),(3,f+16,f+4)]
        else: pairs=[(0,f+8,f),(1,f+8,f+4),(2,f+12,f),(3,f+12,f+4)]
        for (T,a,b) in pairs:
            cin="0" if u==0 else f"v[{acc+4*T}:{acc+4*T+3}]"
            k(f"v_mfma_f32_16x16x32_bf16 v[{acc+4*T}:{acc+4*T+3}], v[{a}:{a+3}], v[{b}:{b+3}], {cin}")
    def kmfma(role):
        kreads(role,0); kreads(role,1)
        for u in range(8):
            if u+2<8: kreads(role,u+2)
            kmf(role,u)
    wreg=[0]
    def wo_frag():
        wof=wreg[0]; vWoA=wreg[0]+4
        k(f"v_bfe_u32 v{vt}, v{vL}, 2, 2")
        k(f"v_lshrrev_b32 v{vt2}, 5, v{vL}")
        k(f"v_lshl_add_u32 v{vt}, v{vt2}, 2, v{vt}")
        k(f"v_lshlrev_b32 v{vWoA}, 6, v{vt}")
        k(f"v_bfe_u32 v{vt2}, v{vL}, 4, 1")
        k(f"v_lshl_add_u32 v{vWoA}, v{vt2}, 5, v{vWoA}")
        k(f"v_and_b32 v{vt2}, 3, v{vL}")
        k(f"v_lshl_add_u32 v{vWoA}, v{vt2}, 3, v{vWoA}")
        k(f"s_lshl_b32 s{sA}, s{sWp}, 10")
        k(f"s_add_u32 s{sA}, s{sA}, {L_WO2}")
        k(f"v_add_u32 v{vWoA}, s{sA}, v{vWoA}")
        k.wait_tag("wo")
        k(f"ds_read_b64_tr_b16 v[{wof}:{wof+1}], v{vWoA}")
        k(f"ds_read_b64_tr_b16 v[{wof+2}:{wof+3}], v{vWoA} offset:512")
        k(f"v_lshlrev_b32 v{vt}, 4, v{vL}")
        k(f"s_lshl_b32 s{sA}, s{sFr}, 10")
        k(f"s_add_u32 s{sA}, s{sA}, {WS_WO}")
        k(f"buffer_store_dwordx4 v[{wof}:{wof+3}], v{vt}, s[{srdWS}:{srdWS+3}], s{sA} offen {STF}")
    row=V()
    k(f"s_cmp_eq_u32 s{sRole}, 0")
    k(f"s_cbranch_scc0 L_{name}_B1")
    snap=k.snapshot(); mark=V.mark()
    for role in range(2):
        if role==1:
            k.restore(snap); V.reset(mark); k.label(f"L_{name}_B1")
        if role==0:
            rne(row,1)
            k(f"v_lshrrev_b32 v{vt2}, 3, v{row}")
            k(f"v_lshl_add_u32 v{row}, v{row}, 1, v{vt2}")
            k(f"v_add_u32 v{row}, 32, v{row}")
            rdaddr(rG1,row)
            rne(row,2); k(f"v_lshlrev_b32 v{row}, 1, v{row}"); k(f"v_add_u32 v{row}, 50, v{row}"); rdaddr(rG2,row)
        else:
            rne(row,3); k(f"v_lshlrev_b32 v{row}, 1, v{row}"); k(f"v_add_u32 v{row}, 51, v{row}"); rdaddr(rG1,row)
            k(f"v_add_u32 v{row}, 6, v{row}"); rdaddr(rG2,row)
        tab=table_role0 if role==0 else table_role1
        st.mark(k,1)
        if PRIO:
            k(f"s_cmp_eq_u32 s{sP}, {PRIO[0]}")
            k(f"s_cbranch_scc0 L_{name}_B{role}_np")
            k(f"s_setprio 1")
            k.label(f"L_{name}_B{role}_np")
        if 'A' in TM or 'B' in TM:
            k.wait_tag("par")
            if 'B' in TM: touch_b()
            if 'A' in TM: touch_a()
        flat=[l for blk in side for l in blk]
        if GMODE=='split2':
            st_={}
            def mid():
                k(f"s_cmp_eq_u32 s{sP}, 1")
                k(f"s_cbranch_scc0 L_{name}_B{role}_g0")
                vmq=list(k.vm)
                for l in flat: k(l)
                k.label(f"L_{name}_B{role}_g0")
                k.vm=vmq
            tab(mid)
            k(f"s_cmp_eq_u32 s{sP}, 0")
            k(f"s_cbranch_scc0 L_{name}_B{role}_g1")
            for l in flat: k(l)
            k.label(f"L_{name}_B{role}_g1")
        elif GMODE=='paced':
            rowc[0]=0
            sidel.clear(); sidel.extend([list(x) for x in side])
            tab()
            rest_side=[list(x) for x in sidel]; sidel.clear()
        elif GMODE=='ink':
            tab()
        elif GMODE=='split':
            k.wait_tag("par")
            k(f"s_cmp_eq_u32 s{sP}, 0")
            k(f"s_cbranch_scc0 L_{name}_B{role}_g0")
            vmq=list(k.vm)
            for l in flat: k(l)
            k.label(f"L_{name}_B{role}_g0")
            k.vm=vmq
            tab()
            k(f"s_cmp_eq_u32 s{sP}, 1")
            k(f"s_cbranch_scc0 L_{name}_B{role}_g1")
            for l in flat: k(l)
            k.label(f"L_{name}_B{role}_g1")
        else:
            sidel.clear(); sidel.extend([list(x) for x in side] if 'G' not in DB else [])
            if GMODE=='pre':
                k.wait_tag("par")
                for blk in sidel:
                    for l in blk: k(l)
                sidel.clear()
            tab()
            for blk in sidel:
                for l in blk: k(l)
            sidel.clear()
        st.mark(k,2)
        k.barrier()
        if not fused: wo_dma()
        else:
            mk_srd(k,srdT,sWO,512*512*2)
            k(f"v_and_b32 v{vt}, 31, v{vL}")
            k(f"v_lshlrev_b32 v{vt}, 7, v{vt}")
            k(f"s_lshl_b32 s{sA}, s{sIDX}, 3")
            k(f"s_add_u32 s{sA}, s{sA}, s{sW}")
            k(f"s_lshl_b32 s{sA}, s{sA}, 12")
            k(f"buffer_load_dword v{vPf}, v{vt}, s[{srdT}:{srdT+3}], s{sA} offen")
        if GMODE=='paced':
            k.bg=[[(l,None) for l in blk] for blk in rest_side]; k.bg_every=int(os.environ.get('GEV','6'))
        if GMODE=='ink':
            k.bg=[[(l,None) for l in blk] for blk in side]; k.bg_every=int(os.environ.get('GEV','6'))
        kmfma(role)
        k.bg_flush()
        st.mark(k,3)
        u_prep()
        vK=vt3
        k(f"s_add_u32 s{sTab}, s{sCB}, {KOFF}")
        k(f"v_lshlrev_b32 v{vK}, 5, v{vL}")
        k(f"v_add_u32 v{vK}, s{sTab}, v{vK}")
        kp=V(8,4); vKz=V()
        if role==0:
            k(f"v_add_f32 v{acc}, v{acc}, v{vDs}")
            k(f"v_lshlrev_b32 v{vKz}, 3, v{vL}")
            k(f"v_add_u32 v{vKz}, s{sTab}, v{vKz}")
        for T in range(4):
            k(f"v_cvt_pk_bf16_f32 v{kp+2*T}, v{acc+4*T}, v{acc+4*T+1}")
            k(f"v_cvt_pk_bf16_f32 v{kp+2*T+1}, v{acc+4*T+2}, v{acc+4*T+3}")
        for b0 in range(2):
            for d in range(2): k(f"v_permlane32_swap_b32 v{kp+2*b0+d}, v{kp+2*(b0+2)+d}")
        for b1 in range(2):
            for d in range(2): k(f"v_permlane16_swap_b32 v{kp+4*b1+d}, v{kp+4*b1+2+d}")
        k.barrier()
        if role==0:
            k(f"ds_write_b64 v{vKz}, v[{z4}:{z4+1}]")
            k(f"ds_write_b64 v{vKz}, v[{z4}:{z4+1}] offset:{P1}")
        o=2048*role
        k(f"ds_write_b128 v{vK}, v[{kp}:{kp+3}] offset:{o+464}")
        k(f"ds_write_b128 v{vK}, v[{kp+4}:{kp+7}] offset:{o+480}")
        k(f"ds_write_b128 v{vK}, v[{kp+2}:{kp+5}] offset:{P1+o+464}")
        k(f"ds_write_b64 v{vK}, v[{kp}:{kp+1}] offset:{P1+o+456}")
        k(f"ds_write_b64 v{vK}, v[{kp+6}:{kp+7}] offset:{P1+o+480}")
        u_write()
        k(f"v_and_b32 v{vt}, 3, v{vI}")
        k(f"v_mul_u32_u24 v{vA}, {UC}, v{vt}")
        k(f"v_lshrrev_b32 v{vt}, 2, v{vI}")
        k(f"v_sub_u32 v{vt}, v{vQ}, v{vt}")
        k(f"v_add_u32 v{vt}, 3, v{vt}")
        k(f"v_lshl_add_u32 v{vA}, v{vt}, 4, v{vA}")
        k(f"v_add_u32 v{vA}, s{sCB}, v{vA}")
        k(f"v_lshrrev_b32 v{vt}, 1, v{vI}")
        k(f"v_lshlrev_b32 v{vB}, 6, v{vt}")
        k(f"v_lshl_add_u32 v{vB}, v{vQ}, 4, v{vB}")
        k(f"v_and_b32 v{vt}, 1, v{vI}")
        k(f"v_mul_u32_u24 v{vt}, {P1-16}, v{vt}")
        k(f"v_sub_u32 v{vt}, {P1}, v{vt}")
        k(f"v_add3_u32 v{vB}, v{vB}, v{vt}, s{sTab}")
        k.barrier()
        V.reset(mark0)
        y=V(32,4)
        S=[V(64,4),V(64,4)]
        wreg[0]=V(8,4)
        def loads(r,s):
            L=[]
            for c in range(8):
                L.append(f"ds_read_b128 v[{s+4*c}:{s+4*c+3}], v{vA} offset:{64*(56+r-8*c)}")
                L.append(f"ds_read_b128 v[{s+32+4*c}:{s+32+4*c+3}], v{vB} offset:{64*(r+8*c)}")
            return L
        classes=[4*role+i for i in range(4)]
        for l in loads(classes[0],S[0]): k(l)
        started=set()
        for ci,r in enumerate(classes):
            s=S[ci&1]
            nxt=loads(classes[ci+1],S[(ci+1)&1]) if ci+1<4 else []
            order=[]
            for d in range(8):
                for a in range(8):
                    for c in range(8):
                        if max(a,c)==d and a+c<=7: order.append((a,c))
            n=0
            for (a,c) in order:
                i=a+c
                cin="0" if i not in started else f"v[{y+4*i}:{y+4*i+3}]"
                started.add(i)
                k(f"v_mfma_f32_16x16x32_bf16 v[{y+4*i}:{y+4*i+3}], v[{s+4*c}:{s+4*c+3}], v[{s+32+4*a}:{s+32+4*a+3}], {cin}")
                n+=1
                if nxt and n>=4 and n%2==0: k(nxt.pop(0))
            for l in nxt: k(l)
            if ci==1 and not fused: wo_frag()
        st.mark(k,4)
        vXw=vt3; vXr=vA
        k(f"v_lshlrev_b32 v{vt}, 4, v{vL}")
        k(f"s_lshl_b32 s{sA}, s{sW}, 12")
        k(f"s_add_u32 s{sA}, s{sA}, {L_WOB}")
        k(f"v_add_u32 v{vXw}, s{sA}, v{vt}")
        k(f"s_xor_b32 s{sA}, s{sA}, 4096") if False else None
        k(f"s_xor_b32 s{sB}, s{sW}, 1")
        k(f"s_lshl_b32 s{sB}, s{sB}, 12")
        k(f"s_add_u32 s{sB}, s{sB}, {L_WOB}")
        k(f"v_add_u32 v{vXr}, s{sB}, v{vt}")
        mine=[4*role+i for i in range(4)]; theirs=[4*(1-role)+i for i in range(4)]
        for n_,i in enumerate(theirs):
            k(f"ds_write_b128 v{vXw}, v[{y+4*i}:{y+4*i+3}] offset:{1024*n_}")
        vS=vB
        k(f"v_lshrrev_b32 v{vt}, 1, v{vI}")
        k(f"v_lshlrev_b32 v{vS}, 6, v{vt}")
        k(f"v_lshl_add_u32 v{vS}, v{vQ}, 4, v{vS}")
        k(f"v_and_b32 v{vt}, 1, v{vI}")
        k(f"v_lshl_add_u32 v{vS}, v{vt}, 3, v{vS}")
        k(f"s_add_u32 s{sA}, s{sD0}, s{sCh}")
        k(f"s_lshl_b32 s{sA}, s{sA}, 12")
        k(f"s_add_u32 s{sA}, s{sA}, {WS_B+role*4*512}")
        k.barrier()
        rr=S[0]
        for n_ in range(4):
            k(f"ds_read_b128 v[{rr+4*n_}:{rr+4*n_+3}], v{vXr} offset:{1024*n_}")
        for n_,i in enumerate(mine):
            b=rr+4*n_
            k(f"v_pk_add_f32 v[{b}:{b+1}], v[{b}:{b+1}], v[{y+4*i}:{y+4*i+1}]")
            k(f"v_pk_add_f32 v[{b+2}:{b+3}], v[{b+2}:{b+3}], v[{y+4*i+2}:{y+4*i+3}]")
            k(f"v_cvt_pk_bf16_f32 v{b}, v{b}, v{b+1}")
            k(f"v_cvt_pk_bf16_f32 v{b+1}, v{b+2}, v{b+3}")
            k(f"buffer_store_dwordx2 v[{b}:{b+1}], v{vS}, s[{srdWS}:{srdWS+3}], s{sA} offen offset:{512*n_} {STF}")
        st.mark(k,5)
        if fused: k(f"s_branch L_{name}_F")
        else:
            st.finish(k,sWS,sW,y)
            k("s_endpgm")
    if fused:
        k.auto=False; rel_read_block(k,name,"B",vZb,srdWS); k.auto=True
    return V.hi
```

```python
import re

TRANS = ("v_exp_f32","v_log_f32","v_rcp_f32","v_rsq_f32","v_sqrt_f32","v_sin_f32","v_cos_f32","v_rcp_iflag_f32")
RMW_DST = ("v_fmac_f32","v_dot2c_f32_bf16","v_pk_fmac_f16","v_writelane_b32","v_mac_f32")
MFMA_PASSES = {"32x32x16":8,"16x16x32":4,"16x16x16":4,"32x32x8":8}
T_C_OVER = {2:4,4:6,8:10,16:18}
T_AB = {2:5,4:8,8:12,16:20}
T_VALU = {2:5,4:8,8:12,16:20}
T_WAR_C = {2:1,4:3,8:7,16:15}

def split_ops(s):
    out=[]; depth=0; cur=""
    for ch in s:
        if ch in "[(": depth+=1
        if ch in "])": depth-=1
        if ch=="," and depth==0:
            out.append(cur.strip()); cur=""
        else: cur+=ch
    if cur.strip(): out.append(cur.strip())
    return out

REG = re.compile(r"^-?\|?(abs\()?([vas])(\d+)\)?\|?$")
RNG = re.compile(r"^-?([vas])\[(\d+):(\d+)\]$")
def regs_of(tok):
    tok=tok.strip()
    m=REG.match(tok)
    if m: return [(m.group(2),int(m.group(3)))]
    m=RNG.match(tok)
    if m: return [(m.group(1),i) for i in range(int(m.group(2)),int(m.group(3))+1)]
    if tok=="vcc": return [("s","vcc")]
    if tok in("vcc_lo","vcc_hi"): return [("s","vcc")]
    if tok=="exec": return [("s","exec")]
    if tok in("exec_lo","exec_hi"): return [("s","exec")]
    if tok=="m0": return [("s","m0")]
    return []

class Ins:
    __slots__=("text","mn","ops","mods","reads","writes","cls","passes","srcC","srcAB","dpp","nstates","sgpr_const_reads","wide_store","lds_dma")
    def __init__(s,text):
        s.text=text
        t=text.split(";")[0].strip()
        parts=t.split(None,1)
        s.mn=parts[0]
        rest=parts[1] if len(parts)>1 else ""
        ops=split_ops(rest)
        mods=""
        if ops:
            last=ops[-1].split()
            if len(last)>1:
                ops[-1]=last[0]; mods=" ".join(last[1:])
        s.ops=ops; s.mods=mods
        s.reads=set(); s.writes=set(); s.passes=0; s.srcC=set(); s.srcAB=set(); s.dpp=False
        s.nstates=1; s.sgpr_const_reads=set(); s.wide_store=set(); s.lds_dma=False
        mn=s.mn
        base=re.sub(r"_(e32|e64|dpp|sdwa)$","",mn)
        R=lambda i: set(regs_of(ops[i])) if i<len(ops) else set()
        allr=lambda a: set().union(*[R(i) for i in range(a,len(ops))]) if len(ops)>a else set()
        if mn=="s_nop":
            s.cls="nop"; s.nstates=int(ops[0],0)+1; return
        if mn in("s_waitcnt","s_barrier","s_endpgm","s_branch","s_setprio","s_sleep") or mn.startswith("s_cbranch"):
            s.cls="ctl"
            if mn in("s_cbranch_vccz","s_cbranch_vccnz"): s.reads={("s","vcc")}
            if mn in("s_cbranch_execz","s_cbranch_execnz"): s.reads={("s","exec")}
            if mn in("s_cbranch_scc0","s_cbranch_scc1"): s.reads={("s","scc")}
            return
        if mn.startswith("s_load") or mn in("s_memtime","s_memrealtime"):
            s.cls="smem"; s.writes=R(0); s.reads=R(1) if mn.startswith("s_load") else set(); return
        if mn.startswith("s_"):
            s.cls="salu"
            if mn.startswith("s_cmp") or mn.startswith("s_bitcmp"):
                s.reads=allr(0); s.writes={("s","scc")}
            elif "saveexec" in mn:
                s.writes=R(0)|{("s","exec"),("s","scc")}; s.reads=R(1)|{("s","exec")}
            elif mn.startswith("s_getpc"):
                s.writes=R(0)
            elif mn.startswith("s_setpc"):
                s.reads=R(0)
            elif mn.startswith("s_getreg"):
                s.writes=R(0)
            else:
                s.writes=R(0); s.reads=allr(1)
                if mn.startswith(("s_addc","s_subb","s_cselect","s_cmov")): s.reads|={("s","scc")}
                if mn.startswith(("s_addk","s_mulk","s_cmov")): s.reads|=R(0)
                if not mn.startswith(("s_mov","s_cselect","s_mul","s_movk","s_cmov","s_bfm","s_brev")): s.writes|={("s","scc")}
            return
        if mn.startswith("v_mfma"):
            s.cls="mfma"
            for k,v in MFMA_PASSES.items():
                if k in mn: s.passes=v
            assert s.passes, mn
            s.writes=R(0); s.srcAB=R(1)|R(2); s.srcC=R(3); s.reads=s.srcAB|s.srcC
            return
        if mn.startswith("v_"):
            s.cls="trans" if base in TRANS else "valu"
            s.dpp = mn.endswith("_dpp") or any(k in mods for k in("row_","quad_perm","wave_"))
            if base.startswith("v_cmp"):
                s.writes=R(0); s.reads=allr(1)
            elif base in("v_readfirstlane_b32","v_readlane_b32"):
                s.writes=R(0); s.reads=allr(1)
            elif base in("v_permlane32_swap_b32","v_permlane16_swap_b32","v_swap_b32"):
                s.writes=R(0)|R(1); s.reads=R(0)|R(1)
            elif base in("v_add_co_u32","v_sub_co_u32","v_addc_co_u32","v_subb_co_u32"):
                s.writes=R(0)|R(1); s.reads=allr(2)
            else:
                s.writes=R(0); s.reads=allr(1)
                if base in RMW_DST or s.dpp: s.reads|=R(0)
            s.reads|={("s","exec")}
            s.sgpr_const_reads={r for r in s.reads if r[0]=="s" and r[1]!="exec"}
            return
        if mn.startswith("buffer_"):
            s.cls="vmem"
            s.lds_dma = "lds" in mods.split()
            if mn.startswith("buffer_load"):
                if s.lds_dma:
                    s.reads=allr(0)|{("s","m0")}
                else:
                    s.writes=R(0); s.reads=allr(1)
                    if "d16" in mn: s.reads|=R(0)
            elif mn.startswith("buffer_store"):
                s.reads=allr(0)
                if "x4" in mn or "x3" in mn: s.wide_store=R(0)
            elif mn.startswith("buffer_atomic"):
                s.reads=allr(0)
                if "sc0" in mods.split(): s.writes=R(0)
            elif mn.startswith(("buffer_wbl2","buffer_inv")):
                pass
            else: raise ValueError(text)
            s.reads|={("s","exec")}
            return
        if mn.startswith("global_"):
            s.cls="vmem"
            if mn.startswith("global_load_lds"):
                s.lds_dma=True; s.reads=allr(0)|{("s","m0")}
            elif mn.startswith("global_load"):
                s.writes=R(0); s.reads=allr(1)
                if "d16" in mn: s.reads|=R(0)
            elif mn.startswith("global_store"):
                s.reads=allr(0)
                if "x4" in mn or "x3" in mn: s.wide_store=R(1)
            elif mn.startswith("global_atomic"):
                if "sc0" in mods.split(): s.writes=R(0); s.reads=allr(1)
                else: s.reads=allr(0)
            else: raise ValueError(text)
            s.reads|={("s","exec")}
            return
        if mn.startswith("ds_"):
            s.cls="ds"
            if mn.startswith(("ds_read","ds_bpermute","ds_permute","ds_swizzle")):
                s.writes=R(0); s.reads=allr(1)
                if "d16" in mn: s.reads|=R(0)
            else:
                s.reads=allr(0)
            s.reads|={("s","exec")}
            return
        raise ValueError("unknown instr: "+text)

def need_states(p, c):
    n=0
    pv = p.cls in("valu","trans")
    cv = c.cls in("valu","trans")
    vw = {r for r in p.writes if r[0] in "va"}
    sw = {r for r in p.writes if r[0]=="s" and r[1] not in("scc",)}
    if pv:
        if c.cls=="mfma" and vw & c.reads: n=max(n,2)
        if cv and c.dpp and vw & c.reads: n=max(n,2)
        if cv and "permlane" in c.mn and vw & c.reads: n=max(n,2)
        if cv and c.mn.startswith(("v_readfirstlane","v_readlane")) and vw & c.reads: n=max(n,1)
        if cv and sw & c.sgpr_const_reads: n=max(n,2)
        if cv and c.mn.startswith(("v_readlane","v_writelane")) and sw & c.reads: n=max(n,4)
        if c.cls=="vmem" and sw & c.reads: n=max(n,5)
        if c.cls=="salu" and sw & c.reads: n=max(n,1)
        if p.cls=="trans" and c.cls in("valu",) and vw & c.reads: n=max(n,1)
        if p.cls=="trans" and c.cls in("vmem","ds") and vw & c.reads: n=max(n,1)
        if ("op_sel" in p.mods and "v_pk" not in p.mn) or p.mn.endswith("sdwa"):
            if cv and vw & (c.reads|c.writes): n=max(n,1)
    if p.mn.startswith("v_dot") and (vw & (c.reads|c.writes)):
        if not (c.mn==p.mn and (vw & c.writes)): n=max(n,3)
    if p.cls=="mfma":
        P=p.passes
        if c.cls=="mfma":
            if p.writes & c.srcC:
                if p.writes==c.srcC and p.passes==c.passes: n=max(n, 2 if P==2 else 0)
                else: n=max(n,T_C_OVER[P])
            if p.writes & c.srcAB: n=max(n,T_AB[P])
            if (p.writes & c.writes) and not (p.writes==c.writes and p.writes==c.srcC):
                if not (p.writes & c.srcC): n=max(n,T_C_OVER[P])
        elif cv:
            if p.writes & (c.reads|c.writes): n=max(n,T_VALU[P])
            if p.srcC & c.writes: n=max(n,T_WAR_C[P])
        elif c.cls in("vmem","ds"):
            if p.writes & (c.reads|c.writes): n=max(n,T_VALU[P])
            if p.srcC & c.writes: n=max(n,T_WAR_C[P])
    if p.wide_store:
        if cv and p.wide_store & c.writes: n=max(n,2)
        elif c.cls in("mfma","ds","vmem") and p.wide_store & c.writes: n=max(n,2)
    if p.cls=="salu" and ("s","m0") in p.writes and c.lds_dma: n=max(n,1)
    if p.cls=="salu" and ("s","exec") in p.writes and c.cls=="mfma": n=max(n,1)
    return n

class Kern:
    def __init__(s, auto=True):
        s.out=[]; s.hist=[]; s.vm=[]; s.lg=[]; s.auto=auto; s.nnop=0; s.nwait=0; s.log=[]; s.vm_total=0; s.bg=[]; s.bg_every=0; s.bg_cnt=0; s.in_bg=False
    def raw(s,text): s.out.append(text)
    def label(s,name):
        s.out.append(name+":")
    def comment(s,t): s.out.append("  ; "+t)
    def snapshot(s): return (list(s.hist),[dict(x) for x in s.vm],[dict(x) for x in s.lg])
    def restore(s,st):
        s.hist=list(st[0]); s.vm=[dict(x) for x in st[1]]; s.lg=[dict(x) for x in st[2]]
    def clear_state(s): s.hist=[]; s.vm=[]; s.lg=[]
    def _push(s,ins):
        s.out.append("  "+ins.text); s.hist.append(ins)
        if len(s.hist)>40: s.hist=s.hist[-40:]
    def _hazard(s,ins):
        need=0; dist=0
        for p in reversed(s.hist):
            if dist>=20: break
            n=need_states(p,ins)
            if n>dist: need=max(need,n-dist)
            dist+=p.nstates
        return need
    def _nops(s,n):
        s.nnop+=n
        while n>0:
            k=min(n,16); s._push(Ins(f"s_nop {k-1}")); n-=k
    def _wait(s,vm=None,lg=None):
        parts=[]
        if vm is not None:
            vm=min(vm,63)
            if len(s.vm)>vm:
                parts.append(f"vmcnt({vm})"); s.vm=s.vm[len(s.vm)-vm:] if vm>0 else []
        if lg is not None:
            lg=min(lg,15)
            if len(s.lg)>lg:
                parts.append(f"lgkmcnt({lg})"); s.lg=s.lg[len(s.lg)-lg:] if lg>0 else []
        if parts:
            s.nwait+=1; s._push(Ins("s_waitcnt "+" ".join(parts)))
    def _autowait(s,ins):
        touched=ins.reads|ins.writes
        if s.bg and not s.in_bg:
            last=-1
            for gi,g in enumerate(s.bg):
                for (t,_) in g:
                    if callable(t): continue
                    if Ins(t).writes & {r for r in touched if r[0] in "va"}: last=gi
            for _ in range(last+1): s.bg_pop()
        vmn=None; lgn=None
        for i,e in enumerate(s.vm):
            if e["dst"] & touched:
                if ins.cls=="vmem" and not (e["dst"] & ins.reads): continue
                n=len(s.vm)-1-i; vmn=n if vmn is None else min(vmn,n)
        anysm=any(e["smem"] for e in s.lg)
        for i,e in enumerate(s.lg):
            if e["dst"] & touched:
                if ins.cls=="ds" and not e["smem"] and not (e["dst"] & ins.reads): continue
                n=0 if anysm else len(s.lg)-1-i; lgn=n if lgn is None else min(lgn,n)
        s._wait(vmn,lgn)
    def __call__(s,text,tag=None):
        for line in text.strip().split("\n"):
            line=line.strip()
            if not line or line.startswith(";"):
                if line: s.out.append("  "+line)
                continue
            if line.endswith(":"): s.label(line[:-1]); continue
            s.emit(line,tag)
    def emit(s,text,tag=None):
        ins=Ins(text)
        if ins.mn=="s_waitcnt":
            m=re.search(r"vmcnt\((\d+)\)",text); l=re.search(r"lgkmcnt\((\d+)\)",text)
            if m:
                n=int(m.group(1)); s.vm=s.vm[max(0,len(s.vm)-n):] if n>0 else []
            if l:
                n=int(l.group(1)); s.lg=s.lg[max(0,len(s.lg)-n):] if n>0 else []
            s._push(ins); return ins
        if s.auto:
            s._autowait(ins)
            if ins.cls=="vmem" and len(s.vm)>=62: s._wait(vm=61)
            if ins.cls in("ds","smem") and len(s.lg)>=15:
                s._wait(lg=0 if any(e["smem"] for e in s.lg) else 14)
        n=s._hazard(ins)
        if n: s._nops(n)
        s._push(ins)
        if ins.cls=="vmem":
            s.vm_total+=1
            s.vm.append({"dst":set(ins.writes),"tag":tag})
            if len(s.vm)>63: s.vm=s.vm[-63:] if False else s.vm
        elif ins.cls=="ds": s.lg.append({"dst":set(ins.writes),"tag":tag,"smem":False})
        elif ins.cls=="smem": s.lg.append({"dst":set(ins.writes),"tag":tag,"smem":True})
        if s.bg and not s.in_bg and ins.cls in("valu","trans","mfma","ds"):
            s.bg_cnt+= (4 if ins.cls=="mfma" and ins.passes>=8 else 2 if ins.cls in("mfma","trans") else 1)
            if s.bg_cnt>=s.bg_every:
                s.bg_cnt=0; s.bg_pop()
        return ins
    def bg_pop(s):
        g=s.bg.pop(0); prev=s.in_bg; s.in_bg=True
        for (t,tg) in g:
            if callable(t): t()
            else: s.emit(t,tg)
        s.in_bg=prev
    def bg_flush(s, upto_tag=None):
        while s.bg:
            if upto_tag is not None and not any(tg==upto_tag for g in s.bg for (_,tg) in g): break
            s.bg_pop()
    def wait_tag(s,tag):
        if not s.in_bg: s.bg_flush(tag)
        idx=[i for i,e in enumerate(s.vm) if e["tag"]==tag]
        if idx: s._wait(vm=len(s.vm)-1-max(idx))
        idx=[i for i,e in enumerate(s.lg) if e["tag"]==tag]
        if idx:
            anysm=any(e["smem"] for e in s.lg)
            s._wait(lg=0 if anysm else len(s.lg)-1-max(idx))
    def wait_vm(s,n=0): s._wait(vm=n)
    def wait_lg(s,n=0): s._wait(lg=n)
    def barrier(s):
        s._wait(lg=0); s.emit("s_barrier")
    def text(s): return "\n".join(s.out)+"\n"

class Alloc:
    def __init__(s,kind,start,limit): s.kind=kind; s.n=start; s.limit=limit; s.hi=start
    def __call__(s,count=1,align=None):
        if align is None: align = 1 if count==1 else 2
        s.n=(s.n+align-1)//align*align
        r=s.n; s.n+=count; s.hi=max(s.hi,s.n)
        assert s.n<=s.limit, f"out of {s.kind} regs"
        return r
    def mark(s): return s.n
    def reset(s,m): s.n=m
def vr(b,n=1): return f"v{b}" if n==1 else f"v[{b}:{b+n-1}]"
def ar(b,n=1): return f"a{b}" if n==1 else f"a[{b}:{b+n-1}]"
def sr(b,n=1): return f"s{b}" if n==1 else f"s[{b}:{b+n-1}]"

STAMP_BASE=86
class Stamper:
    def __init__(s,on,kid): s.on=on; s.kid=kid
    def start(s,k):
        if s.on: k(f"s_memrealtime s[{STAMP_BASE}:{STAMP_BASE+1}]")
    def mark(s,k,i):
        if s.on: k(f"s_memtime s[{STAMP_BASE+2*i}:{STAMP_BASE+2*i+1}]")
    def finish(s,k,wsptr,swave,vtmp):
        if not s.on: return
        k(f"s_waitcnt vmcnt(0)")
        k(f"s_memrealtime s[{STAMP_BASE+14}:{STAMP_BASE+15}]")
        k("s_waitcnt lgkmcnt(0)")
        k(f"s_lshl_b32 s3, s2, 3")
        k(f"s_add_u32 s3, s3, s{swave}")
        k(f"s_lshl_b32 s3, s3, 6")
        k(f"s_add_u32 s3, s3, {(16<<20)+(s.kid<<20)}")
        for i in range(8):
            k(f"v_mov_b32 v{vtmp+i}, s{STAMP_BASE+2*i}")
        k(f"v_mov_b32 v{vtmp+8}, s3")
        k(f"s_mov_b64 exec, 1")
        k(f"global_store_dwordx4 v{vtmp+8}, v[{vtmp}:{vtmp+3}], s[{wsptr}:{wsptr+1}]")
        k(f"global_store_dwordx4 v{vtmp+8}, v[{vtmp+4}:{vtmp+7}], s[{wsptr}:{wsptr+1}] offset:16")
        k(f"s_getreg_b32 s3, hwreg(HW_REG_HW_ID)")
        k(f"v_mov_b32 v{vtmp}, s3")
        k(f"s_getreg_b32 s3, hwreg(HW_REG_XCC_ID)")
        k(f"v_mov_b32 v{vtmp+1}, s3")
        k(f"global_store_dwordx2 v{vtmp+8}, v[{vtmp}:{vtmp+1}], s[{wsptr}:{wsptr+1}] offset:32")
```

```python
from dsl import *
from common import *
import os
DBG=os.environ.get('DBG','')
GATE=os.environ.get('GATE','epi')
QORD=os.environ.get('QORD','last')
PRIOA=os.environ.get('PRIOA','')
XW1=os.environ.get('XW1','pro')
GJ=int(os.environ.get('GJ','29'))
STF=os.environ.get('STF','sc1')
TP=eval(os.environ.get('TP','(0,3,3)'))
NTB=int(os.environ.get('TB','1'))
MK=eval(os.environ.get('MK','{0:2,1:3,2:4,4:5}'))

sX=4; sWQ=6; sWPHI=8; sWO=10; sLA=14; sAI=16; sCR=18; sCI=20; sLDT=22; sDS=24; sGW=26; sOUT=28; sDBG=30; sWS=32
sW=34
sXCD=35; sIDX=36
srdX=40; srdWq=44; srdWS=48; srdKV=52; srdDBG=56; srdT=60
L_WPHI=0
L_WR=2048; WSL=24576; NWS=3
L_XR=L_WR+NWS*WSL; XSL=16384; NXS=3
K1_LDS=159744
LOG2E=0x3fb8aa3b; NLOG2E=0xbfb8aa3b
RED0=L_WR
def red_base(g,w): return (L_WR if g==0 else L_WR+2*WSL)+w*4352

def mk_srd(k,srd,ptr,size):
    k(f"s_mov_b32 s{srd}, s{ptr}")
    k(f"s_and_b32 s{srd+1}, s{ptr+1}, 0xffff")
    k(f"s_mov_b32 s{srd+2}, {size}")
    k(f"s_mov_b32 s{srd+3}, 0x20000")

def softmax2(k, blocks, tmp, sL2E, fill=None):
    nb=len(blocks)
    def each(f):
        for b in range(nb): f(b,*blocks[b])
    T=[tmp+4*b for b in range(nb)]
    each(lambda b,p,o: k(f"v_max3_f32 v{T[b]}, v{p}, v{p+1}, v{p+2}"))
    for u in range(6):
        each(lambda b,p,o: k(f"v_max3_f32 v{T[b]}, v{T[b]}, v{p+3+2*u}, v{p+4+2*u}"))
    each(lambda b,p,o: k(f"v_max_f32 v{T[b]}, v{T[b]}, v{p+15}"))
    each(lambda b,p,o: k(f"v_mul_f32 v{T[b]}, {NLOG2E:#x}, v{T[b]}"))
    for u in range(8):
        each(lambda b,p,o: k(f"v_pk_fma_f32 v[{p+2*u}:{p+2*u+1}], v[{p+2*u}:{p+2*u+1}], s[{sL2E}:{sL2E+1}], v[{T[b]}:{T[b]+1}] op_sel_hi:[1,1,0]"))
    for u in range(16):
        each(lambda b,p,o: k(f"v_exp_f32 v{p+u}, v{p+u}"))
    S=[t+2 for t in T]
    each(lambda b,p,o: k(f"v_pk_add_f32 v[{S[b]}:{S[b]+1}], v[{p}:{p+1}], v[{p+2}:{p+3}]"))
    for u in range(2,8):
        each(lambda b,p,o: k(f"v_pk_add_f32 v[{S[b]}:{S[b]+1}], v[{S[b]}:{S[b]+1}], v[{p+2*u}:{p+2*u+1}]"))
    each(lambda b,p,o: k(f"v_add_f32 v{T[b]}, v{S[b]}, v{S[b]+1}"))
    each(lambda b,p,o: k(f"v_rcp_f32 v{T[b]}, v{T[b]}"))
    for u in range(8):
        each(lambda b,p,o: k(f"v_pk_mul_f32 v[{p+2*u}:{p+2*u+1}], v[{p+2*u}:{p+2*u+1}], v[{T[b]}:{T[b]+1}] op_sel_hi:[1,0]"))
    for u in range(8):
        each(lambda b,p,o: k(f"v_cvt_pk_bf16_f32 v{o+u}, v{p+2*u}, v{p+2*u+1}"))

def gen_a(k, name, st, fused=False):
    from kf import rel_read_rare, rel_read_block
    V=Alloc("v",1,256)
    sTT=37; sHP=38; sT=39; sA=64; sB=65; sX0=66; sWo_=68; sMx=69; sMw=70
    sL2E=74; sMaskLo=76; sTick=80; sGt=86-0 if False else 63; sPhiO=81; sGo=82; sE=83; sFirst=84
    k.label(f"L_{name}_A")
    sHQ=67; sTBW=78; sHG=79
    k(f"s_and_b32 s{sA}, s{sXCD}, 3")
    k(f"s_lshl_b32 s{sA}, s{sA}, 2")
    k(f"s_and_b32 s{sB}, s{sIDX}, 3")
    k(f"s_add_u32 s{sTT}, s{sA}, s{sB}")
    k(f"s_lshr_b32 s{sA}, s{sXCD}, 2")
    k(f"s_lshl_b32 s{sA}, s{sA}, 2")
    k(f"s_lshr_b32 s{sB}, s{sIDX}, 2")
    k(f"s_add_u32 s{sHQ}, s{sA}, s{sB}")
    k(f"s_and_b32 s{sTBW}, s{sW}, 3")
    k(f"s_lshr_b32 s{sHG}, s{sW}, 2")
    k(f"s_lshl_b32 s{sA}, s{sHQ}, 1")
    k(f"s_add_u32 s{sHP}, s{sA}, s{sHG}")
    vL=V(); vXg=V(2); vWg=V(3); vt=V(); vt2=V(); vt3=V()
    k(f"v_and_b32 v{vL}, 63, v0")
    k(f"v_lshrrev_b32 v{vt}, 4, v{vL}")
    k(f"v_xor_b32 v{vt}, v{vt}, v{vL}")
    k(f"v_and_b32 v{vt}, 7, v{vt}")
    k(f"v_lshlrev_b32 v{vt}, 4, v{vt}")
    k(f"v_lshrrev_b32 v{vt2}, 3, v{vL}")
    k(f"v_lshl_add_u32 v{vXg}, v{vt2}, 10, v{vt}")
    k(f"v_xor_b32 v{vXg+1}, 64, v{vXg}")
    k(f"v_add_u32 v{vXg+1}, 8192, v{vXg+1}")
    for i in range(3):
        k(f"v_add_u32 v{vt3}, {64*i}, v{vL}")
        k(f"v_mul_u32_u24 v{vt}, 171, v{vt3}")
        k(f"v_lshrrev_b32 v{vt}, 12, v{vt}")
        k(f"v_mul_u32_u24 v{vt2}, 24, v{vt}")
        k(f"v_sub_u32 v{vt2}, v{vt3}, v{vt2}")
        k(f"v_bfe_u32 v{vt3}, v{vt}, 1, 1")
        k(f"v_lshlrev_b32 v{vt3}, 2, v{vt3}")
        k(f"v_xor_b32 v{vt2}, v{vt2}, v{vt3}")
        k(f"v_mul_u32_u24 v{vWg+i}, 3072, v{vt}")
        k(f"v_lshrrev_b32 v{vt3}, 3, v{vt2}")
        k(f"v_lshl_add_u32 v{vWg+i}, v{vt3}, 10, v{vWg+i}")
        k(f"v_and_b32 v{vt2}, 7, v{vt2}")
        k(f"v_lshl_add_u32 v{vWg+i}, v{vt2}, 4, v{vWg+i}")
    k(f"s_lshl_b32 s{sX0}, s{sTT}, 17")
    k(f"s_lshl_b32 s{sA}, s{sW}, 14")
    k(f"s_add_u32 s{sX0}, s{sX0}, s{sA}")
    k(f"s_mul_i32 s{sWo_}, s{sW}, {8*3072}")
    k(f"s_lshl_b32 s{sA}, s{sHQ}, 7")
    k(f"s_add_u32 s{sWo_}, s{sWo_}, s{sA}")
    k(f"s_lshl_b32 s{sMx}, s{sW}, 11")
    k(f"s_add_u32 s{sMx}, s{sMx}, {L_XR}")
    k(f"s_mul_i32 s{sMw}, s{sW}, 3072")
    k(f"s_add_u32 s{sMw}, s{sMw}, {L_WR}")
    sXk=71; sWk=72; sXc=73; sWc=85
    k(f"s_lshr_b32 s{sA}, s{sIDX}, 2")
    k(f"s_and_b32 s{sB}, s{sIDX}, 3")
    k(f"s_add_u32 s{sA}, s{sA}, s{sB}")
    k(f"s_and_b32 s{sA}, s{sA}, 3")
    k(f"s_lshl_b32 s{sA}, s{sA}, 1")
    if 'N' in DBG: k(f"s_mov_b32 s{sA}, 0")
    k(f"s_lshl_b32 s{sXk}, s{sA}, 7")
    k(f"s_mul_i32 s{sWk}, s{sA}, {64*3072}")
    k("s_waitcnt lgkmcnt(0)")
    mk_srd(k,srdX,sX,2048*512*2)
    mk_srd(k,srdWq,sWQ,512*1536*2)
    def dma_x_l(S):
        L=[]; slot=S%NXS
        for i in range(2):
            g=[]
            if i==0:
                if S>0:
                    g.append((f"s_add_u32 s{sXk}, s{sXk}, 128",None))
                    g.append((f"s_and_b32 s{sXk}, s{sXk}, 0x3ff",None))
                g.append((f"s_add_u32 s{sXc}, s{sX0}, s{sXk}",None))
            g+=[(f"s_add_u32 m0, s{sMx}, {slot*XSL+i*1024}",None),("s_nop 0",None),
                (f"buffer_load_dwordx4 v{vXg+i}, s[{srdX}:{srdX+3}], s{sXc} offen lds",f"x{S}")]
            L.append(g)
        return L
    def dma_w_l(S):
        slot=S%NWS; L=[]
        for i in range(3):
            g=[]
            if i==0:
                if S>0:
                    g.append((f"s_add_u32 s{sWk}, s{sWk}, {64*3072}",None))
                    g.append((f"s_cmp_eq_u32 s{sWk}, {512*3072}",None))
                    g.append((f"s_cselect_b32 s{sWk}, 0, s{sWk}",None))
                g.append((f"s_add_u32 s{sWc}, s{sWo_}, s{sWk}",None))
            g.append((f"s_add_u32 m0, s{sMw}, {slot*WSL+i*1024}",None))
            g.append(("s_nop 0",None))
            g.append((f"buffer_load_dwordx4 v{vWg+i}, s[{srdWq}:{srdWq+3}], s{sWc} offen lds",f"w{S}"))
            L.append(g)
        return L
    def emit_g(g):
        for (t,tag) in g: k(t,tag=tag)
    def dma_x(S):
        for g in dma_x_l(S): emit_g(g)
    def dma_w(S):
        for g in dma_w_l(S): emit_g(g)
    dma_x(0); dma_w(0)
    if XW1=='pro': dma_x(1); dma_w(1)
    if 1 not in MK.values(): st.mark(k,1)
    gx=V(8,4); gw=V(8,4); vGa=V(); vGw=V()
    k(f"v_and_b32 v{vt}, 31, v{vL}")
    k(f"v_lshlrev_b32 v{vGw}, 5, v{vt}")
    k(f"v_lshrrev_b32 v{vt}, 5, v{vL}")
    k(f"v_lshl_add_u32 v{vGa}, v{vt}, 10, v{vGw}")
    k(f"s_lshl_b32 s{sA}, s{sTT}, 7")
    k(f"s_and_b32 s{sB}, s{sHQ}, 7")
    k(f"s_lshl_b32 s{sB}, s{sB}, 4")
    k(f"s_add_u32 s{sA}, s{sA}, s{sB}")
    k(f"s_lshl_b32 s{sB}, s{sW}, 1")
    k(f"s_add_u32 s{sGo}, s{sA}, s{sB}")
    k(f"global_load_dwordx4 v[{gw}:{gw+3}], v{vGw}, s[{sGW}:{sGW+1}]")
    k(f"global_load_dwordx4 v[{gw+4}:{gw+7}], v{vGw}, s[{sGW}:{sGW+1}] offset:16")
    mk_srd(k,srdDBG,sDBG,256)
    mk_srd(k,srdT,sWPHI,32*512)
    mk_srd(k,srdWS,sWS,WS_SIZE)
    vZ=V(); vL16=V(); vOne=V(); sR=3
    k(f"v_mov_b32 v{vZ}, 0")
    k(f"v_lshlrev_b32 v{vL16}, 4, v{vL}")
    k(f"s_lshl_b32 s{sT}, s{sHP}, 10")
    k(f"s_lshl_b32 s{sA}, s{sHG}, 10")
    k(f"s_add_u32 m0, s{sA}, {L_WPHI}")
    k(f"s_lshl_b32 s{sA}, s{sHP}, 2")
    k(f"buffer_load_dwordx4 v{vL16}, s[{srdT}:{srdT+3}], s{sT} offen lds", tag="wphi")
    if fused: rel_read_rare(k,name,"A",vZ)
    k(f"s_mov_b32 s{sL2E}, {LOG2E:#x}")
    k(f"s_mov_b32 s{sL2E+1}, {LOG2E:#x}")
    k(f"s_mov_b32 s{sMaskLo}, 0x0000ffff")
    k(f"s_mov_b32 s{sMaskLo+1}, 0x0000ffff")
    k(f"s_or_b32 s{sA}, s{sTT}, s{sTBW}")
    k(f"s_cmp_eq_u32 s{sA}, 0")
    k(f"s_cselect_b32 s{sFirst}, 1, 0")
    vM=V(); vH=V()
    k(f"v_and_b32 v{vM}, 31, v{vL}")
    k(f"v_lshrrev_b32 v{vH}, 5, v{vL}")
    vXr=V(4); vWr=V()
    k(f"v_lshrrev_b32 v{vt}, 1, v{vM}")
    k(f"v_and_b32 v{vt}, 7, v{vt}")
    k(f"v_xor_b32 v{vt}, v{vt}, v{vH}")
    k(f"v_lshlrev_b32 v{vt}, 4, v{vt}")
    k(f"v_lshl_add_u32 v{vXr}, v{vM}, 7, v{vt}")
    k(f"s_lshl_b32 s{sA}, s{sTBW}, 12")
    k(f"s_add_u32 s{sA}, s{sA}, {L_XR}")
    k(f"v_add_u32 v{vXr}, s{sA}, v{vXr}")
    for ks in range(1,4): k(f"v_xor_b32 v{vXr+ks}, {ks<<5}, v{vXr}")
    k(f"v_bfe_u32 v{vt}, v{vL}, 2, 2")
    k(f"v_lshl_add_u32 v{vt2}, v{vH}, 3, v{vt}")
    k(f"v_mul_u32_u24 v{vWr}, 384, v{vt2}")
    k(f"v_bfe_u32 v{vt2}, v{vL}, 4, 1")
    k(f"v_lshlrev_b32 v{vt2}, 5, v{vt2}")
    k(f"v_and_b32 v{vt3}, 3, v{vL}")
    k(f"v_lshl_add_u32 v{vt2}, v{vt3}, 3, v{vt2}")
    k(f"s_lshl_b32 s{sA}, s{sHG}, 6")
    k(f"v_add_u32 v{vt2}, s{sA}, v{vt2}")
    k(f"v_lshrrev_b32 v{vt}, 1, v{vt}")
    k(f"v_lshlrev_b32 v{vt}, 6, v{vt}")
    k(f"v_xor_b32 v{vt2}, v{vt2}, v{vt}")
    k(f"v_add_u32 v{vWr}, v{vWr}, v{vt2}")
    k(f"v_add_u32 v{vWr}, {L_WR}, v{vWr}")
    vWr2=V()
    k(f"v_add_u32 v{vWr2}, {2*WSL}, v{vWr}")
    I=V(8,4)
    for s in range(2):
        k(f"v_lshlrev_b32 v{vt}, 4, v{vH}")
        k(f"v_sub_u32 v{vt}, v{vM}, v{vt}")
        if s: k(f"v_subrev_u32 v{vt}, 8, v{vt}")
        k(f"v_and_b32 v{vt2}, 1, v{vt}")
        k(f"v_lshlrev_b32 v{vt2}, 4, v{vt2}")
        k(f"v_mov_b32 v{vt3}, 0x3f80")
        k(f"v_lshlrev_b32 v{vt2}, v{vt2}, v{vt3}")
        k(f"v_lshrrev_b32 v{vt}, 1, v{vt}")
        for u in range(4):
            k(f"v_cmp_eq_u32 vcc, {u}, v{vt}")
            k(f"v_cndmask_b32 v{I+4*s+u}, 0, v{vt2}, vcc")
    z4=V(4,4)
    for u in range(4): k(f"v_mov_b32 v{z4+u}, 0")
    accQ=V(16,4); accK=V(16,4); accV=V(16,4)
    F=[V(16,4),V(16,4),V(16,4)]
    def reads_l(j):
        f=F[j%3]; S=j>>2; ks=j&3
        if 'R' in DBG: return []
        L=[f"ds_read_b128 v[{f}:{f+3}], v{vXr+ks} offset:{(S%NXS)*XSL}"]
        for seg in range(3):
            for half in range(2):
                L.append(f"ds_read_b64_tr_b16 v[{f+4+4*seg+2*half}:{f+5+4*seg+2*half}], v{vWr2 if S%NWS==2 else vWr} offset:{(S%NWS%2)*WSL+ks*16*384+half*4*384+seg*128}")
        return L
    def reads(j):
        for l in reads_l(j): k(l)
    RSPLIT=eval(os.environ.get('RSPLIT','(2,2,3)'))
    def mfmas(j, fill=(), rd=()):
        f=F[j%3]; fill=list(fill); rd=list(rd)
        c=lambda a: "0" if j==0 else f"v[{a}:{a+15}]"
        M=[f"v_mfma_f32_32x32x16_bf16 v[{accQ}:{accQ+15}], v[{f+4}:{f+7}], v[{f}:{f+3}], {c(accQ)}",
           f"v_mfma_f32_32x32x16_bf16 v[{accK}:{accK+15}], v[{f+8}:{f+11}], v[{f}:{f+3}], {c(accK)}",
           f"v_mfma_f32_32x32x16_bf16 v[{accV}:{accV+15}], v[{f}:{f+3}], v[{f+12}:{f+15}], {c(accV)}"]
        for n,m in enumerate(M):
            if 'M' not in DBG: k(m)
            for _ in range(RSPLIT[n]):
                if rd: k(rd.pop(0))
            if fill: emit_g(fill.pop(0))
        for l in rd: k(l)
        for g in fill: emit_g(g)
    gs=V(); vgt=V(); vgt2=V()
    def gate_code():
        k(f"v_mov_b32 v{gs}, 0")
        for u in range(8): k(f"v_dot2c_f32_bf16 v{gs}, v{gx+u}, v{gw+u}")
        for n in (8,4,2,1): k(f"v_add_f32_dpp v{gs}, v{gs}, v{gs} row_ror:{n} row_mask:0xf bank_mask:0xf")
        k(f"v_add_f32_dpp v{gs}, v{gs}, v{gs} row_bcast:15 row_mask:0xa bank_mask:0xf")
        k(f"v_cvt_pk_bf16_f32 v{gs}, v{gs}, v{gs}")
        k(f"v_lshlrev_b32 v{gs}, 16, v{gs}")
        k(f"v_mul_f32 v{gs}, {NLOG2E:#x}, v{gs}")
        k(f"v_exp_f32 v{gs}, v{gs}")
        k(f"v_add_f32 v{gs}, 1.0, v{gs}")
        k(f"v_rcp_f32 v{gs}, v{gs}")
        k(f"v_cvt_pk_bf16_f32 v{gs}, v{gs}, v{gs}")
        k(f"v_lshlrev_b32 v{gs}, 16, v{gs}")
        k(f"v_lshlrev_b32 v{vgt}, 2, v{vH}")
        k(f"v_bfe_u32 v{vgt2}, v{vL}, 4, 1")
        k(f"v_subrev_u32 v{vgt2}, 1, v{vgt2}")
        k(f"v_and_b32 v{vgt2}, 0x80000000, v{vgt2}")
        k(f"v_or_b32 v{vgt}, v{vgt}, v{vgt2}")
        k(f"s_lshl_b32 s{sGt}, s{sGo}, 2")
        k(f"s_add_u32 s{sGt}, s{sGt}, {WS_G}")
        k(f"buffer_store_dword v{gs}, v{vgt}, s[{srdWS}:{srdWS+3}], s{sGt} offen {STF}")
    wf=V(8,4); vPhA=V(); vSg=V(); ones=V(); vRb=V(2); vSt=V(2); vRa=V(8); vFl=V()
    pre=[]
    P=lambda t: pre.append(t)
    P(f"v_bfe_u32 v{vt}, v{vL}, 2, 2")
    P(f"v_lshl_add_u32 v{vt}, v{vH}, 2, v{vt}")
    P(f"v_lshlrev_b32 v{vPhA}, 5, v{vt}")
    P(f"v_bfe_u32 v{vt2}, v{vL}, 4, 1")
    P(f"v_lshl_add_u32 v{vPhA}, v{vt2}, 4, v{vPhA}")
    P(f"v_bfe_u32 v{vt2}, v{vL}, 1, 1")
    P(f"v_lshl_add_u32 v{vPhA}, v{vt2}, 3, v{vPhA}")
    P(f"s_lshl_b32 s{sA}, s{sHG}, 10")
    P(f"v_add_u32 v{vPhA}, s{sA}, v{vPhA}")
    for hd in range(2):
        P(f"ds_read_b64_tr_b16 v[{wf+4*hd}:{wf+4*hd+1}], v{vPhA} offset:{L_WPHI+512*hd}")
        P(f"ds_read_b64_tr_b16 v[{wf+4*hd+2}:{wf+4*hd+3}], v{vPhA} offset:{L_WPHI+512*hd+256}")
    P(f"v_bfe_u32 v{vSg}, v{vL}, 2, 1")
    P(f"v_mul_u32_u24 v{vSg}, 0x8000, v{vSg}")
    P(f"v_lshl_or_b32 v{vSg}, v{vSg}, 16, v{vSg}")
    P(f"v_mov_b32 v{ones}, 0x3f803f80")
    P(f"v_and_b32 v{vt}, 15, v{vM}")
    P(f"v_lshlrev_b32 v{vt}, 4, v{vt}")
    P(f"v_lshl_add_u32 v{vt}, v{vH}, 9, v{vt}")
    P(f"v_lshlrev_b32 v{vt2}, 5, v{vH}")
    P(f"v_add_u32 v{vt2}, 2048, v{vt2}")
    P(f"s_mul_i32 s{sA}, s{sTBW}, 4352")
    P(f"s_mul_i32 s{sB}, s{sHG}, {2*WSL}")
    P(f"s_add_u32 s{sA}, s{sA}, s{sB}")
    P(f"s_add_u32 s{sA}, s{sA}, {L_WR}")
    P(f"v_cndmask_b32 v{vRb}, v{vt2}, v{vt}, s[{sMaskLo}:{sMaskLo+1}]")
    P(f"v_cndmask_b32 v{vRb+1}, v{vt}, v{vt2}, s[{sMaskLo}:{sMaskLo+1}]")
    P(f"v_add_u32 v{vRb}, s{sA}, v{vRb}")
    P(f"v_add_u32 v{vRb+1}, s{sA}, v{vRb+1}")
    P(f"v_mov_b32 v{vt}, 256")
    P(f"v_mov_b32 v{vt2}, 16")
    P(f"v_cndmask_b32 v{vSt}, v{vt2}, v{vt}, s[{sMaskLo}:{sMaskLo+1}]")
    P(f"v_cndmask_b32 v{vSt+1}, v{vt}, v{vt2}, s[{sMaskLo}:{sMaskLo+1}]")
    for hd in range(2):
        for i in range(4):
            c=4*(i&1)+(i>>1)
            P(f"v_mad_u32_u24 v{vRa+4*hd+i}, v{vSt+hd}, {c}, v{vRb+hd}")
    for u in range(8): P(f"v_xor_b32 v{wf+u}, v{wf+u}, v{vSg}")
    P(f"s_mul_i32 s{sA}, s{sHP}, {2*KVH}")
    P(f"s_add_u32 s{sA}, s{sA}, {WS_KV}")
    P(f"s_add_u32 s{srdKV}, s{sWS}, s{sA}")
    P(f"s_addc_u32 s{srdKV+1}, s{sWS+1}, 0")
    P(f"s_and_b32 s{srdKV+1}, s{srdKV+1}, 0xffff")
    P(f"s_mov_b32 s{srdKV+2}, {2*KVH}")
    P(f"s_mov_b32 s{srdKV+3}, 0x20000")
    P(f"s_lshl_b32 s{sE}, s{sHP}, 2")
    P(f"s_add_u32 s{sE}, s{sE}, 64")
    P(f"s_lshl_b32 s{sPhiO}, s{sTT}, 2")
    P(f"s_add_u32 s{sPhiO}, s{sPhiO}, s{sTBW}")
    P(f"s_lshl_b32 s{sPhiO}, s{sPhiO}, 16")
    P(f"s_lshl_b32 s{sA}, s{sHP}, 12")
    P(f"s_add_u32 s{sPhiO}, s{sPhiO}, s{sA}")
    vE=vRb; vEl=vRb+1
    P(f"v_and_b32 v{vE}, 255, v0")
    P(f"v_lshlrev_b32 v{vE}, 2, v{vE}")
    P(f"s_mul_i32 s{sB}, s{sHG}, {2*WSL}")
    P(f"v_add_u32 v{vEl}, s{sB}, v{vE}")
    late=[t for t in pre if t.startswith("ds_read_b64_tr_b16") or t.startswith(f"v_xor_b32 v{wf}") or any(t.startswith(f"v_xor_b32 v{wf+u},") for u in range(8))]
    early=[t for t in pre if t not in late]
    if 'L' in DBG: late=pre; early=[]
    for t in early: k(t)
    pre=late
    if PRIOA:
        k(f"s_cmp_eq_u32 s{sHG}, {PRIOA[0]}")
        k(f"s_cbranch_scc0 L_{name}_A_np")
        k(f"s_setprio 1")
        k.label(f"L_{name}_A_np")
    pend=[]
    for j in range(32):
        S=j>>2
        if j%4==0:
            k.wait_tag(f"w{S}")
            k.wait_tag(f"x{S}")
            k.wait_lg(0)
            k("s_barrier")
            if S in MK: st.mark(k,MK[S])
        if j<2 or 'I' in DBG: reads(j)
        if j==0 and XW1!='pro':
            dma_w(1); dma_x(1)
        if j%4==0 and S+2<8 and 'D' not in DBG:
            pend+=dma_w_l(S+2)+dma_x_l(S+2)
        if j>1:
            take=pend[:2]; pend=pend[2:]
            mfmas(j-2, take, [] if 'I' in DBG else reads_l(j))
        if j>=6:
            n=0 if 'Q' in DBG else 4
            while pre and n>0:
                t=pre.pop(0); k(t); n-=1
                if t.startswith("s_add_u32 s{}".format(srdKV)): k(pre.pop(0))
        if j==2:
            k(f"s_cmp_eq_u32 s{sFirst}, 1")
            k(f"s_cbranch_scc1 L_{name}_A_ev4")
            k.label(f"L_{name}_A_ev4ret")
            vm_ev4=k.vm_total
        if j==GJ:
            k(f"s_lshl_b32 s{sT}, s{sGo}, 10")
            k(f"buffer_load_dwordx4 v[{gx}:{gx+3}], v{vGa}, s[{srdX}:{srdX+3}], s{sT} offen")
            k(f"buffer_load_dwordx4 v[{gx+4}:{gx+7}], v{vGa}, s[{srdX}:{srdX+3}], s{sT} offen offset:16")
        if GATE=='loop' and j==GJ+8: gate_code()
        if j==13:
            vm_ev8=k.vm_total
            k(f"s_cmp_eq_u32 s{sFirst}, 1")
            k(f"s_cbranch_scc1 L_{name}_A_ev8")
            k.label(f"L_{name}_A_ev8ret")
        if j==28:
            assert 'Q' in DBG or not pre, len(pre)
            vm_poll0=k.vm_total
            k(f"s_cmp_eq_u32 s{sTBW}, 0")
            k(f"s_cbranch_scc1 L_{name}_A_poll0")
            k.label(f"L_{name}_A_poll0ret")
    assert not pend
    for t in pre: k(t)
    mfmas(30); mfmas(31)
    fa=F[2]; fb=F[0]
    kb=fa; qb=fa+8; vb=fb
    for u in range(8): k(f"v_cvt_pk_bf16_f32 v{kb+u}, v{accK+2*u}, v{accK+2*u+1}")
    pkA=V(16,4); pkB=V(16,4)
    k(f"v_mfma_f32_32x32x16_bf16 v[{pkA}:{pkA+15}], v[{wf}:{wf+3}], v[{kb}:{kb+3}], 0")
    k(f"v_mfma_f32_32x32x16_bf16 v[{pkB}:{pkB+15}], v[{wf+4}:{wf+7}], v[{kb+4}:{kb+7}], 0")
    for u in range(8): k(f"v_cvt_pk_bf16_f32 v{qb+u}, v{accQ+2*u}, v{accQ+2*u+1}")
    pqA=accK; pqB=accQ
    k(f"v_mfma_f32_32x32x16_bf16 v[{pqA}:{pqA+15}], v[{wf}:{wf+3}], v[{qb}:{qb+3}], 0")
    k(f"v_mfma_f32_32x32x16_bf16 v[{pqB}:{pqB+15}], v[{wf+4}:{wf+7}], v[{qb+4}:{qb+7}], 0")
    for u in range(8): k(f"v_cvt_pk_bf16_f32 v{vb+u}, v{accV+2*u}, v{accV+2*u+1}")
    vA_=accV; vB_=accV+8
    for u in range(8): k(f"v_cndmask_b32 v{vA_+u}, v{ones}, v{vb+u}, s[{sMaskLo}:{sMaskLo+1}]")
    for u in range(8): k(f"v_cndmask_b32 v{vB_+u}, v{vb+u}, v{ones}, s[{sMaskLo}:{sMaskLo+1}]")
    phA=V(8,4); phB=V(8,4); tmp=V(8,2)
    def q_part():
        pq_o=gx
        assert gw==gx+8
        softmax2(k,[(pqA,pq_o),(pqB,pq_o+8)],tmp,sL2E)
        for q in range(4):
            k(f"buffer_store_dwordx4 v[{pq_o+4*q}:{pq_o+4*q+3}], v{vL16}, s[{srdWS}:{srdWS+3}], s{sPhiO} offen offset:{q*1024} {STF}")
    if QORD=='first':
        assert GATE=='loop'
        q_part()
    softmax2(k,[(pkA,phA),(pkB,phB)],tmp,sL2E)
    TA=pkA; TB=pkB
    k(f"v_mfma_f32_32x32x16_bf16 v[{TA}:{TA+15}], v[{phA}:{phA+3}], v[{I}:{I+3}], 0")
    k(f"v_mfma_f32_32x32x16_bf16 v[{TB}:{TB+15}], v[{phB}:{phB+3}], v[{I}:{I+3}], 0")
    k(f"v_mfma_f32_32x32x16_bf16 v[{TA}:{TA+15}], v[{phA+4}:{phA+7}], v[{I+4}:{I+7}], v[{TA}:{TA+15}]")
    k(f"v_mfma_f32_32x32x16_bf16 v[{TB}:{TB+15}], v[{phB+4}:{phB+7}], v[{I+4}:{I+7}], v[{TB}:{TB+15}]")
    if GATE=='epi': gate_code()
    ptA=phA; ptB=phB
    for u in range(8): k(f"v_cvt_pk_bf16_f32 v{ptA+u}, v{TA+2*u}, v{TA+2*u+1}")
    for u in range(8): k(f"v_cvt_pk_bf16_f32 v{ptB+u}, v{TB+2*u}, v{TB+2*u+1}")
    kvA=TA; kvB=TB
    k(f"v_mfma_f32_32x32x16_bf16 v[{kvA}:{kvA+15}], v[{ptA}:{ptA+3}], v[{vA_}:{vA_+3}], 0")
    k(f"v_mfma_f32_32x32x16_bf16 v[{kvB}:{kvB+15}], v[{ptB}:{ptB+3}], v[{vB_}:{vB_+3}], 0")
    k(f"v_mfma_f32_32x32x16_bf16 v[{kvA}:{kvA+15}], v[{ptA+4}:{ptA+7}], v[{vA_+4}:{vA_+7}], v[{kvA}:{kvA+15}]")
    k(f"v_mfma_f32_32x32x16_bf16 v[{kvB}:{kvB+15}], v[{ptB+4}:{ptB+7}], v[{vB_+4}:{vB_+7}], v[{kvB}:{kvB+15}]")
    for hd,kvr in ((0,kvA),(1,kvB)):
        for i in range(4):
            k(f"ds_write_b128 v{vRa+4*hd+i}, v[{kvr+4*i}:{kvr+4*i+3}] offset:{hd*KVH}")
    if QORD=='mid': q_part()
    vm_poll=k.vm_total
    k(f"s_cmp_eq_u32 s{sTBW}, 0")
    k(f"s_cbranch_scc1 L_{name}_A_poll")
    k.label(f"L_{name}_A_flagok")
    k.barrier()
    rd=accV; rd2=fb
    for u in range(5):
        for w in range(4):
            k(f"ds_read_b32 v{rd+4*u+w if u<4 else rd2+w}, v{vEl} offset:{L_WR+w*4352+1024*u}")
    for u in range(5):
        b=rd+4*u if u<4 else rd2
        k(f"v_add_f32 v{b}, v{b}, v{b+1}")
        k(f"v_add_f32 v{b+2}, v{b+2}, v{b+3}")
        k(f"v_add_f32 v{b}, v{b}, v{b+2}")
        if u<4: k(f"buffer_atomic_add_f32 v{b}, v{vE}, s[{srdKV}:{srdKV+3}], 0 offen offset:{1024*u} sc1")
        else:
            k(f"v_add_u32 v{vt}, 4096, v{vE}")
            k(f"buffer_atomic_add_f32 v{b}, v{vt}, s[{srdKV}:{srdKV+3}], 0 offen sc1")
    if QORD=='last': q_part()
    if fused: k(f"s_branch L_{name}_F")
    else:
        st.finish(k,sWS,sW,accQ)
        k("s_endpgm")
    k.auto=False
    if fused: rel_read_block(k,name,"A",vZ,srdWS)
    k.label(f"L_{name}_A_ev4")
    k(f"s_mul_i32 s{sR}, s{sHP}, {2*KVH}")
    k(f"s_add_u32 s{sR}, s{sR}, {WS_KV}")
    for u in range(5):
        if u<4:
            k(f"buffer_store_dwordx4 v[{z4}:{z4+3}], v{vL16}, s[{srdWS}:{srdWS+3}], s{sR} offen offset:{u*1024} sc1")
        else:
            k(f"s_add_u32 s{sR}, s{sR}, 4096")
            k(f"s_mov_b64 exec, 0xffff")
            k(f"buffer_store_dwordx4 v[{z4}:{z4+3}], v{vL16}, s[{srdWS}:{srdWS+3}], s{sR} offen sc1")
            k(f"s_mov_b64 exec, -1")
    k(f"s_branch L_{name}_A_ev4ret")
    k.label(f"L_{name}_A_ev8")
    k(f"s_waitcnt vmcnt({vm_ev8-vm_ev4})")
    k(f"v_mov_b32 v{vOne}, 1")
    k(f"s_lshl_b32 s{sR}, s{sHP}, 2")
    k(f"s_add_u32 s{sR}, s{sR}, 64")
    k(f"s_mov_b64 exec, 1")
    k(f"buffer_store_dword v{vOne}, v{vZ}, s[{srdDBG}:{srdDBG+3}], s{sR} offen sc1")
    k(f"s_mov_b64 exec, -1")
    k(f"s_branch L_{name}_A_ev8ret")
    k.label(f"L_{name}_A_poll0")
    k(f"buffer_load_dword v{vFl}, v{vZ}, s[{srdDBG}:{srdDBG+3}], s{sE} offen sc1")
    k(f"s_branch L_{name}_A_poll0ret")
    k.label(f"L_{name}_A_poll")
    k(f"s_mov_b32 s{sTick}, 0")
    k(f"s_waitcnt vmcnt({vm_poll-vm_poll0})")
    k.label(f"L_{name}_A_poll1")
    k(f"v_readfirstlane_b32 s{sR}, v{vFl}")
    k("s_nop 0")
    k(f"s_cmp_lg_u32 s{sR}, 0")
    k(f"s_cbranch_scc1 L_{name}_A_flagok")
    k(f"s_add_u32 s{sTick}, s{sTick}, 1")
    k(f"s_cmp_ge_u32 s{sTick}, 0x40000")
    k(f"s_cbranch_scc1 L_{name}_A_flagok")
    k("s_sleep 1")
    k(f"buffer_load_dword v{vFl}, v{vZ}, s[{srdDBG}:{srdDBG+3}], s{sE} offen sc1")
    k("s_waitcnt vmcnt(0)")
    k(f"s_branch L_{name}_A_poll1")
    k.auto=True
    return V.hi
```

```python
from dsl import *
from common import *
import os
DBG=os.environ.get('DBG','')
GATE=os.environ.get('GATE','epi')
QORD=os.environ.get('QORD','last')
PRIOA=os.environ.get('PRIOA','')
XW1=os.environ.get('XW1','pro')
GJ=int(os.environ.get('GJ','29'))
STF=os.environ.get('STF','sc1')
TP=eval(os.environ.get('TP','(0,3,3)'))
NTB=int(os.environ.get('TB','1'))
MK=eval(os.environ.get('MK','{0:2,1:3,2:4,4:5}'))

sX=4; sWQ=6; sWPHI=8; sWO=10; sLA=14; sAI=16; sCR=18; sCI=20; sLDT=22; sDS=24; sGW=26; sOUT=28; sDBG=30; sWS=32
sW=34
sXCD=35; sIDX=36
srdX=40; srdWq=44; srdWS=48; srdKV=52; srdDBG=56; srdT=60
L_WPHI=0
L_WR=2048; WSL=16384; NWS=3
L_XR=L_WR+NWS*WSL; XSL=16384; NXS=3
L_RED=L_XR+NXS*XSL
K1_LDS=163840
LOG2E=0x3fb8aa3b; NLOG2E=0xbfb8aa3b
RED0=L_WR
def red_base(g,w): return (L_WR if g==0 else L_WR+2*WSL)+w*4352

def mk_srd(k,srd,ptr,size):
    k(f"s_mov_b32 s{srd}, s{ptr}")
    k(f"s_and_b32 s{srd+1}, s{ptr+1}, 0xffff")
    k(f"s_mov_b32 s{srd+2}, {size}")
    k(f"s_mov_b32 s{srd+3}, 0x20000")

def softmax2(k, blocks, tmp, sL2E, fill=None):
    nb=len(blocks)
    def each(f):
        for b in range(nb): f(b,*blocks[b])
    T=[tmp+4*b for b in range(nb)]
    each(lambda b,p,o: k(f"v_max3_f32 v{T[b]}, v{p}, v{p+1}, v{p+2}"))
    for u in range(6):
        each(lambda b,p,o: k(f"v_max3_f32 v{T[b]}, v{T[b]}, v{p+3+2*u}, v{p+4+2*u}"))
    each(lambda b,p,o: k(f"v_max_f32 v{T[b]}, v{T[b]}, v{p+15}"))
    each(lambda b,p,o: k(f"v_mul_f32 v{T[b]}, {NLOG2E:#x}, v{T[b]}"))
    for u in range(8):
        each(lambda b,p,o: k(f"v_pk_fma_f32 v[{p+2*u}:{p+2*u+1}], v[{p+2*u}:{p+2*u+1}], s[{sL2E}:{sL2E+1}], v[{T[b]}:{T[b]+1}] op_sel_hi:[1,1,0]"))
    for u in range(16):
        each(lambda b,p,o: k(f"v_exp_f32 v{p+u}, v{p+u}"))
    S=[t+2 for t in T]
    each(lambda b,p,o: k(f"v_pk_add_f32 v[{S[b]}:{S[b]+1}], v[{p}:{p+1}], v[{p+2}:{p+3}]"))
    for u in range(2,8):
        each(lambda b,p,o: k(f"v_pk_add_f32 v[{S[b]}:{S[b]+1}], v[{S[b]}:{S[b]+1}], v[{p+2*u}:{p+2*u+1}]"))
    each(lambda b,p,o: k(f"v_add_f32 v{T[b]}, v{S[b]}, v{S[b]+1}"))
    each(lambda b,p,o: k(f"v_rcp_f32 v{T[b]}, v{T[b]}"))
    for u in range(8):
        each(lambda b,p,o: k(f"v_pk_mul_f32 v[{p+2*u}:{p+2*u+1}], v[{p+2*u}:{p+2*u+1}], v[{T[b]}:{T[b]+1}] op_sel_hi:[1,0]"))
    for u in range(8):
        each(lambda b,p,o: k(f"v_cvt_pk_bf16_f32 v{o+u}, v{p+2*u}, v{p+2*u+1}"))

def gen_a(k, name, st, fused=False):
    from kf import rel_read_rare, rel_read_block
    V=Alloc("v",1,256)
    sTT=37; sHP=38; sT=39; sA=64; sB=65; sX0=66; sWo_=68; sMx=69; sMw=70
    sL2E=74; sMaskLo=76; sTick=80; sGt=63; sPhiO=81; sGo=82; sE=83; sFirst=84
    k.label(f"L_{name}_A")
    sHQ=67; sTBW=78; sHG=79
    k(f"s_and_b32 s{sA}, s{sXCD}, 3")
    k(f"s_lshl_b32 s{sA}, s{sA}, 2")
    k(f"s_and_b32 s{sB}, s{sIDX}, 3")
    k(f"s_add_u32 s{sTT}, s{sA}, s{sB}")
    k(f"s_lshr_b32 s{sA}, s{sXCD}, 2")
    k(f"s_lshl_b32 s{sA}, s{sA}, 2")
    k(f"s_lshr_b32 s{sB}, s{sIDX}, 2")
    k(f"s_add_u32 s{sHQ}, s{sA}, s{sB}")
    k(f"s_and_b32 s{sTBW}, s{sW}, 3")
    k(f"s_lshr_b32 s{sHG}, s{sW}, 2")
    k(f"s_lshl_b32 s{sA}, s{sHQ}, 1")
    k(f"s_add_u32 s{sHP}, s{sA}, s{sHG}")
    vL=V(); vXg=V(2); vWg=V(3); vt=V(); vt2=V(); vt3=V()
    k(f"v_and_b32 v{vL}, 63, v0")
    k(f"v_lshrrev_b32 v{vt}, 4, v{vL}")
    k(f"v_xor_b32 v{vt}, v{vt}, v{vL}")
    k(f"v_and_b32 v{vt}, 7, v{vt}")
    k(f"v_lshlrev_b32 v{vt}, 4, v{vt}")
    k(f"v_lshrrev_b32 v{vt2}, 3, v{vL}")
    k(f"v_lshl_add_u32 v{vXg}, v{vt2}, 10, v{vt}")
    k(f"v_xor_b32 v{vXg+1}, 64, v{vXg}")
    k(f"v_add_u32 v{vXg+1}, 8192, v{vXg+1}")
    k(f"v_lshrrev_b32 v{vt}, 4, v{vL}")
    k(f"v_lshlrev_b32 v{vt2}, 2, v{vt}")
    k(f"v_xor_b32 v{vt2}, v{vt2}, v{vL}")
    k(f"v_and_b32 v{vt2}, 15, v{vt2}")
    k(f"v_mul_u32_u24 v{vWg}, 3072, v{vt}")
    k(f"v_lshrrev_b32 v{vt3}, 3, v{vt2}")
    k(f"v_lshl_add_u32 v{vWg}, v{vt3}, 10, v{vWg}")
    k(f"v_and_b32 v{vt2}, 7, v{vt2}")
    k(f"v_lshl_add_u32 v{vWg}, v{vt2}, 4, v{vWg}")
    k(f"v_add_u32 v{vWg}, 1024, v{vWg}")
    k(f"v_add_u32 v{vWg+1}, {4*3072}, v{vWg}")
    k(f"v_lshrrev_b32 v{vt}, 3, v{vL}")
    k(f"v_bfe_u32 v{vt2}, v{vL}, 4, 1")
    k(f"v_lshlrev_b32 v{vt2}, 2, v{vt2}")
    k(f"v_xor_b32 v{vt2}, v{vt2}, v{vL}")
    k(f"v_and_b32 v{vt2}, 7, v{vt2}")
    k(f"v_mul_u32_u24 v{vWg+2}, 3072, v{vt}")
    k(f"v_lshl_add_u32 v{vWg+2}, v{vt2}, 4, v{vWg+2}")
    k(f"s_lshl_b32 s{sX0}, s{sTT}, 17")
    k(f"s_lshl_b32 s{sA}, s{sW}, 14")
    k(f"s_add_u32 s{sX0}, s{sX0}, s{sA}")
    k(f"s_mul_i32 s{sWo_}, s{sW}, {8*3072}")
    k(f"s_lshl_b32 s{sA}, s{sHQ}, 7")
    k(f"s_add_u32 s{sWo_}, s{sWo_}, s{sA}")
    k(f"s_lshl_b32 s{sMx}, s{sW}, 11")
    k(f"s_add_u32 s{sMx}, s{sMx}, {L_XR}")
    sMq=62
    k(f"s_lshl_b32 s{sMw}, s{sW}, 11")
    k(f"s_add_u32 s{sMw}, s{sMw}, {L_WR}")
    sXk=71; sWk=72; sXc=73; sWc=85
    k(f"s_lshr_b32 s{sA}, s{sIDX}, 2")
    k(f"s_and_b32 s{sB}, s{sIDX}, 3")
    k(f"s_add_u32 s{sA}, s{sA}, s{sB}")
    k(f"s_and_b32 s{sA}, s{sA}, 3")
    k(f"s_lshl_b32 s{sA}, s{sA}, 1")
    if 'N' in DBG: k(f"s_mov_b32 s{sA}, 0")
    k(f"s_lshl_b32 s{sXk}, s{sA}, 7")
    k(f"s_mul_i32 s{sWk}, s{sA}, {64*3072}")
    k("s_waitcnt lgkmcnt(0)")
    mk_srd(k,srdX,sX,2048*512*2)
    mk_srd(k,srdWq,sWQ,512*1536*2)
    def dma_x_l(S):
        L=[]; slot=S%NXS
        for i in range(2):
            g=[]
            if i==0:
                if S>0:
                    g.append((f"s_add_u32 s{sXk}, s{sXk}, 128",None))
                    g.append((f"s_and_b32 s{sXk}, s{sXk}, 0x3ff",None))
                g.append((f"s_add_u32 s{sXc}, s{sX0}, s{sXk}",None))
            g+=[(f"s_add_u32 m0, s{sMx}, {slot*XSL+i*1024}",None),("s_nop 0",None),
                (f"buffer_load_dwordx4 v{vXg+i}, s[{srdX}:{srdX+3}], s{sXc} offen lds",f"x{S}")]
            L.append(g)
        return L
    def dma_w_l(S):
        slot=S%NWS; L=[]
        n=2 if S<8 else 1
        for i in range(n):
            g=[]
            if i==0:
                if S>0:
                    g.append((f"s_add_u32 s{sWk}, s{sWk}, {64*3072}",None))
                    g.append((f"s_cmp_eq_u32 s{sWk}, {512*3072}",None))
                    g.append((f"s_cselect_b32 s{sWk}, 0, s{sWk}",None))
                g.append((f"s_add_u32 s{sWc}, s{sWo_}, s{sWk}",None))
            if S<8:
                g.append((f"s_add_u32 m0, s{sMw}, {slot*WSL+i*1024}",None))
                g.append(("s_nop 0",None))
                g.append((f"buffer_load_dwordx4 v{vWg+i}, s[{srdWq}:{srdWq+3}], s{sWc} offen lds",f"w{S}"))
            else:
                g.append((f"s_add_u32 m0, s{sMq}, {slot*WSL}",None))
                g.append(("s_nop 0",None))
                g.append((f"buffer_load_dwordx4 v{vWg+2}, s[{srdWq}:{srdWq+3}], s{sWc} offen lds",f"w{S}"))
            L.append(g)
        return L
    def emit_g(g):
        for (t,tag) in g: k(t,tag=tag)
    def dma_x(S):
        for g in dma_x_l(S): emit_g(g)
    def dma_w(S):
        for g in dma_w_l(S): emit_g(g)
    dma_x(0); dma_w(0)
    if XW1=='pro': dma_x(1); dma_w(1)
    if 1 not in MK.values(): st.mark(k,1)
    gx=V(8,4); gw=V(8,4); vGa=V(); vGw=V()
    k(f"v_and_b32 v{vt}, 31, v{vL}")
    k(f"v_lshlrev_b32 v{vGw}, 5, v{vt}")
    k(f"v_lshrrev_b32 v{vt}, 5, v{vL}")
    k(f"v_lshl_add_u32 v{vGa}, v{vt}, 10, v{vGw}")
    k(f"s_lshl_b32 s{sA}, s{sTT}, 7")
    k(f"s_and_b32 s{sB}, s{sHQ}, 7")
    k(f"s_lshl_b32 s{sB}, s{sB}, 4")
    k(f"s_add_u32 s{sA}, s{sA}, s{sB}")
    k(f"s_lshl_b32 s{sB}, s{sW}, 1")
    k(f"s_add_u32 s{sGo}, s{sA}, s{sB}")
    k(f"global_load_dwordx4 v[{gw}:{gw+3}], v{vGw}, s[{sGW}:{sGW+1}]")
    k(f"global_load_dwordx4 v[{gw+4}:{gw+7}], v{vGw}, s[{sGW}:{sGW+1}] offset:16")
    mk_srd(k,srdDBG,sDBG,256)
    mk_srd(k,srdT,sWPHI,32*512)
    mk_srd(k,srdWS,sWS,WS_SIZE)
    vZ=V(); vL16=V(); vOne=V(); sR=3
    k(f"v_mov_b32 v{vZ}, 0")
    k(f"v_lshlrev_b32 v{vL16}, 4, v{vL}")
    k(f"s_lshl_b32 s{sT}, s{sHP}, 10")
    k(f"s_lshl_b32 s{sA}, s{sHG}, 10")
    k(f"s_add_u32 m0, s{sA}, {L_WPHI}")
    k(f"s_lshl_b32 s{sA}, s{sHP}, 2")
    k(f"buffer_load_dwordx4 v{vL16}, s[{srdT}:{srdT+3}], s{sT} offen lds", tag="wphi")
    if fused: rel_read_rare(k,name,"A",vZ)
    k(f"s_lshl_b32 s{sMq}, s{sW}, 10")
    k(f"s_add_u32 s{sMq}, s{sMq}, {L_WR}")
    k(f"s_mov_b32 s{sL2E}, {LOG2E:#x}")
    k(f"s_mov_b32 s{sL2E+1}, {LOG2E:#x}")
    k(f"s_mov_b32 s{sMaskLo}, 0x0000ffff")
    k(f"s_mov_b32 s{sMaskLo+1}, 0x0000ffff")
    k(f"s_or_b32 s{sA}, s{sTT}, s{sTBW}")
    k(f"s_cmp_eq_u32 s{sA}, 0")
    k(f"s_cselect_b32 s{sFirst}, 1, 0")
    vM=V(); vH=V()
    k(f"v_and_b32 v{vM}, 31, v{vL}")
    k(f"v_lshrrev_b32 v{vH}, 5, v{vL}")
    vXr=V(4); vWr=V()
    k(f"v_lshrrev_b32 v{vt}, 1, v{vM}")
    k(f"v_and_b32 v{vt}, 7, v{vt}")
    k(f"v_xor_b32 v{vt}, v{vt}, v{vH}")
    k(f"v_lshlrev_b32 v{vt}, 4, v{vt}")
    k(f"v_lshl_add_u32 v{vXr}, v{vM}, 7, v{vt}")
    k(f"s_lshl_b32 s{sA}, s{sTBW}, 12")
    k(f"s_add_u32 s{sA}, s{sA}, {L_XR}")
    k(f"v_add_u32 v{vXr}, s{sA}, v{vXr}")
    for ks in range(1,4): k(f"v_xor_b32 v{vXr+ks}, {ks<<5}, v{vXr}")
    vWv=V(); vWq=V()
    k(f"v_bfe_u32 v{vt}, v{vL}, 2, 2")
    k(f"v_lshl_add_u32 v{vt2}, v{vH}, 3, v{vt}")
    k(f"v_bfe_u32 v{vt3}, v{vL}, 4, 1")
    k(f"v_lshlrev_b32 v{vt3}, 5, v{vt3}")
    k(f"v_and_b32 v{vWq}, 3, v{vL}")
    k(f"v_lshl_add_u32 v{vt3}, v{vWq}, 3, v{vt3}")
    k(f"v_add_u32 v{vt3}, {L_WR}, v{vt3}")
    k(f"v_lshl_add_u32 v{vWr}, v{vt2}, 8, v{vt3}")
    k(f"v_lshl_add_u32 v{vWq}, v{vt2}, 7, v{vt3}")
    k(f"v_xor_b32 v{vt2}, s{sHG}, v{vt}")
    k(f"v_lshl_add_u32 v{vWr}, v{vt2}, 6, v{vWr}")
    k(f"v_xor_b32 v{vWv}, 128, v{vWr}")
    k(f"v_lshrrev_b32 v{vt}, 1, v{vt}")
    k(f"v_xor_b32 v{vt}, s{sHG}, v{vt}")
    k(f"v_lshl_add_u32 v{vWq}, v{vt}, 6, v{vWq}")
    I=V(8,4)
    for s in range(2):
        k(f"v_lshlrev_b32 v{vt}, 4, v{vH}")
        k(f"v_sub_u32 v{vt}, v{vM}, v{vt}")
        if s: k(f"v_subrev_u32 v{vt}, 8, v{vt}")
        k(f"v_and_b32 v{vt2}, 1, v{vt}")
        k(f"v_lshlrev_b32 v{vt2}, 4, v{vt2}")
        k(f"v_mov_b32 v{vt3}, 0x3f80")
        k(f"v_lshlrev_b32 v{vt2}, v{vt2}, v{vt3}")
        k(f"v_lshrrev_b32 v{vt}, 1, v{vt}")
        for u in range(4):
            k(f"v_cmp_eq_u32 vcc, {u}, v{vt}")
            k(f"v_cndmask_b32 v{I+4*s+u}, 0, v{vt2}, vcc")
    z4=V(4,4)
    for u in range(4): k(f"v_mov_b32 v{z4+u}, 0")
    accQ=V(16,4); accK=V(16,4); accV=V(16,4)
    F=[V(12,4),V(12,4),V(12,4)]
    F2=[V(8,4),V(8,4),V(8,4)]
    def reads_l(j):
        S=j>>2; ks=j&3
        if j<32:
            f=F[j%3]
            L=[f"ds_read_b128 v[{f}:{f+3}], v{vXr+ks} offset:{(S%NXS)*XSL}"]
            for seg in range(2):
                for half in range(2):
                    L.append(f"ds_read_b64_tr_b16 v[{f+4+4*seg+2*half}:{f+5+4*seg+2*half}], v{vWr if seg==0 else vWv} offset:{(S%NWS)*WSL+ks*4096+half*1024}")
        else:
            f=F2[j%3]
            L=[f"ds_read_b128 v[{f}:{f+3}], v{vXr+ks} offset:{(S%NXS)*XSL}"]
            for half in range(2):
                L.append(f"ds_read_b64_tr_b16 v[{f+4+2*half}:{f+5+2*half}], v{vWq} offset:{(S%NWS)*WSL+ks*2048+half*512}")
        return L
    def reads(j):
        for l in reads_l(j): k(l)
    RSPLIT=eval(os.environ.get('RSPLIT','(2,3)'))
    def mfmas(j, fill=(), rd=()):
        f=F[j%3]; fill=list(fill); rd=list(rd)
        c=lambda a: "0" if j==0 else f"v[{a}:{a+15}]"
        M=[f"v_mfma_f32_32x32x16_bf16 v[{accK}:{accK+15}], v[{f+4}:{f+7}], v[{f}:{f+3}], {c(accK)}",
           f"v_mfma_f32_32x32x16_bf16 v[{accV}:{accV+15}], v[{f}:{f+3}], v[{f+8}:{f+11}], {c(accV)}"]
        for n,m in enumerate(M):
            k(m)
            for _ in range(RSPLIT[n]):
                if rd: k(rd.pop(0))
            if fill: emit_g(fill.pop(0))
        for l in rd: k(l)
        for g in fill: emit_g(g)
    def mfma_q(j):
        f=F2[j%3]
        c="0" if j==32 else f"v[{accQ}:{accQ+15}]"
        return f"v_mfma_f32_32x32x16_bf16 v[{accQ}:{accQ+15}], v[{f+4}:{f+7}], v[{f}:{f+3}], {c}"
    gs=V(); vgt=V(); vgt2=V()
    def gate_code():
        k(f"v_mov_b32 v{gs}, 0")
        for u in range(8): k(f"v_dot2c_f32_bf16 v{gs}, v{gx+u}, v{gw+u}")
        for n in (8,4,2,1): k(f"v_add_f32_dpp v{gs}, v{gs}, v{gs} row_ror:{n} row_mask:0xf bank_mask:0xf")
        k(f"v_add_f32_dpp v{gs}, v{gs}, v{gs} row_bcast:15 row_mask:0xa bank_mask:0xf")
        k(f"v_cvt_pk_bf16_f32 v{gs}, v{gs}, v{gs}")
        k(f"v_lshlrev_b32 v{gs}, 16, v{gs}")
        k(f"v_mul_f32 v{gs}, {NLOG2E:#x}, v{gs}")
        k(f"v_exp_f32 v{gs}, v{gs}")
        k(f"v_add_f32 v{gs}, 1.0, v{gs}")
        k(f"v_rcp_f32 v{gs}, v{gs}")
        k(f"v_cvt_pk_bf16_f32 v{gs}, v{gs}, v{gs}")
        k(f"v_lshlrev_b32 v{gs}, 16, v{gs}")
        k(f"v_lshlrev_b32 v{vgt}, 2, v{vH}")
        k(f"v_bfe_u32 v{vgt2}, v{vL}, 4, 1")
        k(f"v_subrev_u32 v{vgt2}, 1, v{vgt2}")
        k(f"v_and_b32 v{vgt2}, 0x80000000, v{vgt2}")
        k(f"v_or_b32 v{vgt}, v{vgt}, v{vgt2}")
    def gate_store():
        k(f"s_lshl_b32 s{sGt}, s{sGo}, 2")
        k(f"s_add_u32 s{sGt}, s{sGt}, {WS_G}")
        k(f"buffer_store_dword v{gs}, v{vgt}, s[{srdWS}:{srdWS+3}], s{sGt} offen {STF}")
    wf=V(8,4); vPhA=V(); vSg=V(); ones=V(); vRb=V(2); vSt=V(2); vRa=V(8); vFl=V()
    pre=[]
    P=lambda t: pre.append(t)
    P(f"v_bfe_u32 v{vt}, v{vL}, 2, 2")
    P(f"v_lshl_add_u32 v{vt}, v{vH}, 2, v{vt}")
    P(f"v_lshlrev_b32 v{vPhA}, 5, v{vt}")
    P(f"v_bfe_u32 v{vt2}, v{vL}, 4, 1")
    P(f"v_lshl_add_u32 v{vPhA}, v{vt2}, 4, v{vPhA}")
    P(f"v_bfe_u32 v{vt2}, v{vL}, 1, 1")
    P(f"v_lshl_add_u32 v{vPhA}, v{vt2}, 3, v{vPhA}")
    P(f"s_lshl_b32 s{sA}, s{sHG}, 10")
    P(f"v_add_u32 v{vPhA}, s{sA}, v{vPhA}")
    for hd in range(2):
        P(f"ds_read_b64_tr_b16 v[{wf+4*hd}:{wf+4*hd+1}], v{vPhA} offset:{L_WPHI+512*hd}")
        P(f"ds_read_b64_tr_b16 v[{wf+4*hd+2}:{wf+4*hd+3}], v{vPhA} offset:{L_WPHI+512*hd+256}")
    P(f"v_bfe_u32 v{vSg}, v{vL}, 2, 1")
    P(f"v_mul_u32_u24 v{vSg}, 0x8000, v{vSg}")
    P(f"v_lshl_or_b32 v{vSg}, v{vSg}, 16, v{vSg}")
    P(f"v_mov_b32 v{ones}, 0x3f803f80")
    P(f"v_and_b32 v{vt}, 15, v{vM}")
    P(f"v_lshlrev_b32 v{vt}, 4, v{vt}")
    P(f"v_lshl_add_u32 v{vt}, v{vH}, 9, v{vt}")
    P(f"v_lshlrev_b32 v{vt2}, 5, v{vH}")
    P(f"v_add_u32 v{vt2}, 2048, v{vt2}")
    P(f"s_mul_i32 s{sA}, s{sW}, 4352")
    P(f"s_add_u32 s{sA}, s{sA}, {L_RED}")
    P(f"v_cndmask_b32 v{vRb}, v{vt2}, v{vt}, s[{sMaskLo}:{sMaskLo+1}]")
    P(f"v_cndmask_b32 v{vRb+1}, v{vt}, v{vt2}, s[{sMaskLo}:{sMaskLo+1}]")
    P(f"v_add_u32 v{vRb}, s{sA}, v{vRb}")
    P(f"v_add_u32 v{vRb+1}, s{sA}, v{vRb+1}")
    P(f"v_mov_b32 v{vt}, 256")
    P(f"v_mov_b32 v{vt2}, 16")
    P(f"v_cndmask_b32 v{vSt}, v{vt2}, v{vt}, s[{sMaskLo}:{sMaskLo+1}]")
    P(f"v_cndmask_b32 v{vSt+1}, v{vt}, v{vt2}, s[{sMaskLo}:{sMaskLo+1}]")
    for hd in range(2):
        for i in range(4):
            c=4*(i&1)+(i>>1)
            P(f"v_mad_u32_u24 v{vRa+4*hd+i}, v{vSt+hd}, {c}, v{vRb+hd}")
    for u in range(8): P(f"v_xor_b32 v{wf+u}, v{wf+u}, v{vSg}")
    P(f"s_mul_i32 s{sA}, s{sHP}, {2*KVH}")
    P(f"s_add_u32 s{sA}, s{sA}, {WS_KV}")
    P(f"s_add_u32 s{srdKV}, s{sWS}, s{sA}")
    P(f"s_addc_u32 s{srdKV+1}, s{sWS+1}, 0")
    P(f"s_and_b32 s{srdKV+1}, s{srdKV+1}, 0xffff")
    P(f"s_mov_b32 s{srdKV+2}, {2*KVH}")
    P(f"s_mov_b32 s{srdKV+3}, 0x20000")
    P(f"s_lshl_b32 s{sE}, s{sHP}, 2")
    P(f"s_add_u32 s{sE}, s{sE}, 64")
    P(f"s_lshl_b32 s{sPhiO}, s{sTT}, 2")
    P(f"s_add_u32 s{sPhiO}, s{sPhiO}, s{sTBW}")
    P(f"s_lshl_b32 s{sPhiO}, s{sPhiO}, 16")
    P(f"s_lshl_b32 s{sA}, s{sHP}, 12")
    P(f"s_add_u32 s{sPhiO}, s{sPhiO}, s{sA}")
    vE=vRb; vEl=vRb+1
    P(f"v_and_b32 v{vE}, 255, v0")
    P(f"v_lshlrev_b32 v{vE}, 2, v{vE}")
    P(f"s_mul_i32 s{sB}, s{sHG}, {4*4352}")
    P(f"s_add_u32 s{sB}, s{sB}, {L_RED}")
    P(f"v_add_u32 v{vEl}, s{sB}, v{vE}")
    late=[t for t in pre if t.startswith("ds_read_b64_tr_b16") or t.startswith(f"v_xor_b32 v{wf}") or any(t.startswith(f"v_xor_b32 v{wf+u},") for u in range(8))]
    early=[t for t in pre if t not in late]
    if 'L' in DBG: late=pre; early=[]
    for t in early: k(t)
    pre=late
    if PRIOA:
        k(f"s_cmp_eq_u32 s{sHG}, {PRIOA[0]}")
        k(f"s_cbranch_scc0 L_{name}_A_np")
        k(f"s_setprio 1")
        k.label(f"L_{name}_A_np")
    pend=[]
    for j in range(32):
        S=j>>2
        if j%4==0:
            k.wait_tag(f"w{S}")
            k.wait_tag(f"x{S}")
            k.wait_lg(0)
            k("s_barrier")
            if S in MK: st.mark(k,MK[S])
        if j<2: reads(j)
        if j==0 and XW1!='pro':
            dma_w(1); dma_x(1)
        if j%4==0:
            pend+=dma_w_l(S+2)+dma_x_l(S+2)
        if j>1:
            take=pend[:2]; pend=pend[2:]
            mfmas(j-2, take, reads_l(j))
        if j>=6:
            n=0 if 'Q' in DBG else 4
            while pre and n>0:
                t=pre.pop(0); k(t); n-=1
                if t.startswith("s_add_u32 s{}".format(srdKV)): k(pre.pop(0))
        if j==2:
            k(f"s_cmp_eq_u32 s{sFirst}, 1")
            k(f"s_cbranch_scc1 L_{name}_A_ev4")
            k.label(f"L_{name}_A_ev4ret")
            vm_ev4=k.vm_total
        if j==GJ:
            k(f"s_lshl_b32 s{sT}, s{sGo}, 10")
            k(f"buffer_load_dwordx4 v[{gx}:{gx+3}], v{vGa}, s[{srdX}:{srdX+3}], s{sT} offen")
            k(f"buffer_load_dwordx4 v[{gx+4}:{gx+7}], v{vGa}, s[{srdX}:{srdX+3}], s{sT} offen offset:16")
        if GATE=='loop' and j==GJ+8: gate_code()
        if j==13:
            vm_ev8=k.vm_total
            k(f"s_cmp_eq_u32 s{sFirst}, 1")
            k(f"s_cbranch_scc1 L_{name}_A_ev8")
            k.label(f"L_{name}_A_ev8ret")
    for g in pend: emit_g(g)
    pend=[]
    for t in pre: k(t)
    mfmas(30); mfmas(31)
    bg=[]
    pv={}
    def poll0_issue():
        pv['vm']=k.vm_total
        k(f"s_cmp_eq_u32 s{sTBW}, 0")
        k(f"s_cbranch_scc1 L_{name}_A_poll0")
        k.label(f"L_{name}_A_poll0ret")
    def stage_sync(S):
        def f():
            k.wait_tag(f"w{S}"); k.wait_tag(f"x{S}"); k.wait_lg(0); k("s_barrier")
        return f
    for j in range(32,64):
        S=j>>2
        if j%4==0:
            bg.append([(stage_sync(S),None)])
            if S==15: bg.append([(poll0_issue,None)])
        rl=reads_l(j)
        bg.append([(l,None) for l in rl])
        if j%4==0 and S+2<16:
            dl=dma_w_l(S+2)+dma_x_l(S+2)
        else: dl=[]
        if j%4==0: qd=dl
        if j%4 in (0,1,2) and qd: bg.append(qd.pop(0))
        if j-2>=32: bg.append([(mfma_q(j-2),None)])
        if j%4==3:
            while qd: bg.append(qd.pop(0))
    bg.append([(mfma_q(62),None)]); bg.append([(mfma_q(63),None)])
    k.bg=bg; k.bg_every=int(os.environ.get('QEV','3')); k.bg_cnt=0
    kb=F[2]; vb=F[0]; qb=F[1]
    for u in range(8): k(f"v_cvt_pk_bf16_f32 v{kb+u}, v{accK+2*u}, v{accK+2*u+1}")
    pkA=V(16,4); pkB=V(16,4)
    k(f"v_mfma_f32_32x32x16_bf16 v[{pkA}:{pkA+15}], v[{wf}:{wf+3}], v[{kb}:{kb+3}], 0")
    k(f"v_mfma_f32_32x32x16_bf16 v[{pkB}:{pkB+15}], v[{wf+4}:{wf+7}], v[{kb+4}:{kb+7}], 0")
    for u in range(8): k(f"v_cvt_pk_bf16_f32 v{vb+u}, v{accV+2*u}, v{accV+2*u+1}")
    vA_=accV; vB_=accV+8
    for u in range(8): k(f"v_cndmask_b32 v{vA_+u}, v{ones}, v{vb+u}, s[{sMaskLo}:{sMaskLo+1}]")
    for u in range(8): k(f"v_cndmask_b32 v{vB_+u}, v{vb+u}, v{ones}, s[{sMaskLo}:{sMaskLo+1}]")
    phA=V(8,4); phB=V(8,4); tmp=V(8,2)
    def q_part():
        k.bg_flush()
        for u in range(8): k(f"v_cvt_pk_bf16_f32 v{qb+u}, v{accQ+2*u}, v{accQ+2*u+1}")
        pqA=accK; pqB=accQ
        k(f"v_mfma_f32_32x32x16_bf16 v[{pqA}:{pqA+15}], v[{wf}:{wf+3}], v[{qb}:{qb+3}], 0")
        k(f"v_mfma_f32_32x32x16_bf16 v[{pqB}:{pqB+15}], v[{wf+4}:{wf+7}], v[{qb+4}:{qb+7}], 0")
        pq_o=gx
        assert gw==gx+8
        softmax2(k,[(pqA,pq_o),(pqB,pq_o+8)],tmp,sL2E)
        for q in range(4):
            k(f"buffer_store_dwordx4 v[{pq_o+4*q}:{pq_o+4*q+3}], v{vL16}, s[{srdWS}:{srdWS+3}], s{sPhiO} offen offset:{q*1024} {STF}")
    if QORD=='first':
        assert GATE=='loop'
        q_part()
    softmax2(k,[(pkA,phA),(pkB,phB)],tmp,sL2E)
    TA=pkA; TB=pkB
    k(f"v_mfma_f32_32x32x16_bf16 v[{TA}:{TA+15}], v[{phA}:{phA+3}], v[{I}:{I+3}], 0")
    k(f"v_mfma_f32_32x32x16_bf16 v[{TB}:{TB+15}], v[{phB}:{phB+3}], v[{I}:{I+3}], 0")
    k(f"v_mfma_f32_32x32x16_bf16 v[{TA}:{TA+15}], v[{phA+4}:{phA+7}], v[{I+4}:{I+7}], v[{TA}:{TA+15}]")
    k(f"v_mfma_f32_32x32x16_bf16 v[{TB}:{TB+15}], v[{phB+4}:{phB+7}], v[{I+4}:{I+7}], v[{TB}:{TB+15}]")
    if GATE=='epi': gate_code()
    ptA=phA; ptB=phB
    for u in range(8): k(f"v_cvt_pk_bf16_f32 v{ptA+u}, v{TA+2*u}, v{TA+2*u+1}")
    for u in range(8): k(f"v_cvt_pk_bf16_f32 v{ptB+u}, v{TB+2*u}, v{TB+2*u+1}")
    kvA=TA; kvB=TB
    k(f"v_mfma_f32_32x32x16_bf16 v[{kvA}:{kvA+15}], v[{ptA}:{ptA+3}], v[{vA_}:{vA_+3}], 0")
    k(f"v_mfma_f32_32x32x16_bf16 v[{kvB}:{kvB+15}], v[{ptB}:{ptB+3}], v[{vB_}:{vB_+3}], 0")
    k(f"v_mfma_f32_32x32x16_bf16 v[{kvA}:{kvA+15}], v[{ptA+4}:{ptA+7}], v[{vA_+4}:{vA_+7}], v[{kvA}:{kvA+15}]")
    k(f"v_mfma_f32_32x32x16_bf16 v[{kvB}:{kvB+15}], v[{ptB+4}:{ptB+7}], v[{vB_+4}:{vB_+7}], v[{kvB}:{kvB+15}]")
    for hd,kvr in ((0,kvA),(1,kvB)):
        for i in range(4):
            k(f"ds_write_b128 v{vRa+4*hd+i}, v[{kvr+4*i}:{kvr+4*i+3}] offset:{hd*KVH}")
    if QORD=='mid': q_part()
    k.bg_flush()
    vm_poll0=pv['vm']
    vm_poll=k.vm_total
    k(f"s_cmp_eq_u32 s{sTBW}, 0")
    k(f"s_cbranch_scc1 L_{name}_A_poll")
    k.label(f"L_{name}_A_flagok")
    k.barrier()
    rd=accV; rd2=F[2]
    for u in range(5):
        for w in range(4):
            k(f"ds_read_b32 v{rd+4*u+w if u<4 else rd2+w}, v{vEl} offset:{w*4352+1024*u}")
    for u in range(5):
        b=rd+4*u if u<4 else rd2
        k(f"v_add_f32 v{b}, v{b}, v{b+1}")
        k(f"v_add_f32 v{b+2}, v{b+2}, v{b+3}")
        k(f"v_add_f32 v{b}, v{b}, v{b+2}")
        if u<4: k(f"buffer_atomic_add_f32 v{b}, v{vE}, s[{srdKV}:{srdKV+3}], 0 offen offset:{1024*u} sc1")
        else:
            k(f"v_add_u32 v{vt}, 4096, v{vE}")
            k(f"buffer_atomic_add_f32 v{b}, v{vt}, s[{srdKV}:{srdKV+3}], 0 offen sc1")
    gate_store()
    if QORD=='last': q_part()
    if fused: k(f"s_branch L_{name}_F")
    else:
        st.finish(k,sWS,sW,accQ)
        k("s_endpgm")
    k.auto=False
    if fused: rel_read_block(k,name,"A",vZ,srdWS)
    k.label(f"L_{name}_A_ev4")
    k(f"s_mul_i32 s{sR}, s{sHP}, {2*KVH}")
    k(f"s_add_u32 s{sR}, s{sR}, {WS_KV}")
    for u in range(5):
        if u<4:
            k(f"buffer_store_dwordx4 v[{z4}:{z4+3}], v{vL16}, s[{srdWS}:{srdWS+3}], s{sR} offen offset:{u*1024} sc1")
        else:
            k(f"s_add_u32 s{sR}, s{sR}, 4096")
            k(f"s_mov_b64 exec, 0xffff")
            k(f"buffer_store_dwordx4 v[{z4}:{z4+3}], v{vL16}, s[{srdWS}:{srdWS+3}], s{sR} offen sc1")
            k(f"s_mov_b64 exec, -1")
    k(f"s_branch L_{name}_A_ev4ret")
    k.label(f"L_{name}_A_ev8")
    k(f"s_waitcnt vmcnt({vm_ev8-vm_ev4})")
    k(f"v_mov_b32 v{vOne}, 1")
    k(f"s_lshl_b32 s{sR}, s{sHP}, 2")
    k(f"s_add_u32 s{sR}, s{sR}, 64")
    k(f"s_mov_b64 exec, 1")
    k(f"buffer_store_dword v{vOne}, v{vZ}, s[{srdDBG}:{srdDBG+3}], s{sR} offen sc1")
    k(f"s_mov_b64 exec, -1")
    k(f"s_branch L_{name}_A_ev8ret")
    k.label(f"L_{name}_A_poll0")
    k(f"buffer_load_dword v{vFl}, v{vZ}, s[{srdDBG}:{srdDBG+3}], s{sE} offen sc1")
    k(f"s_branch L_{name}_A_poll0ret")
    k.label(f"L_{name}_A_poll")
    k(f"s_mov_b32 s{sTick}, 0")
    k(f"s_waitcnt vmcnt({vm_poll-vm_poll0})")
    k.label(f"L_{name}_A_poll1")
    k(f"v_readfirstlane_b32 s{sR}, v{vFl}")
    k("s_nop 0")
    k(f"s_cmp_lg_u32 s{sR}, 0")
    k(f"s_cbranch_scc1 L_{name}_A_flagok")
    k(f"s_add_u32 s{sTick}, s{sTick}, 1")
    k(f"s_cmp_ge_u32 s{sTick}, 0x40000")
    k(f"s_cbranch_scc1 L_{name}_A_flagok")
    k("s_sleep 1")
    k(f"buffer_load_dword v{vFl}, v{vZ}, s[{srdDBG}:{srdDBG+3}], s{sE} offen sc1")
    k("s_waitcnt vmcnt(0)")
    k(f"s_branch L_{name}_A_poll1")
    k.auto=True
    return V.hi
```

```python
from dsl import *
from common import *
import os
GMODE=os.environ.get('GMODE','paced')
DB=os.environ.get('DBGB','')
NOP1=int(os.environ.get('NOP1','1'))
WOAT=os.environ.get('WOAT','conv')
STF=os.environ.get('STF','sc1')
TBP=os.environ.get('TBP','xw')
PRIO=os.environ.get('PRIOB','')
from k1a import mk_srd,sWO,sWQ,srdT,sX,sLA,sAI,sCR,sCI,sLDT,sDS,sWS,sW,sXCD,sIDX,srdX,srdWS,LOG2E,NLOG2E

UC=4160
CH=31744
KOFF=16640
P1=4640
L_WOB=4*CH
L_WO2=L_WOB+32768
INV2PI=0x3e22f983

def cmul(k,dst,w,z,t):
    k(f"v_pk_mul_f32 v[{t}:{t+1}], v[{w}:{w+1}], v[{z}:{z+1}] op_sel:[0,0] op_sel_hi:[0,1]")
    k(f"v_pk_fma_f32 v[{dst}:{dst+1}], v[{w}:{w+1}], v[{z}:{z+1}], v[{t}:{t+1}] op_sel:[1,1,0] op_sel_hi:[1,0,1] neg_lo:[0,1,0]")

def gen_b(k,name,st,fused=False):
    from kf import rel_read_rare, rel_read_block
    V=Alloc("v",1,256)
    sA=64; sB=65; sT=39; sD0=66; sCh=67; sRole=68; sLdt=69; sDsk=70; sCB=71; sSel0=72; sSel1=73; sEx=74; sTab=76
    vL=V(); vt=V(); vt2=V(); vt3=V(); t0=V(2,2); t1=V(2,2)
    vI=V(); vQ=V(); vA=V(); vB=V()
    mark0=V.mark()
    sP=80; sDP=81; sWp=82; sXS=85
    k(f"s_add_u32 s{sXS}, s{sXCD}, {int(os.environ.get('XSH','3'))}")
    k(f"s_and_b32 s{sXS}, s{sXS}, 7")
    k(f"s_lshl_b32 s{sD0}, s{sXS}, 6")
    k(f"s_lshl_b32 s{sA}, s{sIDX}, 2")
    k(f"s_add_u32 s{sD0}, s{sD0}, s{sA}")
    k(f"s_lshr_b32 s{sCh}, s{sW}, 1")
    k(f"s_and_b32 s{sRole}, s{sW}, 1")
    k(f"s_lshr_b32 s{sP}, s{sW}, 2")
    k(f"s_and_b32 s{sWp}, s{sW}, 3")
    k(f"s_lshl_b32 s{sA}, s{sP}, 1")
    k(f"s_add_u32 s{sDP}, s{sD0}, s{sA}")
    k(f"v_and_b32 v{vL}, 63, v0")
    k(f"s_add_u32 s{sA}, s{sD0}, s{sCh}")
    k(f"s_lshl_b32 s{sA}, s{sA}, 8")
    vP=V()
    k(f"v_lshlrev_b32 v{vP}, 2, v{vL}")
    k(f"v_add_u32 v{vP}, s{sA}, v{vP}")
    k(f"s_lshl_b32 s{sB}, s{sDP}, 1")
    k("s_waitcnt lgkmcnt(0)")
    k(f"s_load_dword s{sLdt}, s[{sLDT}:{sLDT+1}], s{sB}")
    k(f"s_load_dword s{sDsk}, s[{sDS}:{sDS+1}], s{sB}")
    pl=V(); pa=V(); pcr=V(); pci=V()
    k(f"global_load_dword v{pl}, v{vP}, s[{sLA}:{sLA+1}]")
    k(f"global_load_dword v{pa}, v{vP}, s[{sAI}:{sAI+1}]")
    k(f"global_load_dword v{pcr}, v{vP}, s[{sCR}:{sCR+1}]")
    k(f"global_load_dword v{pci}, v{vP}, s[{sCI}:{sCI+1}]", tag="par")
    mk_srd(k,srdX,sX,2048*512*2)
    g=V(14,2); vG=V(); vH3=V(); vPf=250
    def touch_a():
        k(f"v_and_b32 v{vt}, 15, v{vL}")
        k(f"v_lshlrev_b32 v{vt}, 10, v{vt}")
        k(f"s_lshl_b32 s{sA}, s{sIDX}, 7")
        k(f"s_lshl_b32 s{sT}, s{sW}, 4")
        k(f"s_add_u32 s{sA}, s{sA}, s{sT}")
        k(f"s_lshl_b32 s{sA}, s{sA}, 10")
        k(f"s_lshl_b32 s{sT}, s{sXS}, 7")
        k(f"s_add_u32 s{sA}, s{sA}, s{sT}")
        k(f"s_mov_b64 exec, 0xffff")
        k(f"buffer_load_dword v{vPf}, v{vt}, s[{srdX}:{srdX+3}], s{sA} offen")
        k(f"s_mov_b64 exec, -1")
    def touch_b():
        if True:
            sS1=83; sTo=84
            k(f"s_lshr_b32 s{sA}, s{sIDX}, 2")
            k(f"s_and_b32 s{sT}, s{sIDX}, 3")
            k(f"s_add_u32 s{sA}, s{sA}, s{sT}")
            k(f"s_and_b32 s{sA}, s{sA}, 3")
            k(f"s_lshl_b32 s{sS1}, s{sA}, 1")
            k(f"s_add_u32 s{sS1}, s{sS1}, 1")
            k(f"s_and_b32 s{sA}, s{sXCD}, 3")
            k(f"s_lshl_b32 s{sA}, s{sA}, 2")
            k(f"s_add_u32 s{sA}, s{sA}, s{sT}")
            k(f"s_lshl_b32 s{sA}, s{sA}, 7")
            k(f"s_lshl_b32 s{sT}, s{sW}, 4")
            k(f"s_add_u32 s{sA}, s{sA}, s{sT}")
            k(f"s_lshl_b32 s{sA}, s{sA}, 10")
            k(f"s_lshl_b32 s{sT}, s{sS1}, 7")
            k(f"s_add_u32 s{sTo}, s{sA}, s{sT}")
            k(f"v_and_b32 v{vt}, 15, v{vL}")
            k(f"v_lshlrev_b32 v{vt}, 10, v{vt}")
            if 'x' in TBP:
                k(f"s_mov_b64 exec, 0xffff")
                k(f"buffer_load_dword v{vPf}, v{vt}, s[{srdX}:{srdX+3}], s{sTo} offen")
                k(f"s_mov_b64 exec, -1")
            mk_srd(k,srdT,sWQ,512*1536*2)
            k(f"v_mul_u32_u24 v{vt}, 171, v{vL}")
            k(f"v_lshrrev_b32 v{vt}, 9, v{vt}")
            k(f"v_mul_u32_u24 v{vt2}, 3, v{vt}")
            k(f"v_sub_u32 v{vt2}, v{vL}, v{vt2}")
            k(f"v_mul_u32_u24 v{vt}, 3072, v{vt}")
            k(f"v_lshl_add_u32 v{vt}, v{vt2}, 10, v{vt}")
            k(f"s_lshl_b32 s{sA}, s{sS1}, 6")
            k(f"s_lshl_b32 s{sT}, s{sW}, 3")
            k(f"s_add_u32 s{sA}, s{sA}, s{sT}")
            k(f"s_mul_i32 s{sA}, s{sA}, 3072")
            k(f"s_lshr_b32 s{sT}, s{sXCD}, 2")
            k(f"s_lshl_b32 s{sT}, s{sT}, 2")
            k(f"s_lshr_b32 s{sTo}, s{sIDX}, 2")
            k(f"s_add_u32 s{sT}, s{sT}, s{sTo}")
            k(f"s_lshl_b32 s{sT}, s{sT}, 7")
            k(f"s_add_u32 s{sA}, s{sA}, s{sT}")
            if 'w' in TBP:
                k(f"s_mov_b64 exec, {'0xffffff' if 'h' not in TBP else '0xfff'}")
                k(f"buffer_load_dword v{vPf}, v{vt}, s[{srdT}:{srdT+3}], s{sA} offen")
                k(f"s_mov_b64 exec, -1")
    TM=os.environ.get('TMODE','a')
    for ch_ in TM:
        if ch_=='a': touch_a()
        if ch_=='b': touch_b()
    sFr=78
    def wo_dma():
        k(f"s_lshl_b32 s{sFr}, s{sXCD}, 4")
        k(f"s_add_u32 s{sFr}, s{sFr}, s{sIDX}")
        k(f"s_lshl_b32 s{sFr}, s{sFr}, 2")
        k(f"s_add_u32 s{sFr}, s{sFr}, s{sWp}")
        mk_srd(k,srdT,sWO,512*512*2)
        k(f"v_lshrrev_b32 v{vt}, 2, v{vL}")
        k(f"v_and_b32 v{vt2}, 3, v{vL}")
        k(f"v_lshlrev_b32 v{vt2}, 4, v{vt2}")
        k(f"v_lshl_add_u32 v{vt}, v{vt}, 10, v{vt2}")
        k(f"s_and_b32 s{sA}, s{sFr}, 31")
        k(f"s_lshl_b32 s{sA}, s{sA}, 14")
        k(f"s_lshr_b32 s{sT}, s{sFr}, 5")
        k(f"s_lshl_b32 s{sT}, s{sT}, 6")
        k(f"s_add_u32 s{sT}, s{sA}, s{sT}")
        k(f"s_lshl_b32 s{sA}, s{sWp}, 10")
        k(f"s_add_u32 m0, s{sA}, {L_WO2}")
        k(f"s_nop 0")
        k(f"buffer_load_dwordx4 v{vt}, s[{srdT}:{srdT+3}], s{sT} offen lds", tag="wo")
    k(f"v_lshlrev_b32 v{vG}, 12, v0")
    k(f"s_lshl_b32 s{sA}, s{sD0}, 1")
    k(f"v_add_u32 v{vG}, s{sA}, v{vG}")
    k(f"v_subrev_u32 v{vH3}, 3072, v{vG}")
    side=[]
    for r in range(4):
        side.append([f"buffer_load_dwordx2 v[{g+6+2*r}:{g+7+2*r}], v{vG}, s[{srdX}:{srdX+3}], 0 offen offset:{r*1024}"])
    side.append(["s_mov_b64 exec, 1"]+[f"buffer_load_dwordx2 v[{g+2*r}:{g+2*r+1}], v{vH3}, s[{srdX}:{srdX+3}], 0 offen offset:{r*1024}" for r in range(3)]+["s_mov_b64 exec, -1"])
    mk_srd(k,srdWS,sWS,WS_SIZE)
    if fused:
        vZb=V(); k(f"v_mov_b32 v{vZb}, 0")
        rel_read_rare(k,name,"B",vZb)
    k(f"s_mul_i32 s{sCB}, s{sCh}, {CH}")
    k(f"s_mov_b32 s{sTab}, s{sCB}")
    aX=V(16)
    k(f"v_and_b32 v{vt}, 1, v{vL}")
    k(f"v_lshlrev_b32 v{vt}, 3, v{vt}")
    k(f"v_lshrrev_b32 v{vt2}, 1, v{vL}")
    k(f"v_lshl_add_u32 v{vt}, v{vt2}, 4, v{vt}")
    k(f"v_add_u32 v{aX}, s{sTab}, v{vt}")
    for x in range(1,16): k(f"v_xor_b32 v{aX+x}, {x<<4}, v{aX}")
    k(f"v_and_b32 v{vI}, 15, v{vL}")
    k(f"v_lshrrev_b32 v{vQ}, 4, v{vL}")
    def rdaddr(dst,rowreg):
        k(f"v_and_b32 v{vt}, 15, v{rowreg}")
        k(f"v_xor_b32 v{vt}, v{vt}, v{vQ}")
        k(f"v_lshlrev_b32 v{vt}, 4, v{vt}")
        k(f"v_lshl_add_u32 v{vt}, v{rowreg}, 9, v{vt}")
        k(f"v_add_u32 v{dst}, s{sTab}, v{vt}")
        for ks in range(1,4): k(f"v_xor_b32 v{dst+ks}, {ks<<6}, v{dst}")
    rF=V(4); rG1=V(4); rG2=V(4)
    rdaddr(rF,vI)
    def rne(dst,kk):
        k(f"v_bfe_u32 v{dst}, v{vI}, {kk}, 1")
        k(f"v_add3_u32 v{dst}, v{dst}, v{vI}, {(1<<(kk-1))-1}")
        k(f"v_lshrrev_b32 v{dst}, {kk}, v{dst}")
    z4=V(4,4)
    for u in range(4): k(f"v_mov_b32 v{z4+u}, 0")
    vDt=V(); vDs=V()
    k("s_waitcnt lgkmcnt(0)")
    k(f"s_lshl_b32 s{sA}, s{sLdt}, 16")
    k(f"s_and_b32 s{sB}, s{sLdt}, 0xffff0000")
    k(f"s_bitcmp0_b32 s{sCh}, 0")
    k(f"s_cselect_b32 s{sLdt}, s{sA}, s{sB}")
    k(f"s_lshl_b32 s{sA}, s{sDsk}, 16")
    k(f"s_and_b32 s{sB}, s{sDsk}, 0xffff0000")
    k(f"s_bitcmp0_b32 s{sCh}, 0")
    k(f"s_cselect_b32 s{sDsk}, s{sA}, s{sB}")
    k(f"v_mov_b32 v{vDt}, {LOG2E:#x}")
    k(f"v_mul_f32 v{vDt}, s{sLdt}, v{vDt}")
    k(f"v_exp_f32 v{vDt}, v{vDt}")
    k(f"v_cvt_pk_bf16_f32 v{vDt}, v{vDt}, v{vDt}")
    k(f"v_lshlrev_b32 v{vDt}, 16, v{vDt}")
    k(f"v_cmp_eq_u32 vcc, 0, v{vL}")
    k(f"v_mov_b32 v{vt}, s{sDsk}")
    k(f"v_cndmask_b32 v{vDs}, 0, v{vt}, vcc")
    import struct
    re2=V(2); fr=V(2); cc=[V(2,2),V(2,2)]; T0=[V(2,2),V(2,2)]; T1=[V(2,2),V(2,2)]
    def unpack(dst,src,m):
        if m==0: k(f"v_lshlrev_b32 v{dst}, 16, v{src}")
        else: k(f"v_and_b32 v{dst}, 0xffff0000, v{src}")
    def both(f):
        for m in range(2): f(m)
    def mode_params(need_c):
        both(lambda m: unpack(re2+m,pl,m))
        both(lambda m: k(f"v_mul_f32 v{re2+m}, {LOG2E:#x}, v{re2+m}"))
        both(lambda m: k(f"v_exp_f32 v{re2+m}, v{re2+m}"))
        both(lambda m: unpack(fr+m,pa,m))
        k(f"v_cvt_pk_bf16_f32 v{vt}, v{re2}, v{re2+1}")
        both(lambda m: k(f"v_mul_f32 v{fr+m}, v{fr+m}, v{vDt}"))
        both(lambda m: unpack(re2+m,vt,m))
        both(lambda m: k(f"v_mul_f32 v{fr+m}, {INV2PI:#x}, v{fr+m}"))
        both(lambda m: k(f"v_mul_f32 v{re2+m}, v{re2+m}, v{vDt}"))
        both(lambda m: k(f"v_mul_f32 v{re2+m}, {NLOG2E:#x}, v{re2+m}"))
        if need_c:
            both(lambda m: unpack(cc[m],pcr,m))
            both(lambda m: unpack(cc[m]+1,pci,m))
            k(f"v_add_f32 v{vt}, v{vDt}, v{vDt}")
            both(lambda m: k(f"v_mul_f32 v{cc[m]}, v{cc[m]}, v{vt}"))
            both(lambda m: k(f"v_mul_f32 v{cc[m]+1}, v{cc[m]+1}, v{vt}"))
    def Edirect(dst,p):
        lit=struct.unpack("<I",struct.pack("<f",float(p)))[0]
        if p==1:
            both(lambda m: k(f"v_exp_f32 v{T1[m]}, v{re2+m}"))
            both(lambda m: k(f"v_fract_f32 v{T1[m]+1}, v{fr+m}"))
        else:
            both(lambda m: k(f"v_mul_f32 v{T1[m]}, {lit:#x}, v{re2+m}"))
            both(lambda m: k(f"v_mul_f32 v{T1[m]+1}, {lit:#x}, v{fr+m}"))
            both(lambda m: k(f"v_exp_f32 v{T1[m]}, v{T1[m]}"))
            both(lambda m: k(f"v_fract_f32 v{T1[m]+1}, v{T1[m]+1}"))
        both(lambda m: k(f"v_cos_f32 v{dst[m]}, v{T1[m]+1}"))
        both(lambda m: k(f"v_sin_f32 v{dst[m]+1}, v{T1[m]+1}"))
        both(lambda m: k(f"v_pk_mul_f32 v[{dst[m]}:{dst[m]+1}], v[{dst[m]}:{dst[m]+1}], v[{T1[m]}:{T1[m]+1}] op_sel_hi:[1,0]"))
    def cmul2(dst,w,z,T):
        both(lambda m: k(f"v_pk_mul_f32 v[{T[m]}:{T[m]+1}], v[{w[m]}:{w[m]+1}], v[{z[m]}:{z[m]+1}] op_sel:[0,0] op_sel_hi:[0,1]"))
        both(lambda m: k(f"v_pk_fma_f32 v[{dst[m]}:{dst[m]+1}], v[{w[m]}:{w[m]+1}], v[{z[m]}:{z[m]+1}], v[{T[m]}:{T[m]+1}] op_sel:[1,1,0] op_sel_hi:[1,0,1] neg_lo:[0,1,0]"))
    pk=[V(2,2),V(2,2)]
    pkc=[0]
    sidel=[]; rowc=[0]; PACE=eval(os.environ.get('PACE','(1,11,21)'))
    def wrow(row,w,neg):
        r=pk[pkc[0]&1]; pkc[0]+=1
        both(lambda m: k(f"v_cvt_pk_bf16_f32 v{r+m}, v{w[m]}, {'-' if neg else ''}v{w[m]+1}"))
        if 'W' not in DB: k(f"ds_write_b64 v{aX+(row&15)}, v[{r}:{r+1}] offset:{row*512}")
        rowc[0]+=1
        if sidel and GMODE[0]=='i' and GMODE[1:].isdigit() and pkc[0]%int(GMODE[1:])==0:
            for l in sidel.pop(0): k(l)
        if sidel and GMODE=='paced' and rowc[0] in PACE:
            for l in sidel.pop(0): k(l)
    P2=lambda: [V(2,2),V(2,2)]
    wA=P2(); wB=P2(); zz=P2(); e4=P2(); e8=P2(); e12=P2(); e16=P2(); eb=P2()
    def mov2(dst,src):
        for m in range(2):
            k(f"v_mov_b32 v{dst[m]}, v{src[m]}"); k(f"v_mov_b32 v{dst[m]+1}, v{src[m]+1}")
    def table_role0(mid=None):
        mode_params(True)
        Edirect(zz,16)
        Edirect(wB,256)
        cmul2(wB,wB,cc,T0)
        if mid: mid()
        for a in range(16):
            src=cc if a==0 else wA
            wrow(a,src,True); wrow(16+a,wB,True)
            if a<15:
                cmul2(wA,src,zz,T0); cmul2(wB,wB,zz,T1)
    def table_role1(mid=None):
        mode_params(False)
        Edirect(zz,1)
        r=pk[pkc[0]&1]; pkc[0]+=1
        k(f"v_mov_b32 v{r}, 0x3f80"); k(f"v_mov_b32 v{r+1}, 0x3f80")
        k(f"ds_write_b64 v{aX+0}, v[{r}:{r+1}] offset:{32*512}")
        keep={4:e4,8:e8,12:e12,16:e16}
        Edirect(eb,512)
        wrow(33,zz,False)
        wrow(50,eb,False)
        if mid: mid()
        cur=zz
        for b in range(2,17):
            dst=keep.get(b,wA)
            cmul2(dst,cur,zz,T0)
            cur=dst
            wrow(32+b if b<16 else 49,cur,False)
            if b in keep:
                cmul2(wB,eb,cur,T1)
                wrow(50+2*(b//4),wB,False)
        for (p,row) in ((1024,51),(1536,57)):
            Edirect(eb,p)
            wrow(row,eb,False)
            cmul2(wB,eb,e8,T0); wrow(row+2,wB,False)
            cmul2(wB,eb,e16,T1); wrow(row+4,wB,False)
    uo={}
    def u_prep():
        for r in range(3):
            for dw in range(2):
                k(f"v_mov_b32_dpp v{g+2*r+dw}, v{g+2*(r+4)+dw} wave_shr:1 row_mask:0xf bank_mask:0xf")
        k(f"s_mov_b32 s{sSel0}, 0x05040100")
        k(f"s_mov_b32 s{sSel1}, 0x07060302")
        uo['z']=V(); uo['u']=V(); uo['u2']=V(); uo['o']=V(32,2)
        k(f"v_lshrrev_b32 v{vt}, 4, v{vL}")
        k(f"v_mul_u32_u24 v{vt}, {CH}, v{vt}")
        k(f"v_bfe_u32 v{vt2}, v{vL}, 2, 2")
        k(f"v_mul_u32_u24 v{vt2}, {UC}, v{vt2}")
        k(f"v_add_u32 v{vt}, v{vt}, v{vt2}")
        k(f"v_and_b32 v{vt2}, 3, v{vL}")
        k(f"v_lshl_add_u32 v{uo['z']}, v{vt2}, 4, v{vt}")
        k(f"v_sub_u32 v{uo['u']}, 511, v0")
        k(f"v_lshlrev_b32 v{uo['u']}, 3, v{uo['u']}")
        k(f"v_add_u32 v{uo['u2']}, {2*CH}, v{uo['u']}")
        G=lambda r,dw: g+2*(r+3)+dw
        for ch in range(4):
            sel=sSel0 if ch%2==0 else sSel1; dw=ch>>1
            for c in range(4):
                o=uo['o']+2*(4*ch+c)
                k(f"v_perm_b32 v{o}, v{G(c-1,dw)}, v{G(c,dw)}, s{sel}")
                k(f"v_perm_b32 v{o+1}, v{G(c-3,dw)}, v{G(c-2,dw)}, s{sel}")
    def u_write():
        k(f"ds_write_b128 v{uo['z']}, v[{z4}:{z4+3}] offset:4096")
        for ch in range(4):
            for c in range(4):
                o=uo['o']+2*(4*ch+c)
                k(f"ds_write_b64 v{uo['u'] if ch<2 else uo['u2']}, v[{o}:{o+1}] offset:{(ch%2)*CH+c*UC}")
    acc=V(16,4)
    fr_=[V(20,4),V(20,4),V(20,4)]
    def kreads(role,u):
        hi,ks=u>>2,u&3; f=fr_[u%3]; o=hi*256
        k(f"ds_read_b128 v[{f}:{f+3}], v{rF+ks} offset:{o}")
        if role==0:
            k(f"ds_read_b128 v[{f+8}:{f+11}], v{rF+ks} offset:{o+16384}")
            k(f"ds_read_b128 v[{f+4}:{f+7}], v{rF+ks} offset:{o+8192}")
            k(f"ds_read_b128 v[{f+12}:{f+15}], v{rG1+ks} offset:{o}")
            k(f"ds_read_b128 v[{f+16}:{f+19}], v{rG2+ks} offset:{o}")
        else:
            k(f"ds_read_b128 v[{f+8}:{f+11}], v{rG1+ks} offset:{o}")
            k(f"ds_read_b128 v[{f+4}:{f+7}], v{rF+ks} offset:{o+8192}")
            k(f"ds_read_b128 v[{f+12}:{f+15}], v{rG2+ks} offset:{o}")
    def kmf(role,u):
        f=fr_[u%3]
        if role==0: pairs=[(0,f+8,f),(1,f+12,f+4),(2,f+16,f),(3,f+16,f+4)]
        else: pairs=[(0,f+8,f),(1,f+8,f+4),(2,f+12,f),(3,f+12,f+4)]
        for (T,a,b) in pairs:
            cin="0" if u==0 else f"v[{acc+4*T}:{acc+4*T+3}]"
            k(f"v_mfma_f32_16x16x32_bf16 v[{acc+4*T}:{acc+4*T+3}], v[{a}:{a+3}], v[{b}:{b+3}], {cin}")
    def kmfma(role):
        kreads(role,0); kreads(role,1)
        for u in range(8):
            if u+2<8: kreads(role,u+2)
            kmf(role,u)
    wreg=[0]
    def wo_frag():
        wof=wreg[0]; vWoA=wreg[0]+4
        k(f"v_bfe_u32 v{vt}, v{vL}, 2, 2")
        k(f"v_lshrrev_b32 v{vt2}, 5, v{vL}")
        k(f"v_lshl_add_u32 v{vt}, v{vt2}, 2, v{vt}")
        k(f"v_lshlrev_b32 v{vWoA}, 6, v{vt}")
        k(f"v_bfe_u32 v{vt2}, v{vL}, 4, 1")
        k(f"v_lshl_add_u32 v{vWoA}, v{vt2}, 5, v{vWoA}")
        k(f"v_and_b32 v{vt2}, 3, v{vL}")
        k(f"v_lshl_add_u32 v{vWoA}, v{vt2}, 3, v{vWoA}")
        k(f"s_lshl_b32 s{sA}, s{sWp}, 10")
        k(f"s_add_u32 s{sA}, s{sA}, {L_WO2}")
        k(f"v_add_u32 v{vWoA}, s{sA}, v{vWoA}")
        k.wait_tag("wo")
        k(f"ds_read_b64_tr_b16 v[{wof}:{wof+1}], v{vWoA}")
        k(f"ds_read_b64_tr_b16 v[{wof+2}:{wof+3}], v{vWoA} offset:512")
        k(f"v_lshlrev_b32 v{vt}, 4, v{vL}")
        k(f"s_lshl_b32 s{sA}, s{sFr}, 10")
        k(f"s_add_u32 s{sA}, s{sA}, {WS_WO}")
        k(f"buffer_store_dwordx4 v[{wof}:{wof+3}], v{vt}, s[{srdWS}:{srdWS+3}], s{sA} offen {STF}")
    row=V()
    k(f"s_cmp_eq_u32 s{sRole}, 0")
    k(f"s_cbranch_scc0 L_{name}_B1")
    snap=k.snapshot(); mark=V.mark()
    for role in range(2):
        if role==1:
            k.restore(snap); V.reset(mark); k.label(f"L_{name}_B1")
        if role==0:
            rne(row,1)
            k(f"v_lshrrev_b32 v{vt2}, 3, v{row}")
            k(f"v_lshl_add_u32 v{row}, v{row}, 1, v{vt2}")
            k(f"v_add_u32 v{row}, 32, v{row}")
            rdaddr(rG1,row)
            rne(row,2); k(f"v_lshlrev_b32 v{row}, 1, v{row}"); k(f"v_add_u32 v{row}, 50, v{row}"); rdaddr(rG2,row)
        else:
            rne(row,3); k(f"v_lshlrev_b32 v{row}, 1, v{row}"); k(f"v_add_u32 v{row}, 51, v{row}"); rdaddr(rG1,row)
            k(f"v_add_u32 v{row}, 6, v{row}"); rdaddr(rG2,row)
        tab=table_role0 if role==0 else table_role1
        st.mark(k,1)
        if PRIO:
            k(f"s_cmp_eq_u32 s{sP}, {PRIO[0]}")
            k(f"s_cbranch_scc0 L_{name}_B{role}_np")
            k(f"s_setprio 1")
            k.label(f"L_{name}_B{role}_np")
        if 'A' in TM or 'B' in TM:
            k.wait_tag("par")
            if 'B' in TM: touch_b()
            if 'A' in TM: touch_a()
        flat=[l for blk in side for l in blk]
        if GMODE=='split2':
            st_={}
            def mid():
                k(f"s_cmp_eq_u32 s{sP}, 1")
                k(f"s_cbranch_scc0 L_{name}_B{role}_g0")
                vmq=list(k.vm)
                for l in flat: k(l)
                k.label(f"L_{name}_B{role}_g0")
                k.vm=vmq
            tab(mid)
            k(f"s_cmp_eq_u32 s{sP}, 0")
            k(f"s_cbranch_scc0 L_{name}_B{role}_g1")
            for l in flat: k(l)
            k.label(f"L_{name}_B{role}_g1")
        elif GMODE=='paced':
            rowc[0]=0
            sidel.clear(); sidel.extend([list(x) for x in side])
            tab()
            rest_side=[list(x) for x in sidel]; sidel.clear()
        elif GMODE=='ink':
            tab()
        elif GMODE=='split':
            k.wait_tag("par")
            k(f"s_cmp_eq_u32 s{sP}, 0")
            k(f"s_cbranch_scc0 L_{name}_B{role}_g0")
            vmq=list(k.vm)
            for l in flat: k(l)
            k.label(f"L_{name}_B{role}_g0")
            k.vm=vmq
            tab()
            k(f"s_cmp_eq_u32 s{sP}, 1")
            k(f"s_cbranch_scc0 L_{name}_B{role}_g1")
            for l in flat: k(l)
            k.label(f"L_{name}_B{role}_g1")
        else:
            sidel.clear(); sidel.extend([list(x) for x in side] if 'G' not in DB else [])
            if GMODE=='pre':
                k.wait_tag("par")
                for blk in sidel:
                    for l in blk: k(l)
                sidel.clear()
            tab()
            for blk in sidel:
                for l in blk: k(l)
            sidel.clear()
        st.mark(k,2)
        k.barrier()
        if not fused:
            if WOAT=='k': wo_dma()
        else:
            mk_srd(k,srdT,sWO,512*512*2)
            k(f"v_and_b32 v{vt}, 31, v{vL}")
            k(f"v_lshlrev_b32 v{vt}, 7, v{vt}")
            k(f"s_lshl_b32 s{sA}, s{sIDX}, 3")
            k(f"s_add_u32 s{sA}, s{sA}, s{sW}")
            k(f"s_lshl_b32 s{sA}, s{sA}, 12")
            k(f"buffer_load_dword v{vPf}, v{vt}, s[{srdT}:{srdT+3}], s{sA} offen")
        if GMODE=='paced':
            k.bg=[[(l,None) for l in blk] for blk in rest_side]; k.bg_every=int(os.environ.get('GEV','6'))
        if GMODE=='ink':
            k.bg=[[(l,None) for l in blk] for blk in side]; k.bg_every=int(os.environ.get('GEV','6'))
        kmfma(role)
        k.bg_flush()
        st.mark(k,3)
        u_prep()
        vK=vt3
        k(f"s_add_u32 s{sTab}, s{sCB}, {KOFF}")
        k(f"v_lshlrev_b32 v{vK}, 5, v{vL}")
        k(f"v_add_u32 v{vK}, s{sTab}, v{vK}")
        kp=V(8,4); vKz=V()
        if role==0:
            k(f"v_add_f32 v{acc}, v{acc}, v{vDs}")
            k(f"v_lshlrev_b32 v{vKz}, 3, v{vL}")
            k(f"v_add_u32 v{vKz}, s{sTab}, v{vKz}")
        for T in range(4):
            k(f"v_cvt_pk_bf16_f32 v{kp+2*T}, v{acc+4*T}, v{acc+4*T+1}")
            k(f"v_cvt_pk_bf16_f32 v{kp+2*T+1}, v{acc+4*T+2}, v{acc+4*T+3}")
        for b0 in range(2):
            for d in range(2): k(f"v_permlane32_swap_b32 v{kp+2*b0+d}, v{kp+2*(b0+2)+d}")
        for b1 in range(2):
            for d in range(2): k(f"v_permlane16_swap_b32 v{kp+4*b1+d}, v{kp+4*b1+2+d}")
        k.barrier()
        if role==0:
            k(f"ds_write_b64 v{vKz}, v[{z4}:{z4+1}]")
            if not NOP1: k(f"ds_write_b64 v{vKz}, v[{z4}:{z4+1}] offset:{P1}")
        o=2048*role
        k(f"ds_write_b128 v{vK}, v[{kp}:{kp+3}] offset:{o+464}")
        k(f"ds_write_b128 v{vK}, v[{kp+4}:{kp+7}] offset:{o+480}")
        if not NOP1:
            k(f"ds_write_b128 v{vK}, v[{kp+2}:{kp+5}] offset:{P1+o+464}")
            k(f"ds_write_b64 v{vK}, v[{kp}:{kp+1}] offset:{P1+o+456}")
            k(f"ds_write_b64 v{vK}, v[{kp+6}:{kp+7}] offset:{P1+o+480}")
        u_write()
        k(f"v_and_b32 v{vt}, 3, v{vI}")
        k(f"v_mul_u32_u24 v{vA}, {UC}, v{vt}")
        k(f"v_lshrrev_b32 v{vt}, 2, v{vI}")
        k(f"v_sub_u32 v{vt}, v{vQ}, v{vt}")
        k(f"v_add_u32 v{vt}, 3, v{vt}")
        k(f"v_lshl_add_u32 v{vA}, v{vt}, 4, v{vA}")
        k(f"v_add_u32 v{vA}, s{sCB}, v{vA}")
        k(f"v_lshrrev_b32 v{vt}, 1, v{vI}")
        k(f"v_lshlrev_b32 v{vB}, 6, v{vt}")
        k(f"v_lshl_add_u32 v{vB}, v{vQ}, 4, v{vB}")
        if NOP1:
            k(f"v_and_b32 v{vt}, 1, v{vI}")
            k(f"v_lshl_add_u32 v{vB}, v{vt}, 3, v{vB}")
            k(f"v_add3_u32 v{vB}, v{vB}, 8, s{sTab}")
        else:
            k(f"v_and_b32 v{vt}, 1, v{vI}")
            k(f"v_mul_u32_u24 v{vt}, {P1-16}, v{vt}")
            k(f"v_sub_u32 v{vt}, {P1}, v{vt}")
            k(f"v_add3_u32 v{vB}, v{vB}, v{vt}, s{sTab}")
        k.barrier()
        V.reset(mark0)
        y=V(32,4)
        S=[V(64,4),V(64,4)]
        wreg[0]=V(8,4)
        def loads(r,s):
            L=[]
            for c in range(8):
                L.append(f"ds_read_b128 v[{s+4*c}:{s+4*c+3}], v{vA} offset:{64*(56+r-8*c)}")
                if NOP1:
                    L.append(f"ds_read_b64 v[{s+32+4*c}:{s+32+4*c+1}], v{vB} offset:{64*(r+8*c)}")
                    L.append(f"ds_read_b64 v[{s+32+4*c+2}:{s+32+4*c+3}], v{vB} offset:{64*(r+8*c)+8}")
                else:
                    L.append(f"ds_read_b128 v[{s+32+4*c}:{s+32+4*c+3}], v{vB} offset:{64*(r+8*c)}")
            return L
        classes=[4*role+i for i in range(4)]
        for l in loads(classes[0],S[0]): k(l)
        if WOAT=='conv' and not fused: wo_dma()
        started=set()
        for ci,r in enumerate(classes):
            s=S[ci&1]
            nxt=loads(classes[ci+1],S[(ci+1)&1]) if ci+1<4 else []
            order=[]
            for d in range(8):
                for a in range(8):
                    for c in range(8):
                        if max(a,c)==d and a+c<=7: order.append((a,c))
            n=0
            for (a,c) in order:
                i=a+c
                cin="0" if i not in started else f"v[{y+4*i}:{y+4*i+3}]"
                started.add(i)
                k(f"v_mfma_f32_16x16x32_bf16 v[{y+4*i}:{y+4*i+3}], v[{s+4*c}:{s+4*c+3}], v[{s+32+4*a}:{s+32+4*a+3}], {cin}")
                n+=1
                if nxt and n>=(2 if NOP1 else 4) and (NOP1 and n%3!=0 or (not NOP1 and n%2==0)): k(nxt.pop(0))
            for l in nxt: k(l)
            if ci==(1 if WOAT=='k' else 2) and not fused: wo_frag()
        st.mark(k,4)
        vXw=vt3; vXr=vA
        k(f"v_lshlrev_b32 v{vt}, 4, v{vL}")
        k(f"s_lshl_b32 s{sA}, s{sW}, 12")
        k(f"s_add_u32 s{sA}, s{sA}, {L_WOB}")
        k(f"v_add_u32 v{vXw}, s{sA}, v{vt}")
        k(f"s_xor_b32 s{sA}, s{sA}, 4096") if False else None
        k(f"s_xor_b32 s{sB}, s{sW}, 1")
        k(f"s_lshl_b32 s{sB}, s{sB}, 12")
        k(f"s_add_u32 s{sB}, s{sB}, {L_WOB}")
        k(f"v_add_u32 v{vXr}, s{sB}, v{vt}")
        mine=[4*role+i for i in range(4)]; theirs=[4*(1-role)+i for i in range(4)]
        for n_,i in enumerate(theirs):
            k(f"ds_write_b128 v{vXw}, v[{y+4*i}:{y+4*i+3}] offset:{1024*n_}")
        vS=vB
        k(f"v_lshrrev_b32 v{vt}, 1, v{vI}")
        k(f"v_lshlrev_b32 v{vS}, 6, v{vt}")
        k(f"v_lshl_add_u32 v{vS}, v{vQ}, 4, v{vS}")
        k(f"v_and_b32 v{vt}, 1, v{vI}")
        k(f"v_lshl_add_u32 v{vS}, v{vt}, 3, v{vS}")
        k(f"s_add_u32 s{sA}, s{sD0}, s{sCh}")
        k(f"s_lshl_b32 s{sA}, s{sA}, 12")
        k(f"s_add_u32 s{sA}, s{sA}, {WS_B+role*4*512}")
        k.barrier()
        rr=S[0]
        for n_ in range(4):
            k(f"ds_read_b128 v[{rr+4*n_}:{rr+4*n_+3}], v{vXr} offset:{1024*n_}")
        for n_,i in enumerate(mine):
            b=rr+4*n_
            k(f"v_pk_add_f32 v[{b}:{b+1}], v[{b}:{b+1}], v[{y+4*i}:{y+4*i+1}]")
            k(f"v_pk_add_f32 v[{b+2}:{b+3}], v[{b+2}:{b+3}], v[{y+4*i+2}:{y+4*i+3}]")
            k(f"v_cvt_pk_bf16_f32 v{b}, v{b}, v{b+1}")
            k(f"v_cvt_pk_bf16_f32 v{b+1}, v{b+2}, v{b+3}")
            k(f"buffer_store_dwordx2 v[{b}:{b+1}], v{vS}, s[{srdWS}:{srdWS+3}], s{sA} offen offset:{512*n_} {STF}")
        st.mark(k,5)
        if fused: k(f"s_branch L_{name}_F")
        else:
            st.finish(k,sWS,sW,y)
            k("s_endpgm")
    if fused:
        k.auto=False; rel_read_block(k,name,"B",vZb,srdWS); k.auto=True
    return V.hi
```

```python
import re, os
LGUARD=int(os.environ.get('LGUARD','1'))

TRANS = ("v_exp_f32","v_log_f32","v_rcp_f32","v_rsq_f32","v_sqrt_f32","v_sin_f32","v_cos_f32","v_rcp_iflag_f32")
RMW_DST = ("v_fmac_f32","v_dot2c_f32_bf16","v_pk_fmac_f16","v_writelane_b32","v_mac_f32")
MFMA_PASSES = {"32x32x16":8,"16x16x32":4,"16x16x16":4,"32x32x8":8}
T_C_OVER = {2:4,4:6,8:10,16:18}
T_AB = {2:5,4:8,8:12,16:20}
T_VALU = {2:5,4:8,8:12,16:20}
T_WAR_C = {2:1,4:3,8:7,16:15}

def split_ops(s):
    out=[]; depth=0; cur=""
    for ch in s:
        if ch in "[(": depth+=1
        if ch in "])": depth-=1
        if ch=="," and depth==0:
            out.append(cur.strip()); cur=""
        else: cur+=ch
    if cur.strip(): out.append(cur.strip())
    return out

REG = re.compile(r"^-?\|?(abs\()?([vas])(\d+)\)?\|?$")
RNG = re.compile(r"^-?([vas])\[(\d+):(\d+)\]$")
def regs_of(tok):
    tok=tok.strip()
    m=REG.match(tok)
    if m: return [(m.group(2),int(m.group(3)))]
    m=RNG.match(tok)
    if m: return [(m.group(1),i) for i in range(int(m.group(2)),int(m.group(3))+1)]
    if tok=="vcc": return [("s","vcc")]
    if tok in("vcc_lo","vcc_hi"): return [("s","vcc")]
    if tok=="exec": return [("s","exec")]
    if tok in("exec_lo","exec_hi"): return [("s","exec")]
    if tok=="m0": return [("s","m0")]
    return []

class Ins:
    __slots__=("text","mn","ops","mods","reads","writes","cls","passes","srcC","srcAB","dpp","nstates","sgpr_const_reads","wide_store","lds_dma")
    def __init__(s,text):
        s.text=text
        t=text.split(";")[0].strip()
        parts=t.split(None,1)
        s.mn=parts[0]
        rest=parts[1] if len(parts)>1 else ""
        ops=split_ops(rest)
        mods=""
        if ops:
            last=ops[-1].split()
            if len(last)>1:
                ops[-1]=last[0]; mods=" ".join(last[1:])
        s.ops=ops; s.mods=mods
        s.reads=set(); s.writes=set(); s.passes=0; s.srcC=set(); s.srcAB=set(); s.dpp=False
        s.nstates=1; s.sgpr_const_reads=set(); s.wide_store=set(); s.lds_dma=False
        mn=s.mn
        base=re.sub(r"_(e32|e64|dpp|sdwa)$","",mn)
        R=lambda i: set(regs_of(ops[i])) if i<len(ops) else set()
        allr=lambda a: set().union(*[R(i) for i in range(a,len(ops))]) if len(ops)>a else set()
        if mn=="s_nop":
            s.cls="nop"; s.nstates=int(ops[0],0)+1; return
        if mn in("s_waitcnt","s_barrier","s_endpgm","s_branch","s_setprio","s_sleep") or mn.startswith("s_cbranch"):
            s.cls="ctl"
            if mn in("s_cbranch_vccz","s_cbranch_vccnz"): s.reads={("s","vcc")}
            if mn in("s_cbranch_execz","s_cbranch_execnz"): s.reads={("s","exec")}
            if mn in("s_cbranch_scc0","s_cbranch_scc1"): s.reads={("s","scc")}
            return
        if mn.startswith("s_load") or mn in("s_memtime","s_memrealtime"):
            s.cls="smem"; s.writes=R(0); s.reads=R(1) if mn.startswith("s_load") else set(); return
        if mn.startswith("s_"):
            s.cls="salu"
            if mn.startswith("s_cmp") or mn.startswith("s_bitcmp"):
                s.reads=allr(0); s.writes={("s","scc")}
            elif "saveexec" in mn:
                s.writes=R(0)|{("s","exec"),("s","scc")}; s.reads=R(1)|{("s","exec")}
            elif mn.startswith("s_getpc"):
                s.writes=R(0)
            elif mn.startswith("s_setpc"):
                s.reads=R(0)
            elif mn.startswith("s_getreg"):
                s.writes=R(0)
            else:
                s.writes=R(0); s.reads=allr(1)
                if mn.startswith(("s_addc","s_subb","s_cselect","s_cmov")): s.reads|={("s","scc")}
                if mn.startswith(("s_addk","s_mulk","s_cmov")): s.reads|=R(0)
                if not mn.startswith(("s_mov","s_cselect","s_mul","s_movk","s_cmov","s_bfm","s_brev")): s.writes|={("s","scc")}
            return
        if mn.startswith("v_mfma"):
            s.cls="mfma"
            for k,v in MFMA_PASSES.items():
                if k in mn: s.passes=v
            assert s.passes, mn
            s.writes=R(0); s.srcAB=R(1)|R(2); s.srcC=R(3); s.reads=s.srcAB|s.srcC
            return
        if mn.startswith("v_"):
            s.cls="trans" if base in TRANS else "valu"
            s.dpp = mn.endswith("_dpp") or any(k in mods for k in("row_","quad_perm","wave_"))
            if base.startswith("v_cmp"):
                s.writes=R(0); s.reads=allr(1)
            elif base in("v_readfirstlane_b32","v_readlane_b32"):
                s.writes=R(0); s.reads=allr(1)
            elif base in("v_permlane32_swap_b32","v_permlane16_swap_b32","v_swap_b32"):
                s.writes=R(0)|R(1); s.reads=R(0)|R(1)
            elif base in("v_add_co_u32","v_sub_co_u32","v_addc_co_u32","v_subb_co_u32"):
                s.writes=R(0)|R(1); s.reads=allr(2)
            else:
                s.writes=R(0); s.reads=allr(1)
                if base in RMW_DST or s.dpp: s.reads|=R(0)
            s.reads|={("s","exec")}
            s.sgpr_const_reads={r for r in s.reads if r[0]=="s" and r[1]!="exec"}
            return
        if mn.startswith("buffer_"):
            s.cls="vmem"
            s.lds_dma = "lds" in mods.split()
            if mn.startswith("buffer_load"):
                if s.lds_dma:
                    s.reads=allr(0)|{("s","m0")}
                else:
                    s.writes=R(0); s.reads=allr(1)
                    if "d16" in mn: s.reads|=R(0)
            elif mn.startswith("buffer_store"):
                s.reads=allr(0)
                if "x4" in mn or "x3" in mn: s.wide_store=R(0)
            elif mn.startswith("buffer_atomic"):
                s.reads=allr(0)
                if "sc0" in mods.split(): s.writes=R(0)
            elif mn.startswith(("buffer_wbl2","buffer_inv")):
                pass
            else: raise ValueError(text)
            s.reads|={("s","exec")}
            return
        if mn.startswith("global_"):
            s.cls="vmem"
            if mn.startswith("global_load_lds"):
                s.lds_dma=True; s.reads=allr(0)|{("s","m0")}
            elif mn.startswith("global_load"):
                s.writes=R(0); s.reads=allr(1)
                if "d16" in mn: s.reads|=R(0)
            elif mn.startswith("global_store"):
                s.reads=allr(0)
                if "x4" in mn or "x3" in mn: s.wide_store=R(1)
            elif mn.startswith("global_atomic"):
                if "sc0" in mods.split(): s.writes=R(0); s.reads=allr(1)
                else: s.reads=allr(0)
            else: raise ValueError(text)
            s.reads|={("s","exec")}
            return
        if mn.startswith("ds_"):
            s.cls="ds"
            if mn.startswith(("ds_read","ds_bpermute","ds_permute","ds_swizzle")):
                s.writes=R(0); s.reads=allr(1)
                if "d16" in mn: s.reads|=R(0)
            else:
                s.reads=allr(0)
            s.reads|={("s","exec")}
            return
        raise ValueError("unknown instr: "+text)

def need_states(p, c):
    n=0
    pv = p.cls in("valu","trans")
    cv = c.cls in("valu","trans")
    vw = {r for r in p.writes if r[0] in "va"}
    sw = {r for r in p.writes if r[0]=="s" and r[1] not in("scc",)}
    if pv:
        if c.cls=="mfma" and vw & c.reads: n=max(n,2)
        if cv and c.dpp and vw & c.reads: n=max(n,2)
        if cv and "permlane" in c.mn and vw & c.reads: n=max(n,2)
        if cv and c.mn.startswith(("v_readfirstlane","v_readlane")) and vw & c.reads: n=max(n,1)
        if cv and sw & c.sgpr_const_reads: n=max(n,2)
        if cv and c.mn.startswith(("v_readlane","v_writelane")) and sw & c.reads: n=max(n,4)
        if c.cls=="vmem" and sw & c.reads: n=max(n,5)
        if c.cls=="salu" and sw & c.reads: n=max(n,1)
        if p.cls=="trans" and c.cls in("valu",) and vw & c.reads: n=max(n,1)
        if p.cls=="trans" and c.cls in("vmem","ds") and vw & c.reads: n=max(n,1)
        if ("op_sel" in p.mods and "v_pk" not in p.mn) or p.mn.endswith("sdwa"):
            if cv and vw & (c.reads|c.writes): n=max(n,1)
    if p.mn.startswith("v_dot") and (vw & (c.reads|c.writes)):
        if not (c.mn==p.mn and (vw & c.writes)): n=max(n,3)
    if p.cls=="mfma":
        P=p.passes
        if c.cls=="mfma":
            if p.writes & c.srcC:
                if p.writes==c.srcC and p.passes==c.passes: n=max(n, 2 if P==2 else 0)
                else: n=max(n,T_C_OVER[P])
            if p.writes & c.srcAB: n=max(n,T_AB[P])
            if (p.writes & c.writes) and not (p.writes==c.writes and p.writes==c.srcC):
                if not (p.writes & c.srcC): n=max(n,T_C_OVER[P])
        elif cv:
            if p.writes & (c.reads|c.writes): n=max(n,T_VALU[P])
            if p.srcC & c.writes: n=max(n,T_WAR_C[P])
        elif c.cls in("vmem","ds"):
            if p.writes & (c.reads|c.writes): n=max(n,T_VALU[P])
            if p.srcC & c.writes: n=max(n,T_WAR_C[P])
    if p.wide_store:
        if cv and p.wide_store & c.writes: n=max(n,2)
        elif c.cls in("mfma","ds","vmem") and p.wide_store & c.writes: n=max(n,2)
    if p.cls=="salu" and ("s","m0") in p.writes and c.lds_dma: n=max(n,1)
    if p.cls=="salu" and ("s","exec") in p.writes and c.cls=="mfma": n=max(n,1)
    return n

class Kern:
    def __init__(s, auto=True):
        s.out=[]; s.hist=[]; s.vm=[]; s.lg=[]; s.auto=auto; s.nnop=0; s.nwait=0; s.log=[]; s.vm_total=0; s.bg=[]; s.bg_every=0; s.bg_cnt=0; s.in_bg=False
    def raw(s,text): s.out.append(text)
    def label(s,name):
        s.out.append(name+":")
    def comment(s,t): s.out.append("  ; "+t)
    def snapshot(s): return (list(s.hist),[dict(x) for x in s.vm],[dict(x) for x in s.lg])
    def restore(s,st):
        s.hist=list(st[0]); s.vm=[dict(x) for x in st[1]]; s.lg=[dict(x) for x in st[2]]
    def clear_state(s): s.hist=[]; s.vm=[]; s.lg=[]
    def _push(s,ins):
        s.out.append("  "+ins.text); s.hist.append(ins)
        if len(s.hist)>40: s.hist=s.hist[-40:]
    def _hazard(s,ins):
        need=0; dist=0
        for p in reversed(s.hist):
            if dist>=20: break
            n=need_states(p,ins)
            if n>dist: need=max(need,n-dist)
            dist+=p.nstates
        return need
    def _nops(s,n):
        s.nnop+=n
        while n>0:
            k=min(n,16); s._push(Ins(f"s_nop {k-1}")); n-=k
    def _wait(s,vm=None,lg=None):
        parts=[]
        if vm is not None:
            vm=min(vm,62)
            if len(s.vm)>vm:
                parts.append(f"vmcnt({vm})"); s.vm=s.vm[len(s.vm)-vm:] if vm>0 else []
        if lg is not None:
            lg=min(lg,14)
            if len(s.lg)>lg:
                parts.append(f"lgkmcnt({lg})"); s.lg=s.lg[len(s.lg)-lg:] if lg>0 else []
        if parts:
            s.nwait+=1; s._push(Ins("s_waitcnt "+" ".join(parts)))
    def _autowait(s,ins):
        touched=ins.reads|ins.writes
        if s.bg and not s.in_bg:
            last=-1
            for gi,g in enumerate(s.bg):
                for (t,_) in g:
                    if callable(t): continue
                    if Ins(t).writes & {r for r in touched if r[0] in "va"}: last=gi
            for _ in range(last+1): s.bg_pop()
        vmn=None; lgn=None
        for i,e in enumerate(s.vm):
            if e["dst"] & touched:
                if ins.cls=="vmem" and not (e["dst"] & ins.reads): continue
                n=len(s.vm)-1-i; vmn=n if vmn is None else min(vmn,n)
        anysm=any(e["smem"] for e in s.lg)
        for i,e in enumerate(s.lg):
            if e["dst"] & touched:
                if ins.cls=="ds" and not e["smem"] and not (e["dst"] & ins.reads): continue
                n=0 if anysm else len(s.lg)-1-i; lgn=n if lgn is None else min(lgn,n)
        s._wait(vmn,lgn)
    def __call__(s,text,tag=None):
        for line in text.strip().split("\n"):
            line=line.strip()
            if not line or line.startswith(";"):
                if line: s.out.append("  "+line)
                continue
            if line.endswith(":"): s.label(line[:-1]); continue
            s.emit(line,tag)
    def emit(s,text,tag=None):
        ins=Ins(text)
        if ins.mn=="s_waitcnt":
            m=re.search(r"vmcnt\((\d+)\)",text); l=re.search(r"lgkmcnt\((\d+)\)",text)
            if m:
                n=int(m.group(1)); s.vm=s.vm[max(0,len(s.vm)-n):] if n>0 else []
            if l:
                n=int(l.group(1)); s.lg=s.lg[max(0,len(s.lg)-n):] if n>0 else []
            s._push(ins); return ins
        if s.auto:
            s._autowait(ins)
            if ins.cls=="vmem" and len(s.vm)>=62: s._wait(vm=61)
            if ins.cls in("ds","smem") and len(s.lg)>=15:
                if LGUARD or any(e["smem"] for e in s.lg) or ins.cls=="smem":
                    s._wait(lg=0 if any(e["smem"] for e in s.lg) else 14)
                else:
                    pass
        n=s._hazard(ins)
        if n: s._nops(n)
        s._push(ins)
        if ins.cls=="vmem":
            s.vm_total+=1
            s.vm.append({"dst":set(ins.writes),"tag":tag})
            if len(s.vm)>63: s.vm=s.vm[-63:] if False else s.vm
        elif ins.cls=="ds": s.lg.append({"dst":set(ins.writes),"tag":tag,"smem":False})
        elif ins.cls=="smem": s.lg.append({"dst":set(ins.writes),"tag":tag,"smem":True})
        if s.bg and not s.in_bg and ins.cls in("valu","trans","mfma","ds"):
            s.bg_cnt+= (4 if ins.cls=="mfma" and ins.passes>=8 else 2 if ins.cls in("mfma","trans") else 1)
            if s.bg_cnt>=s.bg_every:
                s.bg_cnt=0; s.bg_pop()
        return ins
    def bg_pop(s):
        g=s.bg.pop(0); prev=s.in_bg; s.in_bg=True
        for (t,tg) in g:
            if callable(t): t()
            else: s.emit(t,tg)
        s.in_bg=prev
    def bg_flush(s, upto_tag=None):
        while s.bg:
            if upto_tag is not None and not any(tg==upto_tag for g in s.bg for (_,tg) in g): break
            s.bg_pop()
    def wait_tag(s,tag):
        if not s.in_bg: s.bg_flush(tag)
        idx=[i for i,e in enumerate(s.vm) if e["tag"]==tag]
        if idx: s._wait(vm=len(s.vm)-1-max(idx))
        idx=[i for i,e in enumerate(s.lg) if e["tag"]==tag]
        if idx:
            anysm=any(e["smem"] for e in s.lg)
            s._wait(lg=0 if anysm else len(s.lg)-1-max(idx))
    def wait_vm(s,n=0): s._wait(vm=n)
    def wait_lg(s,n=0): s._wait(lg=n)
    def barrier(s):
        s._wait(lg=0); s.emit("s_barrier")
    def text(s): return "\n".join(s.out)+"\n"

class Alloc:
    def __init__(s,kind,start,limit): s.kind=kind; s.n=start; s.limit=limit; s.hi=start
    def __call__(s,count=1,align=None):
        if align is None: align = 1 if count==1 else 2
        s.n=(s.n+align-1)//align*align
        r=s.n; s.n+=count; s.hi=max(s.hi,s.n)
        assert s.n<=s.limit, f"out of {s.kind} regs"
        return r
    def mark(s): return s.n
    def reset(s,m): s.n=m
def vr(b,n=1): return f"v{b}" if n==1 else f"v[{b}:{b+n-1}]"
def ar(b,n=1): return f"a{b}" if n==1 else f"a[{b}:{b+n-1}]"
def sr(b,n=1): return f"s{b}" if n==1 else f"s[{b}:{b+n-1}]"

STAMP_BASE=86
class Stamper:
    def __init__(s,on,kid): s.on=on; s.kid=kid
    def start(s,k):
        if s.on: k(f"s_memrealtime s[{STAMP_BASE}:{STAMP_BASE+1}]")
    def mark(s,k,i):
        if s.on: k(f"s_memtime s[{STAMP_BASE+2*i}:{STAMP_BASE+2*i+1}]")
    def finish(s,k,wsptr,swave,vtmp):
        if not s.on: return
        k(f"s_waitcnt vmcnt(0)")
        k(f"s_memrealtime s[{STAMP_BASE+14}:{STAMP_BASE+15}]")
        k("s_waitcnt lgkmcnt(0)")
        k(f"s_lshl_b32 s3, s2, 3")
        k(f"s_add_u32 s3, s3, s{swave}")
        k(f"s_lshl_b32 s3, s3, 6")
        k(f"s_add_u32 s3, s3, {(16<<20)+(s.kid<<20)}")
        for i in range(8):
            k(f"v_mov_b32 v{vtmp+i}, s{STAMP_BASE+2*i}")
        k(f"v_mov_b32 v{vtmp+8}, s3")
        k(f"s_mov_b64 exec, 1")
        k(f"global_store_dwordx4 v{vtmp+8}, v[{vtmp}:{vtmp+3}], s[{wsptr}:{wsptr+1}]")
        k(f"global_store_dwordx4 v{vtmp+8}, v[{vtmp+4}:{vtmp+7}], s[{wsptr}:{wsptr+1}] offset:16")
        k(f"s_getreg_b32 s3, hwreg(HW_REG_HW_ID)")
        k(f"v_mov_b32 v{vtmp}, s3")
        k(f"s_getreg_b32 s3, hwreg(HW_REG_XCC_ID)")
        k(f"v_mov_b32 v{vtmp+1}, s3")
        k(f"global_store_dwordx2 v{vtmp+8}, v[{vtmp}:{vtmp+1}], s[{wsptr}:{wsptr+1}] offset:32")
```

```python
from dsl import *
from common import *
import os
DBG=os.environ.get('DBG','')
GATE=os.environ.get('GATE','epi')
QORD=os.environ.get('QORD','last')
PRIOA=os.environ.get('PRIOA','')
SPM=os.environ.get('SPM','')
XW1=os.environ.get('XW1','pro')
GJ=int(os.environ.get('GJ','29'))
STF=os.environ.get('STF','sc1')
TP=eval(os.environ.get('TP','(0,3,3)'))
NTB=int(os.environ.get('TB','1'))
MK=eval(os.environ.get('MK','{0:2,1:3,2:4,4:5}'))

sX=4; sWQ=6; sWPHI=8; sWO=10; sLA=14; sAI=16; sCR=18; sCI=20; sLDT=22; sDS=24; sGW=26; sOUT=28; sDBG=30; sWS=32
sW=34
sXCD=35; sIDX=36
srdX=40; srdWq=44; srdWS=48; srdKV=52; srdDBG=56; srdT=60
L_WPHI=0
L_WR=2048; WSL=24576; NWS=3
L_XR=L_WR+NWS*WSL; XSL=16384; NXS=3
K1_LDS=159744
LOG2E=0x3fb8aa3b; NLOG2E=0xbfb8aa3b
RED0=L_WR
def red_base(g,w): return (L_WR if g==0 else L_WR+2*WSL)+w*4352

def mk_srd(k,srd,ptr,size):
    k(f"s_mov_b32 s{srd}, s{ptr}")
    k(f"s_and_b32 s{srd+1}, s{ptr+1}, 0xffff")
    k(f"s_mov_b32 s{srd+2}, {size}")
    k(f"s_mov_b32 s{srd+3}, 0x20000")

def softmax2(k, blocks, tmp, sL2E, fill=None):
    nb=len(blocks)
    def each(f):
        for b in range(nb): f(b,*blocks[b])
    T=[tmp+4*b for b in range(nb)]
    each(lambda b,p,o: k(f"v_max3_f32 v{T[b]}, v{p}, v{p+1}, v{p+2}"))
    for u in range(6):
        each(lambda b,p,o: k(f"v_max3_f32 v{T[b]}, v{T[b]}, v{p+3+2*u}, v{p+4+2*u}"))
    each(lambda b,p,o: k(f"v_max_f32 v{T[b]}, v{T[b]}, v{p+15}"))
    each(lambda b,p,o: k(f"v_mul_f32 v{T[b]}, {NLOG2E:#x}, v{T[b]}"))
    for u in range(8):
        each(lambda b,p,o: k(f"v_pk_fma_f32 v[{p+2*u}:{p+2*u+1}], v[{p+2*u}:{p+2*u+1}], s[{sL2E}:{sL2E+1}], v[{T[b]}:{T[b]+1}] op_sel_hi:[1,1,0]"))
    for u in range(16):
        each(lambda b,p,o: k(f"v_exp_f32 v{p+u}, v{p+u}"))
    S=[t+2 for t in T]
    each(lambda b,p,o: k(f"v_pk_add_f32 v[{S[b]}:{S[b]+1}], v[{p}:{p+1}], v[{p+2}:{p+3}]"))
    for u in range(2,8):
        each(lambda b,p,o: k(f"v_pk_add_f32 v[{S[b]}:{S[b]+1}], v[{S[b]}:{S[b]+1}], v[{p+2*u}:{p+2*u+1}]"))
    each(lambda b,p,o: k(f"v_add_f32 v{T[b]}, v{S[b]}, v{S[b]+1}"))
    each(lambda b,p,o: k(f"v_rcp_f32 v{T[b]}, v{T[b]}"))
    for u in range(8):
        each(lambda b,p,o: k(f"v_pk_mul_f32 v[{p+2*u}:{p+2*u+1}], v[{p+2*u}:{p+2*u+1}], v[{T[b]}:{T[b]+1}] op_sel_hi:[1,0]"))
    for u in range(8):
        each(lambda b,p,o: k(f"v_cvt_pk_bf16_f32 v{o+u}, v{p+2*u}, v{p+2*u+1}"))

def gen_a(k, name, st, fused=False):
    from kf import rel_read_rare, rel_read_block
    V=Alloc("v",1,256)
    sTT=37; sHP=38; sT=39; sA=64; sB=65; sX0=66; sWo_=68; sMx=69; sMw=70
    sL2E=74; sMaskLo=76; sTick=80; sGt=86-0 if False else 63; sPhiO=81; sGo=82; sE=83; sFirst=84
    k.label(f"L_{name}_A")
    sHQ=67; sTBW=78; sHG=79
    k(f"s_and_b32 s{sA}, s{sXCD}, 3")
    k(f"s_lshl_b32 s{sA}, s{sA}, 2")
    k(f"s_and_b32 s{sB}, s{sIDX}, 3")
    k(f"s_add_u32 s{sTT}, s{sA}, s{sB}")
    k(f"s_lshr_b32 s{sA}, s{sXCD}, 2")
    k(f"s_lshl_b32 s{sA}, s{sA}, 2")
    k(f"s_lshr_b32 s{sB}, s{sIDX}, 2")
    k(f"s_add_u32 s{sHQ}, s{sA}, s{sB}")
    k(f"s_and_b32 s{sTBW}, s{sW}, 3")
    k(f"s_lshr_b32 s{sHG}, s{sW}, 2")
    k(f"s_lshl_b32 s{sA}, s{sHQ}, 1")
    k(f"s_add_u32 s{sHP}, s{sA}, s{sHG}")
    vL=V(); vXg=V(2); vWg=V(3); vt=V(); vt2=V(); vt3=V()
    k(f"v_and_b32 v{vL}, 63, v0")
    k(f"v_lshrrev_b32 v{vt}, 4, v{vL}")
    k(f"v_xor_b32 v{vt}, v{vt}, v{vL}")
    k(f"v_and_b32 v{vt}, 7, v{vt}")
    k(f"v_lshlrev_b32 v{vt}, 4, v{vt}")
    k(f"v_lshrrev_b32 v{vt2}, 3, v{vL}")
    k(f"v_lshl_add_u32 v{vXg}, v{vt2}, 10, v{vt}")
    k(f"v_xor_b32 v{vXg+1}, 64, v{vXg}")
    k(f"v_add_u32 v{vXg+1}, 8192, v{vXg+1}")
    for i in range(3):
        k(f"v_add_u32 v{vt3}, {64*i}, v{vL}")
        k(f"v_mul_u32_u24 v{vt}, 171, v{vt3}")
        k(f"v_lshrrev_b32 v{vt}, 12, v{vt}")
        k(f"v_mul_u32_u24 v{vt2}, 24, v{vt}")
        k(f"v_sub_u32 v{vt2}, v{vt3}, v{vt2}")
        k(f"v_bfe_u32 v{vt3}, v{vt}, 1, 1")
        k(f"v_lshlrev_b32 v{vt3}, 2, v{vt3}")
        k(f"v_xor_b32 v{vt2}, v{vt2}, v{vt3}")
        k(f"v_mul_u32_u24 v{vWg+i}, 3072, v{vt}")
        k(f"v_lshrrev_b32 v{vt3}, 3, v{vt2}")
        k(f"v_lshl_add_u32 v{vWg+i}, v{vt3}, 10, v{vWg+i}")
        k(f"v_and_b32 v{vt2}, 7, v{vt2}")
        k(f"v_lshl_add_u32 v{vWg+i}, v{vt2}, 4, v{vWg+i}")
    k(f"s_lshl_b32 s{sX0}, s{sTT}, 17")
    k(f"s_lshl_b32 s{sA}, s{sW}, 14")
    k(f"s_add_u32 s{sX0}, s{sX0}, s{sA}")
    k(f"s_mul_i32 s{sWo_}, s{sW}, {8*3072}")
    k(f"s_lshl_b32 s{sA}, s{sHQ}, 7")
    k(f"s_add_u32 s{sWo_}, s{sWo_}, s{sA}")
    k(f"s_lshl_b32 s{sMx}, s{sW}, 11")
    k(f"s_add_u32 s{sMx}, s{sMx}, {L_XR}")
    k(f"s_mul_i32 s{sMw}, s{sW}, 3072")
    k(f"s_add_u32 s{sMw}, s{sMw}, {L_WR}")
    sXk=71; sWk=72; sXc=73; sWc=85
    k(f"s_lshr_b32 s{sA}, s{sIDX}, 2")
    k(f"s_and_b32 s{sB}, s{sIDX}, 3")
    k(f"s_add_u32 s{sA}, s{sA}, s{sB}")
    k(f"s_and_b32 s{sA}, s{sA}, 3")
    k(f"s_lshl_b32 s{sA}, s{sA}, 1")
    if 'N' in DBG: k(f"s_mov_b32 s{sA}, 0")
    k(f"s_lshl_b32 s{sXk}, s{sA}, 7")
    k(f"s_mul_i32 s{sWk}, s{sA}, {64*3072}")
    k("s_waitcnt lgkmcnt(0)")
    mk_srd(k,srdX,sX,2048*512*2)
    mk_srd(k,srdWq,sWQ,512*1536*2)
    def dma_x_l(S):
        L=[]; slot=S%NXS
        for i in range(2):
            g=[]
            if i==0:
                if S>0:
                    g.append((f"s_add_u32 s{sXk}, s{sXk}, 128",None))
                    g.append((f"s_and_b32 s{sXk}, s{sXk}, 0x3ff",None))
                g.append((f"s_add_u32 s{sXc}, s{sX0}, s{sXk}",None))
            g+=[(f"s_add_u32 m0, s{sMx}, {slot*XSL+i*1024}",None),("s_nop 0",None),
                (f"buffer_load_dwordx4 v{vXg+i}, s[{srdX}:{srdX+3}], s{sXc} offen lds",f"x{S}")]
            L.append(g)
        return L
    def dma_w_l(S):
        slot=S%NWS; L=[]
        for i in range(3):
            g=[]
            if i==0:
                if S>0:
                    g.append((f"s_add_u32 s{sWk}, s{sWk}, {64*3072}",None))
                    g.append((f"s_cmp_eq_u32 s{sWk}, {512*3072}",None))
                    g.append((f"s_cselect_b32 s{sWk}, 0, s{sWk}",None))
                g.append((f"s_add_u32 s{sWc}, s{sWo_}, s{sWk}",None))
            g.append((f"s_add_u32 m0, s{sMw}, {slot*WSL+i*1024}",None))
            g.append(("s_nop 0",None))
            g.append((f"buffer_load_dwordx4 v{vWg+i}, s[{srdWq}:{srdWq+3}], s{sWc} offen lds",f"w{S}"))
            L.append(g)
        return L
    def emit_g(g):
        for (t,tag) in g: k(t,tag=tag)
    def dma_x(S):
        for g in dma_x_l(S): emit_g(g)
    def dma_w(S):
        for g in dma_w_l(S): emit_g(g)
    dma_x(0); dma_w(0)
    if XW1=='pro': dma_x(1); dma_w(1)
    if 1 not in MK.values(): st.mark(k,1)
    gx=V(8,4); gw=V(8,4); vGa=V(); vGw=V()
    k(f"v_and_b32 v{vt}, 31, v{vL}")
    k(f"v_lshlrev_b32 v{vGw}, 5, v{vt}")
    k(f"v_lshrrev_b32 v{vt}, 5, v{vL}")
    k(f"v_lshl_add_u32 v{vGa}, v{vt}, 10, v{vGw}")
    k(f"s_lshl_b32 s{sA}, s{sTT}, 7")
    k(f"s_and_b32 s{sB}, s{sHQ}, 7")
    k(f"s_lshl_b32 s{sB}, s{sB}, 4")
    k(f"s_add_u32 s{sA}, s{sA}, s{sB}")
    k(f"s_lshl_b32 s{sB}, s{sW}, 1")
    k(f"s_add_u32 s{sGo}, s{sA}, s{sB}")
    k(f"global_load_dwordx4 v[{gw}:{gw+3}], v{vGw}, s[{sGW}:{sGW+1}]")
    k(f"global_load_dwordx4 v[{gw+4}:{gw+7}], v{vGw}, s[{sGW}:{sGW+1}] offset:16")
    mk_srd(k,srdDBG,sDBG,256)
    mk_srd(k,srdT,sWPHI,32*512)
    mk_srd(k,srdWS,sWS,WS_SIZE)
    vZ=V(); vL16=V(); vOne=V(); sR=3
    k(f"v_mov_b32 v{vZ}, 0")
    k(f"v_lshlrev_b32 v{vL16}, 4, v{vL}")
    k(f"s_lshl_b32 s{sT}, s{sHP}, 10")
    k(f"s_lshl_b32 s{sA}, s{sHG}, 10")
    k(f"s_add_u32 m0, s{sA}, {L_WPHI}")
    k(f"s_lshl_b32 s{sA}, s{sHP}, 2")
    k(f"buffer_load_dwordx4 v{vL16}, s[{srdT}:{srdT+3}], s{sT} offen lds", tag="wphi")
    if fused: rel_read_rare(k,name,"A",vZ)
    k(f"s_mov_b32 s{sL2E}, {LOG2E:#x}")
    k(f"s_mov_b32 s{sL2E+1}, {LOG2E:#x}")
    k(f"s_mov_b32 s{sMaskLo}, 0x0000ffff")
    k(f"s_mov_b32 s{sMaskLo+1}, 0x0000ffff")
    k(f"s_or_b32 s{sA}, s{sTT}, s{sTBW}")
    k(f"s_cmp_eq_u32 s{sA}, 0")
    k(f"s_cselect_b32 s{sFirst}, 1, 0")
    vM=V(); vH=V()
    k(f"v_and_b32 v{vM}, 31, v{vL}")
    k(f"v_lshrrev_b32 v{vH}, 5, v{vL}")
    vXr=V(4); vWr=V()
    k(f"v_lshrrev_b32 v{vt}, 1, v{vM}")
    k(f"v_and_b32 v{vt}, 7, v{vt}")
    k(f"v_xor_b32 v{vt}, v{vt}, v{vH}")
    k(f"v_lshlrev_b32 v{vt}, 4, v{vt}")
    k(f"v_lshl_add_u32 v{vXr}, v{vM}, 7, v{vt}")
    k(f"s_lshl_b32 s{sA}, s{sTBW}, 12")
    k(f"s_add_u32 s{sA}, s{sA}, {L_XR}")
    k(f"v_add_u32 v{vXr}, s{sA}, v{vXr}")
    for ks in range(1,4): k(f"v_xor_b32 v{vXr+ks}, {ks<<5}, v{vXr}")
    k(f"v_bfe_u32 v{vt}, v{vL}, 2, 2")
    k(f"v_lshl_add_u32 v{vt2}, v{vH}, 3, v{vt}")
    k(f"v_mul_u32_u24 v{vWr}, 384, v{vt2}")
    k(f"v_bfe_u32 v{vt2}, v{vL}, 4, 1")
    k(f"v_lshlrev_b32 v{vt2}, 5, v{vt2}")
    k(f"v_and_b32 v{vt3}, 3, v{vL}")
    k(f"v_lshl_add_u32 v{vt2}, v{vt3}, 3, v{vt2}")
    k(f"s_lshl_b32 s{sA}, s{sHG}, 6")
    k(f"v_add_u32 v{vt2}, s{sA}, v{vt2}")
    k(f"v_lshrrev_b32 v{vt}, 1, v{vt}")
    k(f"v_lshlrev_b32 v{vt}, 6, v{vt}")
    k(f"v_xor_b32 v{vt2}, v{vt2}, v{vt}")
    k(f"v_add_u32 v{vWr}, v{vWr}, v{vt2}")
    k(f"v_add_u32 v{vWr}, {L_WR}, v{vWr}")
    vWr2=V()
    k(f"v_add_u32 v{vWr2}, {2*WSL}, v{vWr}")
    I=V(8,4)
    for s in range(2):
        k(f"v_lshlrev_b32 v{vt}, 4, v{vH}")
        k(f"v_sub_u32 v{vt}, v{vM}, v{vt}")
        if s: k(f"v_subrev_u32 v{vt}, 8, v{vt}")
        k(f"v_and_b32 v{vt2}, 1, v{vt}")
        k(f"v_lshlrev_b32 v{vt2}, 4, v{vt2}")
        k(f"v_mov_b32 v{vt3}, 0x3f80")
        k(f"v_lshlrev_b32 v{vt2}, v{vt2}, v{vt3}")
        k(f"v_lshrrev_b32 v{vt}, 1, v{vt}")
        for u in range(4):
            k(f"v_cmp_eq_u32 vcc, {u}, v{vt}")
            k(f"v_cndmask_b32 v{I+4*s+u}, 0, v{vt2}, vcc")
    z4=V(4,4)
    for u in range(4): k(f"v_mov_b32 v{z4+u}, 0")
    accQ=V(16,4); accK=V(16,4); accV=V(16,4)
    F=[V(16,4),V(16,4),V(16,4)]
    def reads_l(j):
        f=F[j%3]; S=j>>2; ks=j&3
        if 'R' in DBG: return []
        L=[f"ds_read_b128 v[{f}:{f+3}], v{vXr+ks} offset:{(S%NXS)*XSL}"]
        for seg in range(3):
            for half in range(2):
                L.append(f"ds_read_b64_tr_b16 v[{f+4+4*seg+2*half}:{f+5+4*seg+2*half}], v{vWr2 if S%NWS==2 else vWr} offset:{(S%NWS%2)*WSL+ks*16*384+half*4*384+seg*128}")
        return L
    def reads(j):
        for l in reads_l(j): k(l)
    RSPLIT=eval(os.environ.get('RSPLIT','(2,3,2)'))
    def mfmas(j, fill=(), rd=()):
        f=F[j%3]; fill=list(fill); rd=list(rd)
        c=lambda a: "0" if j==0 else f"v[{a}:{a+15}]"
        M=[f"v_mfma_f32_32x32x16_bf16 v[{accQ}:{accQ+15}], v[{f+4}:{f+7}], v[{f}:{f+3}], {c(accQ)}",
           f"v_mfma_f32_32x32x16_bf16 v[{accK}:{accK+15}], v[{f+8}:{f+11}], v[{f}:{f+3}], {c(accK)}",
           f"v_mfma_f32_32x32x16_bf16 v[{accV}:{accV+15}], v[{f}:{f+3}], v[{f+12}:{f+15}], {c(accV)}"]
        for n,m in enumerate(M):
            if SPM=='1' and n==0: k("s_setprio 1")
            if 'M' not in DBG: k(m)
            if SPM=='1' and n==2: k("s_setprio 0")
            if SPM=='2': k("s_setprio 1") if n==2 else None
            for _ in range(RSPLIT[n]):
                if rd: k(rd.pop(0))
            if fill: emit_g(fill.pop(0))
        for l in rd: k(l)
        for g in fill: emit_g(g)
    gs=V(); vgt=V(); vgt2=V()
    def gate_code():
        k(f"v_mov_b32 v{gs}, 0")
        for u in range(8): k(f"v_dot2c_f32_bf16 v{gs}, v{gx+u}, v{gw+u}")
        for n in (8,4,2,1): k(f"v_add_f32_dpp v{gs}, v{gs}, v{gs} row_ror:{n} row_mask:0xf bank_mask:0xf")
        k(f"v_add_f32_dpp v{gs}, v{gs}, v{gs} row_bcast:15 row_mask:0xa bank_mask:0xf")
        k(f"v_cvt_pk_bf16_f32 v{gs}, v{gs}, v{gs}")
        k(f"v_lshlrev_b32 v{gs}, 16, v{gs}")
        k(f"v_mul_f32 v{gs}, {NLOG2E:#x}, v{gs}")
        k(f"v_exp_f32 v{gs}, v{gs}")
        k(f"v_add_f32 v{gs}, 1.0, v{gs}")
        k(f"v_rcp_f32 v{gs}, v{gs}")
        k(f"v_cvt_pk_bf16_f32 v{gs}, v{gs}, v{gs}")
        k(f"v_lshlrev_b32 v{gs}, 16, v{gs}")
        k(f"v_lshlrev_b32 v{vgt}, 2, v{vH}")
        k(f"v_bfe_u32 v{vgt2}, v{vL}, 4, 1")
        k(f"v_subrev_u32 v{vgt2}, 1, v{vgt2}")
        k(f"v_and_b32 v{vgt2}, 0x80000000, v{vgt2}")
        k(f"v_or_b32 v{vgt}, v{vgt}, v{vgt2}")
        k(f"s_lshl_b32 s{sGt}, s{sGo}, 2")
        k(f"s_add_u32 s{sGt}, s{sGt}, {WS_G}")
        k(f"buffer_store_dword v{gs}, v{vgt}, s[{srdWS}:{srdWS+3}], s{sGt} offen {STF}")
    wf=V(8,4); vPhA=V(); vSg=V(); ones=V(); vRb=V(2); vSt=V(2); vRa=V(8); vFl=V()
    pre=[]
    P=lambda t: pre.append(t)
    P(f"v_bfe_u32 v{vt}, v{vL}, 2, 2")
    P(f"v_lshl_add_u32 v{vt}, v{vH}, 2, v{vt}")
    P(f"v_lshlrev_b32 v{vPhA}, 5, v{vt}")
    P(f"v_bfe_u32 v{vt2}, v{vL}, 4, 1")
    P(f"v_lshl_add_u32 v{vPhA}, v{vt2}, 4, v{vPhA}")
    P(f"v_bfe_u32 v{vt2}, v{vL}, 1, 1")
    P(f"v_lshl_add_u32 v{vPhA}, v{vt2}, 3, v{vPhA}")
    P(f"s_lshl_b32 s{sA}, s{sHG}, 10")
    P(f"v_add_u32 v{vPhA}, s{sA}, v{vPhA}")
    for hd in range(2):
        P(f"ds_read_b64_tr_b16 v[{wf+4*hd}:{wf+4*hd+1}], v{vPhA} offset:{L_WPHI+512*hd}")
        P(f"ds_read_b64_tr_b16 v[{wf+4*hd+2}:{wf+4*hd+3}], v{vPhA} offset:{L_WPHI+512*hd+256}")
    P(f"v_bfe_u32 v{vSg}, v{vL}, 2, 1")
    P(f"v_mul_u32_u24 v{vSg}, 0x8000, v{vSg}")
    P(f"v_lshl_or_b32 v{vSg}, v{vSg}, 16, v{vSg}")
    P(f"v_mov_b32 v{ones}, 0x3f803f80")
    P(f"v_and_b32 v{vt}, 15, v{vM}")
    P(f"v_lshlrev_b32 v{vt}, 4, v{vt}")
    P(f"v_lshl_add_u32 v{vt}, v{vH}, 9, v{vt}")
    P(f"v_lshlrev_b32 v{vt2}, 5, v{vH}")
    P(f"v_add_u32 v{vt2}, 2048, v{vt2}")
    P(f"s_mul_i32 s{sA}, s{sTBW}, 4352")
    P(f"s_mul_i32 s{sB}, s{sHG}, {2*WSL}")
    P(f"s_add_u32 s{sA}, s{sA}, s{sB}")
    P(f"s_add_u32 s{sA}, s{sA}, {L_WR}")
    P(f"v_cndmask_b32 v{vRb}, v{vt2}, v{vt}, s[{sMaskLo}:{sMaskLo+1}]")
    P(f"v_cndmask_b32 v{vRb+1}, v{vt}, v{vt2}, s[{sMaskLo}:{sMaskLo+1}]")
    P(f"v_add_u32 v{vRb}, s{sA}, v{vRb}")
    P(f"v_add_u32 v{vRb+1}, s{sA}, v{vRb+1}")
    P(f"v_mov_b32 v{vt}, 256")
    P(f"v_mov_b32 v{vt2}, 16")
    P(f"v_cndmask_b32 v{vSt}, v{vt2}, v{vt}, s[{sMaskLo}:{sMaskLo+1}]")
    P(f"v_cndmask_b32 v{vSt+1}, v{vt}, v{vt2}, s[{sMaskLo}:{sMaskLo+1}]")
    for hd in range(2):
        for i in range(4):
            c=4*(i&1)+(i>>1)
            P(f"v_mad_u32_u24 v{vRa+4*hd+i}, v{vSt+hd}, {c}, v{vRb+hd}")
    for u in range(8): P(f"v_xor_b32 v{wf+u}, v{wf+u}, v{vSg}")
    P(f"s_mul_i32 s{sA}, s{sHP}, {2*KVH}")
    P(f"s_add_u32 s{sA}, s{sA}, {WS_KV}")
    P(f"s_add_u32 s{srdKV}, s{sWS}, s{sA}")
    P(f"s_addc_u32 s{srdKV+1}, s{sWS+1}, 0")
    P(f"s_and_b32 s{srdKV+1}, s{srdKV+1}, 0xffff")
    P(f"s_mov_b32 s{srdKV+2}, {2*KVH}")
    P(f"s_mov_b32 s{srdKV+3}, 0x20000")
    P(f"s_lshl_b32 s{sE}, s{sHP}, 2")
    P(f"s_add_u32 s{sE}, s{sE}, 64")
    P(f"s_lshl_b32 s{sPhiO}, s{sTT}, 2")
    P(f"s_add_u32 s{sPhiO}, s{sPhiO}, s{sTBW}")
    P(f"s_lshl_b32 s{sPhiO}, s{sPhiO}, 16")
    P(f"s_lshl_b32 s{sA}, s{sHP}, 12")
    P(f"s_add_u32 s{sPhiO}, s{sPhiO}, s{sA}")
    vE=vRb; vEl=vRb+1
    P(f"v_and_b32 v{vE}, 255, v0")
    P(f"v_lshlrev_b32 v{vE}, 2, v{vE}")
    P(f"s_mul_i32 s{sB}, s{sHG}, {2*WSL}")
    P(f"v_add_u32 v{vEl}, s{sB}, v{vE}")
    late=[t for t in pre if t.startswith("ds_read_b64_tr_b16") or t.startswith(f"v_xor_b32 v{wf}") or any(t.startswith(f"v_xor_b32 v{wf+u},") for u in range(8))]
    early=[t for t in pre if t not in late]
    if 'L' in DBG: late=pre; early=[]
    for t in early: k(t)
    pre=late
    if PRIOA:
        k(f"s_cmp_eq_u32 s{sHG}, {PRIOA[0]}")
        k(f"s_cbranch_scc0 L_{name}_A_np")
        k(f"s_setprio 1")
        k.label(f"L_{name}_A_np")
    pend=[]
    for j in range(32):
        S=j>>2
        if j%4==0:
            k.wait_tag(f"w{S}")
            k.wait_tag(f"x{S}")
            k.wait_lg(0)
            k("s_barrier")
            if S in MK: st.mark(k,MK[S])
        if j<2 or 'I' in DBG: reads(j)
        if j==0 and XW1!='pro':
            dma_w(1); dma_x(1)
        if j%4==0 and S+2<8 and 'D' not in DBG:
            pend+=dma_w_l(S+2)+dma_x_l(S+2)
        if j>1:
            take=pend[:2]; pend=pend[2:]
            mfmas(j-2, take, [] if 'I' in DBG else reads_l(j))
        if j>=6:
            n=0 if 'Q' in DBG else 4
            while pre and n>0:
                t=pre.pop(0); k(t); n-=1
                if t.startswith("s_add_u32 s{}".format(srdKV)): k(pre.pop(0))
        if j==2:
            k(f"s_cmp_eq_u32 s{sFirst}, 1")
            k(f"s_cbranch_scc1 L_{name}_A_ev4")
            k.label(f"L_{name}_A_ev4ret")
            vm_ev4=k.vm_total
        if j==GJ:
            k(f"s_lshl_b32 s{sT}, s{sGo}, 10")
            k(f"buffer_load_dwordx4 v[{gx}:{gx+3}], v{vGa}, s[{srdX}:{srdX+3}], s{sT} offen")
            k(f"buffer_load_dwordx4 v[{gx+4}:{gx+7}], v{vGa}, s[{srdX}:{srdX+3}], s{sT} offen offset:16")
        if GATE=='loop' and j==GJ+8: gate_code()
        if j==13:
            vm_ev8=k.vm_total
            k(f"s_cmp_eq_u32 s{sFirst}, 1")
            k(f"s_cbranch_scc1 L_{name}_A_ev8")
            k.label(f"L_{name}_A_ev8ret")
        if j==28:
            assert 'Q' in DBG or not pre, len(pre)
            vm_poll0=k.vm_total
            k(f"s_cmp_eq_u32 s{sTBW}, 0")
            k(f"s_cbranch_scc1 L_{name}_A_poll0")
            k.label(f"L_{name}_A_poll0ret")
    assert not pend
    for t in pre: k(t)
    mfmas(30); mfmas(31)
    fa=F[2]; fb=F[0]
    kb=fa; qb=fa+8; vb=fb
    for u in range(8): k(f"v_cvt_pk_bf16_f32 v{kb+u}, v{accK+2*u}, v{accK+2*u+1}")
    pkA=V(16,4); pkB=V(16,4)
    k(f"v_mfma_f32_32x32x16_bf16 v[{pkA}:{pkA+15}], v[{wf}:{wf+3}], v[{kb}:{kb+3}], 0")
    k(f"v_mfma_f32_32x32x16_bf16 v[{pkB}:{pkB+15}], v[{wf+4}:{wf+7}], v[{kb+4}:{kb+7}], 0")
    for u in range(8): k(f"v_cvt_pk_bf16_f32 v{qb+u}, v{accQ+2*u}, v{accQ+2*u+1}")
    pqA=accK; pqB=accQ
    k(f"v_mfma_f32_32x32x16_bf16 v[{pqA}:{pqA+15}], v[{wf}:{wf+3}], v[{qb}:{qb+3}], 0")
    k(f"v_mfma_f32_32x32x16_bf16 v[{pqB}:{pqB+15}], v[{wf+4}:{wf+7}], v[{qb+4}:{qb+7}], 0")
    for u in range(8): k(f"v_cvt_pk_bf16_f32 v{vb+u}, v{accV+2*u}, v{accV+2*u+1}")
    vA_=accV; vB_=accV+8
    for u in range(8): k(f"v_cndmask_b32 v{vA_+u}, v{ones}, v{vb+u}, s[{sMaskLo}:{sMaskLo+1}]")
    for u in range(8): k(f"v_cndmask_b32 v{vB_+u}, v{vb+u}, v{ones}, s[{sMaskLo}:{sMaskLo+1}]")
    phA=V(8,4); phB=V(8,4); tmp=V(8,2)
    def q_part():
        pq_o=gx
        assert gw==gx+8
        softmax2(k,[(pqA,pq_o),(pqB,pq_o+8)],tmp,sL2E)
        for q in range(4):
            k(f"buffer_store_dwordx4 v[{pq_o+4*q}:{pq_o+4*q+3}], v{vL16}, s[{srdWS}:{srdWS+3}], s{sPhiO} offen offset:{q*1024} {STF}")
    if QORD=='first':
        assert GATE=='loop'
        q_part()
    softmax2(k,[(pkA,phA),(pkB,phB)],tmp,sL2E)
    TA=pkA; TB=pkB
    k(f"v_mfma_f32_32x32x16_bf16 v[{TA}:{TA+15}], v[{phA}:{phA+3}], v[{I}:{I+3}], 0")
    k(f"v_mfma_f32_32x32x16_bf16 v[{TB}:{TB+15}], v[{phB}:{phB+3}], v[{I}:{I+3}], 0")
    k(f"v_mfma_f32_32x32x16_bf16 v[{TA}:{TA+15}], v[{phA+4}:{phA+7}], v[{I+4}:{I+7}], v[{TA}:{TA+15}]")
    k(f"v_mfma_f32_32x32x16_bf16 v[{TB}:{TB+15}], v[{phB+4}:{phB+7}], v[{I+4}:{I+7}], v[{TB}:{TB+15}]")
    if GATE=='epi': gate_code()
    ptA=phA; ptB=phB
    for u in range(8): k(f"v_cvt_pk_bf16_f32 v{ptA+u}, v{TA+2*u}, v{TA+2*u+1}")
    for u in range(8): k(f"v_cvt_pk_bf16_f32 v{ptB+u}, v{TB+2*u}, v{TB+2*u+1}")
    kvA=TA; kvB=TB
    k(f"v_mfma_f32_32x32x16_bf16 v[{kvA}:{kvA+15}], v[{ptA}:{ptA+3}], v[{vA_}:{vA_+3}], 0")
    k(f"v_mfma_f32_32x32x16_bf16 v[{kvB}:{kvB+15}], v[{ptB}:{ptB+3}], v[{vB_}:{vB_+3}], 0")
    k(f"v_mfma_f32_32x32x16_bf16 v[{kvA}:{kvA+15}], v[{ptA+4}:{ptA+7}], v[{vA_+4}:{vA_+7}], v[{kvA}:{kvA+15}]")
    k(f"v_mfma_f32_32x32x16_bf16 v[{kvB}:{kvB+15}], v[{ptB+4}:{ptB+7}], v[{vB_+4}:{vB_+7}], v[{kvB}:{kvB+15}]")
    for hd,kvr in ((0,kvA),(1,kvB)):
        for i in range(4):
            k(f"ds_write_b128 v{vRa+4*hd+i}, v[{kvr+4*i}:{kvr+4*i+3}] offset:{hd*KVH}")
    if QORD=='mid': q_part()
    vm_poll=k.vm_total
    k(f"s_cmp_eq_u32 s{sTBW}, 0")
    k(f"s_cbranch_scc1 L_{name}_A_poll")
    k.label(f"L_{name}_A_flagok")
    k.barrier()
    rd=accV; rd2=fb
    for u in range(5):
        for w in range(4):
            k(f"ds_read_b32 v{rd+4*u+w if u<4 else rd2+w}, v{vEl} offset:{L_WR+w*4352+1024*u}")
    for u in range(5):
        b=rd+4*u if u<4 else rd2
        k(f"v_add_f32 v{b}, v{b}, v{b+1}")
        k(f"v_add_f32 v{b+2}, v{b+2}, v{b+3}")
        k(f"v_add_f32 v{b}, v{b}, v{b+2}")
        if u<4: k(f"buffer_atomic_add_f32 v{b}, v{vE}, s[{srdKV}:{srdKV+3}], 0 offen offset:{1024*u} sc1")
        else:
            k(f"v_add_u32 v{vt}, 4096, v{vE}")
            k(f"buffer_atomic_add_f32 v{b}, v{vt}, s[{srdKV}:{srdKV+3}], 0 offen sc1")
    if QORD=='last': q_part()
    if fused: k(f"s_branch L_{name}_F")
    else:
        st.finish(k,sWS,sW,accQ)
        k("s_endpgm")
    k.auto=False
    if fused: rel_read_block(k,name,"A",vZ,srdWS)
    k.label(f"L_{name}_A_ev4")
    k(f"s_mul_i32 s{sR}, s{sHP}, {2*KVH}")
    k(f"s_add_u32 s{sR}, s{sR}, {WS_KV}")
    for u in range(5):
        if u<4:
            k(f"buffer_store_dwordx4 v[{z4}:{z4+3}], v{vL16}, s[{srdWS}:{srdWS+3}], s{sR} offen offset:{u*1024} sc1")
        else:
            k(f"s_add_u32 s{sR}, s{sR}, 4096")
            k(f"s_mov_b64 exec, 0xffff")
            k(f"buffer_store_dwordx4 v[{z4}:{z4+3}], v{vL16}, s[{srdWS}:{srdWS+3}], s{sR} offen sc1")
            k(f"s_mov_b64 exec, -1")
    k(f"s_branch L_{name}_A_ev4ret")
    k.label(f"L_{name}_A_ev8")
    k(f"s_waitcnt vmcnt({vm_ev8-vm_ev4})")
    k(f"v_mov_b32 v{vOne}, 1")
    k(f"s_lshl_b32 s{sR}, s{sHP}, 2")
    k(f"s_add_u32 s{sR}, s{sR}, 64")
    k(f"s_mov_b64 exec, 1")
    k(f"buffer_store_dword v{vOne}, v{vZ}, s[{srdDBG}:{srdDBG+3}], s{sR} offen sc1")
    k(f"s_mov_b64 exec, -1")
    k(f"s_branch L_{name}_A_ev8ret")
    k.label(f"L_{name}_A_poll0")
    k(f"buffer_load_dword v{vFl}, v{vZ}, s[{srdDBG}:{srdDBG+3}], s{sE} offen sc1")
    k(f"s_branch L_{name}_A_poll0ret")
    k.label(f"L_{name}_A_poll")
    k(f"s_mov_b32 s{sTick}, 0")
    k(f"s_waitcnt vmcnt({vm_poll-vm_poll0})")
    k.label(f"L_{name}_A_poll1")
    k(f"v_readfirstlane_b32 s{sR}, v{vFl}")
    k("s_nop 0")
    k(f"s_cmp_lg_u32 s{sR}, 0")
    k(f"s_cbranch_scc1 L_{name}_A_flagok")
    k(f"s_add_u32 s{sTick}, s{sTick}, 1")
    k(f"s_cmp_ge_u32 s{sTick}, 0x40000")
    k(f"s_cbranch_scc1 L_{name}_A_flagok")
    k("s_sleep 1")
    k(f"buffer_load_dword v{vFl}, v{vZ}, s[{srdDBG}:{srdDBG+3}], s{sE} offen sc1")
    k("s_waitcnt vmcnt(0)")
    k(f"s_branch L_{name}_A_poll1")
    k.auto=True
    return V.hi
```
